```python
import torch

def _softmax(x, axis=-1):
    return torch.softmax(x, dim=axis)
def _gelu(x):
    return torch.nn.functional.gelu(x, approximate="tanh")
def _silu(x):
    return torch.nn.functional.silu(x)
def _sigmoid(x):
    return torch.sigmoid(x)
def _layernorm(x, axis=-1, eps=1e-5):
    m = x.mean(dim=axis, keepdim=True)
    v = x.var(dim=axis, keepdim=True, unbiased=False)
    return (x - m) / torch.sqrt(v + eps)
def _scatter_add(tgt, idx, src, axis=0):
    return tgt.clone().index_add_(axis, idx, src)
def _segment_sum(src, seg, n):
    out = torch.zeros((n,) + src.shape[1:], dtype=src.dtype)
    return out.index_add_(0, seg, src)
def _pad(x, pw):
    flat = tuple(v for pair in reversed(pw) for v in pair)
    return torch.nn.functional.pad(x, flat)

kernel_name = 'sequential_preLN__linear_attn_block__swiglu_ffn__prompt'

def setup_inputs():

    _w = (lambda a: (lambda t: t.to(torch.bfloat16) if t.is_floating_point() else t)(torch.as_tensor(a)))
    def _A_setup():
        B, S, D = 1, 2048, 512
        return {
            "x": _w((lambda *s: torch.randn(*s, dtype=torch.bfloat16) * 0.05)(B, S, D)),
            "wqkv": _w((lambda *s: torch.randn(*s, dtype=torch.bfloat16) * 0.05)(D, 3 * D)),
            "wo": _w((lambda *s: torch.randn(*s, dtype=torch.bfloat16) * 0.05)(D, D)),
        }
    _A_in = _A_setup()

    def _B_setup():
        B, S, D, F = 1, 2048, 512, 1792
        return {
            "x": _w((lambda *s: torch.randn(*s, dtype=torch.bfloat16) * 0.05)(B, S, D)),
            "w_gate": _w((lambda *s: torch.randn(*s, dtype=torch.bfloat16) * 0.05)(D, F)),
            "w_up": _w((lambda *s: torch.randn(*s, dtype=torch.bfloat16) * 0.05)(D, F)),
            "w_down": _w((lambda *s: torch.randn(*s, dtype=torch.bfloat16) * 0.05)(F, D)),
        }
    _B_in = _B_setup()

    return {
        "A_x": _A_in["x"],
        "A_wqkv": _A_in["wqkv"],
        "A_wo": _A_in["wo"],
        "B_x": _B_in["x"],
        "B_w_gate": _B_in["w_gate"],
        "B_w_up": _B_in["w_up"],
        "B_w_down": _B_in["w_down"],
    }

def reference(A_x, A_wqkv, A_wo, B_x, B_w_gate, B_w_up, B_w_down):
    def _A_ref(x, wqkv, wo):
        B, S, D = x.shape
        H = 32; Dh = D // H
        qkv = (lambda x, *d: x.permute(*d))((x @ wqkv).reshape(B, S, 3, H, Dh), 2, 0, 3, 1, 4)
        q, k, v = qkv[0], qkv[1], qkv[2]
        phi = lambda t: torch.where(t > 0, t + 1, torch.exp(t)) + 1e-6
        pq, pk = phi(q), phi(k)
        kv = torch.einsum("bhsd,bhse->bhde", pk, v)
        z = torch.einsum("bhsd->bhd", pk)
        num = torch.einsum("bhqd,bhde->bhqe", pq, kv)
        den = torch.einsum("bhqd,bhd->bhq", pq, z)[..., None] + 1e-6
        o = num / den
        return (lambda x, *d: x.permute(*d))(o, 0, 2, 1, 3).reshape(B, S, D) @ wo

    def _B_ref(x, w_gate, w_up, w_down):
        g = _silu(x @ w_gate)
        u = x @ w_up
        return (g * u) @ w_down

    x = A_x
    h = x + _A_ref(_layernorm(x, axis=-1), A_wqkv, A_wo)
    h2 = h + _B_ref(_layernorm(h, axis=-1), B_w_gate, B_w_up, B_w_down)
    return h2
```

```python
import re

class Asm:
    def __init__(self):
        self.lines = []
    def __call__(self, s, *a):
        for l in s.split("\n"):
            l = l.strip()
            if l: self.lines.append(l)
    def label(self, n): self.lines.append(n + ":")
    def c(self, s): self.lines.append("; " + s)
    def text(self): return "\n".join(("" if l.endswith(":") or l.startswith(".") or l.startswith(";") else "  ") + l for l in self.lines) + "\n"

def v(i, n=1): return f"v{i}" if n == 1 else f"v[{i}:{i+n-1}]"
def a(i, n=1): return f"a{i}" if n == 1 else f"a[{i}:{i+n-1}]"
def s(i, n=1): return f"s{i}" if n == 1 else f"s[{i}:{i+n-1}]"

REG = re.compile(r"^(-|abs\()?([vas])(?:(\d+)|\[(\d+):(\d+)\])\)?$")
def regs(tok):
    tok = tok.strip()
    if tok == "vcc": return {("s", 106), ("s", 107)}
    if tok == "exec": return {("s", 126), ("s", 127)}
    if tok == "m0": return {("s", 124)}
    if tok in ("vcc_lo",): return {("s",106)}
    m = REG.match(tok)
    if not m: return set()
    k = m.group(2)
    if m.group(3) is not None: return {(k, int(m.group(3)))}
    return {(k, i) for i in range(int(m.group(4)), int(m.group(5)) + 1)}

TRANS = ("v_exp_f32", "v_log_f32", "v_rcp_f32", "v_rsq_f32", "v_sqrt_f32", "v_sin_f32", "v_cos_f32")

class I:
    pass

def parse(line):
    line = line.split(";")[0].strip()
    if not line or line.endswith(":") or line.startswith("."): return None
    parts = line.split(None, 1)
    op = parts[0]; rest = parts[1] if len(parts) > 1 else ""
    ops = []; cur = ""; depth = 0
    for ch in rest:
        if ch in "[(": depth += 1
        if ch in "])": depth -= 1
        if ch == "," and depth == 0: ops.append(cur.strip()); cur = ""
        else: cur += ch
    if cur.strip(): ops.append(cur.strip())
    mods = ""
    if ops:
        lp = ops[-1].split(None, 1)
        ops[-1] = lp[0]
        if len(lp) > 1: mods = lp[1]
    i = I(); i.op = op; i.ops = ops; i.mods = mods; i.line = line
    i.w = set(); i.r = set(); i.kind = "other"
    b = re.sub(r"_(e32|e64|dpp|sdwa)$", "", op); i.b = b
    if op.startswith("v_mfma"):
        i.kind = "mfma"; i.w = regs(ops[0]); i.A = regs(ops[1]); i.B = regs(ops[2]); i.C = regs(ops[3]); i.r = i.A | i.B | i.C
        i.passes = 8 if "32x32x16" in op else (4 if "16x16x32" in op else None)
        assert i.passes
    elif op.startswith("v_cmp"):
        i.kind = "valu"; i.w = regs(ops[0]); i.r = set().union(*[regs(o) for o in ops[1:]])
    elif op.startswith("v_readfirstlane") or op.startswith("v_readlane"):
        i.kind = "valu"; i.w = regs(ops[0]); i.r = set().union(*[regs(o) for o in ops[1:]])
    elif op.startswith("v_permlane") and "swap" in op:
        i.kind = "valu"; i.w = regs(ops[0]) | regs(ops[1]); i.r = set(i.w)
    elif op.startswith("v_"):
        i.kind = "valu"; i.w = regs(ops[0]); srcs = ops[1:]
        if b in ("v_add_co_u32", "v_addc_co_u32", "v_sub_co_u32"):
            i.w |= regs(ops[1]); srcs = ops[2:]
        i.r = set().union(*[regs(o) for o in srcs]) if srcs else set()
        if b in ("v_fmac_f32", "v_dot2c_f32_bf16", "v_pk_fmac_f16", "v_writelane_b32"): i.r |= regs(ops[0])
        if b == "v_cndmask_b32" and len(ops) == 3: i.r |= regs("vcc")
    elif op.startswith("buffer_load") or op.startswith("buffer_atomic") or op.startswith("buffer_store"):
        i.kind = "vmem"
        lds = "lds" in mods.split() or (len(ops) == 3 and "lds" in (ops[-1] + " " + mods).split())
        i.lds = lds
        if lds:
            i.r = regs(ops[0]) | regs(ops[1]) | regs(ops[2]) | regs("m0")
        elif op.startswith("buffer_load"):
            i.w = regs(ops[0]); i.r = regs(ops[1]) | regs(ops[2]) | regs(ops[3])
        else:
            i.r = regs(ops[0]) | regs(ops[1]) | regs(ops[2]) | regs(ops[3]); i.data = regs(ops[0])
            if "sc0" in mods.split() and op.startswith("buffer_atomic"): i.w = regs(ops[0])
    elif op.startswith("global_load") or op.startswith("global_store") or op.startswith("global_atomic"):
        i.kind = "vmem"; i.lds = False
        if op.startswith("global_load"):
            i.w = regs(ops[0]); i.r = regs(ops[1]) | regs(ops[2])
        elif op.startswith("global_store"):
            i.r = regs(ops[0]) | regs(ops[1]) | regs(ops[2]); i.data = regs(ops[1])
        else:
            if len(ops) == 4: i.w = regs(ops[0]); i.r = regs(ops[1]) | regs(ops[2]) | regs(ops[3])
            else: i.r = regs(ops[0]) | regs(ops[1]) | regs(ops[2])
    elif op.startswith("buffer_inv") or op.startswith("buffer_wbl2"):
        i.kind = "vmem"; i.lds = False
    elif op.startswith("ds_"):
        i.kind = "ds"
        if op.startswith("ds_read") or op.startswith("ds_bpermute") or op.startswith("ds_swizzle"):
            i.w = regs(ops[0]); i.r = set().union(*[regs(o) for o in ops[1:]])
        else:
            i.r = set().union(*[regs(o) for o in ops])
    elif op == "s_getpc_b64":
        i.kind = "salu"; i.w = regs(ops[0])
    elif op.startswith("s_load") or op.startswith("s_memtime") or op.startswith("s_memrealtime"):
        i.kind = "smem"; i.w = regs(ops[0]); i.r = set().union(*[regs(o) for o in ops[1:]]) if len(ops) > 1 else set()
    elif op == "s_nop": i.kind = "nop"; i.n = int(ops[0], 0) + 1
    elif op == "s_waitcnt": i.kind = "wait"
    elif op.startswith("s_"):
        i.kind = "salu"
        if op.startswith("s_cmp") or op.startswith("s_cbranch") or op in ("s_branch", "s_barrier", "s_endpgm", "s_setprio", "s_sleep"):
            i.r = set().union(*[regs(o) for o in ops]) if ops else set()
        else:
            i.w = regs(ops[0]); i.r = set().union(*[regs(o) for o in ops[1:]]) if len(ops) > 1 else set()
            if "saveexec" in op: i.w |= regs("exec")
    else:
        raise Exception("unknown op: " + line)
    return i

def check(lines, name=""):
    ins = []
    for ln in lines:
        i = parse(ln)
        if i is not None: ins.append(i)
        elif ln.endswith(":"):
            m = I(); m.kind = "label"; m.line = ln; m.w = set(); m.r = set(); m.op = "label"; m.b = "label"; ins.append(m)
    errs = []
    def dist(j, k):
        d = 0
        for x in ins[j + 1:k]:
            if x.kind == "label": continue
            d += x.n if x.kind == "nop" else 1
        return d
    vm = []; lg = []
    for k, c in enumerate(ins):
        if c.kind == "label": continue
        if c.op in ("s_endpgm", "s_branch"): vm = []; lg = []
        if c.kind == "wait":
            t = c.line
            m = re.search(r"vmcnt\((\d+)\)", t)
            if m:
                n = int(m.group(1)); vm = vm[len(vm) - n:] if n < len(vm) else vm
                if n == 0: vm = []
            m = re.search(r"lgkmcnt\((\d+)\)", t)
            if m:
                n = int(m.group(1))
                if any(x[2] == "smem" for x in lg) and n != 0: errs.append(f"lgkmcnt({n}) with smem outstanding: {t}")
                lg = lg[len(lg) - n:] if n < len(lg) else lg
                if n == 0: lg = []
        else:
            touched = c.r | c.w
            for (rg, ln, kd) in vm + lg:
                if rg & touched:
                    errs.append(f"[{name}] reg with pending load touched: '{c.line}' vs '{ln}'")
            if c.kind == "vmem":
                vm.append((set(c.w), c.line, "vm"))
                if len(vm) > 63: errs.append(f"[{name}] vmcnt overflow at {c.line}")
            if c.kind == "ds":
                lg.append((set(c.w), c.line, "ds"))
                if len(lg) > 15: pass
            if c.kind == "smem": lg.append((set(c.w), c.line, "smem"))
        back = 0; j = k - 1
        while j >= 0 and back < 24:
            p = ins[j]
            if p.kind == "label": j -= 1; continue
            d = back
            def need(n, why):
                if d < n: errs.append(f"[{name}] hazard {why}: need {n} have {d}: '{p.line}' -> '{c.line}'")
            vw = {r for r in p.w if r[0] in "va"}; sw = {r for r in p.w if r[0] == "s"}
            if p.kind == "valu":
                if c.kind == "mfma" and vw & c.r: need(2, "valu->mfma")
                if p.b in TRANS and c.kind == "valu" and c.b not in TRANS and vw & c.r: need(1, "trans->valu")
                if p.b in TRANS and c.kind in ("mfma",) and vw & c.r: need(2, "trans->mfma")
                if sw and c.kind == "valu" and (sw & c.r):
                    if c.b.startswith("v_readlane") or c.b.startswith("v_writelane"): need(4, "valu sgpr->lane sel")
                    else: need(2, "valu sgpr->valu")
                if sw and c.kind == "vmem" and (sw & c.r): need(5, "valu sgpr->vmem")
                if c.kind == "valu" and (c.b.startswith("v_readfirstlane") or c.b.startswith("v_readlane")) and vw & c.r: need(1, "valu->readlane")
                if c.kind == "valu" and c.b.startswith("v_permlane") and vw & c.r: need(2, "valu->permlane")
                if c.kind == "valu" and c.op.endswith("_dpp") and vw & c.r: need(2, "valu->dpp")
                if p.b.startswith("v_dot2") and c.kind in ("valu", "vmem", "ds", "mfma") and (vw & (c.r | c.w)):
                    same_acc = (c.b == p.b and vw & regs(c.ops[0]) and not (vw & set().union(*[regs(o) for o in c.ops[1:]])))
                    if not same_acc: need(3, "dot->other")
                if regs("exec") & p.w and c.kind == "mfma": need(4, "valu exec->mfma")
            if p.kind == "mfma":
                P = p.passes
                if c.kind == "mfma":
                    if vw & (c.A | c.B): need({4: 8, 8: 12}[P], "mfma D->mfma AB")
                    if vw & c.C and not (c.C == vw and c.passes == P): need({4: 6, 8: 10}[P], "mfma D->mfma C overlap")
                    if vw & c.w and not (c.w == vw) : need({4: 6, 8: 10}[P], "mfma D->mfma D partial")
                if c.kind in ("valu", "vmem", "ds") and vw & (c.r | c.w): need({4: 8, 8: 12}[P], "mfma D->valu/mem")
                if c.kind == "valu" and (p.C & c.w): need({4: 3, 8: 7}[P], "mfma C WAR")
            if p.kind == "salu" and regs("m0") & p.w and c.kind == "vmem" and getattr(c, "lds", False): need(1, "m0->ldsdma")
            if p.kind == "vmem" and hasattr(p, "data") and len(p.data) >= 3 and (p.data & c.w):
                need(2 if c.kind == "valu" else 1, "store data WAR")
            back += p.n if p.kind == "nop" else 1
            j -= 1
    return errs
```

```python
import sys, struct
sys.path.insert(0, "dev")
from asmlib import *

KNAME = "sequential_preLN__linear_attn_block__swiglu_ffn__prompt"
MB = 1 << 20
WS_KVZ = 0;            SZ_KVZ = 32 * 1088
WS_STATS = 0x20000;    SZ_STATS = 2048 * 16 * 8
WS_CSP = 0x80000;      SZ_CSP = 8 * 3584 * 4
WS_PQ = 1 * MB;        SZ_PQ = 2 * MB
WS_H = 3 * MB;         SZ_H = 2 * MB
WS_ACT = 5 * MB;       SZ_ACT = 64 * 112 * 1024
WS_WGU = 13 * MB;      SZ_WGU = 112 * 32 * 1024
WS_WD = 17 * MB;       SZ_WD = 16 * 112 * 1024
WS_WO = 19 * MB;       SZ_WO = 16 * 32 * 1024

def f32(x): return "0x%08x" % struct.unpack("<I", struct.pack("<f", x))[0]
LOG2E = 1.4426950408889634
ONES = "0x3f803f80"

P_X, P_WQKV, P_WO, P_BX, P_WG, P_WU, P_WD, P_OUT, P_DBG, P_WS = 16, 18, 20, 22, 24, 26, 28, 30, 32, 34

def prologue(A, nwg, endl):
    A(f"s_cmp_ge_u32 s2, {nwg}")
    A(f"s_cbranch_scc1 {endl}")
    A("s_load_dwordx16 s[16:31], s[0:1], 0")
    A("s_load_dwordx4 s[32:35], s[0:1], 64")
    A("v_lshrrev_b32 v1, 6, v0")
    A("v_and_b32 v0, 63, v0")
    A("v_readfirstlane_b32 s3, v1")
    A("s_waitcnt lgkmcnt(0)")

def srd(A, d, base, off, size):
    if off:
        A(f"s_add_u32 s{d}, s{base}, {off}")
        A(f"s_addc_u32 s{d+1}, s{base+1}, 0")
    else:
        A(f"s_mov_b32 s{d}, s{base}")
        A(f"s_mov_b32 s{d+1}, s{base+1}")
    A(f"s_mov_b32 s{d+2}, {size}")
    A(f"s_mov_b32 s{d+3}, 0x20000")

def halves_sum(A, r, t):
    A(f"v_mov_b32 v{t}, v{r}")
    A("s_nop 1")
    A(f"v_permlane32_swap_b32 v{r}, v{t}")
    A("s_nop 1")
    A(f"v_add_f32 v{r}, v{r}, v{t}")

def gen_k0(A):
    A.label("k0_kernel")
    prologue(A, 93, "k0_end")
    A("s_cmp_eq_u32 s2, 92")
    A("s_cbranch_scc1 k0_zero")
    A("s_lshl_b32 s4, s2, 2")
    A("s_add_u32 s4, s4, s3")
    A("s_lshl_b32 s5, s3, 14")
    A("v_lshrrev_b32 v2, 3, v0")
    A("v_and_b32 v3, 7, v0")
    A("v_lshlrev_b32 v3, 4, v3")
    A("v_lshlrev_b32 v4, 4, v0")
    A("v_lshrrev_b32 v5, 5, v0")
    A("v_bfe_u32 v6, v0, 2, 2")
    A("v_lshl_add_u32 v5, v5, 2, v6")
    A("v_lshlrev_b32 v5, 7, v5")
    A("v_and_b32 v6, 3, v0")
    A("v_lshl_add_u32 v5, v6, 3, v5")
    A("v_add_u32 v5, s5, v5")
    A("v_bfe_u32 v6, v0, 4, 1")
    A("s_cmp_lt_u32 s4, 224")
    A("s_cbranch_scc1 k0_gu")
    A("s_cmp_lt_u32 s4, 336")
    A("s_cbranch_scc1 k0_wd")
    srd(A, 36, P_WO, 0, 512 * 1024)
    srd(A, 40, P_WS, WS_WO, SZ_WO)
    A("s_mov_b32 s6, 32")
    A("s_sub_u32 s4, s4, 336")
    A("s_branch k0_dd")
    A.label("k0_wd")
    srd(A, 36, P_WD, 0, 1792 * 1024)
    srd(A, 40, P_WS, WS_WD, SZ_WD)
    A("s_mov_b32 s6, 112")
    A("s_sub_u32 s4, s4, 224")
    A.label("k0_dd")
    A("s_lshr_b32 s7, s4, 3")
    A("s_and_b32 s8, s4, 7")
    A("v_lshl_add_u32 v7, v2, 10, v3")
    A("v_lshl_add_u32 v5, v6, 5, v5")
    A("s_lshl_b32 s9, s7, 17")
    A("s_lshl_b32 s10, s8, 7")
    A("s_add_u32 s9, s9, s10")
    for i in range(16):
        A(f"s_add_u32 m0, s5, {i*1024}")
        A(f"s_add_u32 s10, s9, {i*8192}")
        A(f"buffer_load_dwordx4 v7, s[36:39], s10 offen lds")
    A("s_lshl_b32 s10, s8, 1")
    A("s_mul_i32 s10, s10, s6")
    A("s_lshl_b32 s11, s7, 3")
    A("s_add_u32 s10, s10, s11")
    A("s_lshl_b32 s10, s10, 10")
    A("s_lshl_b32 s11, s6, 10")
    A("s_waitcnt vmcnt(0)")
    for c in range(2):
        for i in range(8):
            d = 16 + (c * 8 + i) * 4
            A(f"ds_read_b64_tr_b16 v[{d}:{d+1}], v5 offset:{i*2048 + c*64}")
            A(f"ds_read_b64_tr_b16 v[{d+2}:{d+3}], v5 offset:{i*2048 + c*64 + 1024}")
        A("s_waitcnt lgkmcnt(0)")
        for i in range(8):
            d = 16 + (c * 8 + i) * 4
            A(f"s_add_u32 s12, s10, {i*1024}")
            A(f"buffer_store_dwordx4 v[{d}:{d+3}], v4, s[40:43], s12 offen")
        A("s_add_u32 s10, s10, s11")
    A("s_branch k0_end")
    A.label("k0_gu")
    srd(A, 36, P_WG, 0, 512 * 3584)
    srd(A, 44, P_WU, 0, 512 * 3584)
    srd(A, 40, P_WS, WS_WGU, SZ_WGU)
    srd(A, 48, P_WS, WS_CSP, SZ_CSP)
    A("s_mul_i32 s7, s4, 2341")
    A("s_lshr_b32 s7, s7, 16")
    A("s_mul_i32 s8, s7, 28")
    A("s_sub_u32 s8, s4, s8")
    A("s_movk_i32 s9, 3584")
    A("v_mul_lo_u32 v7, v2, s9")
    A("v_add_u32 v7, v7, v3")
    A("v_lshl_add_u32 v5, v6, 13, v5")
    A(f"s_mul_i32 s9, s7, {64*3584}")
    A("s_lshl_b32 s10, s8, 7")
    A("s_add_u32 s9, s9, s10")
    for mat in range(2):
        for i in range(8):
            A(f"s_add_u32 m0, s5, {mat*8192 + i*1024}")
            A(f"s_add_u32 s10, s9, {i*8*3584}")
            A(f"buffer_load_dwordx4 v7, s[{36 if mat == 0 else 44}:{39 if mat == 0 else 47}], s10 offen lds")
    A("s_lshl_b32 s10, s8, 7")
    A("s_lshl_b32 s11, s7, 2")
    A("s_add_u32 s10, s10, s11")
    A("s_lshl_b32 s10, s10, 10")
    for c in range(4): A(f"v_mov_b32 v{8+c}, 0")
    A("s_waitcnt vmcnt(0)")
    for c in range(4):
        for i in range(4):
            d = 16 + (c * 4 + i) * 4
            A(f"ds_read_b64_tr_b16 v[{d}:{d+1}], v5 offset:{i*2048 + c*32}")
            A(f"ds_read_b64_tr_b16 v[{d+2}:{d+3}], v5 offset:{i*2048 + c*32 + 1024}")
    A("s_waitcnt lgkmcnt(0)")
    for c in range(4):
        for i in range(4):
            d = 16 + (c * 4 + i) * 4
            A(f"s_add_u32 s12, s10, {c*32*1024 + i*1024}")
            A(f"buffer_store_dwordx4 v[{d}:{d+3}], v4, s[40:43], s12 offen")
    for i in range(4):
        for j in range(4):
            for c in range(4):
                d = 16 + (c * 4 + i) * 4
                A(f"v_dot2c_f32_bf16 v{8+c}, {ONES}, v{d+j}")
    A("s_nop 2")
    A("s_mulk_i32 s7, 3584")
    A("s_lshl_b32 s11, s8, 7")
    A("s_add_u32 s7, s7, s11")
    A("s_lshl_b32 s7, s7, 2")
    A("v_and_b32 v12, 31, v0")
    A("v_lshlrev_b32 v12, 2, v12")
    for c in range(4):
        halves_sum(A, 8 + c, 13)
    for c in range(4):
        A(f"buffer_store_dword v{8+c}, v12, s[48:51], s7 offen offset:{c*128}")
    A("s_branch k0_end")
    A.label("k0_zero")
    srd(A, 36, P_WS, WS_KVZ, SZ_KVZ)
    A("v_lshl_add_u32 v2, v1, 6, v0")
    A("v_lshlrev_b32 v2, 4, v2")
    for i in range(4): A(f"v_mov_b32 v{4+i}, 0")
    for i in range(9):
        A(f"s_mov_b32 s4, {i*4096}")
        A(f"buffer_store_dwordx4 v[4:7], v2, s[36:39], s4 offen")
    A.label("k0_end")
    A("s_endpgm")

def gen_k1(A):
    A.label("k1_kernel")
    prologue(A, 256, "k1_end")
    A("s_and_b32 s4, s2, 7")
    A("s_lshr_b32 s5, s2, 3")
    A("s_lshr_b32 s6, s5, 4")
    A("s_lshl_b32 s4, s4, 1")
    A("s_add_u32 s4, s4, s6")
    A("s_and_b32 s5, s5, 15")
    A("s_and_b32 s6, s5, 7")
    srd(A, 36, P_X, 0, 2048 * 1024)
    srd(A, 40, P_WQKV, 0, 512 * 3072)
    A("v_lshrrev_b32 v4, 3, v0")
    A("v_and_b32 v5, 7, v0")
    A("v_lshrrev_b32 v6, 4, v0")
    A("v_xor_b32 v5, v5, v6")
    A("v_lshlrev_b32 v5, 4, v5")
    A("v_lshl_add_u32 v2, v4, 10, v5")
    A("v_xor_b32 v3, 64, v2")
    A("s_lshl_b32 s7, s4, 17")
    A("s_lshl_b32 s8, s3, 15")
    A("s_add_u32 s7, s7, s8")
    A("v_and_b32 v4, 31, v0")
    A("v_lshrrev_b32 v5, 5, v0")
    A("v_bfe_u32 v6, v0, 1, 3")
    A("v_xor_b32 v6, v6, v5")
    A("v_lshlrev_b32 v6, 4, v6")
    A("v_lshl_add_u32 v6, v4, 7, v6")
    A("s_lshl_b32 s8, s3, 12")
    A("v_add_u32 v8, s8, v6")
    for t in range(1, 4): A(f"v_xor_b32 v{8+t}, {32*t}, v8")
    for t in range(4): A(f"v_add_u32 v{12+t}, 0x10000, v{8+t}")
    A("s_cmp_ge_u32 s5, 8")
    A("s_cbranch_scc1 k1_q")
    k1_path(A, "kv")
    A("s_branch k1_end")
    A.label("k1_q")
    k1_path(A, "q")
    A.label("k1_end")
    A("s_endpgm")

def k1_path(A, role):
    kv = role == "kv"
    NT = 4 if kv else 2
    WI = 4 if kv else 2
    PER = 4 + WI
    if kv:
        A("v_lshrrev_b32 v5, 4, v0")
        A("v_bfe_u32 v6, v0, 2, 2")
        A("v_xor_b32 v6, v6, v5")
        A("s_movk_i32 s8, 3072")
        A("v_mul_lo_u32 v4, v5, s8")
        A("v_lshrrev_b32 v7, 1, v6")
        A("v_lshlrev_b32 v7, 10, v7")
        A("v_add_u32 v4, v4, v7")
        A("v_and_b32 v6, 1, v6")
        A("v_lshl_add_u32 v4, v6, 6, v4")
        A("v_and_b32 v6, 3, v0")
        A("v_lshl_add_u32 v4, v6, 4, v4")
        A("v_add_u32 v4, 1024, v4")
        A(f"s_mul_i32 s9, s3, {16*3072}")
        rowstep = 4 * 3072
    else:
        A("v_lshrrev_b32 v5, 3, v0")
        A("s_movk_i32 s8, 3072")
        A("v_mul_lo_u32 v4, v5, s8")
        A("v_bfe_u32 v6, v0, 2, 1")
        A("v_bfe_u32 v7, v0, 4, 1")
        A("v_xor_b32 v6, v6, v7")
        A("v_lshl_add_u32 v4, v6, 6, v4")
        A("v_and_b32 v6, 3, v0")
        A("v_lshl_add_u32 v4, v6, 4, v4")
        A(f"s_mul_i32 s9, s3, {16*3072}")
        rowstep = 8 * 3072
    A("s_lshl_b32 s8, s6, 7")
    A("s_add_u32 s9, s9, s8")
    A("v_lshrrev_b32 v5, 5, v0")
    A("v_bfe_u32 v6, v0, 2, 2")
    A("v_lshl_add_u32 v5, v5, 3, v6")
    if kv:
        A("v_lshlrev_b32 v5, 8, v5")
        A("v_lshl_add_u32 v5, v6, 6, v5")
    else:
        A("v_lshlrev_b32 v5, 7, v5")
        A("v_bfe_u32 v6, v0, 3, 1")
        A("v_lshl_add_u32 v5, v6, 6, v5")
    A("v_bfe_u32 v6, v0, 4, 1")
    A("v_lshl_add_u32 v5, v6, 5, v5")
    A("v_and_b32 v6, 3, v0")
    A("v_lshl_add_u32 v16, v6, 3, v5")
    for c in range(1, NT): A(f"v_xor_b32 v{16+c}, {64*c}, v16")
    for c in range(NT): A(f"v_add_u32 v{20+c}, 0x10000, v{16+c}")
    A("s_lshl_b32 s10, s3, 12")
    A(f"s_mul_i32 s11, s3, {WI*1024}")
    A("s_add_u32 s11, s11, 16384")
    def dma(stage):
        slot = (stage % 4) * 32768
        for i in range(WI):
            A(f"s_add_u32 m0, s11, {slot + i*1024}")
            A(f"s_add_u32 s12, s9, {stage*64*3072 + i*rowstep}")
            A(f"buffer_load_dwordx4 v4, s[40:43], s12 offen lds")
        for i in range(4):
            A(f"s_add_u32 m0, s10, {slot + i*1024}")
            A(f"s_add_u32 s12, s7, {i*8192 + stage*128}")
            A(f"buffer_load_dwordx4 v{2 + (i & 1)}, s[36:39], s12 offen lds")
    for st in range(4): dma(st)
    XF = [24, 28]; WF = [32, 48]
    ACC = 64
    RS, RQ, CS = 128, 130, 132
    for r in range(NT * 16): A(f"v_mov_b32 v{ACC+r}, 0")
    for r in range(RS, CS + 4): A(f"v_mov_b32 v{r}, 0")
    wts = 4096 if kv else 2048
    wsec = 1024 if kv else 512
    def reads(k):
        st, t = divmod(k, 4); sl = st % 4; hi = sl >= 2; off = (sl % 2) * 32768; b = k % 2
        A(f"ds_read_b128 v[{XF[b]}:{XF[b]+3}], v{(12 if hi else 8)+t} offset:{off}")
        for c in range(NT):
            d = WF[b] + 4 * c; ar = (20 if hi else 16) + c
            A(f"ds_read_b64_tr_b16 v[{d}:{d+1}], v{ar} offset:{off + 16384 + t*wts}")
            A(f"ds_read_b64_tr_b16 v[{d+2}:{d+3}], v{ar} offset:{off + 16384 + t*wts + wsec}")
    A(f"s_waitcnt vmcnt({3*PER})")
    A("s_barrier")
    reads(0)
    A("s_waitcnt lgkmcnt(0)")
    for k in range(32):
        st, t = divmod(k, 4); b = k % 2
        if t == 3 and k + 1 < 32:
            nxt = st + 1
            issued_after = min(7, st + 3) - nxt
            A(f"s_waitcnt vmcnt({issued_after*PER})")
            A("s_barrier")
            if st + 4 < 8: dma(st + 4)
        if k + 1 < 32: reads(k + 1)
        x = XF[b]
        dots = []
        for j in range(4):
            dots.append(f"v_dot2c_f32_bf16 v{RS + (j & 1)}, {ONES}, v{x+j}")
            dots.append(f"v_dot2c_f32_bf16 v{RQ + (j & 1)}, v{x+j}, v{x+j}")
        per = len(dots) // NT
        for c in range(NT):
            w = WF[b] + 4 * c; ac = ACC + 16 * c
            if kv: A(f"v_mfma_f32_32x32x16_bf16 v[{ac}:{ac+15}], v[{x}:{x+3}], v[{w}:{w+3}], v[{ac}:{ac+15}]")
            else:  A(f"v_mfma_f32_32x32x16_bf16 v[{ac}:{ac+15}], v[{w}:{w+3}], v[{x}:{x+3}], v[{ac}:{ac+15}]")
            for dd in dots[c*per:(c+1)*per]: A(dd)
        lab = f"k1{role}_cs{k}"
        A(f"s_cmp_lg_u32 s3, {t}")
        A(f"s_cbranch_scc1 {lab}")
        A.lines.append(";OPT_BEGIN")
        for j in range(4):
            for c in range(NT):
                A(f"v_dot2c_f32_bf16 v{CS+c}, {ONES}, v{WF[b]+4*c+j}")
        A.lines.append(";OPT_END")
        A.label(lab)
        A("s_waitcnt lgkmcnt(0)")
    T = 136
    A("s_nop 2")
    A(f"v_add_f32 v{RS}, v{RS}, v{RS+1}")
    A(f"v_add_f32 v{RQ}, v{RQ}, v{RQ+1}")
    halves_sum(A, RS, T); halves_sum(A, RQ, T)
    for c in range(NT): halves_sum(A, CS + c, T)
    A(f"v_mul_f32 v{RS}, {f32(1/512)}, v{RS}")
    A(f"v_mul_f32 v{RQ}, {f32(1/512)}, v{RQ}")
    A(f"v_fma_f32 v{RQ}, -v{RS}, v{RS}, v{RQ}")
    A(f"v_max_f32 v{RQ}, 0, v{RQ}")
    A(f"v_add_f32 v{RQ}, {f32(1e-5)}, v{RQ}")
    A(f"v_rsq_f32 v{RQ}, v{RQ}")
    A("s_nop 0")
    A(f"v_mul_f32 v{RS}, v{RS}, v{RQ}")
    A(f"v_sub_f32 v{RS}, 0, v{RS}")
    A("v_and_b32 v5, 31, v0")
    A("v_lshlrev_b32 v6, 4, v5")
    A("s_lshl_b32 s8, s3, 2")
    A("v_add_u32 v7, s8, v6")
    for c in range(NT): A(f"ds_write_b32 v7, v{CS+c} offset:{c*512}")
    STAT = 4096
    if kv:
        A("s_lshl_b32 s8, s3, 8")
        A("v_lshlrev_b32 v7, 2, v5")
        A("v_add_u32 v7, s8, v7")
        A(f"ds_write_b32 v7, v{RQ} offset:{STAT}")
        A(f"ds_write_b32 v7, v{RS} offset:{STAT+128}")
    A("s_waitcnt lgkmcnt(0)")
    A("s_barrier")
    for c in range(NT): A(f"ds_read_b128 v[{24+4*c}:{27+4*c}], v6 offset:{c*512}")
    SA, SB = 140, 156
    if kv:
        A("v_lshrrev_b32 v7, 5, v0")
        A("v_lshlrev_b32 v7, 4, v7")
        A("v_add_u32 v7, s8, v7")
        for q in range(4):
            A(f"ds_read_b128 v[{SA+4*q}:{SA+4*q+3}], v7 offset:{STAT + q*32}")
            A(f"ds_read_b128 v[{SB+4*q}:{SB+4*q+3}], v7 offset:{STAT + 128 + q*32}")
    A("s_waitcnt lgkmcnt(0)")
    for c in range(NT):
        A(f"v_add_f32 v{24+4*c}, v{24+4*c}, v{25+4*c}")
        A(f"v_add_f32 v{26+4*c}, v{26+4*c}, v{27+4*c}")
        A(f"v_add_f32 v{CS+c}, v{24+4*c}, v{26+4*c}")
    C1, CL, CN, CE = 172, 173, 174, 175
    A(f"v_mov_b32 v{C1}, {f32(1.000001)}")
    A(f"v_mov_b32 v{CL}, {f32(LOG2E)}")
    A(f"v_mov_b32 v{CN}, {f32(-1.000001*LOG2E)}")
    A(f"v_mov_b32 v{CE}, {f32(1e-6)}")
    def phi(reg, areg, breg, csreg, t0, t1):
        A(f"v_fma_f32 v{t0}, v{breg}, v{csreg}, v{C1}")
        A(f"v_fma_f32 v{reg}, v{reg}, v{areg}, v{t0}")
        A(f"v_fma_f32 v{t1}, v{reg}, v{CL}, v{CN}")
        A(f"v_exp_f32_e64 v{t1}, v{t1} clamp")
        A("s_nop 0")
        A(f"v_add_f32 v{t1}, v{t1}, v{CE}")
        A(f"v_max_f32 v{reg}, v{reg}, v{t1}")
    if kv:
        PK = 176
        for c in range(4):
            for r in range(16):
                reg = ACC + 16 * c + r
                if c < 2: phi(reg, SA + r, SB + r, CS + c, T, T + 1)
                else:
                    A(f"v_mul_f32 v{T}, v{SB+r}, v{CS+c}")
                    A(f"v_fma_f32 v{reg}, v{reg}, v{SA+r}, v{T}")
            for r in range(8):
                A(f"v_cvt_pk_bf16_f32 v{PK+8*c+r}, v{ACC+16*c+2*r}, v{ACC+16*c+2*r+1}")
        ON = 208
        for j in range(4): A(f"v_mov_b32 v{ON+j}, {ONES}")
        A("s_nop 1")
        for c in range(2):
            kp = PK + 8 * c; vp = PK + 8 * (2 + c); D = ACC + 32 * c; Z = D + 16
            A(f"v_mfma_f32_32x32x16_bf16 v[{D}:{D+15}], v[{vp}:{vp+3}], v[{kp}:{kp+3}], 0")
            A(f"v_mfma_f32_32x32x16_bf16 v[{Z}:{Z+15}], v[{ON}:{ON+3}], v[{kp}:{kp+3}], 0")
            A(f"v_mfma_f32_32x32x16_bf16 v[{D}:{D+15}], v[{vp+4}:{vp+7}], v[{kp+4}:{kp+7}], v[{D}:{D+15}]")
            A(f"v_mfma_f32_32x32x16_bf16 v[{Z}:{Z+15}], v[{ON}:{ON+3}], v[{kp+4}:{kp+7}], v[{Z}:{Z+15}]")
        RED = 8192
        A("v_and_b32 v5, 16, v0")
        A("v_cmp_ne_u32 vcc, 0, v5")
        A(f"s_mul_i32 s8, s3, {2*9*256}")
        A("v_lshlrev_b32 v7, 2, v0")
        A("v_add_u32 v6, s8, v7")
        A("s_nop 7")
        A("s_nop 3")
        for c in range(2):
            D = ACC + 32 * c; Z = D + 16
            for r in range(8):
                A(f"v_cndmask_b32 v{24+r}, v{D+r}, v{D+8+r}, vcc")
            for r in range(8):
                A(f"ds_write_b32 v6, v{24+r} offset:{RED + (c*9+r)*256}")
            A(f"ds_write_b32 v6, v{Z} offset:{RED + (c*9+8)*256}")
            A("s_nop 0")
        A("s_waitcnt lgkmcnt(0)")
        A("s_barrier")
        A("s_lshr_b32 s8, s3, 1")
        A("s_and_b32 s12, s3, 1")
        A("s_mul_i32 s13, s8, 9")
        A("s_lshl_b32 s14, s12, 2")
        A("s_add_u32 s13, s13, s14")
        A("s_lshl_b32 s13, s13, 8")
        A("v_add_u32 v6, s13, v7")
        for i in range(4):
            for w2 in range(4):
                A(f"ds_read_b32 v{24+4*i+w2}, v6 offset:{RED + w2*4608 + i*256}")
        A("s_mul_i32 s13, s8, 2304")
        A("v_add_u32 v8, s13, v7")
        for w2 in range(4):
            A(f"ds_read_b32 v{40+w2}, v8 offset:{RED + 2048 + w2*4608}")
        srd(A, 44, P_WS, WS_KVZ, SZ_KVZ)
        A("v_bfe_u32 v9, v0, 4, 1")
        A("s_movk_i32 s13, 1088")
        A("v_mul_lo_u32 v9, v9, s13")
        A("v_and_b32 v10, 15, v0")
        A("v_lshl_add_u32 v9, v10, 2, v9")
        A("v_lshrrev_b32 v10, 5, v0")
        A("v_lshl_add_u32 v10, v10, 8, v9")
        A("s_lshl_b32 s13, s6, 2")
        A("s_lshl_b32 s14, s8, 1")
        A("s_add_u32 s13, s13, s14")
        A("s_mulk_i32 s13, 1088")
        A("s_lshl_b32 s14, s12, 9")
        A("s_add_u32 s14, s14, s13")
        A("s_waitcnt lgkmcnt(0)")
        for i in range(5):
            b0 = 24 + 4 * i
            A(f"v_add_f32 v{b0}, v{b0}, v{b0+1}")
            A(f"v_add_f32 v{b0+2}, v{b0+2}, v{b0+3}")
            A(f"v_add_f32 v{b0}, v{b0}, v{b0+2}")
        for i in range(4):
            A(f"buffer_atomic_add_f32 v{24+4*i}, v10, s[44:47], s14 offen offset:{i*64}")
        A("s_cmp_lg_u32 s12, 0")
        A("s_cbranch_scc1 k1kv_noz")
        A("s_mov_b64 exec, 0xffffffff")
        A(f"buffer_atomic_add_f32 v40, v9, s[44:47], s13 offen offset:1024")
        A("s_mov_b64 exec, -1")
        A.label("k1kv_noz")
    else:
        A("s_lshl_b32 s8, s3, 8")
        A("v_lshlrev_b32 v7, 2, v5")
        A("v_add_u32 v7, s8, v7")
        for c in range(2): A(f"ds_write_b32 v7, v{CS+c} offset:{STAT + c*128}")
        A("v_lshrrev_b32 v7, 5, v0")
        A("v_lshlrev_b32 v7, 4, v7")
        A("v_add_u32 v7, s8, v7")
        A("s_waitcnt lgkmcnt(0)")
        for c in range(2):
            for q in range(4):
                A(f"ds_read_b128 v[{SA+16*c+4*q}:{SA+16*c+4*q+3}], v7 offset:{STAT + c*128 + q*32}")
        A("s_waitcnt lgkmcnt(0)")
        PK = 176
        for c in range(2):
            for r in range(16):
                phi(ACC + 16 * c + r, RQ, RS, SA + 16 * c + r, T, T + 1)
            for r in range(8):
                A(f"v_cvt_pk_bf16_f32 v{PK+8*c+r}, v{ACC+16*c+2*r}, v{ACC+16*c+2*r+1}")
        srd(A, 44, P_WS, WS_PQ, SZ_PQ)
        A("s_lshl_b32 s8, s4, 2")
        A("s_add_u32 s8, s8, s3")
        A("s_lshl_b32 s8, s8, 5")
        A("s_lshl_b32 s12, s6, 2")
        A("s_add_u32 s8, s8, s12")
        A("s_lshl_b32 s8, s8, 10")
        A("v_lshlrev_b32 v7, 4, v0")
        for c in range(2):
            for hf in range(2):
                d = PK + 8 * c + 4 * hf
                A(f"buffer_store_dwordx4 v[{d}:{d+3}], v7, s[44:47], s8 offen offset:{(2*c+hf)*1024}")

def ksplit_reduce(A, ACC, TMP):
    A("s_lshl_b32 s8, s3, 12")
    A("v_lshlrev_b32 v7, 4, v0")
    A("v_add_u32 v6, s8, v7")
    for qd in range(4):
        for j in range(4):
            A(f"ds_write_b128 v6, v[{ACC+16*qd+4*j}:{ACC+16*qd+4*j+3}] offset:{qd*16384 + j*1024}")
    A("s_waitcnt lgkmcnt(0)")
    A("s_barrier")
    A("s_lshl_b32 s8, s3, 14")
    A("v_add_u32 v6, s8, v7")
    for w2 in range(4):
        for j in range(4):
            d = ACC + 16 * w2 + 4 * j
            A(f"ds_read_b128 v[{d}:{d+3}], v6 offset:{w2*4096 + j*1024}")
    A("s_waitcnt lgkmcnt(0)")
    for r in range(16):
        A(f"v_add_f32 v{ACC+r}, v{ACC+r}, v{ACC+16+r}")
        A(f"v_add_f32 v{ACC+32+r}, v{ACC+32+r}, v{ACC+48+r}")
    for r in range(16):
        A(f"v_add_f32 v{TMP+r}, v{ACC+r}, v{ACC+32+r}")

def gen_k2(A):
    A.label("k2_kernel")
    prologue(A, 256, "k2_end")
    A("s_and_b32 s4, s2, 7")
    A("s_lshr_b32 s5, s2, 3")
    A("s_lshr_b32 s6, s5, 3")
    A("s_lshl_b32 s4, s4, 2")
    A("s_add_u32 s4, s4, s6")
    A("s_and_b32 s5, s5, 7")
    srd(A, 36, P_WS, WS_KVZ, SZ_KVZ)
    srd(A, 40, P_WS, WS_PQ, SZ_PQ)
    srd(A, 44, P_WS, WS_WO, SZ_WO)
    srd(A, 48, P_X, 0, 2048 * 1024)
    srd(A, 52, P_WS, WS_H, SZ_H)
    srd(A, 56, P_WS, WS_STATS, SZ_STATS)
    A("v_lshlrev_b32 v2, 4, v0")
    A("v_and_b32 v3, 31, v0")
    A("v_min_u32 v4, 16, v3")
    A("v_lshlrev_b32 v4, 6, v4")
    A("v_lshrrev_b32 v5, 5, v0")
    A("v_lshl_add_u32 v4, v5, 4, v4")
    A("s_lshl_b32 s8, s3, 3")
    A("s_mul_i32 s9, s8, 1088")
    KR = 64
    for h in range(8):
        A(f"s_add_u32 s10, s9, {h*1088}")
        A(f"buffer_load_dwordx4 v[{KR+8*h}:{KR+8*h+3}], v4, s[36:39], s10 offen")
        A(f"buffer_load_dwordx4 v[{KR+8*h+4}:{KR+8*h+7}], v4, s[36:39], s10 offen offset:32")
    A("s_lshl_b32 s10, s4, 1")
    A("s_lshl_b32 s10, s10, 5")
    A("s_add_u32 s10, s10, s8")
    A("s_lshl_b32 s10, s10, 10")
    A("s_lshl_b32 s11, s5, 1")
    A("s_lshl_b32 s11, s11, 5")
    A("s_add_u32 s11, s11, s8")
    A("s_lshl_b32 s11, s11, 10")
    for h in range(8):
        for aa in range(2):
            A(f"s_add_u32 s12, s10, {aa*32768 + h*1024}")
            A(f"buffer_load_dwordx4 a[{(aa*8+h)*4}:{(aa*8+h)*4+3}], v2, s[40:43], s12 offen")
        for b in range(2):
            A(f"s_add_u32 s12, s11, {b*32768 + h*1024}")
            A(f"buffer_load_dwordx4 a[{64+(b*8+h)*4}:{64+(b*8+h)*4+3}], v2, s[44:47], s12 offen")
    XR = 200
    A("s_lshr_b32 s12, s3, 1")
    A("s_lshl_b32 s13, s4, 1")
    A("s_add_u32 s13, s13, s12")
    A("s_and_b32 s14, s3, 1")
    A("s_lshl_b32 s15, s13, 15")
    A("s_lshl_b32 s60, s5, 7")
    A("s_add_u32 s15, s15, s60")
    A("s_lshl_b32 s60, s14, 6")
    A("s_add_u32 s15, s15, s60")
    A("v_lshlrev_b32 v6, 10, v3")
    A("v_lshl_add_u32 v6, v5, 3, v6")
    for q in range(4):
        A(f"buffer_load_dwordx2 v[{XR+2*q}:{XR+2*q+1}], v6, s[48:51], s15 offen offset:{q*16}")
    ACC = 128
    for r in range(64): A(f"v_mov_b32 v{ACC+r}, 0")
    A(f"s_waitcnt vmcnt({32+4})")
    KA = 32
    for h in range(8):
        for j in range(4):
            A(f"v_cvt_pk_bf16_f32 v{KA+4*h+j}, v{KR+8*h+2*j}, v{KR+8*h+2*j+1}")
    TT = [64, 80, 96, 112]
    OF = [8, 12]
    EPS = 16
    A(f"v_mov_b32 v{EPS}, {f32(1e-6)}")
    def tm(h):
        for aa in range(2):
            T = TT[(h % 2) * 2 + aa]
            A(f"v_mfma_f32_32x32x16_bf16 v[{T}:{T+15}], v[{KA+4*h}:{KA+4*h+3}], a[{(aa*8+h)*4}:{(aa*8+h)*4+3}], 0")
    A(f"s_waitcnt vmcnt({4 + 28})")
    A("s_nop 1")
    tm(0)
    for h in range(8):
        if h + 1 < 8:
            A(f"s_waitcnt vmcnt({4 + 4*(8-h-2)})")
            tm(h + 1)
        else:
            A("s_nop 7"); A("s_nop 3")
        A("s_nop 7")
        for aa in range(2):
            T = TT[(h % 2) * 2 + aa]
            A(f"v_add_f32 v17, v{T+8}, v{EPS}")
            A("v_rcp_f32 v17, v17")
            A("s_nop 0")
            for r in range(8): A(f"v_mul_f32 v{T+r}, v{T+r}, v17")
            for j in range(4): A(f"v_cvt_pk_bf16_f32 v{OF[aa]+j}, v{T+2*j}, v{T+2*j+1}")
            A("s_nop 1")
            for b in range(2):
                ac = ACC + 16 * (2 * aa + b)
                A(f"v_mfma_f32_32x32x16_bf16 v[{ac}:{ac+15}], a[{64+(b*8+h)*4}:{64+(b*8+h)*4+3}], v[{OF[aa]}:{OF[aa]+3}], v[{ac}:{ac+15}]")
    A("s_nop 7"); A("s_nop 3")
    ksplit_reduce(A, ACC, 64)
    A("s_waitcnt vmcnt(0)")
    for q in range(4):
        for j in range(2):
            xr = XR + 2 * q + j
            A(f"v_lshlrev_b32 v8, 16, v{xr}")
            A(f"v_and_b32 v9, 0xffff0000, v{xr}")
            A(f"v_add_f32 v{64+4*q+2*j}, v{64+4*q+2*j}, v8")
            A(f"v_add_f32 v{64+4*q+2*j+1}, v{64+4*q+2*j+1}, v9")
    HP = 96
    for r in range(8): A(f"v_cvt_pk_bf16_f32 v{HP+r}, v{64+2*r}, v{64+2*r+1}")
    A("s_lshl_b32 s8, s13, 5")
    A("s_lshl_b32 s9, s5, 2")
    A("s_add_u32 s8, s8, s9")
    A("s_lshl_b32 s9, s14, 1")
    A("s_add_u32 s8, s8, s9")
    A("s_lshl_b32 s8, s8, 10")
    A(f"buffer_store_dwordx4 v[{HP}:{HP+3}], v2, s[52:55], s8 offen")
    A(f"buffer_store_dwordx4 v[{HP+4}:{HP+7}], v2, s[52:55], s8 offen offset:1024")
    A("v_mov_b32 v10, 0"); A("v_mov_b32 v11, 0")
    for r in range(8):
        A(f"v_dot2c_f32_bf16 v10, {ONES}, v{HP+r}")
        A(f"v_dot2c_f32_bf16 v11, v{HP+r}, v{HP+r}")
    A("s_nop 2")
    halves_sum(A, 10, 12); halves_sum(A, 11, 12)
    A("s_lshl_b32 s8, s13, 12")
    A("s_lshl_b32 s9, s5, 4")
    A("s_add_u32 s8, s8, s9")
    A("s_lshl_b32 s9, s14, 3")
    A("s_add_u32 s8, s8, s9")
    A("v_lshlrev_b32 v6, 7, v3")
    A("buffer_store_dwordx2 v[10:11], v6, s[56:59], s8 offen")
    A.label("k2_end")
    A("s_endpgm")

def gen_k3(A):
    A.label("k3_kernel")
    prologue(A, 256, "k3_end")
    A("s_and_b32 s4, s2, 7")
    A("s_lshr_b32 s5, s2, 3")
    A("s_lshr_b32 s6, s5, 4")
    A("s_lshl_b32 s4, s4, 1")
    A("s_add_u32 s4, s4, s6")
    A("s_and_b32 s5, s5, 15")
    srd(A, 36, P_WS, WS_WGU, SZ_WGU)
    srd(A, 40, P_WS, WS_H, SZ_H)
    srd(A, 44, P_WS, WS_STATS, SZ_STATS)
    srd(A, 48, P_WS, WS_CSP, SZ_CSP)
    srd(A, 52, P_WS, WS_ACT, SZ_ACT)
    A("v_lshlrev_b32 v2, 4, v0")
    A("s_lshl_b32 s6, s4, 2")
    A("s_add_u32 s6, s6, s3")
    A("s_mul_i32 s7, s5, 7")
    A("s_add_u32 s8, s7, s3")
    A("s_lshl_b32 s8, s8, 15")
    A("s_lshl_b32 s9, s7, 15")
    A("s_lshl_b32 s10, s3, 13")
    A("s_add_u32 s9, s9, s10")
    def dma(stage):
        slot = (stage % 4) * 32768
        for i in range(8):
            A(f"s_add_u32 m0, s10, {slot + i*1024}")
            if stage < 4: A(f"s_add_u32 s12, s8, {(8*stage + i)*1024}")
            else:         A(f"s_add_u32 s12, s9, {stage*32768 + i*1024}")
            A(f"buffer_load_dwordx4 v2, s[36:39], s12 offen lds")
    def hload(t):
        A(f"s_add_u32 s12, s11, {t*1024}")
        A(f"buffer_load_dwordx4 a[{4*t}:{4*t+3}], v2, s[40:43], s12 offen")
    A("s_lshl_b32 s11, s6, 15")
    A("v_and_b32 v3, 31, v0")
    A("v_lshrrev_b32 v5, 5, v0")
    A("v_lshlrev_b32 v4, 7, v3")
    A("v_lshl_add_u32 v4, v5, 6, v4")
    A("s_lshl_b32 s13, s6, 12")
    for j in range(4): A(f"buffer_load_dwordx4 v[{16+4*j}:{19+4*j}], v4, s[44:47], s13 offen offset:{j*16}")
    A("v_lshl_add_u32 v6, v1, 6, v0")
    A("v_min_u32 v6, 223, v6")
    A("v_lshlrev_b32 v6, 2, v6")
    A("s_mul_i32 s13, s7, 128")
    for kc in range(8):
        A(f"s_add_u32 s14, s13, {kc*3584*4}")
        A(f"buffer_load_dword v{32+kc}, v6, s[48:51], s14 offen")
    dma(0)
    for t in range(8): hload(t)
    dma(1)
    for t in range(8, 16): hload(t)
    A("s_waitcnt vmcnt(32)")
    for j in range(1, 4):
        A(f"v_add_f32 v16, v16, v{16+4*j}"); A(f"v_add_f32 v17, v17, v{17+4*j}")
        A(f"v_add_f32 v18, v18, v{18+4*j}"); A(f"v_add_f32 v19, v19, v{19+4*j}")
    A("v_add_f32 v16, v16, v18")
    A("v_add_f32 v17, v17, v19")
    halves_sum(A, 16, 20); halves_sum(A, 17, 20)
    A(f"v_mul_f32 v16, {f32(1/512)}, v16")
    A(f"v_mul_f32 v17, {f32(1/512)}, v17")
    A("v_fma_f32 v17, -v16, v16, v17")
    A("v_max_f32 v17, 0, v17")
    A(f"v_add_f32 v17, {f32(1e-5)}, v17")
    A("v_rsq_f32 v17, v17")
    A("s_nop 0")
    NM, C1, C2 = 8, 9, 10
    A(f"v_sub_f32 v{NM}, 0, v16")
    A(f"v_mul_f32 v{C1}, {f32(-LOG2E)}, v17")
    A(f"v_mul_f32 v{C2}, v17, v17")
    for kc in range(1, 8): A(f"v_add_f32 v32, v32, v{32+kc}")
    CSL = 131072
    A(f"ds_write_b32 v6, v32 offset:0")
    A.lines.pop()
    A(f"v_add_u32 v7, {CSL}, v6")
    A("ds_write_b32 v7, v32")
    dma(2)
    for t in range(16, 24): hload(t)
    dma(3)
    for t in range(24, 31): hload(t)
    A("s_waitcnt vmcnt(62)")
    hload(31)
    return_marker = len(A.lines)
    A("s_waitcnt lgkmcnt(0)")
    A(f"v_lshlrev_b32 v11, 4, v5")
    A(f"v_add_u32 v11, {CSL}, v11")
    A("v_mov_b32 v12, v2")
    A("v_add_u32 v13, 0x10000, v2")
    ACCS = [64 + 16 * i for i in range(7)]
    AF = [16 + 4 * i for i in range(8)]
    CSR = 48
    ET = 176
    def cinit(tile):
        for q in range(4): A(f"ds_read_b128 v[{CSR+4*q}:{CSR+4*q+3}], v11 offset:{tile*128 + q*32}")
        A("s_waitcnt lgkmcnt(0)")
        for r in range(16): A(f"v_mul_f32 v{ACCS[tile]+r}, v{NM}, v{CSR+r}")
    seq = []
    for c in range(4):
        for i in range(8):
            for w in range(4): seq.append((w, 8 * c + i, c, w * 8192 + i * 1024))
    for c in range(4, 7):
        for t in range(32): seq.append((c, t, c, t * 1024))
    def aread(n):
        tile, t, stage, off = seq[n]
        sl = stage % 4
        A(f"ds_read_b128 v[{AF[n%8]}:{AF[n%8]+3}], v{13 if sl >= 2 else 12} offset:{(sl%2)*32768 + off}")
    def epi(tile):
        L = []
        ac = ACCS[tile]; P = ET + 16
        for r in range(8):
            e = ET + r; m = ET + 8 + r
            L.append(f"v_mul_f32 v{e}, v{C1}, v{ac+r}")
            L.append(f"v_exp_f32 v{e}, v{e}")
            L.append(f"v_mul_f32 v{m}, v{ac+r}, v{ac+8+r}")
            L.append(f"v_add_f32 v{e}, 1.0, v{e}")
            L.append(f"v_rcp_f32 v{e}, v{e}")
            L.append(f"v_mul_f32 v{m}, v{m}, v{C2}")
            L.append(f"v_mul_f32 v{m}, v{m}, v{e}")
        for j in range(4): L.append(f"v_cvt_pk_bf16_f32 v{P+j}, v{ET+8+2*j}, v{ET+8+2*j+1}")
        L.append(f"s_add_u32 s12, s14, {tile*1024}")
        L.append(f"buffer_store_dwordx4 v[{P}:{P+3}], v2, s[52:55], s12 offen")
        L.append("s_nop 1")
        return L
    A("s_mul_i32 s14, s6, 112")
    A("s_add_u32 s14, s14, s7")
    A("s_lshl_b32 s14, s14, 10")
    A("s_barrier")
    for tile in range(7): cinit(tile)
    vm_total = 64
    A(f"s_waitcnt vmcnt({63 if vm_total-16 > 63 else vm_total-16})")
    A("s_barrier")
    PF = 4
    for n in range(PF): aread(n)
    pending = []
    N = len(seq)
    extra_vm = 0
    issued = 64
    vmq = []
    for c in range(4): vmq += [("dma", c)] * 8 + [("h", c)] * 8
    def need_stage(stage):
        last = max(i for i, x in enumerate(vmq) if x == ("dma", stage) or (stage < 4 and x == ("h", stage)))
        return len(vmq) - 1 - last
    for n in range(N):
        tile, t, stage, off = seq[n]
        if n + PF < N and seq[n + PF][2] != seq[n + PF - 1][2]:
            ns = seq[n + PF][2]
            A(f"s_waitcnt vmcnt({need_stage(ns)})")
            A("s_barrier")
            rs = ns + 2
            if 4 <= rs < 7:
                dma(rs); vmq += [("dma", rs)] * 8
        if n + PF < N: aread(n + PF)
        A(f"s_waitcnt lgkmcnt({min(PF, N - 1 - n)})")
        ac = ACCS[tile]
        A(f"v_mfma_f32_32x32x16_bf16 v[{ac}:{ac+15}], v[{AF[n%8]}:{AF[n%8]+3}], a[{4*t}:{4*t+3}], v[{ac}:{ac+15}]")
        if stage >= 4 and t == 12 and not pending:
            pass
        if n == 128 + 2:
            for tl in range(4): pending += epi(tl)
        if n == 128 + 32 + 13: pending += epi(4)
        if n == 128 + 64 + 13: pending += epi(5)
        k = 0
        while pending and k < 5:
            l = pending.pop(0); A(l); k += 1
            if l.startswith("buffer_store"): vmq.append(("st", 0))
    A("s_nop 7"); A("s_nop 3")
    for l in pending: A(l)
    for l in epi(6): A(l)
    A.label("k3_end")
    A("s_endpgm")

def gen_k4(A):
    A.label("k4_kernel")
    prologue(A, 256, "k4_end")
    A("s_and_b32 s4, s2, 7")
    A("s_lshr_b32 s5, s2, 3")
    A("s_lshr_b32 s6, s5, 3")
    A("s_lshl_b32 s4, s4, 2")
    A("s_add_u32 s4, s4, s6")
    A("s_and_b32 s5, s5, 7")
    srd(A, 36, P_WS, WS_ACT, SZ_ACT)
    srd(A, 40, P_WS, WS_WD, SZ_WD)
    srd(A, 44, P_WS, WS_H, SZ_H)
    srd(A, 48, P_OUT, 0, 2048 * 1024)
    A("v_lshlrev_b32 v2, 4, v0")
    A("s_mul_i32 s8, s3, 28")
    A("s_lshl_b32 s9, s4, 1")
    A("s_mul_i32 s9, s9, 112")
    A("s_add_u32 s9, s9, s8")
    A("s_lshl_b32 s9, s9, 10")
    A("s_lshl_b32 s10, s5, 1")
    A("s_mul_i32 s10, s10, 112")
    A("s_add_u32 s10, s10, s8")
    A("s_lshl_b32 s10, s10, 10")
    D = 14
    def loads(t):
        b = (t % D) * 16
        for aa in range(2):
            A(f"s_add_u32 s12, s9, {aa*112*1024 + t*1024}")
            A(f"buffer_load_dwordx4 a[{b+4*aa}:{b+4*aa+3}], v2, s[36:39], s12 offen")
        for bb in range(2):
            A(f"s_add_u32 s12, s10, {bb*112*1024 + t*1024}")
            A(f"buffer_load_dwordx4 a[{b+8+4*bb}:{b+8+4*bb+3}], v2, s[40:43], s12 offen")
    A("s_lshr_b32 s12, s3, 1")
    A("s_lshl_b32 s13, s4, 1")
    A("s_add_u32 s13, s13, s12")
    A("s_and_b32 s14, s3, 1")
    A("s_lshl_b32 s15, s13, 5")
    A("s_lshl_b32 s60, s5, 2")
    A("s_add_u32 s15, s15, s60")
    A("s_lshl_b32 s60, s14, 1")
    A("s_add_u32 s15, s15, s60")
    A("s_lshl_b32 s15, s15, 10")
    HR = 16
    A(f"buffer_load_dwordx4 v[{HR}:{HR+3}], v2, s[44:47], s15 offen")
    A(f"buffer_load_dwordx4 v[{HR+4}:{HR+7}], v2, s[44:47], s15 offen offset:1024")
    for t in range(D): loads(t)
    ACC = 128
    for r in range(64): A(f"v_mov_b32 v{ACC+r}, 0")
    for t in range(28):
        inflight = min(28, t + D) - (t + 1)
        A(f"s_waitcnt vmcnt({4*inflight})")
        b = (t % D) * 16
        for aa in range(2):
            for bb in range(2):
                ac = ACC + 16 * (2 * aa + bb)
                A(f"v_mfma_f32_32x32x16_bf16 v[{ac}:{ac+15}], a[{b+8+4*bb}:{b+8+4*bb+3}], a[{b+4*aa}:{b+4*aa+3}], v[{ac}:{ac+15}]")
        if t + D < 28: loads(t + D)
    A("s_nop 7"); A("s_nop 3")
    ksplit_reduce(A, ACC, 64)
    for r in range(8):
        A(f"v_lshlrev_b32 v8, 16, v{HR+r}")
        A(f"v_and_b32 v9, 0xffff0000, v{HR+r}")
        A(f"v_add_f32 v{64+2*r}, v{64+2*r}, v8")
        A(f"v_add_f32 v{64+2*r+1}, v{64+2*r+1}, v9")
    OP = 96
    for r in range(8): A(f"v_cvt_pk_bf16_f32 v{OP+r}, v{64+2*r}, v{64+2*r+1}")
    A("s_nop 1")
    for p in range(2):
        A(f"v_permlane32_swap_b32 v{OP+4*p}, v{OP+4*p+2}")
        A(f"v_permlane32_swap_b32 v{OP+4*p+1}, v{OP+4*p+3}")
    A("v_and_b32 v3, 31, v0")
    A("v_lshrrev_b32 v5, 5, v0")
    A("v_lshlrev_b32 v6, 10, v3")
    A("v_lshl_add_u32 v6, v5, 4, v6")
    A("s_lshl_b32 s8, s13, 15")
    A("s_lshl_b32 s9, s5, 7")
    A("s_add_u32 s8, s8, s9")
    A("s_lshl_b32 s9, s14, 6")
    A("s_add_u32 s8, s8, s9")
    for p in range(2):
        A(f"buffer_store_dwordx4 v[{OP+4*p}:{OP+4*p+3}], v6, s[48:51], s8 offen offset:{p*32}")
    A.label("k4_end")
    A("s_endpgm")

def kd(name, vgpr, accum):
    return f""".p2align 6
.amdhsa_kernel {name}
  .amdhsa_next_free_vgpr {vgpr}
  .amdhsa_next_free_sgpr 96
  .amdhsa_accum_offset {accum}
  .amdhsa_group_segment_fixed_size 0
  .amdhsa_kernarg_size 80
  .amdhsa_user_sgpr_count 2
  .amdhsa_user_sgpr_kernarg_segment_ptr 1
  .amdhsa_system_sgpr_workgroup_id_x 1
.end_amdhsa_kernel
"""

def strip_opt(lines):
    out = []; skip = False
    for l in lines:
        if l == ";OPT_BEGIN": skip = True; continue
        if l == ";OPT_END": skip = False; continue
        if not skip: out.append(l)
    return out

def build(path, extra_launches=0):
    kernels = [("k0_kernel", gen_k0, (93, 65536), 128, 128),
               ("k1_kernel", gen_k1, (256, 131072), 256, 256),
               ("k2_kernel", gen_k2, (256, 65536), 512, 256),
               ("k3_kernel", gen_k3, (256, 131072 + 1024), 512, 256),
               ("k4_kernel", gen_k4, (256, 65536), 512, 256)]
    hdr = open(f"cdna_kernels/{KNAME}.s.ref").read().split("\n")
    out = [l for l in hdr if l.startswith(";") and "@launch" not in l and "Override launch" not in l and "grid=ceil" not in l]
    for (n, g, (wg, lds), vg, ac) in kernels:
        out.append(f"; @launch kernel={n} grid=({wg},1,1) block=(256,1,1) lds={lds}")
    for i in range(extra_launches):
        out.append(f"; @launch kernel=kx_kernel grid=(256,1,1) block=(256,1,1) lds=0")
    out.append('.amdgcn_target "amdgcn-amd-amdhsa--gfx950"')
    out.append(".text")
    nerr = 0
    for (n, g, _, vg, ac) in kernels:
        A = Asm(); g(A)
        for variant in (A.lines, strip_opt(A.lines)):
            errs = check(variant, n)
            for e in errs[:40]: print("CHECK:", e)
            nerr += len(errs)
        out.append(f".globl {n}\n.p2align 8\n.type {n},@function")
        out.append(A.text())
    if extra_launches:
        out.append(".globl kx_kernel\n.p2align 8\n.type kx_kernel,@function\nkx_kernel:\n  s_endpgm")
    out.append('.section .rodata,"a"')
    for (n, g, _, vg, ac) in kernels: out.append(kd(n, vg, ac))
    if extra_launches: out.append(kd("kx_kernel", 8, 8))
    open(path, "w").write("\n".join(out) + "\n")
    print("written", path, "check errors:", nerr)

if __name__ == "__main__":
    build(sys.argv[1] if len(sys.argv) > 1 else f"cdna_kernels/{KNAME}.s",
          int(sys.argv[2]) if len(sys.argv) > 2 else 0)
```

```python
import sys, struct, os
sys.path.insert(0, "dev")
from asmlib import *

KNAME = "sequential_preLN__linear_attn_block__swiglu_ffn__prompt"
MB = 1 << 20
WS_KVZ = 0;            SZ_KVZ = 32 * 1088
WS_STATS = 0x20000;    SZ_STATS = 2048 * 16 * 8
WS_CSP = 0x80000;      SZ_CSP = 8 * 3584 * 4
WS_PQ = 1 * MB;        SZ_PQ = 2 * MB
WS_H = 3 * MB;         SZ_H = 2 * MB
WS_ACT = 5 * MB;       SZ_ACT = 64 * 112 * 1024
WS_WGU = 13 * MB;      SZ_WGU = 112 * 32 * 1024
WS_WD = 17 * MB;       SZ_WD = 16 * 112 * 1024
WS_WO = 19 * MB;       SZ_WO = 16 * 32 * 1024

def f32(x): return "0x%08x" % struct.unpack("<I", struct.pack("<f", x))[0]
LOG2E = 1.4426950408889634
ONES = "0x3f803f80"

P_X, P_WQKV, P_WO, P_BX, P_WG, P_WU, P_WD, P_OUT, P_DBG, P_WS = 16, 18, 20, 22, 24, 26, 28, 30, 32, 34

def prologue(A, nwg, endl):
    A(f"s_cmp_ge_u32 s2, {nwg}")
    A(f"s_cbranch_scc1 {endl}")
    if "scramble" in os.environ.get("EXP", ""):
        A("s_and_b32 s4, s2, 7"); A("s_lshl_b32 s4, s4, 5"); A("s_lshr_b32 s2, s2, 3"); A("s_or_b32 s2, s2, s4")
    if "antiloc" in os.environ.get("EXP", ""):
        A("s_lshr_b32 s4, s2, 3"); A("s_and_b32 s4, s4, 7"); A("s_xor_b32 s2, s2, s4")
    A("s_load_dwordx16 s[16:31], s[0:1], 0")
    A("s_load_dwordx4 s[32:35], s[0:1], 64")
    A("v_lshrrev_b32 v1, 6, v0")
    A("v_and_b32 v0, 63, v0")
    A("v_readfirstlane_b32 s3, v1")
    A("s_waitcnt lgkmcnt(0)")

TS = False
WS_TS = 24 * MB
def ts_mark(A, kidx, slot, wait=True):
    if not TS: return
    if wait: A("s_waitcnt vmcnt(0) lgkmcnt(0)")
    A("s_memrealtime s[90:91]")
    A("s_memtime s[96:97]")
    A(f"s_add_u32 s92, s{P_WS}, {WS_TS + kidx*256*4*64 + slot*8}")
    A(f"s_addc_u32 s93, s{P_WS+1}, 0")
    A("s_mov_b32 s94, 0x100000")
    A("s_mov_b32 s95, 0x20000")
    A("s_lshl_b32 s89, s2, 2")
    A("s_add_u32 s89, s89, s3")
    A("s_lshl_b32 s89, s89, 6")
    A("s_waitcnt lgkmcnt(0)")
    A("v_mov_b32 v254, s90")
    A("v_mov_b32 v255, s96")
    A("v_mov_b32 v253, 0")
    A("buffer_store_dwordx2 v[254:255], v253, s[92:95], s89 offen")
    TSVM.append(1)

TSVM = []
def srd(A, d, base, off, size):
    if off:
        A(f"s_add_u32 s{d}, s{base}, {off}")
        A(f"s_addc_u32 s{d+1}, s{base+1}, 0")
    else:
        A(f"s_mov_b32 s{d}, s{base}")
        A(f"s_mov_b32 s{d+1}, s{base+1}")
    A(f"s_mov_b32 s{d+2}, {size}")
    A(f"s_mov_b32 s{d+3}, 0x20000")

def halves_sum(A, r, t):
    A(f"v_mov_b32 v{t}, v{r}")
    A("s_nop 1")
    A(f"v_permlane32_swap_b32 v{r}, v{t}")
    A("s_nop 1")
    A(f"v_add_f32 v{r}, v{r}, v{t}")

def gen_k0(A):
    A.label("k0_kernel")
    prologue(A, 93, "k0_end"); ts_mark(A, 0, 0, wait=False)
    A("s_cmp_eq_u32 s2, 92")
    A("s_cbranch_scc1 k0_zero")
    A("s_lshl_b32 s4, s2, 2")
    A("s_add_u32 s4, s4, s3")
    A("s_lshl_b32 s5, s3, 14")
    A("v_lshrrev_b32 v2, 3, v0")
    A("v_and_b32 v3, 7, v0")
    A("v_lshlrev_b32 v3, 4, v3")
    A("v_lshlrev_b32 v4, 4, v0")
    A("v_lshrrev_b32 v5, 5, v0")
    A("v_bfe_u32 v6, v0, 2, 2")
    A("v_lshl_add_u32 v5, v5, 2, v6")
    A("v_lshlrev_b32 v5, 7, v5")
    A("v_and_b32 v6, 3, v0")
    A("v_lshl_add_u32 v5, v6, 3, v5")
    A("v_add_u32 v5, s5, v5")
    A("v_bfe_u32 v6, v0, 4, 1")
    A("s_cmp_lt_u32 s4, 224")
    A("s_cbranch_scc1 k0_gu")
    A("s_cmp_lt_u32 s4, 336")
    A("s_cbranch_scc1 k0_wd")
    srd(A, 36, P_WO, 0, 512 * 1024)
    srd(A, 40, P_WS, WS_WO, SZ_WO)
    A("s_mov_b32 s6, 32")
    A("s_sub_u32 s4, s4, 336")
    A("s_branch k0_dd")
    A.label("k0_wd")
    srd(A, 36, P_WD, 0, 1792 * 1024)
    srd(A, 40, P_WS, WS_WD, SZ_WD)
    A("s_mov_b32 s6, 112")
    A("s_sub_u32 s4, s4, 224")
    A.label("k0_dd")
    A("s_lshr_b32 s7, s4, 3")
    A("s_and_b32 s8, s4, 7")
    A("v_lshl_add_u32 v7, v2, 10, v3")
    A("v_lshl_add_u32 v5, v6, 5, v5")
    A("s_lshl_b32 s9, s7, 17")
    A("s_lshl_b32 s10, s8, 7")
    A("s_add_u32 s9, s9, s10")
    for i in range(16):
        A(f"s_add_u32 m0, s5, {i*1024}")
        A(f"s_add_u32 s10, s9, {i*8192}")
        A(f"buffer_load_dwordx4 v7, s[36:39], s10 offen lds")
    A("s_lshl_b32 s10, s8, 1")
    A("s_mul_i32 s10, s10, s6")
    A("s_lshl_b32 s11, s7, 3")
    A("s_add_u32 s10, s10, s11")
    A("s_lshl_b32 s10, s10, 10")
    A("s_lshl_b32 s11, s6, 10")
    A("s_waitcnt vmcnt(0)")
    for c in range(2):
        for i in range(8):
            d = 16 + (c * 8 + i) * 4
            A(f"ds_read_b64_tr_b16 v[{d}:{d+1}], v5 offset:{i*2048 + c*64}")
            A(f"ds_read_b64_tr_b16 v[{d+2}:{d+3}], v5 offset:{i*2048 + c*64 + 1024}")
        A("s_waitcnt lgkmcnt(0)")
        for i in range(8):
            d = 16 + (c * 8 + i) * 4
            A(f"s_add_u32 s12, s10, {i*1024}")
            A(f"buffer_store_dwordx4 v[{d}:{d+3}], v4, s[40:43], s12 offen")
        A("s_add_u32 s10, s10, s11")
    A("s_branch k0_fin")
    A.label("k0_gu")
    srd(A, 36, P_WG, 0, 512 * 3584)
    srd(A, 44, P_WU, 0, 512 * 3584)
    srd(A, 40, P_WS, WS_WGU, SZ_WGU)
    srd(A, 48, P_WS, WS_CSP, SZ_CSP)
    A("s_mul_i32 s7, s4, 2341")
    A("s_lshr_b32 s7, s7, 16")
    A("s_mul_i32 s8, s7, 28")
    A("s_sub_u32 s8, s4, s8")
    A("s_movk_i32 s9, 3584")
    A("v_mul_lo_u32 v7, v2, s9")
    A("v_add_u32 v7, v7, v3")
    A("v_lshl_add_u32 v5, v6, 13, v5")
    A(f"s_mul_i32 s9, s7, {64*3584}")
    A("s_lshl_b32 s10, s8, 7")
    A("s_add_u32 s9, s9, s10")
    for mat in range(2):
        for i in range(8):
            A(f"s_add_u32 m0, s5, {mat*8192 + i*1024}")
            A(f"s_add_u32 s10, s9, {i*8*3584}")
            A(f"buffer_load_dwordx4 v7, s[{36 if mat == 0 else 44}:{39 if mat == 0 else 47}], s10 offen lds")
    A("s_lshl_b32 s10, s8, 7")
    A("s_lshl_b32 s11, s7, 2")
    A("s_add_u32 s10, s10, s11")
    A("s_lshl_b32 s10, s10, 10")
    for c in range(4): A(f"v_mov_b32 v{8+c}, 0")
    A("s_waitcnt vmcnt(0)")
    for c in range(4):
        for i in range(4):
            d = 16 + (c * 4 + i) * 4
            A(f"ds_read_b64_tr_b16 v[{d}:{d+1}], v5 offset:{i*2048 + c*32}")
            A(f"ds_read_b64_tr_b16 v[{d+2}:{d+3}], v5 offset:{i*2048 + c*32 + 1024}")
    A("s_waitcnt lgkmcnt(0)")
    for c in range(4):
        for i in range(4):
            d = 16 + (c * 4 + i) * 4
            A(f"s_add_u32 s12, s10, {c*32*1024 + i*1024}")
            A(f"buffer_store_dwordx4 v[{d}:{d+3}], v4, s[40:43], s12 offen")
    for i in range(4):
        for j in range(4):
            for c in range(4):
                d = 16 + (c * 4 + i) * 4
                A(f"v_dot2c_f32_bf16 v{8+c}, {ONES}, v{d+j}")
    A("s_nop 2")
    A("s_mulk_i32 s7, 3584")
    A("s_lshl_b32 s11, s8, 7")
    A("s_add_u32 s7, s7, s11")
    A("s_lshl_b32 s7, s7, 2")
    A("v_and_b32 v12, 31, v0")
    A("v_lshlrev_b32 v12, 2, v12")
    for c in range(4):
        halves_sum(A, 8 + c, 13)
    for c in range(4):
        A(f"buffer_store_dword v{8+c}, v12, s[48:51], s7 offen offset:{c*128}")
    A("s_branch k0_fin")
    A.label("k0_zero")
    srd(A, 36, P_WS, WS_KVZ, SZ_KVZ)
    A("v_lshl_add_u32 v2, v1, 6, v0")
    A("v_lshlrev_b32 v2, 4, v2")
    for i in range(4): A(f"v_mov_b32 v{4+i}, 0")
    for i in range(9):
        A(f"s_mov_b32 s4, {i*4096}")
        A(f"buffer_store_dwordx4 v[4:7], v2, s[36:39], s4 offen")
    A.label("k0_fin")
    ts_mark(A, 0, 7)
    A.label("k0_end")
    A("s_endpgm")

def gen_k1(A):
    A.label("k1_kernel")
    prologue(A, 256, "k1_end"); ts_mark(A, 1, 0, wait=False)
    A("s_and_b32 s4, s2, 7")
    A("s_lshr_b32 s5, s2, 3")
    A("s_lshr_b32 s6, s5, 4")
    A("s_lshl_b32 s4, s4, 1")
    A("s_add_u32 s4, s4, s6")
    A("s_and_b32 s5, s5, 15")
    A("s_and_b32 s6, s5, 7")
    srd(A, 36, P_X, 0, 2048 * 1024)
    srd(A, 40, P_WQKV, 0, 512 * 3072)
    A("v_lshrrev_b32 v4, 3, v0")
    A("v_and_b32 v5, 7, v0")
    A("v_lshrrev_b32 v6, 4, v0")
    A("v_xor_b32 v5, v5, v6")
    A("v_lshlrev_b32 v5, 4, v5")
    A("v_lshl_add_u32 v2, v4, 10, v5")
    A("v_xor_b32 v3, 64, v2")
    A("s_lshl_b32 s7, s4, 17")
    A("s_lshl_b32 s8, s3, 15")
    A("s_add_u32 s7, s7, s8")
    A("v_and_b32 v4, 31, v0")
    A("v_lshrrev_b32 v5, 5, v0")
    A("v_bfe_u32 v6, v0, 1, 3")
    A("v_xor_b32 v6, v6, v5")
    A("v_lshlrev_b32 v6, 4, v6")
    A("v_lshl_add_u32 v6, v4, 7, v6")
    A("s_lshl_b32 s8, s3, 12")
    A("v_add_u32 v8, s8, v6")
    for t in range(1, 4): A(f"v_xor_b32 v{8+t}, {32*t}, v8")
    for t in range(4): A(f"v_add_u32 v{12+t}, 0x10000, v{8+t}")
    A("s_cmp_ge_u32 s5, 8")
    A("s_cbranch_scc1 k1_q")
    k1_path(A, "kv")
    A("s_branch k1_fin")
    A.label("k1_q")
    k1_path(A, "q")
    A.label("k1_fin")
    ts_mark(A, 1, 7)
    A.label("k1_end")
    A("s_endpgm")

def k1_path(A, role):
    kv = role == "kv"
    NT = 4 if kv else 2
    WI = 4 if kv else 2
    PER = 4 + WI
    if kv:
        A("v_lshrrev_b32 v5, 4, v0")
        A("v_bfe_u32 v6, v0, 2, 2")
        A("v_xor_b32 v6, v6, v5")
        A("s_movk_i32 s8, 3072")
        A("v_mul_lo_u32 v4, v5, s8")
        A("v_lshrrev_b32 v7, 1, v6")
        A("v_lshlrev_b32 v7, 10, v7")
        A("v_add_u32 v4, v4, v7")
        A("v_and_b32 v6, 1, v6")
        A("v_lshl_add_u32 v4, v6, 6, v4")
        A("v_and_b32 v6, 3, v0")
        A("v_lshl_add_u32 v4, v6, 4, v4")
        A("v_add_u32 v4, 1024, v4")
        A(f"s_mul_i32 s9, s3, {16*3072}")
        rowstep = 4 * 3072
    else:
        A("v_lshrrev_b32 v5, 3, v0")
        A("s_movk_i32 s8, 3072")
        A("v_mul_lo_u32 v4, v5, s8")
        A("v_bfe_u32 v6, v0, 2, 1")
        A("v_bfe_u32 v7, v0, 4, 1")
        A("v_xor_b32 v6, v6, v7")
        A("v_lshl_add_u32 v4, v6, 6, v4")
        A("v_and_b32 v6, 3, v0")
        A("v_lshl_add_u32 v4, v6, 4, v4")
        A(f"s_mul_i32 s9, s3, {16*3072}")
        rowstep = 8 * 3072
    A("s_lshl_b32 s8, s6, 7")
    A("s_add_u32 s9, s9, s8")
    A("v_lshrrev_b32 v5, 5, v0")
    A("v_bfe_u32 v6, v0, 2, 2")
    A("v_lshl_add_u32 v5, v5, 3, v6")
    if kv:
        A("v_lshlrev_b32 v5, 8, v5")
        A("v_lshl_add_u32 v5, v6, 6, v5")
    else:
        A("v_lshlrev_b32 v5, 7, v5")
        A("v_bfe_u32 v6, v0, 3, 1")
        A("v_lshl_add_u32 v5, v6, 6, v5")
    A("v_bfe_u32 v6, v0, 4, 1")
    A("v_lshl_add_u32 v5, v6, 5, v5")
    A("v_and_b32 v6, 3, v0")
    A("v_lshl_add_u32 v16, v6, 3, v5")
    for c in range(1, NT): A(f"v_xor_b32 v{16+c}, {64*c}, v16")
    for c in range(NT): A(f"v_add_u32 v{20+c}, 0x10000, v{16+c}")
    A("s_lshl_b32 s10, s3, 12")
    A(f"s_mul_i32 s11, s3, {WI*1024}")
    A("s_add_u32 s11, s11, 16384")
    def dma(stage):
        slot = (stage % 4) * 32768
        for i in range(WI):
            A(f"s_add_u32 m0, s11, {slot + i*1024}")
            A(f"s_add_u32 s12, s9, {stage*64*3072 + i*rowstep}")
            A(f"buffer_load_dwordx4 v4, s[40:43], s12 offen lds")
        for i in range(4):
            A(f"s_add_u32 m0, s10, {slot + i*1024}")
            A(f"s_add_u32 s12, s7, {i*8192 + stage*128}")
            A(f"buffer_load_dwordx4 v{2 + (i & 1)}, s[36:39], s12 offen lds")
    for st in range(4): dma(st)
    XF = [24, 28]; WF = [32, 48]
    ACC = 64
    RS, RQ, CS = 128, 130, 132
    for r in range(NT * 16): A(f"v_mov_b32 v{ACC+r}, 0")
    for r in range(RS, CS + 4): A(f"v_mov_b32 v{r}, 0")
    wts = 4096 if kv else 2048
    wsec = 1024 if kv else 512
    def reads(k):
        st, t = divmod(k, 4); sl = st % 4; hi = sl >= 2; off = (sl % 2) * 32768; b = k % 2
        A(f"ds_read_b128 v[{XF[b]}:{XF[b]+3}], v{(12 if hi else 8)+t} offset:{off}")
        for c in range(NT):
            d = WF[b] + 4 * c; ar = (20 if hi else 16) + c
            A(f"ds_read_b64_tr_b16 v[{d}:{d+1}], v{ar} offset:{off + 16384 + t*wts}")
            A(f"ds_read_b64_tr_b16 v[{d+2}:{d+3}], v{ar} offset:{off + 16384 + t*wts + wsec}")
    ts_mark(A, 1, 1, wait=False)
    A(f"s_waitcnt vmcnt({3*PER})")
    A("s_barrier")
    ts_mark(A, 1, 2, wait=False)
    reads(0)
    A("s_waitcnt lgkmcnt(0)")
    for k in range(32):
        st, t = divmod(k, 4); b = k % 2
        if t == 3 and k + 1 < 32:
            nxt = st + 1
            issued_after = min(7, st + 3) - nxt
            A(f"s_waitcnt vmcnt({issued_after*PER})")
            A("s_barrier")
            if st + 4 < 8: dma(st + 4)
        if k + 1 < 32: reads(k + 1)
        x = XF[b]
        dots = []
        for j in range(4):
            dots.append(f"v_dot2c_f32_bf16 v{RS + (j & 1)}, {ONES}, v{x+j}")
            dots.append(f"v_dot2c_f32_bf16 v{RQ + (j & 1)}, v{x+j}, v{x+j}")
        per = len(dots) // NT
        for c in range(NT):
            w = WF[b] + 4 * c; ac = ACC + 16 * c
            if kv: A(f"v_mfma_f32_32x32x16_bf16 v[{ac}:{ac+15}], v[{x}:{x+3}], v[{w}:{w+3}], v[{ac}:{ac+15}]")
            else:  A(f"v_mfma_f32_32x32x16_bf16 v[{ac}:{ac+15}], v[{w}:{w+3}], v[{x}:{x+3}], v[{ac}:{ac+15}]")
            for dd in dots[c*per:(c+1)*per]: A(dd)
        lab = f"k1{role}_cs{k}"
        A(f"s_cmp_lg_u32 s3, {t}")
        A(f"s_cbranch_scc1 {lab}")
        A.lines.append(";OPT_BEGIN")
        for j in range(4):
            for c in range(NT):
                A(f"v_dot2c_f32_bf16 v{CS+c}, {ONES}, v{WF[b]+4*c+j}")
        A.lines.append(";OPT_END")
        A.label(lab)
        A("s_waitcnt lgkmcnt(0)")
    ts_mark(A, 1, 3, wait=False)
    T = 136
    A("s_nop 2")
    A(f"v_add_f32 v{RS}, v{RS}, v{RS+1}")
    A(f"v_add_f32 v{RQ}, v{RQ}, v{RQ+1}")
    halves_sum(A, RS, T); halves_sum(A, RQ, T)
    for c in range(NT): halves_sum(A, CS + c, T)
    A(f"v_mul_f32 v{RS}, {f32(1/512)}, v{RS}")
    A(f"v_mul_f32 v{RQ}, {f32(1/512)}, v{RQ}")
    A(f"v_fma_f32 v{RQ}, -v{RS}, v{RS}, v{RQ}")
    A(f"v_max_f32 v{RQ}, 0, v{RQ}")
    A(f"v_add_f32 v{RQ}, {f32(1e-5)}, v{RQ}")
    A(f"v_rsq_f32 v{RQ}, v{RQ}")
    A("s_nop 0")
    A(f"v_mul_f32 v{RS}, v{RS}, v{RQ}")
    A(f"v_sub_f32 v{RS}, 0, v{RS}")
    A("v_and_b32 v5, 31, v0")
    A("v_lshlrev_b32 v6, 4, v5")
    A("s_lshl_b32 s8, s3, 2")
    A("v_add_u32 v7, s8, v6")
    for c in range(NT): A(f"ds_write_b32 v7, v{CS+c} offset:{c*512}")
    STAT = 4096
    if kv:
        A("s_lshl_b32 s8, s3, 8")
        A("v_lshlrev_b32 v7, 2, v5")
        A("v_add_u32 v7, s8, v7")
        A(f"ds_write_b32 v7, v{RQ} offset:{STAT}")
        A(f"ds_write_b32 v7, v{RS} offset:{STAT+128}")
    A("s_waitcnt lgkmcnt(0)")
    A("s_barrier")
    for c in range(NT): A(f"ds_read_b128 v[{24+4*c}:{27+4*c}], v6 offset:{c*512}")
    SA, SB = 140, 156
    if kv:
        A("v_lshrrev_b32 v7, 5, v0")
        A("v_lshlrev_b32 v7, 4, v7")
        A("v_add_u32 v7, s8, v7")
        for q in range(4):
            A(f"ds_read_b128 v[{SA+4*q}:{SA+4*q+3}], v7 offset:{STAT + q*32}")
            A(f"ds_read_b128 v[{SB+4*q}:{SB+4*q+3}], v7 offset:{STAT + 128 + q*32}")
    A("s_waitcnt lgkmcnt(0)")
    for c in range(NT):
        A(f"v_add_f32 v{24+4*c}, v{24+4*c}, v{25+4*c}")
        A(f"v_add_f32 v{26+4*c}, v{26+4*c}, v{27+4*c}")
        A(f"v_add_f32 v{CS+c}, v{24+4*c}, v{26+4*c}")
    C1, CL, CN, CE = 172, 173, 174, 175
    A(f"v_mov_b32 v{C1}, {f32(1.000001)}")
    A(f"v_mov_b32 v{CL}, {f32(LOG2E)}")
    A(f"v_mov_b32 v{CN}, {f32(-1.000001*LOG2E)}")
    A(f"v_mov_b32 v{CE}, {f32(1e-6)}")
    def phi(reg, areg, breg, csreg, t0, t1):
        A(f"v_fma_f32 v{t0}, v{breg}, v{csreg}, v{C1}")
        A(f"v_fma_f32 v{reg}, v{reg}, v{areg}, v{t0}")
        A(f"v_fma_f32 v{t1}, v{reg}, v{CL}, v{CN}")
        A(f"v_exp_f32_e64 v{t1}, v{t1} clamp")
        A("s_nop 0")
        A(f"v_add_f32 v{t1}, v{t1}, v{CE}")
        A(f"v_max_f32 v{reg}, v{reg}, v{t1}")
    if kv:
        PK = 176
        for c in range(4):
            for r in range(16):
                reg = ACC + 16 * c + r
                if c < 2: phi(reg, SA + r, SB + r, CS + c, T, T + 1)
                else:
                    A(f"v_mul_f32 v{T}, v{SB+r}, v{CS+c}")
                    A(f"v_fma_f32 v{reg}, v{reg}, v{SA+r}, v{T}")
            for r in range(8):
                A(f"v_cvt_pk_bf16_f32 v{PK+8*c+r}, v{ACC+16*c+2*r}, v{ACC+16*c+2*r+1}")
        ON = 208
        for j in range(4): A(f"v_mov_b32 v{ON+j}, {ONES}")
        A("s_nop 1")
        for c in range(2):
            kp = PK + 8 * c; vp = PK + 8 * (2 + c); D = ACC + 32 * c; Z = D + 16
            A(f"v_mfma_f32_32x32x16_bf16 v[{D}:{D+15}], v[{vp}:{vp+3}], v[{kp}:{kp+3}], 0")
            A(f"v_mfma_f32_32x32x16_bf16 v[{Z}:{Z+15}], v[{ON}:{ON+3}], v[{kp}:{kp+3}], 0")
            A(f"v_mfma_f32_32x32x16_bf16 v[{D}:{D+15}], v[{vp+4}:{vp+7}], v[{kp+4}:{kp+7}], v[{D}:{D+15}]")
            A(f"v_mfma_f32_32x32x16_bf16 v[{Z}:{Z+15}], v[{ON}:{ON+3}], v[{kp+4}:{kp+7}], v[{Z}:{Z+15}]")
        RED = 8192
        ts_mark(A, 1, 4, wait=False)
        A("v_and_b32 v5, 16, v0")
        A("v_cmp_ne_u32 vcc, 0, v5")
        A(f"s_mul_i32 s8, s3, {2*9*256}")
        A("v_lshlrev_b32 v7, 2, v0")
        A("v_add_u32 v6, s8, v7")
        A("s_nop 7")
        A("s_nop 3")
        for c in range(2):
            D = ACC + 32 * c; Z = D + 16
            for r in range(8):
                A(f"v_cndmask_b32 v{24+r}, v{D+r}, v{D+8+r}, vcc")
            for r in range(8):
                A(f"ds_write_b32 v6, v{24+r} offset:{RED + (c*9+r)*256}")
            A(f"ds_write_b32 v6, v{Z} offset:{RED + (c*9+8)*256}")
            A("s_nop 0")
        A("s_waitcnt lgkmcnt(0)")
        A("s_barrier")
        A("s_lshr_b32 s8, s3, 1")
        A("s_and_b32 s12, s3, 1")
        A("s_mul_i32 s13, s8, 9")
        A("s_lshl_b32 s14, s12, 2")
        A("s_add_u32 s13, s13, s14")
        A("s_lshl_b32 s13, s13, 8")
        A("v_add_u32 v6, s13, v7")
        for i in range(4):
            for w2 in range(4):
                A(f"ds_read_b32 v{24+4*i+w2}, v6 offset:{RED + w2*4608 + i*256}")
        A("s_mul_i32 s13, s8, 2304")
        A("v_add_u32 v8, s13, v7")
        for w2 in range(4):
            A(f"ds_read_b32 v{40+w2}, v8 offset:{RED + 2048 + w2*4608}")
        ts_mark(A, 1, 5, wait=False)
        srd(A, 44, P_WS, WS_KVZ, SZ_KVZ)
        A("v_bfe_u32 v9, v0, 4, 1")
        A("s_movk_i32 s13, 1088")
        A("v_mul_lo_u32 v9, v9, s13")
        A("v_and_b32 v10, 15, v0")
        A("v_lshl_add_u32 v9, v10, 2, v9")
        A("v_lshrrev_b32 v10, 5, v0")
        A("v_lshl_add_u32 v10, v10, 8, v9")
        A("s_lshl_b32 s13, s6, 2")
        A("s_lshl_b32 s14, s8, 1")
        A("s_add_u32 s13, s13, s14")
        A("s_mulk_i32 s13, 1088")
        A("s_lshl_b32 s14, s12, 9")
        A("s_add_u32 s14, s14, s13")
        A("s_waitcnt lgkmcnt(0)")
        for i in range(5):
            b0 = 24 + 4 * i
            A(f"v_add_f32 v{b0}, v{b0}, v{b0+1}")
            A(f"v_add_f32 v{b0+2}, v{b0+2}, v{b0+3}")
            A(f"v_add_f32 v{b0}, v{b0}, v{b0+2}")
        for i in range(4):
            A(f"buffer_atomic_add_f32 v{24+4*i}, v10, s[44:47], s14 offen offset:{i*64}")
        A("s_cmp_lg_u32 s12, 0")
        A("s_cbranch_scc1 k1kv_noz")
        A("s_mov_b64 exec, 0xffffffff")
        A(f"buffer_atomic_add_f32 v40, v9, s[44:47], s13 offen offset:1024")
        A("s_mov_b64 exec, -1")
        A.label("k1kv_noz")
    else:
        A("s_lshl_b32 s8, s3, 8")
        A("v_lshlrev_b32 v7, 2, v5")
        A("v_add_u32 v7, s8, v7")
        for c in range(2): A(f"ds_write_b32 v7, v{CS+c} offset:{STAT + c*128}")
        A("v_lshrrev_b32 v7, 5, v0")
        A("v_lshlrev_b32 v7, 4, v7")
        A("v_add_u32 v7, s8, v7")
        A("s_waitcnt lgkmcnt(0)")
        for c in range(2):
            for q in range(4):
                A(f"ds_read_b128 v[{SA+16*c+4*q}:{SA+16*c+4*q+3}], v7 offset:{STAT + c*128 + q*32}")
        A("s_waitcnt lgkmcnt(0)")
        PK = 176
        for c in range(2):
            for r in range(16):
                phi(ACC + 16 * c + r, RQ, RS, SA + 16 * c + r, T, T + 1)
            for r in range(8):
                A(f"v_cvt_pk_bf16_f32 v{PK+8*c+r}, v{ACC+16*c+2*r}, v{ACC+16*c+2*r+1}")
        srd(A, 44, P_WS, WS_PQ, SZ_PQ)
        A("s_lshl_b32 s8, s4, 2")
        A("s_add_u32 s8, s8, s3")
        A("s_lshl_b32 s8, s8, 5")
        A("s_lshl_b32 s12, s6, 2")
        A("s_add_u32 s8, s8, s12")
        A("s_lshl_b32 s8, s8, 10")
        A("v_lshlrev_b32 v7, 4, v0")
        for c in range(2):
            for hf in range(2):
                d = PK + 8 * c + 4 * hf
                A(f"buffer_store_dwordx4 v[{d}:{d+3}], v7, s[44:47], s8 offen offset:{(2*c+hf)*1024}")

def ksplit_reduce(A, ACC, TMP):
    A("s_lshl_b32 s8, s3, 12")
    A("v_lshlrev_b32 v7, 4, v0")
    A("v_add_u32 v6, s8, v7")
    for qd in range(4):
        for j in range(4):
            A(f"ds_write_b128 v6, v[{ACC+16*qd+4*j}:{ACC+16*qd+4*j+3}] offset:{qd*16384 + j*1024}")
    A("s_waitcnt lgkmcnt(0)")
    A("s_barrier")
    A("s_lshl_b32 s8, s3, 14")
    A("v_add_u32 v6, s8, v7")
    for w2 in range(4):
        for j in range(4):
            d = ACC + 16 * w2 + 4 * j
            A(f"ds_read_b128 v[{d}:{d+3}], v6 offset:{w2*4096 + j*1024}")
    A("s_waitcnt lgkmcnt(0)")
    for r in range(16):
        A(f"v_add_f32 v{ACC+r}, v{ACC+r}, v{ACC+16+r}")
        A(f"v_add_f32 v{ACC+32+r}, v{ACC+32+r}, v{ACC+48+r}")
    for r in range(16):
        A(f"v_add_f32 v{TMP+r}, v{ACC+r}, v{ACC+32+r}")

def gen_k2(A):
    A.label("k2_kernel")
    prologue(A, 256, "k2_end"); ts_mark(A, 2, 0, wait=False)
    A("s_and_b32 s4, s2, 7")
    A("s_lshr_b32 s5, s2, 3")
    A("s_lshr_b32 s6, s5, 3")
    A("s_lshl_b32 s4, s4, 2")
    A("s_add_u32 s4, s4, s6")
    A("s_and_b32 s5, s5, 7")
    srd(A, 36, P_WS, WS_KVZ, SZ_KVZ)
    srd(A, 40, P_WS, WS_PQ, SZ_PQ)
    srd(A, 44, P_WS, WS_WO, SZ_WO)
    srd(A, 48, P_X, 0, 2048 * 1024)
    srd(A, 52, P_WS, WS_H, SZ_H)
    srd(A, 56, P_WS, WS_STATS, SZ_STATS)
    A("v_lshlrev_b32 v2, 4, v0")
    A("v_and_b32 v3, 31, v0")
    A("v_min_u32 v4, 16, v3")
    A("v_lshlrev_b32 v4, 6, v4")
    A("v_lshrrev_b32 v5, 5, v0")
    A("v_lshl_add_u32 v4, v5, 4, v4")
    A("s_lshl_b32 s8, s3, 3")
    A("s_mul_i32 s9, s8, 1088")
    KR = 64
    for h in range(8):
        A(f"s_add_u32 s10, s9, {h*1088}")
        A(f"buffer_load_dwordx4 v[{KR+8*h}:{KR+8*h+3}], v4, s[36:39], s10 offen")
        A(f"buffer_load_dwordx4 v[{KR+8*h+4}:{KR+8*h+7}], v4, s[36:39], s10 offen offset:32")
    A("s_lshl_b32 s10, s4, 1")
    A("s_lshl_b32 s10, s10, 5")
    A("s_add_u32 s10, s10, s8")
    A("s_lshl_b32 s10, s10, 10")
    A("s_lshl_b32 s11, s5, 1")
    A("s_lshl_b32 s11, s11, 5")
    A("s_add_u32 s11, s11, s8")
    A("s_lshl_b32 s11, s11, 10")
    for h in range(8):
        for aa in range(2):
            A(f"s_add_u32 s12, s10, {aa*32768 + h*1024}")
            A(f"buffer_load_dwordx4 a[{(aa*8+h)*4}:{(aa*8+h)*4+3}], v2, s[40:43], s12 offen")
        for b in range(2):
            A(f"s_add_u32 s12, s11, {b*32768 + h*1024}")
            A(f"buffer_load_dwordx4 a[{64+(b*8+h)*4}:{64+(b*8+h)*4+3}], v2, s[44:47], s12 offen")
    XR = 200
    A("s_lshr_b32 s12, s3, 1")
    A("s_lshl_b32 s13, s4, 1")
    A("s_add_u32 s13, s13, s12")
    A("s_and_b32 s14, s3, 1")
    A("s_lshl_b32 s15, s13, 15")
    A("s_lshl_b32 s60, s5, 7")
    A("s_add_u32 s15, s15, s60")
    A("s_lshl_b32 s60, s14, 6")
    A("s_add_u32 s15, s15, s60")
    A("v_lshlrev_b32 v6, 10, v3")
    A("v_lshl_add_u32 v6, v5, 3, v6")
    for q in range(4):
        A(f"buffer_load_dwordx2 v[{XR+2*q}:{XR+2*q+1}], v6, s[48:51], s15 offen offset:{q*16}")
    ACC = 128
    for r in range(64): A(f"v_mov_b32 v{ACC+r}, 0")
    ts_mark(A, 2, 1, wait=False)
    A(f"s_waitcnt vmcnt({32+4})")
    ts_mark(A, 2, 2, wait=False)
    KA = 32
    for h in range(8):
        for j in range(4):
            A(f"v_cvt_pk_bf16_f32 v{KA+4*h+j}, v{KR+8*h+2*j}, v{KR+8*h+2*j+1}")
    TT = [64, 80, 96, 112]
    OF = [8, 12]
    EPS = 16
    A(f"v_mov_b32 v{EPS}, {f32(1e-6)}")
    def tm(h):
        for aa in range(2):
            T = TT[(h % 2) * 2 + aa]
            A(f"v_mfma_f32_32x32x16_bf16 v[{T}:{T+15}], v[{KA+4*h}:{KA+4*h+3}], a[{(aa*8+h)*4}:{(aa*8+h)*4+3}], 0")
    A(f"s_waitcnt vmcnt({4 + 28})")
    A("s_nop 1")
    tm(0)
    for h in range(8):
        if h + 1 < 8:
            A(f"s_waitcnt vmcnt({4 + 4*(8-h-2)})")
            tm(h + 1)
        else:
            A("s_nop 7"); A("s_nop 3")
        A("s_nop 7")
        for aa in range(2):
            T = TT[(h % 2) * 2 + aa]
            A(f"v_add_f32 v17, v{T+8}, v{EPS}")
            A("v_rcp_f32 v17, v17")
            A("s_nop 0")
            for r in range(8): A(f"v_mul_f32 v{T+r}, v{T+r}, v17")
            for j in range(4): A(f"v_cvt_pk_bf16_f32 v{OF[aa]+j}, v{T+2*j}, v{T+2*j+1}")
            A("s_nop 1")
            for b in range(2):
                ac = ACC + 16 * (2 * aa + b)
                A(f"v_mfma_f32_32x32x16_bf16 v[{ac}:{ac+15}], a[{64+(b*8+h)*4}:{64+(b*8+h)*4+3}], v[{OF[aa]}:{OF[aa]+3}], v[{ac}:{ac+15}]")
    ts_mark(A, 2, 3, wait=False)
    A("s_nop 7"); A("s_nop 3")
    ksplit_reduce(A, ACC, 64)
    ts_mark(A, 2, 4, wait=False)
    A("s_waitcnt vmcnt(0)")
    for q in range(4):
        for j in range(2):
            xr = XR + 2 * q + j
            A(f"v_lshlrev_b32 v8, 16, v{xr}")
            A(f"v_and_b32 v9, 0xffff0000, v{xr}")
            A(f"v_add_f32 v{64+4*q+2*j}, v{64+4*q+2*j}, v8")
            A(f"v_add_f32 v{64+4*q+2*j+1}, v{64+4*q+2*j+1}, v9")
    HP = 96
    for r in range(8): A(f"v_cvt_pk_bf16_f32 v{HP+r}, v{64+2*r}, v{64+2*r+1}")
    A("s_lshl_b32 s8, s13, 5")
    A("s_lshl_b32 s9, s5, 2")
    A("s_add_u32 s8, s8, s9")
    A("s_lshl_b32 s9, s14, 1")
    A("s_add_u32 s8, s8, s9")
    A("s_lshl_b32 s8, s8, 10")
    A(f"buffer_store_dwordx4 v[{HP}:{HP+3}], v2, s[52:55], s8 offen")
    A(f"buffer_store_dwordx4 v[{HP+4}:{HP+7}], v2, s[52:55], s8 offen offset:1024")
    A("v_mov_b32 v10, 0"); A("v_mov_b32 v11, 0")
    for r in range(8):
        A(f"v_dot2c_f32_bf16 v10, {ONES}, v{HP+r}")
        A(f"v_dot2c_f32_bf16 v11, v{HP+r}, v{HP+r}")
    A("s_nop 2")
    halves_sum(A, 10, 12); halves_sum(A, 11, 12)
    A("s_lshl_b32 s8, s13, 12")
    A("s_lshl_b32 s9, s5, 4")
    A("s_add_u32 s8, s8, s9")
    A("s_lshl_b32 s9, s14, 3")
    A("s_add_u32 s8, s8, s9")
    A("v_lshlrev_b32 v6, 7, v3")
    A("buffer_store_dwordx2 v[10:11], v6, s[56:59], s8 offen")
    A.label("k2_fin")
    ts_mark(A, 2, 7)
    A.label("k2_end")
    A("s_endpgm")

def gen_k3(A):
    A.label("k3_kernel")
    prologue(A, 256, "k3_end"); ts_mark(A, 3, 0, wait=False)
    A("s_and_b32 s4, s2, 7")
    A("s_lshr_b32 s5, s2, 3")
    A("s_lshr_b32 s6, s5, 4")
    A("s_lshl_b32 s4, s4, 1")
    A("s_add_u32 s4, s4, s6")
    A("s_and_b32 s5, s5, 15")
    srd(A, 36, P_WS, WS_WGU, SZ_WGU)
    srd(A, 40, P_WS, WS_H, SZ_H)
    srd(A, 44, P_WS, WS_STATS, SZ_STATS)
    srd(A, 48, P_WS, WS_CSP, SZ_CSP)
    srd(A, 52, P_WS, WS_ACT, SZ_ACT)
    A("v_lshlrev_b32 v2, 4, v0")
    A("s_lshl_b32 s6, s4, 2")
    A("s_add_u32 s6, s6, s3")
    A("s_mul_i32 s7, s5, 7")
    A("s_add_u32 s8, s7, s3")
    A("s_lshl_b32 s8, s8, 15")
    A("s_lshl_b32 s9, s7, 15")
    A("s_lshl_b32 s10, s3, 13")
    A("s_add_u32 s9, s9, s10")
    def dma(stage):
        slot = (stage % 4) * 32768
        for i in range(8):
            A(f"s_add_u32 m0, s10, {slot + i*1024}")
            if stage < 4: A(f"s_add_u32 s12, s8, {(8*stage + i)*1024}")
            else:         A(f"s_add_u32 s12, s9, {stage*32768 + i*1024}")
            A(f"buffer_load_dwordx4 v2, s[36:39], s12 offen lds")
    def hload(t):
        A(f"s_add_u32 s12, s11, {t*1024}")
        A(f"buffer_load_dwordx4 a[{4*t}:{4*t+3}], v2, s[40:43], s12 offen")
    A("s_lshl_b32 s11, s6, 15")
    A("v_and_b32 v3, 31, v0")
    A("v_lshrrev_b32 v5, 5, v0")
    A("v_lshlrev_b32 v4, 7, v3")
    A("v_lshl_add_u32 v4, v5, 6, v4")
    A("s_lshl_b32 s13, s6, 12")
    for j in range(4): A(f"buffer_load_dwordx4 v[{16+4*j}:{19+4*j}], v4, s[44:47], s13 offen offset:{j*16}")
    A("v_lshl_add_u32 v6, v1, 6, v0")
    A("v_min_u32 v6, 223, v6")
    A("v_lshlrev_b32 v6, 2, v6")
    A("s_mul_i32 s13, s7, 128")
    for kc in range(8):
        A(f"s_add_u32 s14, s13, {kc*3584*4}")
        A(f"buffer_load_dword v{32+kc}, v6, s[48:51], s14 offen")
    dma(0)
    for t in range(8): hload(t)
    dma(1)
    for t in range(8, 16): hload(t)
    A("s_waitcnt vmcnt(32)")
    for j in range(1, 4):
        A(f"v_add_f32 v16, v16, v{16+4*j}"); A(f"v_add_f32 v17, v17, v{17+4*j}")
        A(f"v_add_f32 v18, v18, v{18+4*j}"); A(f"v_add_f32 v19, v19, v{19+4*j}")
    A("v_add_f32 v16, v16, v18")
    A("v_add_f32 v17, v17, v19")
    halves_sum(A, 16, 20); halves_sum(A, 17, 20)
    A(f"v_mul_f32 v16, {f32(1/512)}, v16")
    A(f"v_mul_f32 v17, {f32(1/512)}, v17")
    A("v_fma_f32 v17, -v16, v16, v17")
    A("v_max_f32 v17, 0, v17")
    A(f"v_add_f32 v17, {f32(1e-5)}, v17")
    A("v_rsq_f32 v17, v17")
    A("s_nop 0")
    NM, C1, C2 = 8, 9, 10
    A(f"v_sub_f32 v{NM}, 0, v16")
    A(f"v_mul_f32 v{C1}, {f32(-LOG2E)}, v17")
    A(f"v_mul_f32 v{C2}, v17, v17")
    for kc in range(1, 8): A(f"v_add_f32 v32, v32, v{32+kc}")
    CSL = 131072
    A(f"ds_write_b32 v6, v32 offset:0")
    A.lines.pop()
    A(f"v_add_u32 v7, {CSL}, v6")
    A("ds_write_b32 v7, v32")
    dma(2)
    for t in range(16, 24): hload(t)
    dma(3)
    for t in range(24, 31): hload(t)
    A("s_waitcnt vmcnt(62)")
    hload(31)
    return_marker = len(A.lines)
    A("s_waitcnt lgkmcnt(0)")
    A(f"v_lshlrev_b32 v11, 4, v5")
    A(f"v_add_u32 v11, {CSL}, v11")
    A("v_mov_b32 v12, v2")
    A("v_add_u32 v13, 0x10000, v2")
    ACCS = [64 + 16 * i for i in range(7)]
    AF = [16 + 4 * i for i in range(8)]
    CSR = 48
    ET = 176
    def cinit(tile):
        for q in range(4): A(f"ds_read_b128 v[{CSR+4*q}:{CSR+4*q+3}], v11 offset:{tile*128 + q*32}")
        A("s_waitcnt lgkmcnt(0)")
        for r in range(16): A(f"v_mul_f32 v{ACCS[tile]+r}, v{NM}, v{CSR+r}")
    seq = []
    for c in range(4):
        for i in range(8):
            for w in range(4): seq.append((w, 8 * c + i, c, w * 8192 + i * 1024))
    for c in range(4, 7):
        for t in range(32): seq.append((c, t, c, t * 1024))
    def aread(n):
        tile, t, stage, off = seq[n]
        sl = stage % 4
        A(f"ds_read_b128 v[{AF[n%8]}:{AF[n%8]+3}], v{13 if sl >= 2 else 12} offset:{(sl%2)*32768 + off}")
    def epi(tile):
        L = []
        ac = ACCS[tile]; P = ET + 16
        for r in range(8):
            e = ET + r; m = ET + 8 + r
            L.append(f"v_mul_f32 v{e}, v{C1}, v{ac+r}")
            L.append(f"v_exp_f32 v{e}, v{e}")
            L.append(f"v_mul_f32 v{m}, v{ac+r}, v{ac+8+r}")
            L.append(f"v_add_f32 v{e}, 1.0, v{e}")
            L.append(f"v_rcp_f32 v{e}, v{e}")
            L.append(f"v_mul_f32 v{m}, v{m}, v{C2}")
            L.append(f"v_mul_f32 v{m}, v{m}, v{e}")
        for j in range(4): L.append(f"v_cvt_pk_bf16_f32 v{P+j}, v{ET+8+2*j}, v{ET+8+2*j+1}")
        L.append(f"s_add_u32 s12, s14, {tile*1024}")
        L.append(f"buffer_store_dwordx4 v[{P}:{P+3}], v2, s[52:55], s12 offen")
        L.append("s_nop 1")
        return L
    A("s_mul_i32 s14, s6, 112")
    A("s_add_u32 s14, s14, s7")
    A("s_lshl_b32 s14, s14, 10")
    ts_mark(A, 3, 1, wait=False)
    A("s_barrier")
    for tile in range(7): cinit(tile)
    vm_total = 64
    A(f"s_waitcnt vmcnt({63 if vm_total-16 > 63 else vm_total-16})")
    A("s_barrier")
    ts_mark(A, 3, 2, wait=False)
    PF = 4
    for n in range(PF): aread(n)
    pending = []
    N = len(seq)
    extra_vm = 0
    issued = 64
    vmq = []
    for c in range(4): vmq += [("dma", c)] * 8 + [("h", c)] * 8
    def need_stage(stage):
        last = max(i for i, x in enumerate(vmq) if x == ("dma", stage) or (stage < 4 and x == ("h", stage)))
        return len(vmq) - 1 - last
    for n in range(N):
        tile, t, stage, off = seq[n]
        if n + PF < N and seq[n + PF][2] != seq[n + PF - 1][2]:
            ns = seq[n + PF][2]
            A(f"s_waitcnt vmcnt({need_stage(ns)})")
            A("s_barrier")
            rs = ns + 2
            if 4 <= rs < 7:
                dma(rs); vmq += [("dma", rs)] * 8
        if n + PF < N: aread(n + PF)
        A(f"s_waitcnt lgkmcnt({min(PF, N - 1 - n)})")
        ac = ACCS[tile]
        A(f"v_mfma_f32_32x32x16_bf16 v[{ac}:{ac+15}], v[{AF[n%8]}:{AF[n%8]+3}], a[{4*t}:{4*t+3}], v[{ac}:{ac+15}]")
        if stage >= 4 and t == 12 and not pending:
            pass
        if n == 127: ts_mark(A, 3, 3, wait=False)
        if n == 128 + 2:
            for tl in range(4): pending += epi(tl)
        if n == 128 + 32 + 13: pending += epi(4)
        if n == 128 + 64 + 13: pending += epi(5)
        k = 0
        while pending and k < 5:
            l = pending.pop(0); A(l); k += 1
            if l.startswith("buffer_store"): vmq.append(("st", 0))
    ts_mark(A, 3, 4, wait=False)
    A("s_nop 7"); A("s_nop 3")
    for l in pending: A(l)
    for l in epi(6): A(l)
    A.label("k3_fin")
    ts_mark(A, 3, 7)
    A.label("k3_end")
    A("s_endpgm")

def gen_k4(A):
    A.label("k4_kernel")
    prologue(A, 256, "k4_end"); ts_mark(A, 4, 0, wait=False)
    A("s_and_b32 s4, s2, 7")
    A("s_lshr_b32 s5, s2, 3")
    A("s_lshr_b32 s6, s5, 3")
    A("s_lshl_b32 s4, s4, 2")
    A("s_add_u32 s4, s4, s6")
    A("s_and_b32 s5, s5, 7")
    srd(A, 36, P_WS, WS_ACT, SZ_ACT)
    srd(A, 40, P_WS, WS_WD, SZ_WD)
    srd(A, 44, P_WS, WS_H, SZ_H)
    srd(A, 48, P_OUT, 0, 2048 * 1024)
    A("v_lshlrev_b32 v2, 4, v0")
    A("s_mul_i32 s8, s3, 28")
    A("s_lshl_b32 s9, s4, 1")
    A("s_mul_i32 s9, s9, 112")
    A("s_add_u32 s9, s9, s8")
    A("s_lshl_b32 s9, s9, 10")
    A("s_lshl_b32 s10, s5, 1")
    A("s_mul_i32 s10, s10, 112")
    A("s_add_u32 s10, s10, s8")
    A("s_lshl_b32 s10, s10, 10")
    D = 14
    def loads(t):
        b = (t % D) * 16
        for aa in range(2):
            A(f"s_add_u32 s12, s9, {aa*112*1024 + t*1024}")
            A(f"buffer_load_dwordx4 a[{b+4*aa}:{b+4*aa+3}], v2, s[36:39], s12 offen")
        for bb in range(2):
            A(f"s_add_u32 s12, s10, {bb*112*1024 + t*1024}")
            A(f"buffer_load_dwordx4 a[{b+8+4*bb}:{b+8+4*bb+3}], v2, s[40:43], s12 offen")
    A("s_lshr_b32 s12, s3, 1")
    A("s_lshl_b32 s13, s4, 1")
    A("s_add_u32 s13, s13, s12")
    A("s_and_b32 s14, s3, 1")
    A("s_lshl_b32 s15, s13, 5")
    A("s_lshl_b32 s60, s5, 2")
    A("s_add_u32 s15, s15, s60")
    A("s_lshl_b32 s60, s14, 1")
    A("s_add_u32 s15, s15, s60")
    A("s_lshl_b32 s15, s15, 10")
    HR = 16
    A(f"buffer_load_dwordx4 v[{HR}:{HR+3}], v2, s[44:47], s15 offen")
    A(f"buffer_load_dwordx4 v[{HR+4}:{HR+7}], v2, s[44:47], s15 offen offset:1024")
    for t in range(D): loads(t)
    ACC = 128
    for r in range(64): A(f"v_mov_b32 v{ACC+r}, 0")
    ts_mark(A, 4, 1, wait=False)
    for t in range(28):
        if t == 1: ts_mark(A, 4, 2, wait=False)
        inflight = min(28, t + D) - (t + 1)
        A(f"s_waitcnt vmcnt({4*inflight})")
        b = (t % D) * 16
        for aa in range(2):
            for bb in range(2):
                ac = ACC + 16 * (2 * aa + bb)
                A(f"v_mfma_f32_32x32x16_bf16 v[{ac}:{ac+15}], a[{b+8+4*bb}:{b+8+4*bb+3}], a[{b+4*aa}:{b+4*aa+3}], v[{ac}:{ac+15}]")
        if t + D < 28: loads(t + D)
    ts_mark(A, 4, 3, wait=False)
    A("s_nop 7"); A("s_nop 3")
    ksplit_reduce(A, ACC, 64)
    ts_mark(A, 4, 4, wait=False)
    for r in range(8):
        A(f"v_lshlrev_b32 v8, 16, v{HR+r}")
        A(f"v_and_b32 v9, 0xffff0000, v{HR+r}")
        A(f"v_add_f32 v{64+2*r}, v{64+2*r}, v8")
        A(f"v_add_f32 v{64+2*r+1}, v{64+2*r+1}, v9")
    OP = 96
    for r in range(8): A(f"v_cvt_pk_bf16_f32 v{OP+r}, v{64+2*r}, v{64+2*r+1}")
    A("s_nop 1")
    for p in range(2):
        A(f"v_permlane32_swap_b32 v{OP+4*p}, v{OP+4*p+2}")
        A(f"v_permlane32_swap_b32 v{OP+4*p+1}, v{OP+4*p+3}")
    A("v_and_b32 v3, 31, v0")
    A("v_lshrrev_b32 v5, 5, v0")
    A("v_lshlrev_b32 v6, 10, v3")
    A("v_lshl_add_u32 v6, v5, 4, v6")
    A("s_lshl_b32 s8, s13, 15")
    A("s_lshl_b32 s9, s5, 7")
    A("s_add_u32 s8, s8, s9")
    A("s_lshl_b32 s9, s14, 6")
    A("s_add_u32 s8, s8, s9")
    for p in range(2):
        A(f"buffer_store_dwordx4 v[{OP+4*p}:{OP+4*p+3}], v6, s[48:51], s8 offen offset:{p*32}")
    A.label("k4_fin")
    ts_mark(A, 4, 7)
    A.label("k4_end")
    A("s_endpgm")

def kd(name, vgpr, accum):
    return f""".p2align 6
.amdhsa_kernel {name}
  .amdhsa_next_free_vgpr {vgpr}
  .amdhsa_next_free_sgpr 100
  .amdhsa_accum_offset {accum}
  .amdhsa_group_segment_fixed_size 0
  .amdhsa_kernarg_size 80
  .amdhsa_user_sgpr_count 2
  .amdhsa_user_sgpr_kernarg_segment_ptr 1
  .amdhsa_system_sgpr_workgroup_id_x 1
.end_amdhsa_kernel
"""

def strip_opt(lines):
    out = []; skip = False
    for l in lines:
        if l == ";OPT_BEGIN": skip = True; continue
        if l == ";OPT_END": skip = False; continue
        if not skip: out.append(l)
    return out

def build(path, extra_launches=0):
    kernels = [("k0_kernel", gen_k0, (93, 65536), 256, 256),
               ("k1_kernel", gen_k1, (256, 131072), 256, 256),
               ("k2_kernel", gen_k2, (256, 65536), 512, 256),
               ("k3_kernel", gen_k3, (256, 131072 + 1024), 512, 256),
               ("k4_kernel", gen_k4, (256, 65536), 512, 256)]
    hdr = open(f"cdna_kernels/{KNAME}.s.ref").read().split("\n")
    out = [l for l in hdr if l.startswith(";") and "@launch" not in l and "Override launch" not in l and "grid=ceil" not in l]
    for (n, g, (wg, lds), vg, ac) in kernels:
        out.append(f"; @launch kernel={n} grid=({wg},1,1) block=(256,1,1) lds={lds}")
    for i in range(extra_launches):
        out.append(f"; @launch kernel=kx_kernel grid=(256,1,1) block=(256,1,1) lds=0")
    out.append('.amdgcn_target "amdgcn-amd-amdhsa--gfx950"')
    out.append(".text")
    nerr = 0
    for (n, g, _, vg, ac) in kernels:
        A = Asm(); g(A)
        for variant in (A.lines, strip_opt(A.lines)):
            errs = check(variant, n)
            for e in errs[:40]: print("CHECK:", e)
            nerr += len(errs)
        out.append(f".globl {n}\n.p2align 8\n.type {n},@function")
        out.append(A.text())
    if extra_launches:
        out.append(".globl kx_kernel\n.p2align 8\n.type kx_kernel,@function\nkx_kernel:\n  s_endpgm")
    out.append('.section .rodata,"a"')
    for (n, g, _, vg, ac) in kernels: out.append(kd(n, vg, ac))
    if extra_launches: out.append(kd("kx_kernel", 8, 8))
    open(path, "w").write("\n".join(out) + "\n")
    print("written", path, "check errors:", nerr)

if __name__ == "__main__":
    if "--ts" in sys.argv: TS = True; sys.argv.remove("--ts")
    build(sys.argv[1] if len(sys.argv) > 1 else f"cdna_kernels/{KNAME}.s",
          int(sys.argv[2]) if len(sys.argv) > 2 else 0)
```

```python
import sys, struct
sys.path.insert(0, "dev")
from asmlib import *
import gen as G
from gen import (KNAME, MB, WS_KVZ, SZ_KVZ, WS_STATS, SZ_STATS, WS_CSP, SZ_CSP, WS_PQ, SZ_PQ, WS_H, SZ_H, WS_ACT, SZ_ACT,
                 WS_WGU, SZ_WGU, WS_WD, SZ_WD, WS_WO, SZ_WO, f32, LOG2E, ONES, P_X, P_WQKV, P_WO, P_BX, P_WG, P_WU, P_WD,
                 P_OUT, P_DBG, P_WS, prologue, srd, halves_sum, kd, strip_opt, WS_TS)
SZ_CSP = 16 * 3584 * 4
WS_CS = 0x7C000; SZ_CS = 3584 * 4
def ts(A, k, slot, wait=False): G.ts_mark(A, k, slot, wait)

class VMQ:
    def __init__(self): self.q = []
    def add(self, tag, n=1): self.q += [tag] * n
    def need(self, *tags):
        idx = [i for i, x in enumerate(self.q) if x in tags]
        return len(self.q) - 1 - max(idx)

import os
EXP = set(os.environ.get("EXP", "").split(","))
STP = " sc1" if "nosc1" not in EXP else ""
JOBI = int(os.environ.get("JOBI", "3"))
JOBF = int(os.environ.get("JOBF", "4"))
NPRE = int(os.environ.get("NPRE", "8"))
VFAST = int(os.environ.get("VFAST", "8"))
BC = "op_sel_hi:[1,0,1]"
def job_issue(A, jl):
    pass

def gen_k1(A):
    A.label("k1_kernel")
    prologue(A, 256, "k1_end")
    A("s_mov_b32 s59, s3")
    A("s_and_b32 s3, s3, 3")
    A("v_and_b32 v1, 3, v1")
    A("s_and_b32 s4, s2, 7")
    A("s_lshr_b32 s5, s2, 3")
    A("s_lshr_b32 s6, s4, 1"); A("s_lshl_b32 s6, s6, 3"); A("s_lshr_b32 s7, s5, 2"); A("s_add_u32 s6, s6, s7")
    A("s_and_b32 s4, s4, 1"); A("s_lshl_b32 s4, s4, 2"); A("s_and_b32 s5, s5, 3"); A("s_add_u32 s5, s5, s4")
    srd(A, 44, P_WS, WS_KVZ, SZ_KVZ)
    srd(A, 48, P_DBG, 0, 256)
    A("s_cmp_ge_u32 s59, 4"); A("s_cbranch_scc1 k1_loader")
    ts(A, 1, 0)
    A("s_cmp_eq_u32 s3, 0"); A("s_cbranch_scc1 k1_w0")
    A("s_cmp_eq_u32 s3, 1"); A("s_cbranch_scc1 k1_w1")
    A("s_cmp_eq_u32 s3, 2"); A("s_cbranch_scc1 k1_w2")
    for w in (3, 0, 1, 2):
        A.label(f"k1_w{w}")
        k1_wave(A, w)
        A("s_branch k1_fin")
    A.label("k1_loader")
    k1_loader(A)
    A("s_branch k1_end")
    A.label("k1_fin")
    ts(A, 1, 7, True)
    A.label("k1_end")
    A("s_endpgm")

def lds_signal(A, addr):
    A(f"v_mov_b32 v18, {addr}"); A("v_mov_b32 v123, 1")
    A("ds_write_b32 v18, v123")

def lds_wait4(A, addr, lab):
    A(f"v_mov_b32 v18, {addr}")
    A.label(lab)
    A("ds_read_b128 v[124:127], v18")
    A("s_waitcnt lgkmcnt(0)")
    A("v_and_b32 v124, v124, v125"); A("v_and_b32 v126, v126, v127"); A("v_and_b32 v124, v124, v126")
    A("s_nop 0")
    A("v_readfirstlane_b32 s14, v124")
    A("s_nop 3")
    A("s_cmp_eq_u32 s14, 0")
    A(f"s_cbranch_scc1 {lab}")

def lds_wait(A, addr, lab):
    A(f"v_mov_b32 v18, {addr}")
    A.label(lab)
    A("ds_read_b32 v123, v18")
    A("s_waitcnt lgkmcnt(0)")
    A("v_readfirstlane_b32 s14, v123")
    A("s_nop 3")
    A("s_cmp_eq_u32 s14, 0")
    A(f"s_cbranch_scc1 {lab}")

def k1_loader(A):
    ts(A, 0, 0)
    q = VMQ()
    srd(A, 36, P_X, 0, 2048 * 1024)
    srd(A, 40, P_WQKV, 0, 512 * 3072)
    A("s_cmp_lg_u32 s6, 0"); A("s_cbranch_scc1 k1_nozero")
    A("v_lshl_add_u32 v8, v1, 6, v0"); A("v_lshlrev_b32 v8, 4, v8")
    for i in range(4): A(f"v_mov_b32 v{12+i}, 0")
    A("s_mul_i32 s12, s5, 4352")
    A("buffer_store_dwordx4 v[12:15], v8, s[44:47], s12 offen sc1")
    A("v_add_u32 v8, 4096, v8"); A("v_cmp_gt_u32 vcc, 4352, v8")
    A("s_and_saveexec_b64 s[14:15], vcc"); A("s_cbranch_execz k1_z2")
    A("buffer_store_dwordx4 v[12:15], v8, s[44:47], s12 offen sc1")
    A.label("k1_z2"); A("s_mov_b64 exec, s[14:15]")
    A.label("k1_nozero")
    A("v_lshrrev_b32 v4, 3, v0"); A("v_and_b32 v5, 7, v0"); A("v_lshrrev_b32 v6, 4, v0"); A("v_xor_b32 v5, v5, v6")
    A("v_lshlrev_b32 v5, 4, v5"); A("v_lshl_add_u32 v2, v4, 10, v5"); A("v_xor_b32 v3, 64, v2")
    A("s_lshl_b32 s7, s6, 16"); A("s_lshl_b32 s12, s3, 14"); A("s_add_u32 s7, s7, s12")
    A(f"s_mul_i32 s8, s3, {16*3072}"); A("s_lshl_b32 s12, s5, 7"); A("s_add_u32 s8, s8, s12")
    A("s_lshl_b32 s9, s3, 11"); A(f"s_mul_i32 s10, s3, {6*1024}"); A("s_add_u32 s10, s10, 8192")
    def xdma(stage):
        slot = (stage % 4) * 32768
        for i in range(2):
            A(f"s_add_u32 m0, s9, {slot + i*1024}"); A(f"s_add_u32 s13, s7, {i*8192 + stage*128}")
            A(f"buffer_load_dwordx4 v{2+i}, s[36:39], s13 offen lds"); q.add(("st", stage))
    xdma(0)
    A("s_movk_i32 s12, 2731"); A("s_movk_i32 s13, 3072")
    for b in range(3):
        A(f"v_add_u32 v8, {64*b}, v0"); A("v_mul_lo_u32 v9, v8, s12"); A("v_lshrrev_b32 v9, 16, v9")
        A("v_mul_u32_u24 v10, 24, v9"); A("v_sub_u32 v10, v8, v10"); A(f"v_mul_lo_u32 v{4+b}, v9, s13")
        A("v_lshrrev_b32 v11, 3, v10"); A(f"v_lshl_add_u32 v{4+b}, v11, 10, v{4+b}")
        A("v_bfe_u32 v11, v10, 2, 1"); A("v_bfe_u32 v12, v9, 1, 1"); A("v_xor_b32 v11, v11, v12")
        A(f"v_lshl_add_u32 v{4+b}, v11, 6, v{4+b}"); A("v_and_b32 v11, 3, v10"); A(f"v_lshl_add_u32 v{4+b}, v11, 4, v{4+b}")
    def wdma(stage):
        slot = (stage % 4) * 32768
        for a in range(2):
            for b in range(3):
                A(f"s_add_u32 m0, s10, {slot + (a*3+b)*1024}")
                if b == 0: A(f"s_add_u32 s12, s8, {stage*64*3072 + a*8*3072}")
                else: A("s_nop 0")
                A(f"buffer_load_dwordx4 v{4+b}, s[40:43], s12 offen lds"); q.add(("st", stage))
    wdma(0)
    xdma(1); wdma(1)
    job = "nojob" not in EXP
    ts(A, 0, 1)
    A(f"s_waitcnt vmcnt({q.need(('st', 0))})")
    A("s_barrier")
    A("s_cmp_lg_u32 s6, 0"); A("s_cbranch_scc1 k1_noflag"); A("s_cmp_lg_u32 s3, 0"); A("s_cbranch_scc1 k1_noflag")
    A("v_mov_b32 v20, 1"); A("s_lshl_b32 s12, s5, 2"); A("v_mov_b32 v21, s12")
    A("s_mov_b64 exec, 1")
    A("buffer_store_dword v20, v21, s[48:51], 0 offen sc1")
    A("s_mov_b64 exec, -1")
    A.label("k1_noflag")
    for st in range(2, 4): xdma(st); wdma(st)
    if JOBI == -1 and job: job_issue(A, q)
    FL = 131072 + 24576 + 4096
    A("s_lshl_b32 s12, s3, 2"); A(f"s_add_u32 s12, s12, {FL + 64}"); A("v_mov_b32 v22, s12"); A("v_mov_b32 v23, 1")
    for st in range(7):
        A(f"s_waitcnt vmcnt({q.need(('st', st + 1))})")
        if st < 4: A("s_barrier")
        else: A(f"ds_write_b32 v22, v23 offset:{(st - 4) * 16}")
        if st + 4 < 8: xdma(st + 4); wdma(st + 4)
        if st == JOBI and job:
            ts(A, 0, 2)
            job_issue(A, q)
    if job:
        A("s_waitcnt vmcnt(0)")
        ts(A, 0, 3)
        job_finish(A)
    ts(A, 0, 7, True)

def k1_wave(A, w):
    wm, wn = w >> 1, w & 1
    q = VMQ()
    A("v_and_b32 v20, 31, v0"); A("v_lshrrev_b32 v21, 5, v0"); A("v_bfe_u32 v22, v0, 1, 3")
    A("v_xor_b32 v22, v22, v21"); A("v_lshlrev_b32 v22, 4, v22"); A("v_lshl_add_u32 v22, v20, 7, v22")
    A(f"v_add_u32 v8, {wm*4096}, v22")
    for t in range(1, 4): A(f"v_xor_b32 v{8+t}, {32*t}, v8")
    for t in range(4): A(f"v_add_u32 v{12+t}, 0x10000, v{8+t}")
    A("v_bfe_u32 v22, v0, 2, 2"); A("v_lshl_add_u32 v23, v21, 3, v22"); A("v_mul_u32_u24 v23, 384, v23")
    A("v_bfe_u32 v22, v0, 3, 1")
    if wn: A("v_xor_b32 v22, 1, v22")
    A("v_lshl_add_u32 v23, v22, 6, v23"); A("v_bfe_u32 v22, v0, 4, 1"); A("v_lshl_add_u32 v23, v22, 5, v23")
    A("v_and_b32 v22, 3, v0"); A("v_lshl_add_u32 v16, v22, 3, v23"); A("v_add_u32 v17, 0x10000, v16")
    XF = [24, 28]; WF = [32, 44]; ACC = 64
    RS, RQ, CS = 112, 114, 116
    RS2, RQ2, CS2 = 232, 234, 236
    for r in list(range(RS, CS + 3)) + list(range(RS2, CS2 + 3)): A(f"v_mov_b32 v{r}, 0")
    def reads(k):
        st, t = divmod(k, 4); sl = st % 4; hi = sl >= 2; off = (sl % 2) * 32768; b = k % 2
        L = [f"ds_read_b128 v[{XF[b]}:{XF[b]+3}], v{(12 if hi else 8)+t} offset:{off}"]
        for p in range(3):
            d = WF[b] + 4 * p; o = off + 8192 + t * 6144 + p * 128
            L.append(f"ds_read_b64_tr_b16 v[{d}:{d+1}], v{17 if hi else 16} offset:{o}")
            L.append(f"ds_read_b64_tr_b16 v[{d+2}:{d+3}], v{17 if hi else 16} offset:{o + 1536}")
        return L
    FL = 131072 + 24576 + 4096
    A(f"v_mov_b32 v18, {FL + w*16}"); A("v_mov_b32 v19, 0")
    A("ds_write_b64 v18, v[18:19]") if False else None
    A("v_mov_b32 v22, 0"); A("v_mov_b32 v23, 0")
    A("v_mov_b32 v24, 0"); A("v_mov_b32 v25, 0"); A("v_mov_b32 v26, 0"); A("v_mov_b32 v27, 0")
    A("ds_write_b128 v18, v[24:27]")
    A("ds_write_b128 v18, v[24:27] offset:64")
    if "nopf" not in EXP:
        srd(A, 36, P_X, 0, 2048 * 1024); srd(A, 40, P_WQKV, 0, 512 * 3072)
        A("s_lshr_b32 s12, s2, 3"); A("s_lshl_b32 s12, s12, 2"); A(f"s_add_u32 s12, s12, {w}")
        A("s_and_b32 s13, s2, 7")
        A("s_lshr_b32 s14, s13, 1"); A("s_lshl_b32 s14, s14, 19"); A("s_lshl_b32 s15, s12, 12"); A("s_add_u32 s14, s14, s15")
        A("v_lshlrev_b32 v22, 7, v20")
        A("buffer_load_dword v118, v22, s[36:39], s14 offen") if False else None
        if "noxpf" not in EXP: A("buffer_load_dword v240, v22, s[36:39], s14 offen"); q.add("pf")
        A("v_min_u32 v22, 47, v0"); A("v_mul_u32_u24 v23, 43, v22"); A("v_lshrrev_b32 v23, 9, v23")
        A("v_mul_u32_u24 v24, 12, v23"); A("v_sub_u32 v24, v22, v24")
        A("v_mul_u32_u24 v23, 3072, v23"); A("v_lshrrev_b32 v25, 2, v24"); A("v_lshl_add_u32 v23, v25, 10, v23")
        A("v_and_b32 v24, 3, v24"); A("v_lshl_add_u32 v23, v24, 7, v23")
        A("s_mul_i32 s14, s12, 12288"); A("s_and_b32 s13, s13, 1"); A("s_lshl_b32 s13, s13, 9"); A("s_add_u32 s14, s14, s13")
        A("buffer_load_dword v241, v23, s[40:43], s14 offen"); q.add("pf")
    ts(A, 1, 1)
    A("s_waitcnt lgkmcnt(0)")
    A("s_barrier")
    ts(A, 1, 2)
    for l in reads(0): A(l)
    A("s_waitcnt lgkmcnt(0)")
    for k in range(32):
        st, t = divmod(k, 4); b = k % 2
        if t == 3 and k + 1 < 32:
            if st < 4: A("s_barrier")
            else: lds_wait4(A, FL + 64 + (st - 4) * 16, f"k1_lf{w}_{st}")
        if k == 28: lds_signal(A, FL + w * 16 + 8)
        if k == 24:
            A("s_lshl_b32 s14, s5, 2"); A("v_mov_b32 v120, s14")
            A("buffer_load_dword v121, v120, s[48:51], 0 offen sc1"); q.add("flag")
        rd = reads(k + 1) if k + 1 < 32 else []
        x = XF[b]; wf = WF[b]
        c0 = "0" if k == 0 else None
        def C(r): return "0" if k == 0 else f"v[{r}:{r+15}]"
        A(f"v_mfma_f32_32x32x16_bf16 v[{ACC}:{ACC+15}], v[{wf}:{wf+3}], v[{x}:{x+3}], {C(ACC)}")
        for l in rd[:4]: A(l)
        A(f"v_mfma_f32_32x32x16_bf16 v[{ACC+16}:{ACC+31}], v[{x}:{x+3}], v[{wf+4}:{wf+7}], {C(ACC+16)}")
        for l in rd[4:]: A(l)
        A(f"v_mfma_f32_32x32x16_bf16 v[{ACC+32}:{ACC+47}], v[{x}:{x+3}], v[{wf+8}:{wf+11}], {C(ACC+32)}")
        if (k & 1) == wn and "nodots" not in EXP:
            for j in range(4):
                A(f"v_dot2c_f32_bf16 v{[RS, RS+1, RS2, RS2+1][j]}, {ONES}, v{x+j}")
                A(f"v_dot2c_f32_bf16 v{[RQ, RQ+1, RQ2, RQ2+1][j]}, v{x+j}, v{x+j}")
        if (k & 1) == wm and "nodots" not in EXP:
            for j in range(4):
                for p in range(3): A(f"v_dot2c_f32_bf16 v{(CS if j & 1 else CS2)+p}, {ONES}, v{wf+4*p+j}")
        A("s_waitcnt lgkmcnt(0)")
    ts(A, 1, 3)
    T = 122
    EX = 65536
    A("s_nop 2")
    A(f"v_add_f32 v{RS}, v{RS}, v{RS+1}"); A(f"v_add_f32 v{RS2}, v{RS2}, v{RS2+1}")
    A(f"v_add_f32 v{RQ}, v{RQ}, v{RQ+1}"); A(f"v_add_f32 v{RQ2}, v{RQ2}, v{RQ2+1}")
    for p in range(3): A(f"v_add_f32 v{CS+p}, v{CS+p}, v{CS2+p}")
    A(f"v_add_f32 v{RS}, v{RS}, v{RS2}"); A(f"v_add_f32 v{RQ}, v{RQ}, v{RQ2}")
    hs = [RS, RQ, CS, CS + 1, CS + 2]
    for i, r in enumerate(hs): A(f"v_mov_b32 v{24+i}, v{r}")
    A("s_nop 1")
    for i, r in enumerate(hs): A(f"v_permlane32_swap_b32 v{r}, v{24+i}")
    A("s_nop 1")
    for i, r in enumerate(hs): A(f"v_add_f32 v{r}, v{r}, v{24+i}")
    for o in range(4):
        if o != w: lds_wait(A, FL + o * 16 + 8, f"k1_d6{w}_{o}")
    A("v_lshlrev_b32 v22, 2, v20"); A(f"v_add_u32 v22, {EX}, v22")
    es = (wm * 2 + wn) * 256; eo = (wm * 2 + (1 - wn)) * 256
    ec = 1024 + (wn * 2 + wm) * 384; eco = 1024 + (wn * 2 + (1 - wm)) * 384
    A(f"ds_write_b32 v22, v{RS} offset:{es}"); A(f"ds_write_b32 v22, v{RQ} offset:{es+128}")
    for p in range(3): A(f"ds_write_b32 v22, v{CS+p} offset:{ec + p*128}")
    C1, CL, CN, CE = 176, 178, 180, 182
    for r, val in ((C1, 1.000001), (CL, LOG2E), (CN, -1.000001 * LOG2E), (CE, 1e-6)):
        A(f"v_mov_b32 v{r}, {f32(val)}"); A(f"v_mov_b32 v{r+1}, {f32(val)}")
    ON = 224
    for j in range(4): A(f"v_mov_b32 v{ON+j}, {ONES}")
    A("v_lshlrev_b32 v23, 4, v21"); A(f"v_add_u32 v23, {EX}, v23")
    lds_signal(A, FL + w * 16)
    lds_wait(A, FL + (wm * 2 + 1 - wn) * 16, f"k1_sp{w}a")
    lds_wait(A, FL + ((1 - wm) * 2 + wn) * 16, f"k1_sp{w}b")
    ts(A, 1, 6)
    A(f"ds_read_b32 v24, v22 offset:{eo}"); A(f"ds_read_b32 v25, v22 offset:{eo+128}")
    for p in range(3): A(f"ds_read_b32 v{26+p}, v22 offset:{eco + p*128}")
    A("s_waitcnt lgkmcnt(0)")
    A(f"v_add_f32 v{RS}, v{RS}, v24"); A(f"v_add_f32 v{RQ}, v{RQ}, v25")
    for p in range(3): A(f"v_add_f32 v{CS+p}, v{CS+p}, v{26+p}")
    PR = 4096 + w * 512
    A(f"ds_write_b32 v22, v{CS} offset:{PR+256}")
    A(f"v_mul_f32 v{RS}, {f32(1/512)}, v{RS}"); A(f"v_mul_f32 v{RQ}, {f32(1/512)}, v{RQ}")
    A(f"v_fma_f32 v{RQ}, -v{RS}, v{RS}, v{RQ}"); A(f"v_max_f32 v{RQ}, 0, v{RQ}"); A(f"v_add_f32 v{RQ}, {f32(1e-5)}, v{RQ}")
    A(f"v_rsq_f32 v{RQ}, v{RQ}"); A("s_nop 0")
    A(f"v_mul_f32 v{RS}, v{RS}, v{RQ}"); A(f"v_sub_f32 v{RS}, 0, v{RS}")
    A(f"ds_write_b32 v22, v{RQ} offset:{PR}"); A(f"ds_write_b32 v22, v{RS} offset:{PR+128}")
    SA, SB, SC = 128, 144, 160
    A(f"v_mov_b32 v184, v{RQ}"); A(f"v_mov_b32 v186, v{RS}"); A(f"v_mov_b32 v188, v{CS+1}"); A(f"v_mov_b32 v190, v{CS+2}")
    A("s_waitcnt lgkmcnt(0)")
    for qd in range(4):
        A(f"ds_read_b128 v[{SA+4*qd}:{SA+4*qd+3}], v23 offset:{PR + qd*32}")
        A(f"ds_read_b128 v[{SB+4*qd}:{SB+4*qd+3}], v23 offset:{PR + 128 + qd*32}")
    for qd in range(4): A(f"ds_read_b128 v[{SC+4*qd}:{SC+4*qd+3}], v23 offset:{PR + 256 + qd*32}")
    A("s_waitcnt lgkmcnt(4)")
    TP = 40
    def phi_vec(base, mode):
        prs = list(range(0, 16, 2))
        for i in prs:
            if mode == "q": A(f"v_pk_fma_f32 v[{TP+i}:{TP+i+1}], v[{SC+i}:{SC+i+1}], v[186:187], v[{C1}:{C1+1}] op_sel_hi:[1,0,1]")
            else:           A(f"v_pk_fma_f32 v[{TP+i}:{TP+i+1}], v[{SB+i}:{SB+i+1}], v[188:189], v[{C1}:{C1+1}] op_sel_hi:[1,0,1]")
        for i in prs:
            r = base + i
            if mode == "q": A(f"v_pk_fma_f32 v[{r}:{r+1}], v[{r}:{r+1}], v[184:185], v[{TP+i}:{TP+i+1}] op_sel_hi:[1,0,1]")
            else:           A(f"v_pk_fma_f32 v[{r}:{r+1}], v[{r}:{r+1}], v[{SA+i}:{SA+i+1}], v[{TP+i}:{TP+i+1}]")
        for i in prs:
            r = base + i
            A(f"v_pk_fma_f32 v[{TP+i}:{TP+i+1}], v[{r}:{r+1}], v[{CL}:{CL+1}], v[{CN}:{CN+1}]")
        for i in range(16): A(f"v_exp_f32_e64 v{TP+i}, v{TP+i} clamp")
        for i in prs: A(f"v_pk_add_f32 v[{TP+i}:{TP+i+1}], v[{TP+i}:{TP+i+1}], v[{CE}:{CE+1}]")
        for i in range(16): A(f"v_max_f32 v{base+i}, v{base+i}, v{TP+i}")
    PK = 200
    for r in range(0, 16, 2): A(f"v_pk_mul_f32 v[{24+r}:{24+r+1}], v[{SB+r}:{SB+r+1}], v[190:191] op_sel_hi:[1,0]")
    for r in range(0, 16, 2):
        rg = ACC + 32 + r
        A(f"v_pk_fma_f32 v[{rg}:{rg+1}], v[{rg}:{rg+1}], v[{SA+r}:{SA+r+1}], v[{24+r}:{24+r+1}]")
    phi_vec(ACC + 16, "k")
    for r in range(8): A(f"v_cvt_pk_bf16_f32 v{PK+16+r}, v{ACC+32+2*r}, v{ACC+32+2*r+1}")
    for r in range(8): A(f"v_cvt_pk_bf16_f32 v{PK+8+r}, v{ACC+16+2*r}, v{ACC+16+2*r+1}")
    A("s_nop 1")
    kp, vp = PK + 8, PK + 16; D = ACC + 16; Z = ACC + 32
    A(f"v_mfma_f32_32x32x16_bf16 v[{D}:{D+15}], v[{vp}:{vp+3}], v[{kp}:{kp+3}], 0")
    A(f"v_mfma_f32_32x32x16_bf16 v[{Z}:{Z+15}], v[{ON}:{ON+3}], v[{kp}:{kp+3}], 0")
    A(f"v_mfma_f32_32x32x16_bf16 v[{D}:{D+15}], v[{vp+4}:{vp+7}], v[{kp+4}:{kp+7}], v[{D}:{D+15}]")
    A(f"v_mfma_f32_32x32x16_bf16 v[{Z}:{Z+15}], v[{ON}:{ON+3}], v[{kp+4}:{kp+7}], v[{Z}:{Z+15}]")
    A("v_and_b32 v22, 16, v0"); A("v_cmp_ne_u32 vcc, 0, v22")
    A("v_lshlrev_b32 v19, 2, v0"); A(f"v_add_u32 v19, {EX + 8192}, v19")
    A("v_bfe_u32 v9, v0, 4, 1"); A("s_movk_i32 s13, 1088"); A("v_mul_lo_u32 v9, v9, s13")
    A("v_and_b32 v10, 15, v0"); A("v_lshl_add_u32 v9, v10, 2, v9"); A("v_lshl_add_u32 v10, v21, 8, v9")
    A("s_lshl_b32 s13, s5, 2"); A(f"s_add_u32 s13, s13, {2*wn}"); A("s_mulk_i32 s13, 1088")
    A("s_nop 7")
    for r in range(8): A(f"v_cndmask_b32 v{24+r}, v{D+r}, v{D+8+r}, vcc")
    keep = list(range(4 * wm, 4 * wm + 4)); send = [r for r in range(8) if r not in keep]
    mine = (wn * 2 + wm) * 2304; other = (wn * 2 + 1 - wm) * 2304
    for r in send: A(f"ds_write_b32 v19, v{24+r} offset:{mine + r*256}")
    if wm == 1: A(f"ds_write_b32 v19, v{Z} offset:{mine + 8*256}")
    lds_signal(A, FL + w * 16 + 4)
    lds_wait(A, FL + ((1 - wm) * 2 + wn) * 16 + 4, f"k1_sp{w}c")
    for i, r in enumerate(keep): A(f"ds_read_b32 v{32+i}, v19 offset:{other + r*256}")
    if wm == 0: A(f"ds_read_b32 v36, v19 offset:{other + 8*256}")
    A(f"s_waitcnt vmcnt({q.need('flag')})")
    A("s_waitcnt lgkmcnt(0)")
    for i, r in enumerate(keep): A(f"v_add_f32 v{24+r}, v{24+r}, v{32+i}")
    if wm == 0: A(f"v_add_f32 v36, v36, v{Z}")
    A.label(f"k1_poll{w}")
    A("v_readfirstlane_b32 s14, v121"); A("s_nop 3"); A("s_cmp_lg_u32 s14, 0"); A(f"s_cbranch_scc1 k1_go{w}")
    A("s_sleep 2"); A("buffer_load_dword v121, v120, s[48:51], 0 offen sc1"); A("s_waitcnt vmcnt(0)"); A(f"s_branch k1_poll{w}")
    A.label(f"k1_go{w}")
    for i, r in enumerate(keep):
        A(f"buffer_atomic_add_f32 v{24+r}, v10, s[44:47], s13 offen offset:{wm*512 + (r&3)*64}")
    if wm == 0:
        A("s_mov_b64 exec, 0xffffffff")
        A("buffer_atomic_add_f32 v36, v9, s[44:47], s13 offen offset:1024")
        A("s_mov_b64 exec, -1")
    ts(A, 1, 4)
    phi_vec(ACC, "q")
    for r in range(8): A(f"v_cvt_pk_bf16_f32 v{PK+r}, v{ACC+2*r}, v{ACC+2*r+1}")
    srd(A, 52, P_WS, WS_PQ, SZ_PQ)
    A("s_lshl_b32 s12, s6, 1"); A(f"s_add_u32 s12, s12, {wm}"); A("s_lshl_b32 s12, s12, 5")
    A("s_lshl_b32 s13, s5, 2"); A("s_add_u32 s12, s12, s13"); A(f"s_add_u32 s12, s12, {2*wn}"); A("s_lshl_b32 s12, s12, 10")
    A("v_lshlrev_b32 v18, 4, v0")
    A(f"buffer_store_dwordx4 v[{PK}:{PK+3}], v18, s[52:55], s12 offen{STP}")
    A(f"buffer_store_dwordx4 v[{PK+4}:{PK+7}], v18, s[52:55], s12 offen offset:1024{STP}")
    ts(A, 1, 5)

def job_issue(A, q):
    A("s_lshl_b32 s70, s3, 8"); A("s_add_u32 s70, s70, s2")
    A("s_lshl_b32 s71, s3, 13"); A("s_add_u32 s71, s71, 131072")
    A("v_lshrrev_b32 v28, 3, v0"); A("v_and_b32 v29, 7, v0"); A("v_lshlrev_b32 v29, 4, v29")
    A("v_lshl_add_u32 v30, v28, 10, v29")
    A("s_mov_b32 s72, 3")
    srd(A, 76, P_WO, 0, 0); srd(A, 80, P_WO, 0, 0)
    A("s_mov_b32 s88, 0"); A("s_mov_b32 s90, 0"); A("s_mov_b32 s91, 0")
    A("s_mov_b32 s62, 0"); A(f"s_mov_b32 s63, {131072 + 24576}")
    A("s_cmp_ge_u32 s70, 736"); A("s_cbranch_scc1 k1_js_done")
    A("s_movk_i32 s62, 1024"); A("s_mov_b32 s63, s71")
    A("s_cmp_lt_u32 s70, 448"); A("s_cbranch_scc1 k1_js_gu")
    A("s_mov_b32 s72, 1")
    A("s_cmp_lt_u32 s70, 672"); A("s_cbranch_scc1 k1_js_wd")
    srd(A, 76, P_WO, 0, 512 * 1024); srd(A, 80, P_WO, 0, 512 * 1024); srd(A, 84, P_WS, WS_WO, SZ_WO)
    A("s_mov_b32 s73, 32"); A("s_sub_u32 s70, s70, 672")
    A("s_branch k1_js_dd")
    A.label("k1_js_wd")
    srd(A, 76, P_WD, 0, 1792 * 1024); srd(A, 80, P_WD, 0, 1792 * 1024); srd(A, 84, P_WS, WS_WD, SZ_WD)
    A("s_mov_b32 s73, 112"); A("s_sub_u32 s70, s70, 448")
    A.label("k1_js_dd")
    A("s_lshr_b32 s74, s70, 3"); A("s_and_b32 s75, s70, 7")
    A("s_lshl_b32 s88, s74, 16"); A("s_lshl_b32 s89, s75, 7"); A("s_add_u32 s88, s88, s89")
    A("s_movk_i32 s90, 8192"); A("s_add_u32 s91, s88, 32768")
    A("s_branch k1_js_done")
    A.label("k1_js_gu")
    A("s_mov_b32 s72, 0")
    srd(A, 76, P_WG, 0, 512 * 3584); srd(A, 80, P_WU, 0, 512 * 3584); srd(A, 84, P_WS, WS_WGU, SZ_WGU)
    A("s_mul_i32 s74, s70, 2341"); A("s_lshr_b32 s74, s74, 16"); A("s_mul_i32 s75, s74, 28"); A("s_sub_u32 s75, s70, s75")
    A("s_movk_i32 s89, 3584"); A("v_mul_lo_u32 v30, v28, s89"); A("v_add_u32 v30, v30, v29")
    A(f"s_mul_i32 s88, s74, {32*3584}"); A("s_lshl_b32 s89, s75, 7"); A("s_add_u32 s88, s88, s89")
    A(f"s_movk_i32 s90, {8*3584}"); A("s_mov_b32 s91, s88")
    A.label("k1_js_done")
    for i in range(8):
        A("s_mov_b32 m0, s63")
        rg = 88 if i < 4 else 91
        A("s_add_u32 s63, s63, s62")
        A(f"buffer_load_dwordx4 v30, s[{76 if i < 4 else 80}:{79 if i < 4 else 83}], s{rg} offen lds"); q.add("job")
        A(f"s_add_u32 s{rg}, s{rg}, s90")

def job_finish(A):
    A("s_cmp_eq_u32 s72, 3"); A("s_cbranch_scc1 k1_jf_end")
    A("v_lshlrev_b32 v34, 4, v0")
    A("v_lshrrev_b32 v35, 5, v0"); A("v_bfe_u32 v36, v0, 2, 2"); A("v_lshl_add_u32 v35, v35, 2, v36"); A("v_lshlrev_b32 v35, 7, v35")
    A("v_and_b32 v36, 3, v0"); A("v_lshl_add_u32 v35, v36, 3, v35"); A("v_add_u32 v35, s71, v35"); A("v_bfe_u32 v36, v0, 4, 1")
    A("s_cmp_eq_u32 s72, 0"); A("s_cbranch_scc1 k1_jf_gu")
    A("v_lshl_add_u32 v35, v36, 5, v35")
    A("s_lshl_b32 s60, s75, 1"); A("s_mul_i32 s60, s60, s73"); A("s_lshl_b32 s61, s74, 2"); A("s_add_u32 s60, s60, s61")
    A("s_lshl_b32 s60, s60, 10"); A("s_lshl_b32 s61, s73, 10")
    for c in range(2):
        for i in range(4):
            d = 40 + (c * 4 + i) * 4
            A(f"ds_read_b64_tr_b16 v[{d}:{d+1}], v35 offset:{i*2048 + c*64}")
            A(f"ds_read_b64_tr_b16 v[{d+2}:{d+3}], v35 offset:{i*2048 + c*64 + 1024}")
    A("s_waitcnt lgkmcnt(0)")
    for c in range(2):
        for i in range(4):
            d = 40 + (c * 4 + i) * 4
            A(f"buffer_store_dwordx4 v[{d}:{d+3}], v34, s[84:87], s60 offen offset:{i*1024}{STP}")
        A("s_add_u32 s60, s60, s61")
    A("s_branch k1_jf_end")
    A.label("k1_jf_gu")
    srd(A, 76, P_WS, WS_CSP, SZ_CSP)
    A("v_lshl_add_u32 v35, v36, 12, v35")
    A("s_lshl_b32 s60, s75, 7"); A("s_lshl_b32 s61, s74, 1"); A("s_add_u32 s60, s60, s61"); A("s_lshl_b32 s60, s60, 10")
    for c in range(8): A(f"v_mov_b32 v{72+c}, 0")
    for c in range(4):
        for i in range(2):
            d = 40 + (c * 2 + i) * 4
            A(f"ds_read_b64_tr_b16 v[{d}:{d+1}], v35 offset:{i*2048 + c*32}")
            A(f"ds_read_b64_tr_b16 v[{d+2}:{d+3}], v35 offset:{i*2048 + c*32 + 1024}")
    A("s_waitcnt lgkmcnt(0)")
    for c in range(4):
        A(f"s_add_u32 s61, s60, {c*32*1024}")
        for i in range(2):
            d = 40 + (c * 2 + i) * 4
            A(f"buffer_store_dwordx4 v[{d}:{d+3}], v34, s[84:87], s61 offen offset:{i*1024}{STP}")
    for j in range(4):
        for i in range(2):
            for c in range(4): A(f"v_dot2c_f32_bf16 v{72+4*i+c}, {ONES}, v{40+(c*2+i)*4+j}")
    A("s_nop 2")
    for c in range(4): A(f"v_add_f32 v{72+c}, v{72+c}, v{76+c}")
    A("s_mulk_i32 s74, 3584"); A("s_lshl_b32 s61, s75, 7"); A("s_add_u32 s74, s74, s61"); A("s_lshl_b32 s74, s74, 2")
    A("v_and_b32 v32, 31, v0"); A("v_lshlrev_b32 v32, 2, v32")
    for c in range(4): halves_sum(A, 72 + c, 33)
    for c in range(4): A(f"buffer_store_dword v{72+c}, v32, s[76:79], s74 offen offset:{c*128}{STP}")
    A.label("k1_jf_end")

def ksplit_reduce(A, pre, ACC, OUT, TMP):
    A("v_lshlrev_b32 v7, 4, v0")
    for qd in range(1, 4):
        A(f"s_xor_b32 s8, s3, {qd}"); A("s_mulk_i32 s8, 12288"); A("v_add_u32 v6, s8, v7")
        for j in range(4):
            r = ACC + 16 * qd + 4 * j
            A(f"ds_write_b128 v6, {pre}[{r}:{r+3}] offset:{(qd-1)*4096 + j*1024}")
    if pre == "a":
        for r in range(16): A(f"v_accvgpr_read_b32 v{OUT+r}, a{ACC+r}")
    A("s_mul_i32 s8, s3, 12288"); A("v_add_u32 v6, s8, v7")
    A("s_waitcnt lgkmcnt(0)")
    A("s_barrier")
    for p in range(3):
        for j in range(4):
            d = TMP + 16 * p + 4 * j
            A(f"ds_read_b128 v[{d}:{d+3}], v6 offset:{p*4096 + j*1024}")
    own = OUT if pre == "a" else ACC
    A("s_waitcnt lgkmcnt(8)")
    for r in range(0, 16, 2): A(f"v_pk_add_f32 v[{OUT+r}:{OUT+r+1}], v[{own+r}:{own+r+1}], v[{TMP+r}:{TMP+r+1}]")
    A("s_waitcnt lgkmcnt(0)")
    for r in range(0, 16, 2): A(f"v_pk_add_f32 v[{TMP+16+r}:{TMP+16+r+1}], v[{TMP+16+r}:{TMP+16+r+1}], v[{TMP+32+r}:{TMP+32+r+1}]")
    for r in range(0, 16, 2): A(f"v_pk_add_f32 v[{OUT+r}:{OUT+r+1}], v[{OUT+r}:{OUT+r+1}], v[{TMP+16+r}:{TMP+16+r+1}]")

def prefetch(A, srdn, soff, dummy, lane128):
    A(f"buffer_load_dword v{dummy}, v{lane128}, s[{srdn}:{srdn+3}], s{soff} offen")

def gen_k2(A):
    A.label("k2_kernel")
    prologue(A, 256, "k2_end"); ts(A, 2, 0)
    A("s_and_b32 s4, s2, 7"); A("s_lshr_b32 s5, s2, 3"); A("s_mov_b32 s61, s4"); A("s_mov_b32 s62, s5")
    A("s_lshr_b32 s6, s5, 3"); A("s_lshl_b32 s4, s4, 2"); A("s_add_u32 s4, s4, s6"); A("s_and_b32 s5, s5, 7")
    srd(A, 36, P_WS, WS_KVZ, SZ_KVZ); srd(A, 40, P_WS, WS_PQ, SZ_PQ); srd(A, 44, P_WS, WS_WO, SZ_WO)
    srd(A, 48, P_X, 0, 2048 * 1024); srd(A, 52, P_WS, WS_H, SZ_H); srd(A, 56, P_WS, WS_STATS, SZ_STATS)
    srd(A, 64, P_WS, WS_WGU, SZ_WGU)
    q = VMQ()
    A("v_lshlrev_b32 v2, 4, v0"); A("v_and_b32 v3, 31, v0"); A("v_min_u32 v4, 16, v3"); A("v_lshlrev_b32 v4, 6, v4")
    A("v_lshrrev_b32 v5, 5, v0"); A("v_lshl_add_u32 v4, v5, 4, v4")
    A("s_lshl_b32 s8, s3, 3"); A("s_mul_i32 s9, s8, 1088")
    A("s_lshr_b32 s12, s3, 1"); A("s_and_b32 s16, s3, 1")
    A("s_lshl_b32 s13, s4, 1"); A("s_add_u32 s13, s13, s12")
    A("s_lshl_b32 s10, s13, 5"); A("s_add_u32 s10, s10, s8"); A("s_lshl_b32 s10, s10, 10")
    A("s_xor_b32 s14, s13, 1"); A("s_lshl_b32 s14, s14, 5"); A("s_add_u32 s14, s14, s8"); A("s_lshl_b32 s14, s14, 10")
    A("s_lshl_b32 s11, s5, 1"); A("s_add_u32 s11, s11, s16"); A("s_xor_b32 s15, s11, 1")
    A("s_lshl_b32 s11, s11, 5"); A("s_add_u32 s11, s11, s8"); A("s_lshl_b32 s11, s11, 10")
    A("s_lshl_b32 s15, s15, 5"); A("s_add_u32 s15, s15, s8"); A("s_lshl_b32 s15, s15, 10")
    KR = 64
    def loads(h):
        A(f"s_add_u32 s12, s9, {h*1088}")
        A(f"buffer_load_dwordx4 v[{KR+8*h}:{KR+8*h+3}], v4, s[36:39], s12 offen"); q.add(("kv", h))
        A(f"buffer_load_dwordx4 v[{KR+8*h+4}:{KR+8*h+7}], v4, s[36:39], s12 offen offset:32"); q.add(("kv", h))
        base = [10, 14, 11, 15]
        dst = [h * 4, (8 + h) * 4, 64 + h * 4, 64 + (8 + h) * 4]
        for i in range(4):
            sr = 40 if i < 2 else 44
            if h == 4: A(f"s_add_u32 s{base[i]}, s{base[i]}, 4096")
            A(f"buffer_load_dwordx4 a[{dst[i]}:{dst[i]+3}], v2, s[{sr}:{sr+3}], s{base[i]} offen offset:{(h%4)*1024}"); q.add(("fr", h))
    for h in range(3): loads(h)
    for r in range(64): A(f"v_accvgpr_write_b32 a{128+r}, 0")
    KA = 32; TT = [[128, 144], [160, 176]]; OF = [[8, 12], [16, 20]]; EPS = 24; XR = 200
    A(f"v_mov_b32 v{EPS}, {f32(1e-6)}")
    ts(A, 2, 1)
    def cv(h): return [f"v_cvt_pk_bf16_f32 v{KA+4*h+j}, v{KR+8*h+2*j}, v{KR+8*h+2*j+1}" for j in range(4)]
    def tm(h, aa):
        T = TT[h % 2][aa]
        return f"v_mfma_f32_32x32x16_bf16 v[{T}:{T+15}], v[{KA+4*h}:{KA+4*h+3}], a[{(aa*8+h)*4}:{(aa*8+h)*4+3}], 0"
    def mm(h, aa, b):
        ac = 128 + 16 * (2 * aa + b); o = OF[h % 2][aa]
        return f"v_mfma_f32_32x32x16_bf16 a[{ac}:{ac+15}], a[{64+(b*8+h)*4}:{64+(b*8+h)*4+3}], v[{o}:{o+3}], a[{ac}:{ac+15}]"
    def valu(h):
        L = []
        T0, T1 = TT[h % 2]; o0, o1 = OF[h % 2]
        L += [f"v_add_f32 v25, v{T0+8}, v{EPS}", f"v_add_f32 v26, v{T1+8}, v{EPS}", "v_rcp_f32 v25, v25", "v_rcp_f32 v26, v26", "s_nop 0"]
        for r in range(8): L += [f"v_mul_f32 v{T0+r}, v{T0+r}, v25", f"v_mul_f32 v{T1+r}, v{T1+r}, v26"]
        for j in range(4): L += [f"v_cvt_pk_bf16_f32 v{o0+j}, v{T0+2*j}, v{T0+2*j+1}", f"v_cvt_pk_bf16_f32 v{o1+j}, v{T1+2*j}, v{T1+2*j+1}"]
        return L
    A(f"s_waitcnt vmcnt({q.need(('fr', 0))})")
    for l in cv(0): A(l)
    ts(A, 2, 2)
    A("s_nop 1")
    A(tm(0, 0)); A(tm(0, 1))
    for h in range(9):
        if h + 3 < 8: loads(h + 3)
        if h == 5:
            A("s_lshl_b32 s17, s13, 15"); A("s_lshl_b32 s60, s5, 7"); A("s_add_u32 s17, s17, s60"); A("s_lshl_b32 s60, s16, 6"); A("s_add_u32 s17, s17, s60")
            A("v_lshlrev_b32 v6, 10, v3"); A("v_lshl_add_u32 v6, v5, 3, v6")
            for qd in range(4):
                A(f"buffer_load_dwordx2 v[{XR+2*qd}:{XR+2*qd+1}], v6, s[48:51], s17 offen offset:{qd*16}"); q.add("x")
            A("s_and_b32 s60, s61, 3"); A("s_mul_i32 s60, s60, 917504"); A("s_mul_i32 s63, s62, 28672"); A("s_add_u32 s60, s60, s63")
            A("s_mul_i32 s63, s3, 7168"); A("s_add_u32 s60, s60, s63")
            A("v_min_u32 v7, 55, v0"); A("v_lshlrev_b32 v7, 7, v7")
            A("buffer_load_dword v208, v7, s[64:67], s60 offen"); q.add("pf")
        if h == 6:
            srd(A, 68, P_WS, WS_CSP, SZ_CSP)
            A("s_lshl_b32 s60, s2, 2"); A("s_add_u32 s60, s60, s3"); A("s_lshl_b32 s63, s60, 8")
            A("v_lshlrev_b32 v7, 2, v0")
            A("s_cmp_ge_u32 s60, 56"); A("s_cbranch_scc1 k2_nocs1")
            A.lines.append(";OPT_BEGIN")
            for kc in range(16):
                A(f"s_add_u32 s60, s63, {kc*3584*4}")
                A(f"buffer_load_dword v{210+kc}, v7, s[68:71], s60 offen")
            A.lines.append(";OPT_END")
            A.label("k2_nocs1")
        ms = []
        if h + 1 < 8:
            A(f"s_waitcnt vmcnt({q.need(('fr', h + 1))})")
            for l in cv(h + 1): A(l)
            A("s_nop 1")
            ms += [tm(h + 1, 0), tm(h + 1, 1)]
        if h >= 1: ms += [mm(h - 1, 0, 0), mm(h - 1, 0, 1), mm(h - 1, 1, 0), mm(h - 1, 1, 1)]
        vl = valu(h) if h < 8 else []
        if h == 0:
            for m_ in ms: A(m_)
            A("s_nop 5")
            for l in vl: A(l)
            A("s_nop 1")
        else:
            per = (len(vl) + len(ms) - 1) // len(ms) if vl else 0
            for m_ in ms:
                A(m_)
                for _ in range(per):
                    if vl: A(vl.pop(0))
            for l in vl: A(l)
            A("s_nop 1")
    ts(A, 2, 3)
    A("s_nop 7"); A("s_nop 3")
    ksplit_reduce(A, "a", 128, 64, 80)
    ts(A, 2, 4)
    A(f"s_waitcnt vmcnt({q.need('x')})")
    for qd in range(4):
        for j in range(2):
            xr = XR + 2 * qd + j; t8 = 8 + 2 * ((2 * qd + j) % 4)
            A(f"v_lshlrev_b32 v{t8}, 16, v{xr}"); A(f"v_and_b32 v{t8+1}, 0xffff0000, v{xr}")
            A(f"v_pk_add_f32 v[{64+4*qd+2*j}:{64+4*qd+2*j+1}], v[{64+4*qd+2*j}:{64+4*qd+2*j+1}], v[{t8}:{t8+1}]")
    HP = 96
    for r in range(8): A(f"v_cvt_pk_bf16_f32 v{HP+r}, v{64+2*r}, v{64+2*r+1}")
    A("s_lshl_b32 s8, s13, 5"); A("s_lshl_b32 s9, s5, 2"); A("s_add_u32 s8, s8, s9"); A("s_lshl_b32 s9, s16, 1"); A("s_add_u32 s8, s8, s9"); A("s_lshl_b32 s8, s8, 10")
    A(f"buffer_store_dwordx4 v[{HP}:{HP+3}], v2, s[52:55], s8 offen{STP}")
    A(f"buffer_store_dwordx4 v[{HP+4}:{HP+7}], v2, s[52:55], s8 offen offset:1024{STP}")
    for r in range(16, 20): A(f"v_mov_b32 v{r}, 0")
    for r in range(8):
        A(f"v_dot2c_f32_bf16 v{16+(r&1)}, {ONES}, v{HP+r}"); A(f"v_dot2c_f32_bf16 v{18+(r&1)}, v{HP+r}, v{HP+r}")
    A("s_nop 2")
    A("v_add_f32 v10, v16, v17"); A("v_add_f32 v11, v18, v19")
    halves_sum(A, 10, 12); halves_sum(A, 11, 12)
    A("s_lshl_b32 s8, s13, 12"); A("s_lshl_b32 s9, s5, 4"); A("s_add_u32 s8, s8, s9"); A("s_lshl_b32 s9, s16, 3"); A("s_add_u32 s8, s8, s9")
    A("v_lshlrev_b32 v6, 7, v3")
    A(f"buffer_store_dwordx2 v[10:11], v6, s[56:59], s8 offen{STP}")
    A("s_lshl_b32 s60, s2, 2"); A("s_add_u32 s60, s60, s3"); A("s_cmp_ge_u32 s60, 56"); A("s_cbranch_scc1 k2_nocs2")
    A("s_waitcnt vmcnt(0)")
    A.lines.append(";OPT_BEGIN")
    for st_ in (8, 4, 2, 1):
        for kc in range(st_): A(f"v_add_f32 v{210+kc}, v{210+kc}, v{210+kc+st_}")
    srd(A, 68, P_WS, WS_CS, SZ_CS)
    A("v_lshlrev_b32 v7, 2, v0")
    A(f"buffer_store_dword v210, v7, s[68:71], s63 offen{STP}")
    A.lines.append(";OPT_END")
    A.label("k2_nocs2")
    ts(A, 2, 7, True)
    A.label("k2_end")
    A("s_endpgm")

def gen_k3(A):
    A.label("k3_kernel")
    prologue(A, 256, "k3_end"); ts(A, 3, 0)
    A("s_and_b32 s4, s2, 7"); A("s_lshr_b32 s5, s2, 3")
    A("s_lshr_b32 s6, s4, 2"); A("s_lshl_b32 s6, s6, 3"); A("s_lshr_b32 s7, s5, 2"); A("s_add_u32 s6, s6, s7")
    A("s_and_b32 s4, s4, 3"); A("s_lshl_b32 s4, s4, 2"); A("s_and_b32 s5, s5, 3"); A("s_add_u32 s5, s5, s4")
    A("s_mov_b32 s4, s6")
    srd(A, 36, P_WS, WS_WGU, SZ_WGU); srd(A, 40, P_WS, WS_H, SZ_H)
    q = VMQ()
    A("v_lshlrev_b32 v2, 4, v0")
    A("s_lshl_b32 s6, s4, 2"); A("s_add_u32 s6, s6, s3")
    A("s_mul_i32 s7, s5, 7")
    A("s_add_u32 s8, s7, s3"); A("s_lshl_b32 s8, s8, 15")
    A("s_lshl_b32 s9, s7, 15"); A("s_lshl_b32 s10, s3, 13"); A("s_add_u32 s9, s9, s10")
    A("s_lshl_b32 s11, s6, 15")
    def dma_groups(stage):
        slot = (stage % 4) * 32768; L = []
        for hlf in range(2):
            for i in range(4):
                g = []
                if i == 0:
                    g.append(f"s_add_u32 m0, s10, {slot + hlf*4096}")
                    g.append(f"s_add_u32 s12, s8, {(8*stage + 4*hlf)*1024}" if stage < 4 else f"s_add_u32 s12, s9, {stage*32768 + hlf*4096}")
                g.append(f"buffer_load_dwordx4 v2, s[36:39], s12 offen offset:{i*1024} lds")
                L.append((g, ("dma", stage)))
        return L
    def h_groups(c):
        L = []
        for t in range(8 * c, 8 * c + 8):
            g = []
            if t % 4 == 0: g.append(f"s_add_u32 s13, s11, {t*1024}")
            g.append(f"buffer_load_dwordx4 a[{4*t}:{4*t+3}], v2, s[40:43], s13 offen offset:{(t%4)*1024}")
            L.append((g, ("h", c)))
        return L
    def emit(gt):
        for l in gt[0]: A(l)
        q.add(gt[1])
    def inter(a, b):
        out = []
        for x, y in zip(a, b): out += [x, y]
        return out
    for gt in inter(dma_groups(0), h_groups(0)): emit(gt)
    srd(A, 44, P_WS, WS_STATS, SZ_STATS); srd(A, 48, P_WS, WS_CS, SZ_CS); srd(A, 52, P_WS, WS_ACT, SZ_ACT)
    SM = 212
    A("v_and_b32 v3, 31, v0"); A("v_lshrrev_b32 v5, 5, v0"); A("v_lshlrev_b32 v4, 7, v3"); A("v_lshl_add_u32 v4, v5, 6, v4")
    A("s_lshl_b32 s14, s6, 12")
    for j in range(4): A(f"buffer_load_dwordx4 v[{SM+4*j}:{SM+4*j+3}], v4, s[44:47], s14 offen offset:{j*16}"); q.add("small")
    A("v_lshl_add_u32 v6, v1, 6, v0"); A("v_min_u32 v6, 223, v6"); A("v_lshlrev_b32 v6, 2, v6")
    A("s_mul_i32 s14, s7, 128")
    A(f"buffer_load_dword v{SM+16}, v6, s[48:51], s14 offen"); q.add("small")
    vpend = inter(dma_groups(1), h_groups(1))
    for _ in range(NPRE): emit(vpend.pop(0))
    vpend += inter(dma_groups(2), h_groups(2)) + inter(dma_groups(3), h_groups(3))
    NM, C1, C2 = 8, 9, 10
    CSL = 131072
    A(f"v_add_u32 v7, {CSL}, v6")
    A(f"v_lshlrev_b32 v11, 4, v5"); A(f"v_add_u32 v11, {CSL}, v11")
    A("v_mov_b32 v12, v2"); A("v_add_u32 v13, 0x10000, v2")
    ACCS = [64 + 16 * i for i in range(7)]
    NAF = 12
    AF = [16 + 4 * i for i in range(NAF)]
    CSR = 176; ET = 192
    A("s_mul_i32 s14, s6, 112"); A("s_add_u32 s14, s14, s7"); A("s_lshl_b32 s14, s14, 10")
    st_l = []
    for j in range(1, 4):
        for e in range(4): st_l.append(f"v_add_f32 v{SM+e}, v{SM+e}, v{SM+4*j+e}")
    st_l += [f"v_add_f32 v{SM}, v{SM}, v{SM+2}", f"v_add_f32 v{SM+1}, v{SM+1}, v{SM+3}",
             f"v_mov_b32 v{SM+4}, v{SM}", f"v_mov_b32 v{SM+5}, v{SM+1}", "s_nop 1",
             f"v_permlane32_swap_b32 v{SM}, v{SM+4}", f"v_permlane32_swap_b32 v{SM+1}, v{SM+5}", "s_nop 1",
             f"v_add_f32 v{SM}, v{SM}, v{SM+4}", f"v_add_f32 v{SM+1}, v{SM+1}, v{SM+5}",
             f"v_mul_f32 v{SM}, {f32(1/512)}, v{SM}", f"v_mul_f32 v{SM+1}, {f32(1/512)}, v{SM+1}",
             f"v_fma_f32 v{SM+1}, -v{SM}, v{SM}, v{SM+1}", f"v_max_f32 v{SM+1}, 0, v{SM+1}", f"v_add_f32 v{SM+1}, {f32(1e-5)}, v{SM+1}",
             f"v_rsq_f32 v{SM+1}, v{SM+1}", f"v_sub_f32 v{NM}, 0, v{SM}",
             f"v_mul_f32 v{C1}, {f32(-LOG2E)}, v{SM+1}", f"v_mul_f32 v{C2}, v{SM+1}, v{SM+1}", f"ds_write_b32 v7, v{SM+16}"]
    seq = []
    for c in range(4):
        for i in range(8):
            for w in range(4): seq.append((w, 8 * c + i, c, w * 8192 + i * 1024))
    for c in range(4, 7):
        for t in range(32): seq.append((c, t, c, t * 1024))
    def aread(n):
        tile, t, stage, off = seq[n]; sl = stage % 4
        A(f"ds_read_b128 v[{AF[n%NAF]}:{AF[n%NAF]+3}], v{13 if sl >= 2 else 12} offset:{(sl%2)*32768 + off}")
    def epi(tile, n0):
        L = []; ac = ACCS[tile]; P = ET + 16; R8 = range(8)
        L += [(n0, f"ds_read_b128 v[{CSR+4*qd}:{CSR+4*qd+3}], v11 offset:{tile*128 + qd*32}") for qd in range(4)]
        L += [("sync", None)]
        M = []
        M += [f"v_fmac_f32 v{ac+r}, v{NM}, v{CSR+r}" for r in range(16)]
        M += [f"v_mul_f32 v{ET+r}, v{C1}, v{ac+r}" for r in R8]
        M += [x for r in R8 for x in (f"v_exp_f32 v{ET+r}, v{ET+r}", f"v_mul_f32 v{ET+8+r}, v{ac+r}, v{ac+8+r}")]
        M += [x for r in R8 for x in (f"v_add_f32 v{ET+r}, 1.0, v{ET+r}", f"v_mul_f32 v{ET+8+r}, v{ET+8+r}, v{C2}")]
        M += [f"v_rcp_f32 v{ET+r}, v{ET+r}" for r in R8]
        M += [f"v_mul_f32 v{ET+8+r}, v{ET+8+r}, v{ET+r}" for r in R8]
        M += [f"v_cvt_pk_bf16_f32 v{P+j}, v{ET+8+2*j}, v{ET+8+2*j+1}" for j in range(4)]
        M += [f"s_add_u32 s15, s14, {tile*1024}", f"buffer_store_dwordx4 v[{P}:{P+3}], v2, s[52:55], s15 offen{STP}"]
        return L + [(n0, m) for m in M]
    cost = lambda l: 2 if (l.startswith("v_exp") or l.startswith("v_rcp") or l.startswith("v_rsq")) else 1
    ts(A, 3, 1)
    A(f"s_waitcnt vmcnt({q.need(('dma', 0), ('h', 0))})")
    A("s_barrier")
    ts(A, 3, 2)
    PF = 8
    for n in range(PF): aread(n)
    N = len(seq)
    pend = []
    started = set()
    hold = -1
    for n in range(N):
        tile, t, stage, off = seq[n]
        budget = 6
        if n + PF < N and seq[n + PF][2] != seq[n + PF - 1][2]:
            ns = seq[n + PF][2]
            tags = [("dma", ns)] + ([("h", ns)] if ns < 4 else []) + (["small"] if ns == 1 else [])
            while any(gt[1] in tags for gt in vpend): emit(vpend.pop(0))
            A(f"s_waitcnt vmcnt({q.need(*tags)})")
            A("s_barrier")
            rs = ns + 2
            if 4 <= rs < 7: vpend += dma_groups(rs)
            budget -= 2
            if ns == 1: pend += [(n, l) for l in st_l]
        if n + PF < N: aread(n + PF); budget -= 1
        if n % 2 == 0:
            A(f"s_waitcnt lgkmcnt({max(0, min(PF, N - 1 - n) - 1)})"); budget -= 1
        ac = ACCS[tile]
        c_in = f"v[{ac}:{ac+15}]" if tile in started else "0"
        started.add(tile)
        A(f"v_mfma_f32_32x32x16_bf16 v[{ac}:{ac+15}], v[{AF[n%NAF]}:{AF[n%NAF]+3}], a[{4*t}:{4*t+3}], {c_in}")
        if n == 127: ts(A, 3, 3)
        if n == 159: ts(A, 3, 5)
        if n == 191: ts(A, 3, 6)
        rate = 1 if (n < VFAST) else 2
        if vpend and n % rate == rate - 1:
            gt = vpend.pop(0); emit(gt); budget -= len(gt[0])
        if n == 128 + 2:
            for tl in range(4): pend += epi(tl, n)
        if n == 128 + 32 + 13: pend += epi(4, n)
        if n == 128 + 64 + 13: pend += epi(5, n)
        if "k3nofill" in EXP and n > 100: pend = []
        while pend and budget > 0 and n >= hold:
            e, l = pend.pop(0)
            if e == "sync":
                hold = n + PF + 2; break
            A(l); budget -= cost(l)
            if l.startswith("buffer_store"): q.add("st")
    ts(A, 3, 4)
    A("s_nop 7"); A("s_nop 3")
    A("s_waitcnt lgkmcnt(0)")
    for e, l in pend + epi(6, 0):
        if e == "sync": A("s_waitcnt lgkmcnt(0)")
        else: A(l)
    ts(A, 3, 7, True)
    A.label("k3_end")
    A("s_endpgm")

def gen_k4(A):
    A.label("k4_kernel")
    prologue(A, 256, "k4_end"); ts(A, 4, 0)
    A("s_and_b32 s4, s2, 7"); A("s_lshr_b32 s5, s2, 3"); A("s_lshr_b32 s6, s5, 3"); A("s_lshl_b32 s4, s4, 2"); A("s_add_u32 s4, s4, s6"); A("s_and_b32 s5, s5, 7")
    srd(A, 36, P_WS, WS_ACT, SZ_ACT); srd(A, 40, P_WS, WS_WD, SZ_WD); srd(A, 44, P_WS, WS_H, SZ_H); srd(A, 48, P_OUT, 0, 2048 * 1024)
    q = VMQ()
    A("v_lshlrev_b32 v2, 4, v0")
    A("s_mul_i32 s8, s3, 28")
    A("s_lshr_b32 s13, s3, 1"); A("s_lshl_b32 s14, s4, 1"); A("s_add_u32 s13, s14, s13")
    A("s_and_b32 s14, s3, 1")
    A("s_mul_i32 s9, s13, 112"); A("s_add_u32 s9, s9, s8"); A("s_lshl_b32 s9, s9, 10")
    A("s_xor_b32 s11, s13, 1"); A("s_mul_i32 s11, s11, 112"); A("s_add_u32 s11, s11, s8"); A("s_lshl_b32 s11, s11, 10")
    A("s_lshl_b32 s10, s5, 1"); A("s_add_u32 s10, s10, s14"); A("s_xor_b32 s12, s10, 1")
    A("s_mul_i32 s10, s10, 112"); A("s_add_u32 s10, s10, s8"); A("s_lshl_b32 s10, s10, 10")
    A("s_mul_i32 s12, s12, 112"); A("s_add_u32 s12, s12, s8"); A("s_lshl_b32 s12, s12, 10")
    D = 5
    bases = [9, 11, 10, 12]
    def loads(t):
        b = (t % D) * 16
        for i in range(4):
            sr = 36 if i < 2 else 40
            if t % 4 == 0 and t > 0: A(f"s_add_u32 s{bases[i]}, s{bases[i]}, 4096")
            A(f"buffer_load_dwordx4 a[{b+4*i}:{b+4*i+3}], v2, s[{sr}:{sr+3}], s{bases[i]} offen offset:{(t%4)*1024}"); q.add(("g", t))
    for t in range(D): loads(t)
    A("s_lshl_b32 s15, s13, 5"); A("s_lshl_b32 s60, s5, 2"); A("s_add_u32 s15, s15, s60"); A("s_lshl_b32 s60, s14, 1"); A("s_add_u32 s15, s15, s60"); A("s_lshl_b32 s15, s15, 10")
    HR = 16
    ACC = 128
    for r in range(64): A(f"v_mov_b32 v{ACC+r}, 0")
    ts(A, 4, 1)
    for t in range(28):
        A(f"s_waitcnt vmcnt({q.need(('g', t))})")
        if t == 1: ts(A, 4, 2)
        b = (t % D) * 16
        for aa in range(2):
            for bb in range(2):
                ac = ACC + 16 * (2 * aa + bb)
                A(f"v_mfma_f32_32x32x16_bf16 v[{ac}:{ac+15}], a[{b+8+4*bb}:{b+8+4*bb+3}], a[{b+4*aa}:{b+4*aa+3}], v[{ac}:{ac+15}]")
        if t + D < 28: loads(t + D)
        if t == 22:
            A(f"buffer_load_dwordx4 v[{HR}:{HR+3}], v2, s[44:47], s15 offen"); q.add("h")
            A(f"buffer_load_dwordx4 v[{HR+4}:{HR+7}], v2, s[44:47], s15 offen offset:1024"); q.add("h")
    ts(A, 4, 3)
    A("s_nop 7"); A("s_nop 3")
    ksplit_reduce(A, "v", ACC, 64, 80)
    ts(A, 4, 4)
    A("s_waitcnt vmcnt(0)")
    for r in range(8):
        t8 = 8 + 2 * (r % 4)
        A(f"v_lshlrev_b32 v{t8}, 16, v{HR+r}"); A(f"v_and_b32 v{t8+1}, 0xffff0000, v{HR+r}")
        A(f"v_pk_add_f32 v[{64+2*r}:{64+2*r+1}], v[{64+2*r}:{64+2*r+1}], v[{t8}:{t8+1}]")
    OP = 96
    for r in range(8): A(f"v_cvt_pk_bf16_f32 v{OP+r}, v{64+2*r}, v{64+2*r+1}")
    A("s_nop 1")
    for p in range(2):
        A(f"v_permlane32_swap_b32 v{OP+4*p}, v{OP+4*p+2}"); A(f"v_permlane32_swap_b32 v{OP+4*p+1}, v{OP+4*p+3}")
    A("v_and_b32 v3, 31, v0"); A("v_lshrrev_b32 v5, 5, v0"); A("v_lshlrev_b32 v6, 10, v3"); A("v_lshl_add_u32 v6, v5, 4, v6")
    A("s_lshl_b32 s8, s13, 15"); A("s_lshl_b32 s9, s5, 7"); A("s_add_u32 s8, s8, s9"); A("s_lshl_b32 s9, s14, 6"); A("s_add_u32 s8, s8, s9")
    for p in range(2): A(f"buffer_store_dwordx4 v[{OP+4*p}:{OP+4*p+3}], v6, s[48:51], s8 offen offset:{p*32}{STP}")
    ts(A, 4, 7, True)
    A.label("k4_end")
    A("s_endpgm")

def build(path, extra_launches=0):
    kernels = [("k1_kernel", gen_k1, (256, 163840, 512), 256, 256),
               ("k2_kernel", gen_k2, (256, 49152, 256), 512, 256),
               ("k3_kernel", gen_k3, (256, 131072 + 1024, 256), 512, 256),
               ("k4_kernel", gen_k4, (256, 49152, 256), 512, 256)]
    hdr = open(f"cdna_kernels/{KNAME}.s.ref").read().split("\n")
    out = [l for l in hdr if l.startswith(";") and "@launch" not in l and "Override launch" not in l and "grid=ceil" not in l]
    for (n, g, (wg, lds, thr), vg, ac) in kernels:
        out.append(f"; @launch kernel={n} grid=({wg},1,1) block=({thr},1,1) lds={lds}")
    out.append('.amdgcn_target "amdgcn-amd-amdhsa--gfx950"'); out.append(".text")
    nerr = 0
    for (n, g, _, vg, ac) in kernels:
        A = Asm(); g(A)
        A.lines = [l for l in A.lines if l is not None]
        for variant in (A.lines, strip_opt(A.lines)):
            errs = check(variant, n)
            for e in errs[:30]: print("CHECK:", e)
            nerr += len(errs)
        out.append(f".globl {n}\n.p2align 8\n.type {n},@function"); out.append(A.text())
    out.append('.section .rodata,"a"')
    for (n, g, _, vg, ac) in kernels: out.append(kd(n, vg, ac))
    open(path, "w").write("\n".join(out) + "\n")
    print("written", path, "check errors:", nerr)
    import subprocess
    r = subprocess.run(["clang", "-x", "assembler", "-target", "amdgcn-amd-amdhsa", "-mcpu=gfx950", "-c", path, "-o", "x.o"], capture_output=True, text=True)
    if r.returncode: print(r.stderr[:2000])

if __name__ == "__main__":
    if "--ts" in sys.argv: G.TS = True; sys.argv.remove("--ts")
    build(sys.argv[1])
```

```python
import sys, struct
sys.path.insert(0, "dev")
from asmlib import *
import gen as G
from gen import (KNAME, MB, WS_KVZ, SZ_KVZ, WS_STATS, SZ_STATS, WS_CSP, SZ_CSP, WS_PQ, SZ_PQ, WS_H, SZ_H, WS_ACT, SZ_ACT,
                 WS_WGU, SZ_WGU, WS_WD, SZ_WD, WS_WO, SZ_WO, f32, LOG2E, ONES, P_X, P_WQKV, P_WO, P_BX, P_WG, P_WU, P_WD,
                 P_OUT, P_DBG, P_WS, prologue, srd, halves_sum, kd, strip_opt, WS_TS)
SZ_CSP = 16 * 3584 * 4
WS_CS = 0x7C000; SZ_CS = 3584 * 4
def ts(A, k, slot, wait=False): G.ts_mark(A, k, slot, wait)

class VMQ:
    def __init__(self): self.q = []
    def add(self, tag, n=1): self.q += [tag] * n
    def need(self, *tags):
        idx = [i for i, x in enumerate(self.q) if x in tags]
        return len(self.q) - 1 - max(idx)

import os
EXP = set(os.environ.get("EXP", "").split(","))
STP = " sc1" if "nosc1" not in EXP else ""
JOBI = int(os.environ.get("JOBI", "3"))
JOBF = int(os.environ.get("JOBF", "4"))
NPRE = int(os.environ.get("NPRE", "8"))
VFAST = int(os.environ.get("VFAST", "8"))
BC = "op_sel_hi:[1,0,1]"
def job_issue(A, jl):
    pass

def gen_k1(A):
    A.label("k1_kernel")
    prologue(A, 256, "k1_end")
    A("s_mov_b32 s59, s3")
    A("s_and_b32 s3, s3, 3")
    A("v_and_b32 v1, 3, v1")
    A("s_and_b32 s4, s2, 7")
    A("s_lshr_b32 s5, s2, 3")
    A("s_lshr_b32 s6, s4, 1"); A("s_lshl_b32 s6, s6, 3"); A("s_lshr_b32 s7, s5, 2"); A("s_add_u32 s6, s6, s7")
    A("s_and_b32 s4, s4, 1"); A("s_lshl_b32 s4, s4, 2"); A("s_and_b32 s5, s5, 3"); A("s_add_u32 s5, s5, s4")
    srd(A, 44, P_WS, WS_KVZ, SZ_KVZ)
    srd(A, 48, P_DBG, 0, 256)
    A("s_cmp_ge_u32 s59, 4"); A("s_cbranch_scc1 k1_loader")
    ts(A, 1, 0)
    A("s_cmp_eq_u32 s3, 0"); A("s_cbranch_scc1 k1_w0")
    A("s_cmp_eq_u32 s3, 1"); A("s_cbranch_scc1 k1_w1")
    A("s_cmp_eq_u32 s3, 2"); A("s_cbranch_scc1 k1_w2")
    for w in (3, 0, 1, 2):
        A.label(f"k1_w{w}")
        k1_wave(A, w)
        A("s_branch k1_fin")
    A.label("k1_loader")
    k1_loader(A)
    A("s_branch k1_end")
    A.label("k1_fin")
    ts(A, 1, 7, True)
    A.label("k1_end")
    A("s_endpgm")

def lds_signal(A, addr):
    A(f"v_mov_b32 v18, {addr}"); A("v_mov_b32 v123, 1")
    A("ds_write_b32 v18, v123")

def lds_wait4(A, addr, lab):
    A(f"v_mov_b32 v18, {addr}")
    A.label(lab)
    A("ds_read_b128 v[124:127], v18")
    A("s_waitcnt lgkmcnt(0)")
    A("v_and_b32 v124, v124, v125"); A("v_and_b32 v126, v126, v127"); A("v_and_b32 v124, v124, v126")
    A("s_nop 0")
    A("v_readfirstlane_b32 s14, v124")
    A("s_nop 3")
    A("s_cmp_eq_u32 s14, 0")
    A(f"s_cbranch_scc1 {lab}")

def lds_wait(A, addr, lab):
    A(f"v_mov_b32 v18, {addr}")
    A.label(lab)
    A("ds_read_b32 v123, v18")
    A("s_waitcnt lgkmcnt(0)")
    A("v_readfirstlane_b32 s14, v123")
    A("s_nop 3")
    A("s_cmp_eq_u32 s14, 0")
    A(f"s_cbranch_scc1 {lab}")

def k1_loader(A):
    ts(A, 0, 0)
    q = VMQ()
    srd(A, 36, P_X, 0, 2048 * 1024)
    srd(A, 40, P_WQKV, 0, 512 * 3072)
    A("s_cmp_lg_u32 s6, 0"); A("s_cbranch_scc1 k1_nozero")
    A("v_lshl_add_u32 v8, v1, 6, v0"); A("v_lshlrev_b32 v8, 4, v8")
    for i in range(4): A(f"v_mov_b32 v{12+i}, 0")
    A("s_mul_i32 s12, s5, 4352")
    A("buffer_store_dwordx4 v[12:15], v8, s[44:47], s12 offen sc1")
    A("v_add_u32 v8, 4096, v8"); A("v_cmp_gt_u32 vcc, 4352, v8")
    A("s_and_saveexec_b64 s[14:15], vcc"); A("s_cbranch_execz k1_z2")
    A("buffer_store_dwordx4 v[12:15], v8, s[44:47], s12 offen sc1")
    A.label("k1_z2"); A("s_mov_b64 exec, s[14:15]")
    A.label("k1_nozero")
    A("v_lshrrev_b32 v4, 3, v0"); A("v_and_b32 v5, 7, v0"); A("v_lshrrev_b32 v6, 4, v0"); A("v_xor_b32 v5, v5, v6")
    A("v_lshlrev_b32 v5, 4, v5"); A("v_lshl_add_u32 v2, v4, 10, v5"); A("v_xor_b32 v3, 64, v2")
    A("s_lshl_b32 s7, s6, 16"); A("s_lshl_b32 s12, s3, 14"); A("s_add_u32 s7, s7, s12")
    A(f"s_mul_i32 s8, s3, {16*3072}"); A("s_lshl_b32 s12, s5, 7"); A("s_add_u32 s8, s8, s12")
    A("s_lshl_b32 s9, s3, 11"); A(f"s_mul_i32 s10, s3, {6*1024}"); A("s_add_u32 s10, s10, 8192")
    def xdma(stage):
        slot = (stage % 4) * 32768
        for i in range(2):
            A(f"s_add_u32 m0, s9, {slot + i*1024}"); A(f"s_add_u32 s13, s7, {i*8192 + stage*128}")
            A(f"buffer_load_dwordx4 v{2+i}, s[36:39], s13 offen lds"); q.add(("st", stage))
    xdma(0)
    A("s_movk_i32 s12, 2731"); A("s_movk_i32 s13, 3072")
    for b in range(3):
        A(f"v_add_u32 v8, {64*b}, v0"); A("v_mul_lo_u32 v9, v8, s12"); A("v_lshrrev_b32 v9, 16, v9")
        A("v_mul_u32_u24 v10, 24, v9"); A("v_sub_u32 v10, v8, v10"); A(f"v_mul_lo_u32 v{4+b}, v9, s13")
        A("v_lshrrev_b32 v11, 3, v10"); A(f"v_lshl_add_u32 v{4+b}, v11, 10, v{4+b}")
        A("v_bfe_u32 v11, v10, 2, 1"); A("v_bfe_u32 v12, v9, 1, 1"); A("v_xor_b32 v11, v11, v12")
        A(f"v_lshl_add_u32 v{4+b}, v11, 6, v{4+b}"); A("v_and_b32 v11, 3, v10"); A(f"v_lshl_add_u32 v{4+b}, v11, 4, v{4+b}")
    def wdma(stage):
        slot = (stage % 4) * 32768
        for a in range(2):
            for b in range(3):
                A(f"s_add_u32 m0, s10, {slot + (a*3+b)*1024}")
                if b == 0: A(f"s_add_u32 s12, s8, {stage*64*3072 + a*8*3072}")
                else: A("s_nop 0")
                A(f"buffer_load_dwordx4 v{4+b}, s[40:43], s12 offen lds"); q.add(("st", stage))
    wdma(0)
    xdma(1); wdma(1)
    job = "nojob" not in EXP
    ts(A, 0, 1)
    A(f"s_waitcnt vmcnt({q.need(('st', 0))})")
    A("s_barrier")
    A("s_cmp_lg_u32 s6, 0"); A("s_cbranch_scc1 k1_noflag"); A("s_cmp_lg_u32 s3, 0"); A("s_cbranch_scc1 k1_noflag")
    A("v_mov_b32 v20, 1"); A("s_lshl_b32 s12, s5, 2"); A("v_mov_b32 v21, s12")
    A("s_mov_b64 exec, 1")
    A("buffer_store_dword v20, v21, s[48:51], 0 offen sc1")
    A("s_mov_b64 exec, -1")
    A.label("k1_noflag")
    for st in range(2, 4): xdma(st); wdma(st)
    if JOBI == -1 and job: job_issue(A, q)
    FL = 131072 + 24576 + 4096
    A("s_lshl_b32 s12, s3, 2"); A(f"s_add_u32 s12, s12, {FL + 64}"); A("v_mov_b32 v22, s12"); A("v_mov_b32 v23, 1")
    for st in range(7):
        A(f"s_waitcnt vmcnt({q.need(('st', st + 1))})")
        if st < 4: A("s_barrier")
        else: A(f"ds_write_b32 v22, v23 offset:{(st - 4) * 16}")
        if st + 4 < 8: xdma(st + 4); wdma(st + 4)
        if st == JOBI and job:
            ts(A, 0, 2)
            job_issue(A, q)
    if job:
        A("s_waitcnt vmcnt(0)")
        ts(A, 0, 3)
        job_finish(A)
    ts(A, 0, 7, True)

def k1_wave(A, w):
    wm, wn = w >> 1, w & 1
    q = VMQ()
    A("v_and_b32 v20, 31, v0"); A("v_lshrrev_b32 v21, 5, v0"); A("v_bfe_u32 v22, v0, 1, 3")
    A("v_xor_b32 v22, v22, v21"); A("v_lshlrev_b32 v22, 4, v22"); A("v_lshl_add_u32 v22, v20, 7, v22")
    A(f"v_add_u32 v8, {wm*4096}, v22")
    for t in range(1, 4): A(f"v_xor_b32 v{8+t}, {32*t}, v8")
    for t in range(4): A(f"v_add_u32 v{12+t}, 0x10000, v{8+t}")
    A("v_bfe_u32 v22, v0, 2, 2"); A("v_lshl_add_u32 v23, v21, 3, v22"); A("v_mul_u32_u24 v23, 384, v23")
    A("v_bfe_u32 v22, v0, 3, 1")
    if wn: A("v_xor_b32 v22, 1, v22")
    A("v_lshl_add_u32 v23, v22, 6, v23"); A("v_bfe_u32 v22, v0, 4, 1"); A("v_lshl_add_u32 v23, v22, 5, v23")
    A("v_and_b32 v22, 3, v0"); A("v_lshl_add_u32 v16, v22, 3, v23"); A("v_add_u32 v17, 0x10000, v16")
    XF = [24, 28]; WF = [32, 44]; ACC = 64
    RS, RQ, CS = 112, 114, 116
    RS2, RQ2, CS2 = 232, 234, 236
    for r in list(range(RS, CS + 3)) + list(range(RS2, CS2 + 3)): A(f"v_mov_b32 v{r}, 0")
    def reads(k):
        st, t = divmod(k, 4); sl = st % 4; hi = sl >= 2; off = (sl % 2) * 32768; b = k % 2
        L = [f"ds_read_b128 v[{XF[b]}:{XF[b]+3}], v{(12 if hi else 8)+t} offset:{off}"]
        for p in range(3):
            d = WF[b] + 4 * p; o = off + 8192 + t * 6144 + p * 128
            L.append(f"ds_read_b64_tr_b16 v[{d}:{d+1}], v{17 if hi else 16} offset:{o}")
            L.append(f"ds_read_b64_tr_b16 v[{d+2}:{d+3}], v{17 if hi else 16} offset:{o + 1536}")
        return L
    FL = 131072 + 24576 + 4096
    A(f"v_mov_b32 v18, {FL + w*16}"); A("v_mov_b32 v19, 0")
    A("ds_write_b64 v18, v[18:19]") if False else None
    A("v_mov_b32 v22, 0"); A("v_mov_b32 v23, 0")
    A("v_mov_b32 v24, 0"); A("v_mov_b32 v25, 0"); A("v_mov_b32 v26, 0"); A("v_mov_b32 v27, 0")
    A("ds_write_b128 v18, v[24:27]")
    A("ds_write_b128 v18, v[24:27] offset:64")
    if "nopf" not in EXP:
        srd(A, 36, P_X, 0, 2048 * 1024); srd(A, 40, P_WQKV, 0, 512 * 3072)
        A("s_lshr_b32 s12, s2, 3"); A("s_lshl_b32 s12, s12, 2"); A(f"s_add_u32 s12, s12, {w}")
        A("s_and_b32 s13, s2, 7")
        A("s_lshr_b32 s14, s13, 1"); A("s_lshl_b32 s14, s14, 19"); A("s_lshl_b32 s15, s12, 12"); A("s_add_u32 s14, s14, s15")
        A("v_lshlrev_b32 v22, 7, v20")
        A("buffer_load_dword v118, v22, s[36:39], s14 offen") if False else None
        if "noxpf" not in EXP: A("buffer_load_dword v240, v22, s[36:39], s14 offen"); q.add("pf")
        A("v_min_u32 v22, 47, v0"); A("v_mul_u32_u24 v23, 43, v22"); A("v_lshrrev_b32 v23, 9, v23")
        A("v_mul_u32_u24 v24, 12, v23"); A("v_sub_u32 v24, v22, v24")
        A("v_mul_u32_u24 v23, 3072, v23"); A("v_lshrrev_b32 v25, 2, v24"); A("v_lshl_add_u32 v23, v25, 10, v23")
        A("v_and_b32 v24, 3, v24"); A("v_lshl_add_u32 v23, v24, 7, v23")
        A("s_mul_i32 s14, s12, 12288"); A("s_and_b32 s13, s13, 1"); A("s_lshl_b32 s13, s13, 9"); A("s_add_u32 s14, s14, s13")
        A("buffer_load_dword v241, v23, s[40:43], s14 offen"); q.add("pf")
    if w == 0 and "codepf" in EXP:
        A("s_getpc_b64 s[64:65]")
        A.label("k1_pc")
        A("s_add_u32 s64, s64, k1_kernel-k1_pc")
        A("s_addc_u32 s65, s65, -1")
        A("s_lshr_b32 s12, s2, 3"); A("s_lshl_b32 s12, s12, 13")
        A("v_lshlrev_b32 v22, 7, v0"); A("v_add_u32 v22, s12, v22")
        A("s_mov_b32 s13, code_end-k1_kernel-4")
        A("s_cmp_gt_u32 s12, s13"); A("s_cbranch_scc1 k1_nocpf")
        A("v_min_u32 v22, s13, v22")
        A("global_load_dword v242, v22, s[64:65]")
        A.label("k1_nocpf")
    ts(A, 1, 1)
    A("s_waitcnt lgkmcnt(0)")
    A("s_barrier")
    ts(A, 1, 2)
    for l in reads(0): A(l)
    A("s_waitcnt lgkmcnt(0)")
    for k in range(32):
        st, t = divmod(k, 4); b = k % 2
        if t == 3 and k + 1 < 32:
            if st < 4: A("s_barrier")
            else: lds_wait4(A, FL + 64 + (st - 4) * 16, f"k1_lf{w}_{st}")
        if k == 28: lds_signal(A, FL + w * 16 + 8)
        if k == 24:
            A("s_lshl_b32 s14, s5, 2"); A("v_mov_b32 v120, s14")
            A("buffer_load_dword v121, v120, s[48:51], 0 offen sc1"); q.add("flag")
        rd = reads(k + 1) if k + 1 < 32 else []
        x = XF[b]; wf = WF[b]
        c0 = "0" if k == 0 else None
        def C(r): return "0" if k == 0 else f"v[{r}:{r+15}]"
        A(f"v_mfma_f32_32x32x16_bf16 v[{ACC}:{ACC+15}], v[{wf}:{wf+3}], v[{x}:{x+3}], {C(ACC)}")
        for l in rd[:4]: A(l)
        A(f"v_mfma_f32_32x32x16_bf16 v[{ACC+16}:{ACC+31}], v[{x}:{x+3}], v[{wf+4}:{wf+7}], {C(ACC+16)}")
        for l in rd[4:]: A(l)
        A(f"v_mfma_f32_32x32x16_bf16 v[{ACC+32}:{ACC+47}], v[{x}:{x+3}], v[{wf+8}:{wf+11}], {C(ACC+32)}")
        if (k & 1) == wn and "nodots" not in EXP:
            for j in range(4):
                A(f"v_dot2c_f32_bf16 v{[RS, RS+1, RS2, RS2+1][j]}, {ONES}, v{x+j}")
                A(f"v_dot2c_f32_bf16 v{[RQ, RQ+1, RQ2, RQ2+1][j]}, v{x+j}, v{x+j}")
        if (k & 1) == wm and "nodots" not in EXP:
            for j in range(4):
                for p in range(3): A(f"v_dot2c_f32_bf16 v{(CS if j & 1 else CS2)+p}, {ONES}, v{wf+4*p+j}")
        A("s_waitcnt lgkmcnt(0)")
    ts(A, 1, 3)
    T = 122
    EX = 65536
    A("s_nop 2")
    A(f"v_add_f32 v{RS}, v{RS}, v{RS+1}"); A(f"v_add_f32 v{RS2}, v{RS2}, v{RS2+1}")
    A(f"v_add_f32 v{RQ}, v{RQ}, v{RQ+1}"); A(f"v_add_f32 v{RQ2}, v{RQ2}, v{RQ2+1}")
    for p in range(3): A(f"v_add_f32 v{CS+p}, v{CS+p}, v{CS2+p}")
    A(f"v_add_f32 v{RS}, v{RS}, v{RS2}"); A(f"v_add_f32 v{RQ}, v{RQ}, v{RQ2}")
    hs = [RS, RQ, CS, CS + 1, CS + 2]
    for i, r in enumerate(hs): A(f"v_mov_b32 v{24+i}, v{r}")
    A("s_nop 1")
    for i, r in enumerate(hs): A(f"v_permlane32_swap_b32 v{r}, v{24+i}")
    A("s_nop 1")
    for i, r in enumerate(hs): A(f"v_add_f32 v{r}, v{r}, v{24+i}")
    for o in range(4):
        if o != w: lds_wait(A, FL + o * 16 + 8, f"k1_d6{w}_{o}")
    A("v_lshlrev_b32 v22, 2, v20"); A(f"v_add_u32 v22, {EX}, v22")
    es = (wm * 2 + wn) * 256; eo = (wm * 2 + (1 - wn)) * 256
    ec = 1024 + (wn * 2 + wm) * 384; eco = 1024 + (wn * 2 + (1 - wm)) * 384
    A(f"ds_write_b32 v22, v{RS} offset:{es}"); A(f"ds_write_b32 v22, v{RQ} offset:{es+128}")
    for p in range(3): A(f"ds_write_b32 v22, v{CS+p} offset:{ec + p*128}")
    C1, CL, CN, CE = 176, 178, 180, 182
    for r, val in ((C1, 1.000001), (CL, LOG2E), (CN, -1.000001 * LOG2E), (CE, 1e-6)):
        A(f"v_mov_b32 v{r}, {f32(val)}"); A(f"v_mov_b32 v{r+1}, {f32(val)}")
    ON = 224
    for j in range(4): A(f"v_mov_b32 v{ON+j}, {ONES}")
    A("v_lshlrev_b32 v23, 4, v21"); A(f"v_add_u32 v23, {EX}, v23")
    lds_signal(A, FL + w * 16)
    lds_wait(A, FL + (wm * 2 + 1 - wn) * 16, f"k1_sp{w}a")
    lds_wait(A, FL + ((1 - wm) * 2 + wn) * 16, f"k1_sp{w}b")
    ts(A, 1, 6)
    A(f"ds_read_b32 v24, v22 offset:{eo}"); A(f"ds_read_b32 v25, v22 offset:{eo+128}")
    for p in range(3): A(f"ds_read_b32 v{26+p}, v22 offset:{eco + p*128}")
    A("s_waitcnt lgkmcnt(0)")
    A(f"v_add_f32 v{RS}, v{RS}, v24"); A(f"v_add_f32 v{RQ}, v{RQ}, v25")
    for p in range(3): A(f"v_add_f32 v{CS+p}, v{CS+p}, v{26+p}")
    PR = 4096 + w * 512
    A(f"ds_write_b32 v22, v{CS} offset:{PR+256}")
    A(f"v_mul_f32 v{RS}, {f32(1/512)}, v{RS}"); A(f"v_mul_f32 v{RQ}, {f32(1/512)}, v{RQ}")
    A(f"v_fma_f32 v{RQ}, -v{RS}, v{RS}, v{RQ}"); A(f"v_max_f32 v{RQ}, 0, v{RQ}"); A(f"v_add_f32 v{RQ}, {f32(1e-5)}, v{RQ}")
    A(f"v_rsq_f32 v{RQ}, v{RQ}"); A("s_nop 0")
    A(f"v_mul_f32 v{RS}, v{RS}, v{RQ}"); A(f"v_sub_f32 v{RS}, 0, v{RS}")
    A(f"ds_write_b32 v22, v{RQ} offset:{PR}"); A(f"ds_write_b32 v22, v{RS} offset:{PR+128}")
    SA, SB, SC = 128, 144, 160
    A(f"v_mov_b32 v184, v{RQ}"); A(f"v_mov_b32 v186, v{RS}"); A(f"v_mov_b32 v188, v{CS+1}"); A(f"v_mov_b32 v190, v{CS+2}")
    A("s_waitcnt lgkmcnt(0)")
    for qd in range(4):
        A(f"ds_read_b128 v[{SA+4*qd}:{SA+4*qd+3}], v23 offset:{PR + qd*32}")
        A(f"ds_read_b128 v[{SB+4*qd}:{SB+4*qd+3}], v23 offset:{PR + 128 + qd*32}")
    for qd in range(4): A(f"ds_read_b128 v[{SC+4*qd}:{SC+4*qd+3}], v23 offset:{PR + 256 + qd*32}")
    A("s_waitcnt lgkmcnt(4)")
    TP = 40
    def phi_vec(base, mode):
        prs = list(range(0, 16, 2))
        for i in prs:
            if mode == "q": A(f"v_pk_fma_f32 v[{TP+i}:{TP+i+1}], v[{SC+i}:{SC+i+1}], v[186:187], v[{C1}:{C1+1}] op_sel_hi:[1,0,1]")
            else:           A(f"v_pk_fma_f32 v[{TP+i}:{TP+i+1}], v[{SB+i}:{SB+i+1}], v[188:189], v[{C1}:{C1+1}] op_sel_hi:[1,0,1]")
        for i in prs:
            r = base + i
            if mode == "q": A(f"v_pk_fma_f32 v[{r}:{r+1}], v[{r}:{r+1}], v[184:185], v[{TP+i}:{TP+i+1}] op_sel_hi:[1,0,1]")
            else:           A(f"v_pk_fma_f32 v[{r}:{r+1}], v[{r}:{r+1}], v[{SA+i}:{SA+i+1}], v[{TP+i}:{TP+i+1}]")
        for i in prs:
            r = base + i
            A(f"v_pk_fma_f32 v[{TP+i}:{TP+i+1}], v[{r}:{r+1}], v[{CL}:{CL+1}], v[{CN}:{CN+1}]")
        for i in range(16): A(f"v_exp_f32_e64 v{TP+i}, v{TP+i} clamp")
        for i in prs: A(f"v_pk_add_f32 v[{TP+i}:{TP+i+1}], v[{TP+i}:{TP+i+1}], v[{CE}:{CE+1}]")
        for i in range(16): A(f"v_max_f32 v{base+i}, v{base+i}, v{TP+i}")
    PK = 200
    for r in range(0, 16, 2): A(f"v_pk_mul_f32 v[{24+r}:{24+r+1}], v[{SB+r}:{SB+r+1}], v[190:191] op_sel_hi:[1,0]")
    for r in range(0, 16, 2):
        rg = ACC + 32 + r
        A(f"v_pk_fma_f32 v[{rg}:{rg+1}], v[{rg}:{rg+1}], v[{SA+r}:{SA+r+1}], v[{24+r}:{24+r+1}]")
    phi_vec(ACC + 16, "k")
    for r in range(8): A(f"v_cvt_pk_bf16_f32 v{PK+16+r}, v{ACC+32+2*r}, v{ACC+32+2*r+1}")
    for r in range(8): A(f"v_cvt_pk_bf16_f32 v{PK+8+r}, v{ACC+16+2*r}, v{ACC+16+2*r+1}")
    A("s_nop 1")
    kp, vp = PK + 8, PK + 16; D = ACC + 16; Z = ACC + 32
    A(f"v_mfma_f32_32x32x16_bf16 v[{D}:{D+15}], v[{vp}:{vp+3}], v[{kp}:{kp+3}], 0")
    A(f"v_mfma_f32_32x32x16_bf16 v[{Z}:{Z+15}], v[{ON}:{ON+3}], v[{kp}:{kp+3}], 0")
    A(f"v_mfma_f32_32x32x16_bf16 v[{D}:{D+15}], v[{vp+4}:{vp+7}], v[{kp+4}:{kp+7}], v[{D}:{D+15}]")
    A(f"v_mfma_f32_32x32x16_bf16 v[{Z}:{Z+15}], v[{ON}:{ON+3}], v[{kp+4}:{kp+7}], v[{Z}:{Z+15}]")
    A("v_and_b32 v22, 16, v0"); A("v_cmp_ne_u32 vcc, 0, v22")
    A("v_lshlrev_b32 v19, 2, v0"); A(f"v_add_u32 v19, {EX + 8192}, v19")
    A("v_bfe_u32 v9, v0, 4, 1"); A("s_movk_i32 s13, 1088"); A("v_mul_lo_u32 v9, v9, s13")
    A("v_and_b32 v10, 15, v0"); A("v_lshl_add_u32 v9, v10, 2, v9"); A("v_lshl_add_u32 v10, v21, 8, v9")
    A("s_lshl_b32 s13, s5, 2"); A(f"s_add_u32 s13, s13, {2*wn}"); A("s_mulk_i32 s13, 1088")
    A("s_nop 7")
    for r in range(8): A(f"v_cndmask_b32 v{24+r}, v{D+r}, v{D+8+r}, vcc")
    keep = list(range(4 * wm, 4 * wm + 4)); send = [r for r in range(8) if r not in keep]
    mine = (wn * 2 + wm) * 2304; other = (wn * 2 + 1 - wm) * 2304
    for r in send: A(f"ds_write_b32 v19, v{24+r} offset:{mine + r*256}")
    if wm == 1: A(f"ds_write_b32 v19, v{Z} offset:{mine + 8*256}")
    lds_signal(A, FL + w * 16 + 4)
    lds_wait(A, FL + ((1 - wm) * 2 + wn) * 16 + 4, f"k1_sp{w}c")
    for i, r in enumerate(keep): A(f"ds_read_b32 v{32+i}, v19 offset:{other + r*256}")
    if wm == 0: A(f"ds_read_b32 v36, v19 offset:{other + 8*256}")
    A(f"s_waitcnt vmcnt({q.need('flag')})")
    A("s_waitcnt lgkmcnt(0)")
    for i, r in enumerate(keep): A(f"v_add_f32 v{24+r}, v{24+r}, v{32+i}")
    if wm == 0: A(f"v_add_f32 v36, v36, v{Z}")
    A.label(f"k1_poll{w}")
    A("v_readfirstlane_b32 s14, v121"); A("s_nop 3"); A("s_cmp_lg_u32 s14, 0"); A(f"s_cbranch_scc1 k1_go{w}")
    A("s_sleep 2"); A("buffer_load_dword v121, v120, s[48:51], 0 offen sc1"); A("s_waitcnt vmcnt(0)"); A(f"s_branch k1_poll{w}")
    A.label(f"k1_go{w}")
    for i, r in enumerate(keep):
        A(f"buffer_atomic_add_f32 v{24+r}, v10, s[44:47], s13 offen offset:{wm*512 + (r&3)*64}")
    if wm == 0:
        A("s_mov_b64 exec, 0xffffffff")
        A("buffer_atomic_add_f32 v36, v9, s[44:47], s13 offen offset:1024")
        A("s_mov_b64 exec, -1")
    ts(A, 1, 4)
    phi_vec(ACC, "q")
    for r in range(8): A(f"v_cvt_pk_bf16_f32 v{PK+r}, v{ACC+2*r}, v{ACC+2*r+1}")
    srd(A, 52, P_WS, WS_PQ, SZ_PQ)
    A("s_lshl_b32 s12, s6, 1"); A(f"s_add_u32 s12, s12, {wm}"); A("s_lshl_b32 s12, s12, 5")
    A("s_lshl_b32 s13, s5, 2"); A("s_add_u32 s12, s12, s13"); A(f"s_add_u32 s12, s12, {2*wn}"); A("s_lshl_b32 s12, s12, 10")
    A("v_lshlrev_b32 v18, 4, v0")
    A(f"buffer_store_dwordx4 v[{PK}:{PK+3}], v18, s[52:55], s12 offen{STP}")
    A(f"buffer_store_dwordx4 v[{PK+4}:{PK+7}], v18, s[52:55], s12 offen offset:1024{STP}")
    ts(A, 1, 5)

def job_issue(A, q):
    A("s_lshl_b32 s70, s3, 8"); A("s_add_u32 s70, s70, s2")
    A("s_lshl_b32 s71, s3, 13"); A("s_add_u32 s71, s71, 131072")
    A("v_lshrrev_b32 v28, 3, v0"); A("v_and_b32 v29, 7, v0"); A("v_lshlrev_b32 v29, 4, v29")
    A("v_lshl_add_u32 v30, v28, 10, v29")
    A("s_mov_b32 s72, 3")
    srd(A, 76, P_WO, 0, 0); srd(A, 80, P_WO, 0, 0)
    A("s_mov_b32 s88, 0"); A("s_mov_b32 s90, 0"); A("s_mov_b32 s91, 0")
    A("s_mov_b32 s62, 0"); A(f"s_mov_b32 s63, {131072 + 24576}")
    A("s_cmp_ge_u32 s70, 736"); A("s_cbranch_scc1 k1_js_done")
    A("s_movk_i32 s62, 1024"); A("s_mov_b32 s63, s71")
    A("s_cmp_lt_u32 s70, 448"); A("s_cbranch_scc1 k1_js_gu")
    A("s_mov_b32 s72, 1")
    A("s_cmp_lt_u32 s70, 672"); A("s_cbranch_scc1 k1_js_wd")
    srd(A, 76, P_WO, 0, 512 * 1024); srd(A, 80, P_WO, 0, 512 * 1024); srd(A, 84, P_WS, WS_WO, SZ_WO)
    A("s_mov_b32 s73, 32"); A("s_sub_u32 s70, s70, 672")
    A("s_branch k1_js_dd")
    A.label("k1_js_wd")
    srd(A, 76, P_WD, 0, 1792 * 1024); srd(A, 80, P_WD, 0, 1792 * 1024); srd(A, 84, P_WS, WS_WD, SZ_WD)
    A("s_mov_b32 s73, 112"); A("s_sub_u32 s70, s70, 448")
    A.label("k1_js_dd")
    A("s_lshr_b32 s74, s70, 3"); A("s_and_b32 s75, s70, 7")
    A("s_lshl_b32 s88, s74, 16"); A("s_lshl_b32 s89, s75, 7"); A("s_add_u32 s88, s88, s89")
    A("s_movk_i32 s90, 8192"); A("s_add_u32 s91, s88, 32768")
    A("s_branch k1_js_done")
    A.label("k1_js_gu")
    A("s_mov_b32 s72, 0")
    srd(A, 76, P_WG, 0, 512 * 3584); srd(A, 80, P_WU, 0, 512 * 3584); srd(A, 84, P_WS, WS_WGU, SZ_WGU)
    A("s_mul_i32 s74, s70, 2341"); A("s_lshr_b32 s74, s74, 16"); A("s_mul_i32 s75, s74, 28"); A("s_sub_u32 s75, s70, s75")
    A("s_movk_i32 s89, 3584"); A("v_mul_lo_u32 v30, v28, s89"); A("v_add_u32 v30, v30, v29")
    A(f"s_mul_i32 s88, s74, {32*3584}"); A("s_lshl_b32 s89, s75, 7"); A("s_add_u32 s88, s88, s89")
    A(f"s_movk_i32 s90, {8*3584}"); A("s_mov_b32 s91, s88")
    A.label("k1_js_done")
    for i in range(8):
        A("s_mov_b32 m0, s63")
        rg = 88 if i < 4 else 91
        A("s_add_u32 s63, s63, s62")
        A(f"buffer_load_dwordx4 v30, s[{76 if i < 4 else 80}:{79 if i < 4 else 83}], s{rg} offen lds"); q.add("job")
        A(f"s_add_u32 s{rg}, s{rg}, s90")

def job_finish(A):
    A("s_cmp_eq_u32 s72, 3"); A("s_cbranch_scc1 k1_jf_end")
    A("v_lshlrev_b32 v34, 4, v0")
    A("v_lshrrev_b32 v35, 5, v0"); A("v_bfe_u32 v36, v0, 2, 2"); A("v_lshl_add_u32 v35, v35, 2, v36"); A("v_lshlrev_b32 v35, 7, v35")
    A("v_and_b32 v36, 3, v0"); A("v_lshl_add_u32 v35, v36, 3, v35"); A("v_add_u32 v35, s71, v35"); A("v_bfe_u32 v36, v0, 4, 1")
    A("s_cmp_eq_u32 s72, 0"); A("s_cbranch_scc1 k1_jf_gu")
    A("v_lshl_add_u32 v35, v36, 5, v35")
    A("s_lshl_b32 s60, s75, 1"); A("s_mul_i32 s60, s60, s73"); A("s_lshl_b32 s61, s74, 2"); A("s_add_u32 s60, s60, s61")
    A("s_lshl_b32 s60, s60, 10"); A("s_lshl_b32 s61, s73, 10")
    for c in range(2):
        for i in range(4):
            d = 40 + (c * 4 + i) * 4
            A(f"ds_read_b64_tr_b16 v[{d}:{d+1}], v35 offset:{i*2048 + c*64}")
            A(f"ds_read_b64_tr_b16 v[{d+2}:{d+3}], v35 offset:{i*2048 + c*64 + 1024}")
    A("s_waitcnt lgkmcnt(0)")
    for c in range(2):
        for i in range(4):
            d = 40 + (c * 4 + i) * 4
            A(f"buffer_store_dwordx4 v[{d}:{d+3}], v34, s[84:87], s60 offen offset:{i*1024}{STP}")
        A("s_add_u32 s60, s60, s61")
    A("s_branch k1_jf_end")
    A.label("k1_jf_gu")
    srd(A, 76, P_WS, WS_CSP, SZ_CSP)
    A("v_lshl_add_u32 v35, v36, 12, v35")
    A("s_lshl_b32 s60, s75, 7"); A("s_lshl_b32 s61, s74, 1"); A("s_add_u32 s60, s60, s61"); A("s_lshl_b32 s60, s60, 10")
    for c in range(8): A(f"v_mov_b32 v{72+c}, 0")
    for c in range(4):
        for i in range(2):
            d = 40 + (c * 2 + i) * 4
            A(f"ds_read_b64_tr_b16 v[{d}:{d+1}], v35 offset:{i*2048 + c*32}")
            A(f"ds_read_b64_tr_b16 v[{d+2}:{d+3}], v35 offset:{i*2048 + c*32 + 1024}")
    A("s_waitcnt lgkmcnt(0)")
    for c in range(4):
        A(f"s_add_u32 s61, s60, {c*32*1024}")
        for i in range(2):
            d = 40 + (c * 2 + i) * 4
            A(f"buffer_store_dwordx4 v[{d}:{d+3}], v34, s[84:87], s61 offen offset:{i*1024}{STP}")
    for j in range(4):
        for i in range(2):
            for c in range(4): A(f"v_dot2c_f32_bf16 v{72+4*i+c}, {ONES}, v{40+(c*2+i)*4+j}")
    A("s_nop 2")
    for c in range(4): A(f"v_add_f32 v{72+c}, v{72+c}, v{76+c}")
    A("s_mulk_i32 s74, 3584"); A("s_lshl_b32 s61, s75, 7"); A("s_add_u32 s74, s74, s61"); A("s_lshl_b32 s74, s74, 2")
    A("v_and_b32 v32, 31, v0"); A("v_lshlrev_b32 v32, 2, v32")
    for c in range(4): halves_sum(A, 72 + c, 33)
    for c in range(4): A(f"buffer_store_dword v{72+c}, v32, s[76:79], s74 offen offset:{c*128}{STP}")
    A.label("k1_jf_end")

def ksplit_reduce(A, pre, ACC, OUT, TMP):
    A("v_lshlrev_b32 v7, 4, v0")
    for qd in range(1, 4):
        A(f"s_xor_b32 s8, s3, {qd}"); A("s_mulk_i32 s8, 12288"); A("v_add_u32 v6, s8, v7")
        for j in range(4):
            r = ACC + 16 * qd + 4 * j
            A(f"ds_write_b128 v6, {pre}[{r}:{r+3}] offset:{(qd-1)*4096 + j*1024}")
    if pre == "a":
        for r in range(16): A(f"v_accvgpr_read_b32 v{OUT+r}, a{ACC+r}")
    A("s_mul_i32 s8, s3, 12288"); A("v_add_u32 v6, s8, v7")
    A("s_waitcnt lgkmcnt(0)")
    A("s_barrier")
    for p in range(3):
        for j in range(4):
            d = TMP + 16 * p + 4 * j
            A(f"ds_read_b128 v[{d}:{d+3}], v6 offset:{p*4096 + j*1024}")
    own = OUT if pre == "a" else ACC
    A("s_waitcnt lgkmcnt(8)")
    for r in range(0, 16, 2): A(f"v_pk_add_f32 v[{OUT+r}:{OUT+r+1}], v[{own+r}:{own+r+1}], v[{TMP+r}:{TMP+r+1}]")
    A("s_waitcnt lgkmcnt(0)")
    for r in range(0, 16, 2): A(f"v_pk_add_f32 v[{TMP+16+r}:{TMP+16+r+1}], v[{TMP+16+r}:{TMP+16+r+1}], v[{TMP+32+r}:{TMP+32+r+1}]")
    for r in range(0, 16, 2): A(f"v_pk_add_f32 v[{OUT+r}:{OUT+r+1}], v[{OUT+r}:{OUT+r+1}], v[{TMP+16+r}:{TMP+16+r+1}]")

def prefetch(A, srdn, soff, dummy, lane128):
    A(f"buffer_load_dword v{dummy}, v{lane128}, s[{srdn}:{srdn+3}], s{soff} offen")

def gen_k2(A):
    A.label("k2_kernel")
    prologue(A, 256, "k2_end"); ts(A, 2, 0)
    A("s_and_b32 s4, s2, 7"); A("s_lshr_b32 s5, s2, 3"); A("s_mov_b32 s61, s4"); A("s_mov_b32 s62, s5")
    A("s_lshr_b32 s6, s5, 3"); A("s_lshl_b32 s4, s4, 2"); A("s_add_u32 s4, s4, s6"); A("s_and_b32 s5, s5, 7")
    srd(A, 36, P_WS, WS_KVZ, SZ_KVZ); srd(A, 40, P_WS, WS_PQ, SZ_PQ); srd(A, 44, P_WS, WS_WO, SZ_WO)
    srd(A, 48, P_X, 0, 2048 * 1024); srd(A, 52, P_WS, WS_H, SZ_H); srd(A, 56, P_WS, WS_STATS, SZ_STATS)
    srd(A, 64, P_WS, WS_WGU, SZ_WGU)
    q = VMQ()
    A("v_lshlrev_b32 v2, 4, v0"); A("v_and_b32 v3, 31, v0"); A("v_min_u32 v4, 16, v3"); A("v_lshlrev_b32 v4, 6, v4")
    A("v_lshrrev_b32 v5, 5, v0"); A("v_lshl_add_u32 v4, v5, 4, v4")
    A("s_lshl_b32 s8, s3, 3"); A("s_mul_i32 s9, s8, 1088")
    A("s_lshr_b32 s12, s3, 1"); A("s_and_b32 s16, s3, 1")
    A("s_lshl_b32 s13, s4, 1"); A("s_add_u32 s13, s13, s12")
    A("s_lshl_b32 s10, s13, 5"); A("s_add_u32 s10, s10, s8"); A("s_lshl_b32 s10, s10, 10")
    A("s_xor_b32 s14, s13, 1"); A("s_lshl_b32 s14, s14, 5"); A("s_add_u32 s14, s14, s8"); A("s_lshl_b32 s14, s14, 10")
    A("s_lshl_b32 s11, s5, 1"); A("s_add_u32 s11, s11, s16"); A("s_xor_b32 s15, s11, 1")
    A("s_lshl_b32 s11, s11, 5"); A("s_add_u32 s11, s11, s8"); A("s_lshl_b32 s11, s11, 10")
    A("s_lshl_b32 s15, s15, 5"); A("s_add_u32 s15, s15, s8"); A("s_lshl_b32 s15, s15, 10")
    KR = 64
    def loads(h):
        A(f"s_add_u32 s12, s9, {h*1088}")
        A(f"buffer_load_dwordx4 v[{KR+8*h}:{KR+8*h+3}], v4, s[36:39], s12 offen"); q.add(("kv", h))
        A(f"buffer_load_dwordx4 v[{KR+8*h+4}:{KR+8*h+7}], v4, s[36:39], s12 offen offset:32"); q.add(("kv", h))
        base = [10, 14, 11, 15]
        dst = [h * 4, (8 + h) * 4, 64 + h * 4, 64 + (8 + h) * 4]
        for i in range(4):
            sr = 40 if i < 2 else 44
            if h == 4: A(f"s_add_u32 s{base[i]}, s{base[i]}, 4096")
            A(f"buffer_load_dwordx4 a[{dst[i]}:{dst[i]+3}], v2, s[{sr}:{sr+3}], s{base[i]} offen offset:{(h%4)*1024}"); q.add(("fr", h))
    for h in range(3): loads(h)
    for r in range(64): A(f"v_accvgpr_write_b32 a{128+r}, 0")
    KA = 32; TT = [[128, 144], [160, 176]]; OF = [[8, 12], [16, 20]]; EPS = 24; XR = 200
    A(f"v_mov_b32 v{EPS}, {f32(1e-6)}")
    ts(A, 2, 1)
    def cv(h): return [f"v_cvt_pk_bf16_f32 v{KA+4*h+j}, v{KR+8*h+2*j}, v{KR+8*h+2*j+1}" for j in range(4)]
    def tm(h, aa):
        T = TT[h % 2][aa]
        return f"v_mfma_f32_32x32x16_bf16 v[{T}:{T+15}], v[{KA+4*h}:{KA+4*h+3}], a[{(aa*8+h)*4}:{(aa*8+h)*4+3}], 0"
    def mm(h, aa, b):
        ac = 128 + 16 * (2 * aa + b); o = OF[h % 2][aa]
        return f"v_mfma_f32_32x32x16_bf16 a[{ac}:{ac+15}], a[{64+(b*8+h)*4}:{64+(b*8+h)*4+3}], v[{o}:{o+3}], a[{ac}:{ac+15}]"
    def valu(h):
        L = []
        T0, T1 = TT[h % 2]; o0, o1 = OF[h % 2]
        L += [f"v_add_f32 v25, v{T0+8}, v{EPS}", f"v_add_f32 v26, v{T1+8}, v{EPS}", "v_rcp_f32 v25, v25", "v_rcp_f32 v26, v26", "s_nop 0"]
        for r in range(8): L += [f"v_mul_f32 v{T0+r}, v{T0+r}, v25", f"v_mul_f32 v{T1+r}, v{T1+r}, v26"]
        for j in range(4): L += [f"v_cvt_pk_bf16_f32 v{o0+j}, v{T0+2*j}, v{T0+2*j+1}", f"v_cvt_pk_bf16_f32 v{o1+j}, v{T1+2*j}, v{T1+2*j+1}"]
        return L
    A(f"s_waitcnt vmcnt({q.need(('fr', 0))})")
    for l in cv(0): A(l)
    ts(A, 2, 2)
    A("s_nop 1")
    A(tm(0, 0)); A(tm(0, 1))
    for h in range(9):
        if h + 3 < 8: loads(h + 3)
        if h == 5:
            A("s_lshl_b32 s17, s13, 15"); A("s_lshl_b32 s60, s5, 7"); A("s_add_u32 s17, s17, s60"); A("s_lshl_b32 s60, s16, 6"); A("s_add_u32 s17, s17, s60")
            A("v_lshlrev_b32 v6, 10, v3"); A("v_lshl_add_u32 v6, v5, 3, v6")
            for qd in range(4):
                A(f"buffer_load_dwordx2 v[{XR+2*qd}:{XR+2*qd+1}], v6, s[48:51], s17 offen offset:{qd*16}"); q.add("x")
            A("s_and_b32 s60, s61, 3"); A("s_mul_i32 s60, s60, 917504"); A("s_mul_i32 s63, s62, 28672"); A("s_add_u32 s60, s60, s63")
            A("s_mul_i32 s63, s3, 7168"); A("s_add_u32 s60, s60, s63")
            A("v_min_u32 v7, 55, v0"); A("v_lshlrev_b32 v7, 7, v7")
            A("buffer_load_dword v208, v7, s[64:67], s60 offen"); q.add("pf")
        if h == 6:
            srd(A, 68, P_WS, WS_CSP, SZ_CSP)
            A("s_lshl_b32 s60, s2, 2"); A("s_add_u32 s60, s60, s3"); A("s_lshl_b32 s63, s60, 8")
            A("v_lshlrev_b32 v7, 2, v0")
            A("s_cmp_ge_u32 s60, 56"); A("s_cbranch_scc1 k2_nocs1")
            A.lines.append(";OPT_BEGIN")
            for kc in range(16):
                A(f"s_add_u32 s60, s63, {kc*3584*4}")
                A(f"buffer_load_dword v{210+kc}, v7, s[68:71], s60 offen")
            A.lines.append(";OPT_END")
            A.label("k2_nocs1")
        ms = []
        if h + 1 < 8:
            A(f"s_waitcnt vmcnt({q.need(('fr', h + 1))})")
            for l in cv(h + 1): A(l)
            A("s_nop 1")
            ms += [tm(h + 1, 0), tm(h + 1, 1)]
        if h >= 1: ms += [mm(h - 1, 0, 0), mm(h - 1, 0, 1), mm(h - 1, 1, 0), mm(h - 1, 1, 1)]
        vl = valu(h) if h < 8 else []
        if h == 0:
            for m_ in ms: A(m_)
            A("s_nop 5")
            for l in vl: A(l)
            A("s_nop 1")
        else:
            per = (len(vl) + len(ms) - 1) // len(ms) if vl else 0
            for m_ in ms:
                A(m_)
                for _ in range(per):
                    if vl: A(vl.pop(0))
            for l in vl: A(l)
            A("s_nop 1")
    ts(A, 2, 3)
    A("s_nop 7"); A("s_nop 3")
    ksplit_reduce(A, "a", 128, 64, 80)
    ts(A, 2, 4)
    A(f"s_waitcnt vmcnt({q.need('x')})")
    for qd in range(4):
        for j in range(2):
            xr = XR + 2 * qd + j; t8 = 8 + 2 * ((2 * qd + j) % 4)
            A(f"v_lshlrev_b32 v{t8}, 16, v{xr}"); A(f"v_and_b32 v{t8+1}, 0xffff0000, v{xr}")
            A(f"v_pk_add_f32 v[{64+4*qd+2*j}:{64+4*qd+2*j+1}], v[{64+4*qd+2*j}:{64+4*qd+2*j+1}], v[{t8}:{t8+1}]")
    HP = 96
    for r in range(8): A(f"v_cvt_pk_bf16_f32 v{HP+r}, v{64+2*r}, v{64+2*r+1}")
    A("s_lshl_b32 s8, s13, 5"); A("s_lshl_b32 s9, s5, 2"); A("s_add_u32 s8, s8, s9"); A("s_lshl_b32 s9, s16, 1"); A("s_add_u32 s8, s8, s9"); A("s_lshl_b32 s8, s8, 10")
    A(f"buffer_store_dwordx4 v[{HP}:{HP+3}], v2, s[52:55], s8 offen{STP}")
    A(f"buffer_store_dwordx4 v[{HP+4}:{HP+7}], v2, s[52:55], s8 offen offset:1024{STP}")
    for r in range(16, 20): A(f"v_mov_b32 v{r}, 0")
    for r in range(8):
        A(f"v_dot2c_f32_bf16 v{16+(r&1)}, {ONES}, v{HP+r}"); A(f"v_dot2c_f32_bf16 v{18+(r&1)}, v{HP+r}, v{HP+r}")
    A("s_nop 2")
    A("v_add_f32 v10, v16, v17"); A("v_add_f32 v11, v18, v19")
    halves_sum(A, 10, 12); halves_sum(A, 11, 12)
    A("s_lshl_b32 s8, s13, 12"); A("s_lshl_b32 s9, s5, 4"); A("s_add_u32 s8, s8, s9"); A("s_lshl_b32 s9, s16, 3"); A("s_add_u32 s8, s8, s9")
    A("v_lshlrev_b32 v6, 7, v3")
    A(f"buffer_store_dwordx2 v[10:11], v6, s[56:59], s8 offen{STP}")
    A("s_lshl_b32 s60, s2, 2"); A("s_add_u32 s60, s60, s3"); A("s_cmp_ge_u32 s60, 56"); A("s_cbranch_scc1 k2_nocs2")
    A("s_waitcnt vmcnt(0)")
    A.lines.append(";OPT_BEGIN")
    for st_ in (8, 4, 2, 1):
        for kc in range(st_): A(f"v_add_f32 v{210+kc}, v{210+kc}, v{210+kc+st_}")
    srd(A, 68, P_WS, WS_CS, SZ_CS)
    A("v_lshlrev_b32 v7, 2, v0")
    A(f"buffer_store_dword v210, v7, s[68:71], s63 offen{STP}")
    A.lines.append(";OPT_END")
    A.label("k2_nocs2")
    ts(A, 2, 7, True)
    A.label("k2_end")
    A("s_endpgm")

def gen_k3(A):
    A.label("k3_kernel")
    prologue(A, 256, "k3_end"); ts(A, 3, 0)
    A("s_and_b32 s4, s2, 7"); A("s_lshr_b32 s5, s2, 3")
    A("s_lshr_b32 s6, s4, 2"); A("s_lshl_b32 s6, s6, 3"); A("s_lshr_b32 s7, s5, 2"); A("s_add_u32 s6, s6, s7")
    A("s_and_b32 s4, s4, 3"); A("s_lshl_b32 s4, s4, 2"); A("s_and_b32 s5, s5, 3"); A("s_add_u32 s5, s5, s4")
    A("s_mov_b32 s4, s6")
    srd(A, 36, P_WS, WS_WGU, SZ_WGU); srd(A, 40, P_WS, WS_H, SZ_H)
    q = VMQ()
    A("v_lshlrev_b32 v2, 4, v0")
    A("s_lshl_b32 s6, s4, 2"); A("s_add_u32 s6, s6, s3")
    A("s_mul_i32 s7, s5, 7")
    A("s_add_u32 s8, s7, s3"); A("s_lshl_b32 s8, s8, 15")
    A("s_lshl_b32 s9, s7, 15"); A("s_lshl_b32 s10, s3, 13"); A("s_add_u32 s9, s9, s10")
    A("s_lshl_b32 s11, s6, 15")
    def dma_groups(stage):
        slot = (stage % 4) * 32768; L = []
        for hlf in range(2):
            for i in range(4):
                g = []
                if i == 0:
                    g.append(f"s_add_u32 m0, s10, {slot + hlf*4096}")
                    g.append(f"s_add_u32 s12, s8, {(8*stage + 4*hlf)*1024}" if stage < 4 else f"s_add_u32 s12, s9, {stage*32768 + hlf*4096}")
                g.append(f"buffer_load_dwordx4 v2, s[36:39], s12 offen offset:{i*1024} lds")
                L.append((g, ("dma", stage)))
        return L
    def h_groups(c):
        L = []
        for t in range(8 * c, 8 * c + 8):
            g = []
            if t % 4 == 0: g.append(f"s_add_u32 s13, s11, {t*1024}")
            g.append(f"buffer_load_dwordx4 a[{4*t}:{4*t+3}], v2, s[40:43], s13 offen offset:{(t%4)*1024}")
            L.append((g, ("h", c)))
        return L
    def emit(gt):
        for l in gt[0]: A(l)
        q.add(gt[1])
    def inter(a, b):
        out = []
        for x, y in zip(a, b): out += [x, y]
        return out
    for gt in inter(dma_groups(0), h_groups(0)): emit(gt)
    srd(A, 44, P_WS, WS_STATS, SZ_STATS); srd(A, 48, P_WS, WS_CS, SZ_CS); srd(A, 52, P_WS, WS_ACT, SZ_ACT)
    SM = 212
    A("v_and_b32 v3, 31, v0"); A("v_lshrrev_b32 v5, 5, v0"); A("v_lshlrev_b32 v4, 7, v3"); A("v_lshl_add_u32 v4, v5, 6, v4")
    A("s_lshl_b32 s14, s6, 12")
    for j in range(4): A(f"buffer_load_dwordx4 v[{SM+4*j}:{SM+4*j+3}], v4, s[44:47], s14 offen offset:{j*16}"); q.add("small")
    A("v_lshl_add_u32 v6, v1, 6, v0"); A("v_min_u32 v6, 223, v6"); A("v_lshlrev_b32 v6, 2, v6")
    A("s_mul_i32 s14, s7, 128")
    A(f"buffer_load_dword v{SM+16}, v6, s[48:51], s14 offen"); q.add("small")
    vpend = inter(dma_groups(1), h_groups(1))
    for _ in range(NPRE): emit(vpend.pop(0))
    vpend += inter(dma_groups(2), h_groups(2)) + inter(dma_groups(3), h_groups(3))
    NM, C1, C2 = 8, 9, 10
    CSL = 131072
    A(f"v_add_u32 v7, {CSL}, v6")
    A(f"v_lshlrev_b32 v11, 4, v5"); A(f"v_add_u32 v11, {CSL}, v11")
    A("v_mov_b32 v12, v2"); A("v_add_u32 v13, 0x10000, v2")
    ACCS = [64 + 16 * i for i in range(7)]
    NAF = 12
    AF = [16 + 4 * i for i in range(NAF)]
    CSR = 176; ET = 192
    A("s_mul_i32 s14, s6, 112"); A("s_add_u32 s14, s14, s7"); A("s_lshl_b32 s14, s14, 10")
    st_l = []
    for j in range(1, 4):
        for e in range(4): st_l.append(f"v_add_f32 v{SM+e}, v{SM+e}, v{SM+4*j+e}")
    st_l += [f"v_add_f32 v{SM}, v{SM}, v{SM+2}", f"v_add_f32 v{SM+1}, v{SM+1}, v{SM+3}",
             f"v_mov_b32 v{SM+4}, v{SM}", f"v_mov_b32 v{SM+5}, v{SM+1}", "s_nop 1",
             f"v_permlane32_swap_b32 v{SM}, v{SM+4}", f"v_permlane32_swap_b32 v{SM+1}, v{SM+5}", "s_nop 1",
             f"v_add_f32 v{SM}, v{SM}, v{SM+4}", f"v_add_f32 v{SM+1}, v{SM+1}, v{SM+5}",
             f"v_mul_f32 v{SM}, {f32(1/512)}, v{SM}", f"v_mul_f32 v{SM+1}, {f32(1/512)}, v{SM+1}",
             f"v_fma_f32 v{SM+1}, -v{SM}, v{SM}, v{SM+1}", f"v_max_f32 v{SM+1}, 0, v{SM+1}", f"v_add_f32 v{SM+1}, {f32(1e-5)}, v{SM+1}",
             f"v_rsq_f32 v{SM+1}, v{SM+1}", f"v_sub_f32 v{NM}, 0, v{SM}",
             f"v_mul_f32 v{C1}, {f32(-LOG2E)}, v{SM+1}", f"v_mul_f32 v{C2}, v{SM+1}, v{SM+1}", f"ds_write_b32 v7, v{SM+16}"]
    seq = []
    for c in range(4):
        for i in range(8):
            for w in range(4): seq.append((w, 8 * c + i, c, w * 8192 + i * 1024))
    for c in range(4, 7):
        for t in range(32): seq.append((c, t, c, t * 1024))
    def aread(n):
        tile, t, stage, off = seq[n]; sl = stage % 4
        A(f"ds_read_b128 v[{AF[n%NAF]}:{AF[n%NAF]+3}], v{13 if sl >= 2 else 12} offset:{(sl%2)*32768 + off}")
    def epi(tile, n0):
        L = []; ac = ACCS[tile]; P = ET + 16; R8 = range(8)
        L += [(n0, f"ds_read_b128 v[{CSR+4*qd}:{CSR+4*qd+3}], v11 offset:{tile*128 + qd*32}") for qd in range(4)]
        L += [("sync", None)]
        M = []
        M += [f"v_fmac_f32 v{ac+r}, v{NM}, v{CSR+r}" for r in range(16)]
        M += [f"v_mul_f32 v{ET+r}, v{C1}, v{ac+r}" for r in R8]
        M += [x for r in R8 for x in (f"v_exp_f32 v{ET+r}, v{ET+r}", f"v_mul_f32 v{ET+8+r}, v{ac+r}, v{ac+8+r}")]
        M += [x for r in R8 for x in (f"v_add_f32 v{ET+r}, 1.0, v{ET+r}", f"v_mul_f32 v{ET+8+r}, v{ET+8+r}, v{C2}")]
        M += [f"v_rcp_f32 v{ET+r}, v{ET+r}" for r in R8]
        M += [f"v_mul_f32 v{ET+8+r}, v{ET+8+r}, v{ET+r}" for r in R8]
        M += [f"v_cvt_pk_bf16_f32 v{P+j}, v{ET+8+2*j}, v{ET+8+2*j+1}" for j in range(4)]
        M += [f"s_add_u32 s15, s14, {tile*1024}", f"buffer_store_dwordx4 v[{P}:{P+3}], v2, s[52:55], s15 offen{STP}"]
        return L + [(n0, m) for m in M]
    cost = lambda l: 2 if (l.startswith("v_exp") or l.startswith("v_rcp") or l.startswith("v_rsq")) else 1
    ts(A, 3, 1)
    A(f"s_waitcnt vmcnt({q.need(('dma', 0), ('h', 0))})")
    A("s_barrier")
    ts(A, 3, 2)
    PF = 8
    for n in range(PF): aread(n)
    N = len(seq)
    pend = []
    started = set()
    hold = -1
    for n in range(N):
        tile, t, stage, off = seq[n]
        budget = 6
        if n + PF < N and seq[n + PF][2] != seq[n + PF - 1][2]:
            ns = seq[n + PF][2]
            tags = [("dma", ns)] + ([("h", ns)] if ns < 4 else []) + (["small"] if ns == 1 else [])
            while any(gt[1] in tags for gt in vpend): emit(vpend.pop(0))
            A(f"s_waitcnt vmcnt({q.need(*tags)})")
            A("s_barrier")
            rs = ns + 2
            if 4 <= rs < 7: vpend += dma_groups(rs)
            budget -= 2
            if ns == 1: pend += [(n, l) for l in st_l]
        if n + PF < N: aread(n + PF); budget -= 1
        if n % 2 == 0:
            A(f"s_waitcnt lgkmcnt({max(0, min(PF, N - 1 - n) - 1)})"); budget -= 1
        ac = ACCS[tile]
        c_in = f"v[{ac}:{ac+15}]" if tile in started else "0"
        started.add(tile)
        A(f"v_mfma_f32_32x32x16_bf16 v[{ac}:{ac+15}], v[{AF[n%NAF]}:{AF[n%NAF]+3}], a[{4*t}:{4*t+3}], {c_in}")
        if n == 127: ts(A, 3, 3)
        if n == 159: ts(A, 3, 5)
        if n == 191: ts(A, 3, 6)
        rate = 1 if (n < VFAST) else 2
        if vpend and n % rate == rate - 1:
            gt = vpend.pop(0); emit(gt); budget -= len(gt[0])
        if n == 128 + 2:
            for tl in range(4): pend += epi(tl, n)
        if n == 128 + 32 + 13: pend += epi(4, n)
        if n == 128 + 64 + 13: pend += epi(5, n)
        if "k3nofill" in EXP and n > 100: pend = []
        while pend and budget > 0 and n >= hold:
            e, l = pend.pop(0)
            if e == "sync":
                hold = n + PF + 2; break
            A(l); budget -= cost(l)
            if l.startswith("buffer_store"): q.add("st")
    ts(A, 3, 4)
    A("s_nop 7"); A("s_nop 3")
    A("s_waitcnt lgkmcnt(0)")
    for e, l in pend + epi(6, 0):
        if e == "sync": A("s_waitcnt lgkmcnt(0)")
        else: A(l)
    ts(A, 3, 7, True)
    A.label("k3_end")
    A("s_endpgm")

def gen_k4(A):
    A.label("k4_kernel")
    prologue(A, 256, "k4_end"); ts(A, 4, 0)
    A("s_and_b32 s4, s2, 7"); A("s_lshr_b32 s5, s2, 3"); A("s_lshr_b32 s6, s5, 3"); A("s_lshl_b32 s4, s4, 2"); A("s_add_u32 s4, s4, s6"); A("s_and_b32 s5, s5, 7")
    srd(A, 36, P_WS, WS_ACT, SZ_ACT); srd(A, 40, P_WS, WS_WD, SZ_WD); srd(A, 44, P_WS, WS_H, SZ_H); srd(A, 48, P_OUT, 0, 2048 * 1024)
    q = VMQ()
    A("v_lshlrev_b32 v2, 4, v0")
    A("s_mul_i32 s8, s3, 28")
    A("s_lshr_b32 s13, s3, 1"); A("s_lshl_b32 s14, s4, 1"); A("s_add_u32 s13, s14, s13")
    A("s_and_b32 s14, s3, 1")
    A("s_mul_i32 s9, s13, 112"); A("s_add_u32 s9, s9, s8"); A("s_lshl_b32 s9, s9, 10")
    A("s_xor_b32 s11, s13, 1"); A("s_mul_i32 s11, s11, 112"); A("s_add_u32 s11, s11, s8"); A("s_lshl_b32 s11, s11, 10")
    A("s_lshl_b32 s10, s5, 1"); A("s_add_u32 s10, s10, s14"); A("s_xor_b32 s12, s10, 1")
    A("s_mul_i32 s10, s10, 112"); A("s_add_u32 s10, s10, s8"); A("s_lshl_b32 s10, s10, 10")
    A("s_mul_i32 s12, s12, 112"); A("s_add_u32 s12, s12, s8"); A("s_lshl_b32 s12, s12, 10")
    D = 5
    bases = [9, 11, 10, 12]
    def loads(t):
        b = (t % D) * 16
        for i in range(4):
            sr = 36 if i < 2 else 40
            if t % 4 == 0 and t > 0: A(f"s_add_u32 s{bases[i]}, s{bases[i]}, 4096")
            A(f"buffer_load_dwordx4 a[{b+4*i}:{b+4*i+3}], v2, s[{sr}:{sr+3}], s{bases[i]} offen offset:{(t%4)*1024}"); q.add(("g", t))
    for t in range(D): loads(t)
    A("s_lshl_b32 s15, s13, 5"); A("s_lshl_b32 s60, s5, 2"); A("s_add_u32 s15, s15, s60"); A("s_lshl_b32 s60, s14, 1"); A("s_add_u32 s15, s15, s60"); A("s_lshl_b32 s15, s15, 10")
    HR = 16
    ACC = 128
    for r in range(64): A(f"v_mov_b32 v{ACC+r}, 0")
    ts(A, 4, 1)
    for t in range(28):
        A(f"s_waitcnt vmcnt({q.need(('g', t))})")
        if t == 1: ts(A, 4, 2)
        b = (t % D) * 16
        for aa in range(2):
            for bb in range(2):
                ac = ACC + 16 * (2 * aa + bb)
                A(f"v_mfma_f32_32x32x16_bf16 v[{ac}:{ac+15}], a[{b+8+4*bb}:{b+8+4*bb+3}], a[{b+4*aa}:{b+4*aa+3}], v[{ac}:{ac+15}]")
        if t + D < 28: loads(t + D)
        if t == 22:
            A(f"buffer_load_dwordx4 v[{HR}:{HR+3}], v2, s[44:47], s15 offen"); q.add("h")
            A(f"buffer_load_dwordx4 v[{HR+4}:{HR+7}], v2, s[44:47], s15 offen offset:1024"); q.add("h")
    ts(A, 4, 3)
    A("s_nop 7"); A("s_nop 3")
    ksplit_reduce(A, "v", ACC, 64, 80)
    ts(A, 4, 4)
    A("s_waitcnt vmcnt(0)")
    for r in range(8):
        t8 = 8 + 2 * (r % 4)
        A(f"v_lshlrev_b32 v{t8}, 16, v{HR+r}"); A(f"v_and_b32 v{t8+1}, 0xffff0000, v{HR+r}")
        A(f"v_pk_add_f32 v[{64+2*r}:{64+2*r+1}], v[{64+2*r}:{64+2*r+1}], v[{t8}:{t8+1}]")
    OP = 96
    for r in range(8): A(f"v_cvt_pk_bf16_f32 v{OP+r}, v{64+2*r}, v{64+2*r+1}")
    A("s_nop 1")
    for p in range(2):
        A(f"v_permlane32_swap_b32 v{OP+4*p}, v{OP+4*p+2}"); A(f"v_permlane32_swap_b32 v{OP+4*p+1}, v{OP+4*p+3}")
    A("v_and_b32 v3, 31, v0"); A("v_lshrrev_b32 v5, 5, v0"); A("v_lshlrev_b32 v6, 10, v3"); A("v_lshl_add_u32 v6, v5, 4, v6")
    A("s_lshl_b32 s8, s13, 15"); A("s_lshl_b32 s9, s5, 7"); A("s_add_u32 s8, s8, s9"); A("s_lshl_b32 s9, s14, 6"); A("s_add_u32 s8, s8, s9")
    for p in range(2): A(f"buffer_store_dwordx4 v[{OP+4*p}:{OP+4*p+3}], v6, s[48:51], s8 offen offset:{p*32}{STP}")
    ts(A, 4, 7, True)
    A.label("k4_end")
    A("s_endpgm")

def build(path, extra_launches=0):
    kernels = [("k1_kernel", gen_k1, (256, 163840, 512), 256, 256),
               ("k2_kernel", gen_k2, (256, 49152, 256), 512, 256),
               ("k3_kernel", gen_k3, (256, 131072 + 1024, 256), 512, 256),
               ("k4_kernel", gen_k4, (256, 49152, 256), 512, 256)]
    hdr = open(f"cdna_kernels/{KNAME}.s.ref").read().split("\n")
    out = [l for l in hdr if l.startswith(";") and "@launch" not in l and "Override launch" not in l and "grid=ceil" not in l]
    for (n, g, (wg, lds, thr), vg, ac) in kernels:
        out.append(f"; @launch kernel={n} grid=({wg},1,1) block=({thr},1,1) lds={lds}")
    out.append('.amdgcn_target "amdgcn-amd-amdhsa--gfx950"'); out.append(".text")
    nerr = 0
    for (n, g, _, vg, ac) in kernels:
        A = Asm(); g(A)
        A.lines = [l for l in A.lines if l is not None]
        for variant in (A.lines, strip_opt(A.lines)):
            errs = check(variant, n)
            for e in errs[:30]: print("CHECK:", e)
            nerr += len(errs)
        out.append(f".globl {n}\n.p2align 8\n.type {n},@function"); out.append(A.text())
    out.append("code_end:\n  s_endpgm")
    out.append('.section .rodata,"a"')
    for (n, g, _, vg, ac) in kernels: out.append(kd(n, vg, ac))
    open(path, "w").write("\n".join(out) + "\n")
    print("written", path, "check errors:", nerr)
    import subprocess
    r = subprocess.run(["clang", "-x", "assembler", "-target", "amdgcn-amd-amdhsa", "-mcpu=gfx950", "-c", path, "-o", "x.o"], capture_output=True, text=True)
    if r.returncode: print(r.stderr[:2000])

if __name__ == "__main__":
    if "--ts" in sys.argv: G.TS = True; sys.argv.remove("--ts")
    build(sys.argv[1])
```

```python
import sys, struct
sys.path.insert(0, "dev")
from asmlib import *
import gen as G
from gen import (KNAME, MB, WS_KVZ, SZ_KVZ, WS_STATS, SZ_STATS, WS_CSP, SZ_CSP, WS_PQ, SZ_PQ, WS_H, SZ_H, WS_ACT, SZ_ACT,
                 WS_WGU, SZ_WGU, WS_WD, SZ_WD, WS_WO, SZ_WO, f32, LOG2E, ONES, P_X, P_WQKV, P_WO, P_BX, P_WG, P_WU, P_WD,
                 P_OUT, P_DBG, P_WS, prologue, srd, halves_sum, kd, strip_opt, WS_TS)
SZ_CSP = 16 * 3584 * 4
WS_CS = 0x7C000; SZ_CS = 3584 * 4
def ts(A, k, slot, wait=False): G.ts_mark(A, k, slot, wait)

class VMQ:
    def __init__(self): self.q = []
    def add(self, tag, n=1): self.q += [tag] * n
    def need(self, *tags):
        idx = [i for i, x in enumerate(self.q) if x in tags]
        return len(self.q) - 1 - max(idx)

import os
EXP = set(os.environ.get("EXP", "").split(","))
STP = " sc1" if "nosc1" not in EXP else ""
JOBI = int(os.environ.get("JOBI", "3"))
JOBF = int(os.environ.get("JOBF", "4"))
NPRE = int(os.environ.get("NPRE", "8"))
VFAST = int(os.environ.get("VFAST", "8"))
BC = "op_sel_hi:[1,0,1]"
def job_issue(A, jl):
    pass

def gen_k1(A):
    A.label("k1_kernel")
    prologue(A, 256, "k1_end")
    A("s_mov_b32 s59, s3")
    A("s_and_b32 s3, s3, 3")
    A("v_and_b32 v1, 3, v1")
    A("s_and_b32 s4, s2, 7")
    A("s_lshr_b32 s5, s2, 3")
    A("s_lshr_b32 s6, s4, 1"); A("s_lshl_b32 s6, s6, 3"); A("s_lshr_b32 s7, s5, 2"); A("s_add_u32 s6, s6, s7")
    A("s_and_b32 s4, s4, 1"); A("s_lshl_b32 s4, s4, 2"); A("s_and_b32 s5, s5, 3"); A("s_add_u32 s5, s5, s4")
    srd(A, 44, P_WS, WS_KVZ, SZ_KVZ)
    srd(A, 48, P_DBG, 0, 256)
    A("s_cmp_ge_u32 s59, 4"); A("s_cbranch_scc1 k1_loader")
    ts(A, 1, 0)
    A("s_cmp_eq_u32 s3, 0"); A("s_cbranch_scc1 k1_w0")
    A("s_cmp_eq_u32 s3, 1"); A("s_cbranch_scc1 k1_w1")
    A("s_cmp_eq_u32 s3, 2"); A("s_cbranch_scc1 k1_w2")
    for w in (3, 0, 1, 2):
        A.label(f"k1_w{w}")
        k1_wave(A, w)
        A("s_branch k1_fin")
    A.label("k1_loader")
    k1_loader(A)
    A("s_branch k1_end")
    A.label("k1_fin")
    ts(A, 1, 7, True)
    A.label("k1_end")
    A("s_endpgm")

def lds_signal(A, addr):
    A(f"v_mov_b32 v18, {addr}"); A("v_mov_b32 v123, 1")
    A("ds_write_b32 v18, v123")

def lds_wait4(A, addr, lab):
    A(f"v_mov_b32 v18, {addr}")
    A.label(lab)
    A("ds_read_b128 v[124:127], v18")
    A("s_waitcnt lgkmcnt(0)")
    A("v_and_b32 v124, v124, v125"); A("v_and_b32 v126, v126, v127"); A("v_and_b32 v124, v124, v126")
    A("s_nop 0")
    A("v_readfirstlane_b32 s14, v124")
    A("s_nop 3")
    A("s_cmp_eq_u32 s14, 0")
    A(f"s_cbranch_scc1 {lab}")

def lds_wait(A, addr, lab):
    A(f"v_mov_b32 v18, {addr}")
    A.label(lab)
    A("ds_read_b32 v123, v18")
    A("s_waitcnt lgkmcnt(0)")
    A("v_readfirstlane_b32 s14, v123")
    A("s_nop 3")
    A("s_cmp_eq_u32 s14, 0")
    A(f"s_cbranch_scc1 {lab}")

def k1_loader(A):
    ts(A, 0, 0)
    q = VMQ()
    srd(A, 36, P_X, 0, 2048 * 1024)
    srd(A, 40, P_WQKV, 0, 512 * 3072)
    A("s_cmp_lg_u32 s6, 0"); A("s_cbranch_scc1 k1_nozero")
    A("v_lshl_add_u32 v8, v1, 6, v0"); A("v_lshlrev_b32 v8, 4, v8")
    for i in range(4): A(f"v_mov_b32 v{12+i}, 0")
    A("s_mul_i32 s12, s5, 4352")
    A("buffer_store_dwordx4 v[12:15], v8, s[44:47], s12 offen sc1")
    A("v_add_u32 v8, 4096, v8"); A("v_cmp_gt_u32 vcc, 4352, v8")
    A("s_and_saveexec_b64 s[14:15], vcc"); A("s_cbranch_execz k1_z2")
    A("buffer_store_dwordx4 v[12:15], v8, s[44:47], s12 offen sc1")
    A.label("k1_z2"); A("s_mov_b64 exec, s[14:15]")
    A.label("k1_nozero")
    A("v_lshrrev_b32 v4, 3, v0"); A("v_and_b32 v5, 7, v0"); A("v_lshrrev_b32 v6, 4, v0"); A("v_xor_b32 v5, v5, v6")
    A("v_lshlrev_b32 v5, 4, v5"); A("v_lshl_add_u32 v2, v4, 10, v5"); A("v_xor_b32 v3, 64, v2")
    A("s_lshl_b32 s7, s6, 16"); A("s_lshl_b32 s12, s3, 14"); A("s_add_u32 s7, s7, s12")
    A(f"s_mul_i32 s8, s3, {16*3072}"); A("s_lshl_b32 s12, s5, 7"); A("s_add_u32 s8, s8, s12")
    A("s_lshl_b32 s9, s3, 11"); A(f"s_mul_i32 s10, s3, {6*1024}"); A("s_add_u32 s10, s10, 8192")
    def xdma(stage):
        slot = (stage % 4) * 32768
        for i in range(2):
            A(f"s_add_u32 m0, s9, {slot + i*1024}"); A(f"s_add_u32 s13, s7, {i*8192 + stage*128}")
            A(f"buffer_load_dwordx4 v{2+i}, s[36:39], s13 offen lds"); q.add(("st", stage))
    xdma(0)
    A("s_movk_i32 s12, 2731"); A("s_movk_i32 s13, 3072")
    for b in range(3):
        A(f"v_add_u32 v8, {64*b}, v0"); A("v_mul_lo_u32 v9, v8, s12"); A("v_lshrrev_b32 v9, 16, v9")
        A("v_mul_u32_u24 v10, 24, v9"); A("v_sub_u32 v10, v8, v10"); A(f"v_mul_lo_u32 v{4+b}, v9, s13")
        A("v_lshrrev_b32 v11, 3, v10"); A(f"v_lshl_add_u32 v{4+b}, v11, 10, v{4+b}")
        A("v_bfe_u32 v11, v10, 2, 1"); A("v_bfe_u32 v12, v9, 1, 1"); A("v_xor_b32 v11, v11, v12")
        A(f"v_lshl_add_u32 v{4+b}, v11, 6, v{4+b}"); A("v_and_b32 v11, 3, v10"); A(f"v_lshl_add_u32 v{4+b}, v11, 4, v{4+b}")
    def wdma(stage):
        slot = (stage % 4) * 32768
        for a in range(2):
            for b in range(3):
                A(f"s_add_u32 m0, s10, {slot + (a*3+b)*1024}")
                if b == 0: A(f"s_add_u32 s12, s8, {stage*64*3072 + a*8*3072}")
                else: A("s_nop 0")
                A(f"buffer_load_dwordx4 v{4+b}, s[40:43], s12 offen lds"); q.add(("st", stage))
    wdma(0)
    xdma(1); wdma(1)
    job = "nojob" not in EXP
    ts(A, 0, 1)
    A(f"s_waitcnt vmcnt({q.need(('st', 0))})")
    A("s_barrier")
    A("s_cmp_lg_u32 s6, 0"); A("s_cbranch_scc1 k1_noflag"); A("s_cmp_lg_u32 s3, 0"); A("s_cbranch_scc1 k1_noflag")
    A("v_mov_b32 v20, 1"); A("s_lshl_b32 s12, s5, 2"); A("v_mov_b32 v21, s12")
    A("s_mov_b64 exec, 1")
    A("buffer_store_dword v20, v21, s[48:51], 0 offen sc1")
    A("s_mov_b64 exec, -1")
    A.label("k1_noflag")
    for st in range(2, 4): xdma(st); wdma(st)
    if JOBI == -1 and job: job_issue(A, q)
    FL = 131072 + 24576 + 4096
    A("s_lshl_b32 s12, s3, 2"); A(f"s_add_u32 s12, s12, {FL + 64}"); A("v_mov_b32 v22, s12"); A("v_mov_b32 v23, 1")
    for st in range(7):
        A(f"s_waitcnt vmcnt({q.need(('st', st + 1))})")
        if st < 4: A("s_barrier")
        else: A(f"ds_write_b32 v22, v23 offset:{(st - 4) * 16}")
        if st + 4 < 8: xdma(st + 4); wdma(st + 4)
        if st == JOBI and job:
            ts(A, 0, 2)
            job_issue(A, q)
    if job:
        A("s_waitcnt vmcnt(0)")
        ts(A, 0, 3)
        job_finish(A)
    ts(A, 0, 7, True)

def k1_wave(A, w):
    wm, wn = w >> 1, w & 1
    q = VMQ()
    A("v_and_b32 v20, 31, v0"); A("v_lshrrev_b32 v21, 5, v0"); A("v_bfe_u32 v22, v0, 1, 3")
    A("v_xor_b32 v22, v22, v21"); A("v_lshlrev_b32 v22, 4, v22"); A("v_lshl_add_u32 v22, v20, 7, v22")
    A(f"v_add_u32 v8, {wm*4096}, v22")
    for t in range(1, 4): A(f"v_xor_b32 v{8+t}, {32*t}, v8")
    for t in range(4): A(f"v_add_u32 v{12+t}, 0x10000, v{8+t}")
    A("v_bfe_u32 v22, v0, 2, 2"); A("v_lshl_add_u32 v23, v21, 3, v22"); A("v_mul_u32_u24 v23, 384, v23")
    A("v_bfe_u32 v22, v0, 3, 1")
    if wn: A("v_xor_b32 v22, 1, v22")
    A("v_lshl_add_u32 v23, v22, 6, v23"); A("v_bfe_u32 v22, v0, 4, 1"); A("v_lshl_add_u32 v23, v22, 5, v23")
    A("v_and_b32 v22, 3, v0"); A("v_lshl_add_u32 v16, v22, 3, v23"); A("v_add_u32 v17, 0x10000, v16")
    XF = [24, 28]; WF = [32, 44]; ACC = 64
    RS, RQ, CS = 112, 114, 116
    RS2, RQ2, CS2 = 232, 234, 236
    for r in list(range(RS, CS + 3)) + list(range(RS2, CS2 + 3)): A(f"v_mov_b32 v{r}, 0")
    def reads(k):
        st, t = divmod(k, 4); sl = st % 4; hi = sl >= 2; off = (sl % 2) * 32768; b = k % 2
        L = [f"ds_read_b128 v[{XF[b]}:{XF[b]+3}], v{(12 if hi else 8)+t} offset:{off}"]
        for p in range(3):
            d = WF[b] + 4 * p; o = off + 8192 + t * 6144 + p * 128
            L.append(f"ds_read_b64_tr_b16 v[{d}:{d+1}], v{17 if hi else 16} offset:{o}")
            L.append(f"ds_read_b64_tr_b16 v[{d+2}:{d+3}], v{17 if hi else 16} offset:{o + 1536}")
        return L
    FL = 131072 + 24576 + 4096
    A(f"v_mov_b32 v18, {FL + w*16}"); A("v_mov_b32 v19, 0")
    A("ds_write_b64 v18, v[18:19]") if False else None
    A("v_mov_b32 v22, 0"); A("v_mov_b32 v23, 0")
    A("v_mov_b32 v24, 0"); A("v_mov_b32 v25, 0"); A("v_mov_b32 v26, 0"); A("v_mov_b32 v27, 0")
    A("ds_write_b128 v18, v[24:27]")
    A("ds_write_b128 v18, v[24:27] offset:64")
    if "nopf" not in EXP:
        srd(A, 36, P_X, 0, 2048 * 1024); srd(A, 40, P_WQKV, 0, 512 * 3072)
        A("s_lshr_b32 s12, s2, 3"); A("s_lshl_b32 s12, s12, 2"); A(f"s_add_u32 s12, s12, {w}")
        A("s_and_b32 s13, s2, 7")
        A("s_lshr_b32 s14, s13, 1"); A("s_lshl_b32 s14, s14, 19"); A("s_lshl_b32 s15, s12, 12"); A("s_add_u32 s14, s14, s15")
        A("v_lshlrev_b32 v22, 7, v20")
        A("buffer_load_dword v118, v22, s[36:39], s14 offen") if False else None
        if "noxpf" not in EXP: A("buffer_load_dword v240, v22, s[36:39], s14 offen"); q.add("pf")
        A("v_min_u32 v22, 47, v0"); A("v_mul_u32_u24 v23, 43, v22"); A("v_lshrrev_b32 v23, 9, v23")
        A("v_mul_u32_u24 v24, 12, v23"); A("v_sub_u32 v24, v22, v24")
        A("v_mul_u32_u24 v23, 3072, v23"); A("v_lshrrev_b32 v25, 2, v24"); A("v_lshl_add_u32 v23, v25, 10, v23")
        A("v_and_b32 v24, 3, v24"); A("v_lshl_add_u32 v23, v24, 7, v23")
        A("s_mul_i32 s14, s12, 12288"); A("s_and_b32 s13, s13, 1"); A("s_lshl_b32 s13, s13, 9"); A("s_add_u32 s14, s14, s13")
        A("buffer_load_dword v241, v23, s[40:43], s14 offen"); q.add("pf")
    if w == 1 and "tlbpf" in EXP:
        srd(A, 64, P_WS, 0, 24 * MB)
        A("v_lshlrev_b32 v22, 19, v0"); A("v_min_u32 v22, 0x17f0000, v22")
        A("buffer_load_dword v243, v22, s[64:67], 0 offen")
        srd(A, 64, P_OUT, 0, 2 * MB)
        A("v_lshlrev_b32 v22, 15, v0")
        A("buffer_load_dword v244, v22, s[64:67], 0 offen")
    if w == 0 and "codepf" in EXP:
        A("s_getpc_b64 s[64:65]")
        A.label("k1_pc")
        A("s_add_u32 s64, s64, k1_kernel-k1_pc")
        A("s_addc_u32 s65, s65, -1")
        A("s_lshr_b32 s12, s2, 3"); A("s_lshl_b32 s12, s12, 13")
        A("v_lshlrev_b32 v22, 7, v0"); A("v_add_u32 v22, s12, v22")
        A("s_mov_b32 s13, code_end-k1_kernel-4")
        A("s_cmp_gt_u32 s12, s13"); A("s_cbranch_scc1 k1_nocpf")
        A("v_min_u32 v22, s13, v22")
        A("global_load_dword v242, v22, s[64:65]")
        A.label("k1_nocpf")
    ts(A, 1, 1)
    A("s_waitcnt lgkmcnt(0)")
    A("s_barrier")
    ts(A, 1, 2)
    for l in reads(0): A(l)
    A("s_waitcnt lgkmcnt(0)")
    for k in range(32):
        st, t = divmod(k, 4); b = k % 2
        if t == 3 and k + 1 < 32:
            if st < 4: A("s_barrier")
            else: lds_wait4(A, FL + 64 + (st - 4) * 16, f"k1_lf{w}_{st}")
        if k == 28: lds_signal(A, FL + w * 16 + 8)
        if k == 24:
            A("s_lshl_b32 s14, s5, 2"); A("v_mov_b32 v120, s14")
            A("buffer_load_dword v121, v120, s[48:51], 0 offen sc1"); q.add("flag")
        rd = reads(k + 1) if k + 1 < 32 else []
        x = XF[b]; wf = WF[b]
        c0 = "0" if k == 0 else None
        def C(r): return "0" if k == 0 else f"v[{r}:{r+15}]"
        A(f"v_mfma_f32_32x32x16_bf16 v[{ACC}:{ACC+15}], v[{wf}:{wf+3}], v[{x}:{x+3}], {C(ACC)}")
        for l in rd[:4]: A(l)
        A(f"v_mfma_f32_32x32x16_bf16 v[{ACC+16}:{ACC+31}], v[{x}:{x+3}], v[{wf+4}:{wf+7}], {C(ACC+16)}")
        for l in rd[4:]: A(l)
        A(f"v_mfma_f32_32x32x16_bf16 v[{ACC+32}:{ACC+47}], v[{x}:{x+3}], v[{wf+8}:{wf+11}], {C(ACC+32)}")
        if (k & 1) == wn and "nodots" not in EXP:
            for j in range(4):
                A(f"v_dot2c_f32_bf16 v{[RS, RS+1, RS2, RS2+1][j]}, {ONES}, v{x+j}")
                A(f"v_dot2c_f32_bf16 v{[RQ, RQ+1, RQ2, RQ2+1][j]}, v{x+j}, v{x+j}")
        if (k & 1) == wm and "nodots" not in EXP:
            for j in range(4):
                for p in range(3): A(f"v_dot2c_f32_bf16 v{(CS if j & 1 else CS2)+p}, {ONES}, v{wf+4*p+j}")
        A("s_waitcnt lgkmcnt(0)")
    ts(A, 1, 3)
    T = 122
    EX = 65536
    A("s_nop 2")
    A(f"v_add_f32 v{RS}, v{RS}, v{RS+1}"); A(f"v_add_f32 v{RS2}, v{RS2}, v{RS2+1}")
    A(f"v_add_f32 v{RQ}, v{RQ}, v{RQ+1}"); A(f"v_add_f32 v{RQ2}, v{RQ2}, v{RQ2+1}")
    for p in range(3): A(f"v_add_f32 v{CS+p}, v{CS+p}, v{CS2+p}")
    A(f"v_add_f32 v{RS}, v{RS}, v{RS2}"); A(f"v_add_f32 v{RQ}, v{RQ}, v{RQ2}")
    hs = [RS, RQ, CS, CS + 1, CS + 2]
    for i, r in enumerate(hs): A(f"v_mov_b32 v{24+i}, v{r}")
    A("s_nop 1")
    for i, r in enumerate(hs): A(f"v_permlane32_swap_b32 v{r}, v{24+i}")
    A("s_nop 1")
    for i, r in enumerate(hs): A(f"v_add_f32 v{r}, v{r}, v{24+i}")
    for o in range(4):
        if o != w: lds_wait(A, FL + o * 16 + 8, f"k1_d6{w}_{o}")
    A("v_lshlrev_b32 v22, 2, v20"); A(f"v_add_u32 v22, {EX}, v22")
    es = (wm * 2 + wn) * 256; eo = (wm * 2 + (1 - wn)) * 256
    ec = 1024 + (wn * 2 + wm) * 384; eco = 1024 + (wn * 2 + (1 - wm)) * 384
    A(f"ds_write_b32 v22, v{RS} offset:{es}"); A(f"ds_write_b32 v22, v{RQ} offset:{es+128}")
    for p in range(3): A(f"ds_write_b32 v22, v{CS+p} offset:{ec + p*128}")
    C1, CL, CN, CE = 176, 178, 180, 182
    for r, val in ((C1, 1.000001), (CL, LOG2E), (CN, -1.000001 * LOG2E), (CE, 1e-6)):
        A(f"v_mov_b32 v{r}, {f32(val)}"); A(f"v_mov_b32 v{r+1}, {f32(val)}")
    ON = 224
    for j in range(4): A(f"v_mov_b32 v{ON+j}, {ONES}")
    A("v_lshlrev_b32 v23, 4, v21"); A(f"v_add_u32 v23, {EX}, v23")
    lds_signal(A, FL + w * 16)
    lds_wait(A, FL + (wm * 2 + 1 - wn) * 16, f"k1_sp{w}a")
    lds_wait(A, FL + ((1 - wm) * 2 + wn) * 16, f"k1_sp{w}b")
    ts(A, 1, 6)
    A(f"ds_read_b32 v24, v22 offset:{eo}"); A(f"ds_read_b32 v25, v22 offset:{eo+128}")
    for p in range(3): A(f"ds_read_b32 v{26+p}, v22 offset:{eco + p*128}")
    A("s_waitcnt lgkmcnt(0)")
    A(f"v_add_f32 v{RS}, v{RS}, v24"); A(f"v_add_f32 v{RQ}, v{RQ}, v25")
    for p in range(3): A(f"v_add_f32 v{CS+p}, v{CS+p}, v{26+p}")
    PR = 4096 + w * 512
    A(f"ds_write_b32 v22, v{CS} offset:{PR+256}")
    A(f"v_mul_f32 v{RS}, {f32(1/512)}, v{RS}"); A(f"v_mul_f32 v{RQ}, {f32(1/512)}, v{RQ}")
    A(f"v_fma_f32 v{RQ}, -v{RS}, v{RS}, v{RQ}"); A(f"v_max_f32 v{RQ}, 0, v{RQ}"); A(f"v_add_f32 v{RQ}, {f32(1e-5)}, v{RQ}")
    A(f"v_rsq_f32 v{RQ}, v{RQ}"); A("s_nop 0")
    A(f"v_mul_f32 v{RS}, v{RS}, v{RQ}"); A(f"v_sub_f32 v{RS}, 0, v{RS}")
    A(f"ds_write_b32 v22, v{RQ} offset:{PR}"); A(f"ds_write_b32 v22, v{RS} offset:{PR+128}")
    SA, SB, SC = 128, 144, 160
    A(f"v_mov_b32 v184, v{RQ}"); A(f"v_mov_b32 v186, v{RS}"); A(f"v_mov_b32 v188, v{CS+1}"); A(f"v_mov_b32 v190, v{CS+2}")
    A("s_waitcnt lgkmcnt(0)")
    for qd in range(4):
        A(f"ds_read_b128 v[{SA+4*qd}:{SA+4*qd+3}], v23 offset:{PR + qd*32}")
        A(f"ds_read_b128 v[{SB+4*qd}:{SB+4*qd+3}], v23 offset:{PR + 128 + qd*32}")
    for qd in range(4): A(f"ds_read_b128 v[{SC+4*qd}:{SC+4*qd+3}], v23 offset:{PR + 256 + qd*32}")
    A("s_waitcnt lgkmcnt(4)")
    TP = 40
    def phi_vec(base, mode):
        prs = list(range(0, 16, 2))
        for i in prs:
            if mode == "q": A(f"v_pk_fma_f32 v[{TP+i}:{TP+i+1}], v[{SC+i}:{SC+i+1}], v[186:187], v[{C1}:{C1+1}] op_sel_hi:[1,0,1]")
            else:           A(f"v_pk_fma_f32 v[{TP+i}:{TP+i+1}], v[{SB+i}:{SB+i+1}], v[188:189], v[{C1}:{C1+1}] op_sel_hi:[1,0,1]")
        for i in prs:
            r = base + i
            if mode == "q": A(f"v_pk_fma_f32 v[{r}:{r+1}], v[{r}:{r+1}], v[184:185], v[{TP+i}:{TP+i+1}] op_sel_hi:[1,0,1]")
            else:           A(f"v_pk_fma_f32 v[{r}:{r+1}], v[{r}:{r+1}], v[{SA+i}:{SA+i+1}], v[{TP+i}:{TP+i+1}]")
        for i in prs:
            r = base + i
            A(f"v_pk_fma_f32 v[{TP+i}:{TP+i+1}], v[{r}:{r+1}], v[{CL}:{CL+1}], v[{CN}:{CN+1}]")
        for i in range(16): A(f"v_exp_f32_e64 v{TP+i}, v{TP+i} clamp")
        for i in prs: A(f"v_pk_add_f32 v[{TP+i}:{TP+i+1}], v[{TP+i}:{TP+i+1}], v[{CE}:{CE+1}]")
        for i in range(16): A(f"v_max_f32 v{base+i}, v{base+i}, v{TP+i}")
    PK = 200
    for r in range(0, 16, 2): A(f"v_pk_mul_f32 v[{24+r}:{24+r+1}], v[{SB+r}:{SB+r+1}], v[190:191] op_sel_hi:[1,0]")
    for r in range(0, 16, 2):
        rg = ACC + 32 + r
        A(f"v_pk_fma_f32 v[{rg}:{rg+1}], v[{rg}:{rg+1}], v[{SA+r}:{SA+r+1}], v[{24+r}:{24+r+1}]")
    phi_vec(ACC + 16, "k")
    for r in range(8): A(f"v_cvt_pk_bf16_f32 v{PK+16+r}, v{ACC+32+2*r}, v{ACC+32+2*r+1}")
    for r in range(8): A(f"v_cvt_pk_bf16_f32 v{PK+8+r}, v{ACC+16+2*r}, v{ACC+16+2*r+1}")
    A("s_nop 1")
    kp, vp = PK + 8, PK + 16; D = ACC + 16; Z = ACC + 32
    A(f"v_mfma_f32_32x32x16_bf16 v[{D}:{D+15}], v[{vp}:{vp+3}], v[{kp}:{kp+3}], 0")
    A(f"v_mfma_f32_32x32x16_bf16 v[{Z}:{Z+15}], v[{ON}:{ON+3}], v[{kp}:{kp+3}], 0")
    A(f"v_mfma_f32_32x32x16_bf16 v[{D}:{D+15}], v[{vp+4}:{vp+7}], v[{kp+4}:{kp+7}], v[{D}:{D+15}]")
    A(f"v_mfma_f32_32x32x16_bf16 v[{Z}:{Z+15}], v[{ON}:{ON+3}], v[{kp+4}:{kp+7}], v[{Z}:{Z+15}]")
    A("v_and_b32 v22, 16, v0"); A("v_cmp_ne_u32 vcc, 0, v22")
    A("v_lshlrev_b32 v19, 2, v0"); A(f"v_add_u32 v19, {EX + 8192}, v19")
    A("v_bfe_u32 v9, v0, 4, 1"); A("s_movk_i32 s13, 1088"); A("v_mul_lo_u32 v9, v9, s13")
    A("v_and_b32 v10, 15, v0"); A("v_lshl_add_u32 v9, v10, 2, v9"); A("v_lshl_add_u32 v10, v21, 8, v9")
    A("s_lshl_b32 s13, s5, 2"); A(f"s_add_u32 s13, s13, {2*wn}"); A("s_mulk_i32 s13, 1088")
    A("s_nop 7")
    for r in range(8): A(f"v_cndmask_b32 v{24+r}, v{D+r}, v{D+8+r}, vcc")
    keep = list(range(4 * wm, 4 * wm + 4)); send = [r for r in range(8) if r not in keep]
    mine = (wn * 2 + wm) * 2304; other = (wn * 2 + 1 - wm) * 2304
    for r in send: A(f"ds_write_b32 v19, v{24+r} offset:{mine + r*256}")
    if wm == 1: A(f"ds_write_b32 v19, v{Z} offset:{mine + 8*256}")
    lds_signal(A, FL + w * 16 + 4)
    lds_wait(A, FL + ((1 - wm) * 2 + wn) * 16 + 4, f"k1_sp{w}c")
    for i, r in enumerate(keep): A(f"ds_read_b32 v{32+i}, v19 offset:{other + r*256}")
    if wm == 0: A(f"ds_read_b32 v36, v19 offset:{other + 8*256}")
    A(f"s_waitcnt vmcnt({q.need('flag')})")
    A("s_waitcnt lgkmcnt(0)")
    for i, r in enumerate(keep): A(f"v_add_f32 v{24+r}, v{24+r}, v{32+i}")
    if wm == 0: A(f"v_add_f32 v36, v36, v{Z}")
    A.label(f"k1_poll{w}")
    A("v_readfirstlane_b32 s14, v121"); A("s_nop 3"); A("s_cmp_lg_u32 s14, 0"); A(f"s_cbranch_scc1 k1_go{w}")
    A("s_sleep 2"); A("buffer_load_dword v121, v120, s[48:51], 0 offen sc1"); A("s_waitcnt vmcnt(0)"); A(f"s_branch k1_poll{w}")
    A.label(f"k1_go{w}")
    for i, r in enumerate(keep):
        A(f"buffer_atomic_add_f32 v{24+r}, v10, s[44:47], s13 offen offset:{wm*512 + (r&3)*64}")
    if wm == 0:
        A("s_mov_b64 exec, 0xffffffff")
        A("buffer_atomic_add_f32 v36, v9, s[44:47], s13 offen offset:1024")
        A("s_mov_b64 exec, -1")
    ts(A, 1, 4)
    phi_vec(ACC, "q")
    for r in range(8): A(f"v_cvt_pk_bf16_f32 v{PK+r}, v{ACC+2*r}, v{ACC+2*r+1}")
    srd(A, 52, P_WS, WS_PQ, SZ_PQ)
    A("s_lshl_b32 s12, s6, 1"); A(f"s_add_u32 s12, s12, {wm}"); A("s_lshl_b32 s12, s12, 5")
    A("s_lshl_b32 s13, s5, 2"); A("s_add_u32 s12, s12, s13"); A(f"s_add_u32 s12, s12, {2*wn}"); A("s_lshl_b32 s12, s12, 10")
    A("v_lshlrev_b32 v18, 4, v0")
    A(f"buffer_store_dwordx4 v[{PK}:{PK+3}], v18, s[52:55], s12 offen{STP}")
    A(f"buffer_store_dwordx4 v[{PK+4}:{PK+7}], v18, s[52:55], s12 offen offset:1024{STP}")
    ts(A, 1, 5)

def job_issue(A, q):
    A("s_lshl_b32 s70, s3, 8"); A("s_add_u32 s70, s70, s2")
    A("s_lshl_b32 s71, s3, 13"); A("s_add_u32 s71, s71, 131072")
    A("v_lshrrev_b32 v28, 3, v0"); A("v_and_b32 v29, 7, v0"); A("v_lshlrev_b32 v29, 4, v29")
    A("v_lshl_add_u32 v30, v28, 10, v29")
    A("s_mov_b32 s72, 3")
    srd(A, 76, P_WO, 0, 0); srd(A, 80, P_WO, 0, 0)
    A("s_mov_b32 s88, 0"); A("s_mov_b32 s90, 0"); A("s_mov_b32 s91, 0")
    A("s_mov_b32 s62, 0"); A(f"s_mov_b32 s63, {131072 + 24576}")
    A("s_cmp_ge_u32 s70, 736"); A("s_cbranch_scc1 k1_js_done")
    A("s_movk_i32 s62, 1024"); A("s_mov_b32 s63, s71")
    A("s_cmp_lt_u32 s70, 448"); A("s_cbranch_scc1 k1_js_gu")
    A("s_mov_b32 s72, 1")
    A("s_cmp_lt_u32 s70, 672"); A("s_cbranch_scc1 k1_js_wd")
    srd(A, 76, P_WO, 0, 512 * 1024); srd(A, 80, P_WO, 0, 512 * 1024); srd(A, 84, P_WS, WS_WO, SZ_WO)
    A("s_mov_b32 s73, 32"); A("s_sub_u32 s70, s70, 672")
    A("s_branch k1_js_dd")
    A.label("k1_js_wd")
    srd(A, 76, P_WD, 0, 1792 * 1024); srd(A, 80, P_WD, 0, 1792 * 1024); srd(A, 84, P_WS, WS_WD, SZ_WD)
    A("s_mov_b32 s73, 112"); A("s_sub_u32 s70, s70, 448")
    A.label("k1_js_dd")
    A("s_lshr_b32 s74, s70, 3"); A("s_and_b32 s75, s70, 7")
    A("s_lshl_b32 s88, s74, 16"); A("s_lshl_b32 s89, s75, 7"); A("s_add_u32 s88, s88, s89")
    A("s_movk_i32 s90, 8192"); A("s_add_u32 s91, s88, 32768")
    A("s_branch k1_js_done")
    A.label("k1_js_gu")
    A("s_mov_b32 s72, 0")
    srd(A, 76, P_WG, 0, 512 * 3584); srd(A, 80, P_WU, 0, 512 * 3584); srd(A, 84, P_WS, WS_WGU, SZ_WGU)
    A("s_mul_i32 s74, s70, 2341"); A("s_lshr_b32 s74, s74, 16"); A("s_mul_i32 s75, s74, 28"); A("s_sub_u32 s75, s70, s75")
    A("s_movk_i32 s89, 3584"); A("v_mul_lo_u32 v30, v28, s89"); A("v_add_u32 v30, v30, v29")
    A(f"s_mul_i32 s88, s74, {32*3584}"); A("s_lshl_b32 s89, s75, 7"); A("s_add_u32 s88, s88, s89")
    A(f"s_movk_i32 s90, {8*3584}"); A("s_mov_b32 s91, s88")
    A.label("k1_js_done")
    for i in range(8):
        A("s_mov_b32 m0, s63")
        rg = 88 if i < 4 else 91
        A("s_add_u32 s63, s63, s62")
        A(f"buffer_load_dwordx4 v30, s[{76 if i < 4 else 80}:{79 if i < 4 else 83}], s{rg} offen lds"); q.add("job")
        A(f"s_add_u32 s{rg}, s{rg}, s90")

def job_finish(A):
    A("s_cmp_eq_u32 s72, 3"); A("s_cbranch_scc1 k1_jf_end")
    A("v_lshlrev_b32 v34, 4, v0")
    A("v_lshrrev_b32 v35, 5, v0"); A("v_bfe_u32 v36, v0, 2, 2"); A("v_lshl_add_u32 v35, v35, 2, v36"); A("v_lshlrev_b32 v35, 7, v35")
    A("v_and_b32 v36, 3, v0"); A("v_lshl_add_u32 v35, v36, 3, v35"); A("v_add_u32 v35, s71, v35"); A("v_bfe_u32 v36, v0, 4, 1")
    A("s_cmp_eq_u32 s72, 0"); A("s_cbranch_scc1 k1_jf_gu")
    A("v_lshl_add_u32 v35, v36, 5, v35")
    A("s_lshl_b32 s60, s75, 1"); A("s_mul_i32 s60, s60, s73"); A("s_lshl_b32 s61, s74, 2"); A("s_add_u32 s60, s60, s61")
    A("s_lshl_b32 s60, s60, 10"); A("s_lshl_b32 s61, s73, 10")
    for c in range(2):
        for i in range(4):
            d = 40 + (c * 4 + i) * 4
            A(f"ds_read_b64_tr_b16 v[{d}:{d+1}], v35 offset:{i*2048 + c*64}")
            A(f"ds_read_b64_tr_b16 v[{d+2}:{d+3}], v35 offset:{i*2048 + c*64 + 1024}")
    A("s_waitcnt lgkmcnt(0)")
    for c in range(2):
        for i in range(4):
            d = 40 + (c * 4 + i) * 4
            A(f"buffer_store_dwordx4 v[{d}:{d+3}], v34, s[84:87], s60 offen offset:{i*1024}{STP}")
        A("s_add_u32 s60, s60, s61")
    A("s_branch k1_jf_end")
    A.label("k1_jf_gu")
    srd(A, 76, P_WS, WS_CSP, SZ_CSP)
    A("v_lshl_add_u32 v35, v36, 12, v35")
    A("s_lshl_b32 s60, s75, 7"); A("s_lshl_b32 s61, s74, 1"); A("s_add_u32 s60, s60, s61"); A("s_lshl_b32 s60, s60, 10")
    for c in range(8): A(f"v_mov_b32 v{72+c}, 0")
    for c in range(4):
        for i in range(2):
            d = 40 + (c * 2 + i) * 4
            A(f"ds_read_b64_tr_b16 v[{d}:{d+1}], v35 offset:{i*2048 + c*32}")
            A(f"ds_read_b64_tr_b16 v[{d+2}:{d+3}], v35 offset:{i*2048 + c*32 + 1024}")
    A("s_waitcnt lgkmcnt(0)")
    for c in range(4):
        A(f"s_add_u32 s61, s60, {c*32*1024}")
        for i in range(2):
            d = 40 + (c * 2 + i) * 4
            A(f"buffer_store_dwordx4 v[{d}:{d+3}], v34, s[84:87], s61 offen offset:{i*1024}{STP}")
    for j in range(4):
        for i in range(2):
            for c in range(4): A(f"v_dot2c_f32_bf16 v{72+4*i+c}, {ONES}, v{40+(c*2+i)*4+j}")
    A("s_nop 2")
    for c in range(4): A(f"v_add_f32 v{72+c}, v{72+c}, v{76+c}")
    A("s_mulk_i32 s74, 3584"); A("s_lshl_b32 s61, s75, 7"); A("s_add_u32 s74, s74, s61"); A("s_lshl_b32 s74, s74, 2")
    A("v_and_b32 v32, 31, v0"); A("v_lshlrev_b32 v32, 2, v32")
    for c in range(4): halves_sum(A, 72 + c, 33)
    for c in range(4): A(f"buffer_store_dword v{72+c}, v32, s[76:79], s74 offen offset:{c*128}{STP}")
    A.label("k1_jf_end")

def ksplit_reduce(A, pre, ACC, OUT, TMP):
    A("v_lshlrev_b32 v7, 4, v0")
    for qd in range(1, 4):
        A(f"s_xor_b32 s8, s3, {qd}"); A("s_mulk_i32 s8, 12288"); A("v_add_u32 v6, s8, v7")
        for j in range(4):
            r = ACC + 16 * qd + 4 * j
            A(f"ds_write_b128 v6, {pre}[{r}:{r+3}] offset:{(qd-1)*4096 + j*1024}")
    if pre == "a":
        for r in range(16): A(f"v_accvgpr_read_b32 v{OUT+r}, a{ACC+r}")
    A("s_mul_i32 s8, s3, 12288"); A("v_add_u32 v6, s8, v7")
    A("s_waitcnt lgkmcnt(0)")
    A("s_barrier")
    for p in range(3):
        for j in range(4):
            d = TMP + 16 * p + 4 * j
            A(f"ds_read_b128 v[{d}:{d+3}], v6 offset:{p*4096 + j*1024}")
    own = OUT if pre == "a" else ACC
    A("s_waitcnt lgkmcnt(8)")
    for r in range(0, 16, 2): A(f"v_pk_add_f32 v[{OUT+r}:{OUT+r+1}], v[{own+r}:{own+r+1}], v[{TMP+r}:{TMP+r+1}]")
    A("s_waitcnt lgkmcnt(0)")
    for r in range(0, 16, 2): A(f"v_pk_add_f32 v[{TMP+16+r}:{TMP+16+r+1}], v[{TMP+16+r}:{TMP+16+r+1}], v[{TMP+32+r}:{TMP+32+r+1}]")
    for r in range(0, 16, 2): A(f"v_pk_add_f32 v[{OUT+r}:{OUT+r+1}], v[{OUT+r}:{OUT+r+1}], v[{TMP+16+r}:{TMP+16+r+1}]")

def prefetch(A, srdn, soff, dummy, lane128):
    A(f"buffer_load_dword v{dummy}, v{lane128}, s[{srdn}:{srdn+3}], s{soff} offen")

def gen_k2(A):
    A.label("k2_kernel")
    prologue(A, 256, "k2_end"); ts(A, 2, 0)
    A("s_and_b32 s4, s2, 7"); A("s_lshr_b32 s5, s2, 3"); A("s_mov_b32 s61, s4"); A("s_mov_b32 s62, s5")
    A("s_lshr_b32 s6, s5, 3"); A("s_lshl_b32 s4, s4, 2"); A("s_add_u32 s4, s4, s6"); A("s_and_b32 s5, s5, 7")
    srd(A, 36, P_WS, WS_KVZ, SZ_KVZ); srd(A, 40, P_WS, WS_PQ, SZ_PQ); srd(A, 44, P_WS, WS_WO, SZ_WO)
    srd(A, 48, P_X, 0, 2048 * 1024); srd(A, 52, P_WS, WS_H, SZ_H); srd(A, 56, P_WS, WS_STATS, SZ_STATS)
    srd(A, 64, P_WS, WS_WGU, SZ_WGU)
    q = VMQ()
    A("v_lshlrev_b32 v2, 4, v0"); A("v_and_b32 v3, 31, v0"); A("v_min_u32 v4, 16, v3"); A("v_lshlrev_b32 v4, 6, v4")
    A("v_lshrrev_b32 v5, 5, v0"); A("v_lshl_add_u32 v4, v5, 4, v4")
    A("s_lshl_b32 s8, s3, 3"); A("s_mul_i32 s9, s8, 1088")
    A("s_lshr_b32 s12, s3, 1"); A("s_and_b32 s16, s3, 1")
    A("s_lshl_b32 s13, s4, 1"); A("s_add_u32 s13, s13, s12")
    A("s_lshl_b32 s10, s13, 5"); A("s_add_u32 s10, s10, s8"); A("s_lshl_b32 s10, s10, 10")
    A("s_xor_b32 s14, s13, 1"); A("s_lshl_b32 s14, s14, 5"); A("s_add_u32 s14, s14, s8"); A("s_lshl_b32 s14, s14, 10")
    A("s_lshl_b32 s11, s5, 1"); A("s_add_u32 s11, s11, s16"); A("s_xor_b32 s15, s11, 1")
    A("s_lshl_b32 s11, s11, 5"); A("s_add_u32 s11, s11, s8"); A("s_lshl_b32 s11, s11, 10")
    A("s_lshl_b32 s15, s15, 5"); A("s_add_u32 s15, s15, s8"); A("s_lshl_b32 s15, s15, 10")
    KR = 64
    def loads(h):
        A(f"s_add_u32 s12, s9, {h*1088}")
        A(f"buffer_load_dwordx4 v[{KR+8*h}:{KR+8*h+3}], v4, s[36:39], s12 offen"); q.add(("kv", h))
        A(f"buffer_load_dwordx4 v[{KR+8*h+4}:{KR+8*h+7}], v4, s[36:39], s12 offen offset:32"); q.add(("kv", h))
        base = [10, 14, 11, 15]
        dst = [h * 4, (8 + h) * 4, 64 + h * 4, 64 + (8 + h) * 4]
        for i in range(4):
            sr = 40 if i < 2 else 44
            if h == 4: A(f"s_add_u32 s{base[i]}, s{base[i]}, 4096")
            A(f"buffer_load_dwordx4 a[{dst[i]}:{dst[i]+3}], v2, s[{sr}:{sr+3}], s{base[i]} offen offset:{(h%4)*1024}"); q.add(("fr", h))
    for h in range(3): loads(h)
    for r in range(64): A(f"v_accvgpr_write_b32 a{128+r}, 0")
    KA = 32; TT = [[128, 144], [160, 176]]; OF = [[8, 12], [16, 20]]; EPS = 24; XR = 200
    A(f"v_mov_b32 v{EPS}, {f32(1e-6)}")
    ts(A, 2, 1)
    def cv(h): return [f"v_cvt_pk_bf16_f32 v{KA+4*h+j}, v{KR+8*h+2*j}, v{KR+8*h+2*j+1}" for j in range(4)]
    def tm(h, aa):
        T = TT[h % 2][aa]
        return f"v_mfma_f32_32x32x16_bf16 v[{T}:{T+15}], v[{KA+4*h}:{KA+4*h+3}], a[{(aa*8+h)*4}:{(aa*8+h)*4+3}], 0"
    def mm(h, aa, b):
        ac = 128 + 16 * (2 * aa + b); o = OF[h % 2][aa]
        return f"v_mfma_f32_32x32x16_bf16 a[{ac}:{ac+15}], a[{64+(b*8+h)*4}:{64+(b*8+h)*4+3}], v[{o}:{o+3}], a[{ac}:{ac+15}]"
    def valu(h):
        L = []
        T0, T1 = TT[h % 2]; o0, o1 = OF[h % 2]
        L += [f"v_add_f32 v25, v{T0+8}, v{EPS}", f"v_add_f32 v26, v{T1+8}, v{EPS}", "v_rcp_f32 v25, v25", "v_rcp_f32 v26, v26", "s_nop 0"]
        for r in range(8): L += [f"v_mul_f32 v{T0+r}, v{T0+r}, v25", f"v_mul_f32 v{T1+r}, v{T1+r}, v26"]
        for j in range(4): L += [f"v_cvt_pk_bf16_f32 v{o0+j}, v{T0+2*j}, v{T0+2*j+1}", f"v_cvt_pk_bf16_f32 v{o1+j}, v{T1+2*j}, v{T1+2*j+1}"]
        return L
    A(f"s_waitcnt vmcnt({q.need(('fr', 0))})")
    for l in cv(0): A(l)
    ts(A, 2, 2)
    A("s_nop 1")
    A(tm(0, 0)); A(tm(0, 1))
    for h in range(9):
        if h + 3 < 8: loads(h + 3)
        if h == 5:
            A("s_lshl_b32 s17, s13, 15"); A("s_lshl_b32 s60, s5, 7"); A("s_add_u32 s17, s17, s60"); A("s_lshl_b32 s60, s16, 6"); A("s_add_u32 s17, s17, s60")
            A("v_lshlrev_b32 v6, 10, v3"); A("v_lshl_add_u32 v6, v5, 3, v6")
            for qd in range(4):
                A(f"buffer_load_dwordx2 v[{XR+2*qd}:{XR+2*qd+1}], v6, s[48:51], s17 offen offset:{qd*16}"); q.add("x")
            A("s_and_b32 s60, s61, 3"); A("s_mul_i32 s60, s60, 917504"); A("s_mul_i32 s63, s62, 28672"); A("s_add_u32 s60, s60, s63")
            A("s_mul_i32 s63, s3, 7168"); A("s_add_u32 s60, s60, s63")
            A("v_min_u32 v7, 55, v0"); A("v_lshlrev_b32 v7, 7, v7")
            A("buffer_load_dword v208, v7, s[64:67], s60 offen"); q.add("pf")
        if h == 6:
            srd(A, 68, P_WS, WS_CSP, SZ_CSP)
            A("s_lshl_b32 s60, s2, 2"); A("s_add_u32 s60, s60, s3"); A("s_lshl_b32 s63, s60, 8")
            A("v_lshlrev_b32 v7, 2, v0")
            A("s_cmp_ge_u32 s60, 56"); A("s_cbranch_scc1 k2_nocs1")
            A.lines.append(";OPT_BEGIN")
            for kc in range(16):
                A(f"s_add_u32 s60, s63, {kc*3584*4}")
                A(f"buffer_load_dword v{210+kc}, v7, s[68:71], s60 offen")
            A.lines.append(";OPT_END")
            A.label("k2_nocs1")
        ms = []
        if h + 1 < 8:
            A(f"s_waitcnt vmcnt({q.need(('fr', h + 1))})")
            for l in cv(h + 1): A(l)
            A("s_nop 1")
            ms += [tm(h + 1, 0), tm(h + 1, 1)]
        if h >= 1: ms += [mm(h - 1, 0, 0), mm(h - 1, 0, 1), mm(h - 1, 1, 0), mm(h - 1, 1, 1)]
        vl = valu(h) if h < 8 else []
        if h == 0:
            for m_ in ms: A(m_)
            A("s_nop 5")
            for l in vl: A(l)
            A("s_nop 1")
        else:
            per = (len(vl) + len(ms) - 1) // len(ms) if vl else 0
            for m_ in ms:
                A(m_)
                for _ in range(per):
                    if vl: A(vl.pop(0))
            for l in vl: A(l)
            A("s_nop 1")
    ts(A, 2, 3)
    A("s_nop 7"); A("s_nop 3")
    ksplit_reduce(A, "a", 128, 64, 80)
    ts(A, 2, 4)
    A(f"s_waitcnt vmcnt({q.need('x')})")
    for qd in range(4):
        for j in range(2):
            xr = XR + 2 * qd + j; t8 = 8 + 2 * ((2 * qd + j) % 4)
            A(f"v_lshlrev_b32 v{t8}, 16, v{xr}"); A(f"v_and_b32 v{t8+1}, 0xffff0000, v{xr}")
            A(f"v_pk_add_f32 v[{64+4*qd+2*j}:{64+4*qd+2*j+1}], v[{64+4*qd+2*j}:{64+4*qd+2*j+1}], v[{t8}:{t8+1}]")
    HP = 96
    for r in range(8): A(f"v_cvt_pk_bf16_f32 v{HP+r}, v{64+2*r}, v{64+2*r+1}")
    A("s_lshl_b32 s8, s13, 5"); A("s_lshl_b32 s9, s5, 2"); A("s_add_u32 s8, s8, s9"); A("s_lshl_b32 s9, s16, 1"); A("s_add_u32 s8, s8, s9"); A("s_lshl_b32 s8, s8, 10")
    A(f"buffer_store_dwordx4 v[{HP}:{HP+3}], v2, s[52:55], s8 offen{STP}")
    A(f"buffer_store_dwordx4 v[{HP+4}:{HP+7}], v2, s[52:55], s8 offen offset:1024{STP}")
    for r in range(16, 20): A(f"v_mov_b32 v{r}, 0")
    for r in range(8):
        A(f"v_dot2c_f32_bf16 v{16+(r&1)}, {ONES}, v{HP+r}"); A(f"v_dot2c_f32_bf16 v{18+(r&1)}, v{HP+r}, v{HP+r}")
    A("s_nop 2")
    A("v_add_f32 v10, v16, v17"); A("v_add_f32 v11, v18, v19")
    halves_sum(A, 10, 12); halves_sum(A, 11, 12)
    A("s_lshl_b32 s8, s13, 12"); A("s_lshl_b32 s9, s5, 4"); A("s_add_u32 s8, s8, s9"); A("s_lshl_b32 s9, s16, 3"); A("s_add_u32 s8, s8, s9")
    A("v_lshlrev_b32 v6, 7, v3")
    A(f"buffer_store_dwordx2 v[10:11], v6, s[56:59], s8 offen{STP}")
    A("s_lshl_b32 s60, s2, 2"); A("s_add_u32 s60, s60, s3"); A("s_cmp_ge_u32 s60, 56"); A("s_cbranch_scc1 k2_nocs2")
    A("s_waitcnt vmcnt(0)")
    A.lines.append(";OPT_BEGIN")
    for st_ in (8, 4, 2, 1):
        for kc in range(st_): A(f"v_add_f32 v{210+kc}, v{210+kc}, v{210+kc+st_}")
    srd(A, 68, P_WS, WS_CS, SZ_CS)
    A("v_lshlrev_b32 v7, 2, v0")
    A(f"buffer_store_dword v210, v7, s[68:71], s63 offen{STP}")
    A.lines.append(";OPT_END")
    A.label("k2_nocs2")
    ts(A, 2, 7, True)
    A.label("k2_end")
    A("s_endpgm")

def gen_k3(A):
    A.label("k3_kernel")
    prologue(A, 256, "k3_end"); ts(A, 3, 0)
    A("s_and_b32 s4, s2, 7"); A("s_lshr_b32 s5, s2, 3")
    A("s_lshr_b32 s6, s4, 2"); A("s_lshl_b32 s6, s6, 3"); A("s_lshr_b32 s7, s5, 2"); A("s_add_u32 s6, s6, s7")
    A("s_and_b32 s4, s4, 3"); A("s_lshl_b32 s4, s4, 2"); A("s_and_b32 s5, s5, 3"); A("s_add_u32 s5, s5, s4")
    A("s_mov_b32 s4, s6")
    srd(A, 36, P_WS, WS_WGU, SZ_WGU); srd(A, 40, P_WS, WS_H, SZ_H)
    q = VMQ()
    A("v_lshlrev_b32 v2, 4, v0")
    A("s_lshl_b32 s6, s4, 2"); A("s_add_u32 s6, s6, s3")
    A("s_mul_i32 s7, s5, 7")
    A("s_add_u32 s8, s7, s3"); A("s_lshl_b32 s8, s8, 15")
    A("s_lshl_b32 s9, s7, 15"); A("s_lshl_b32 s10, s3, 13"); A("s_add_u32 s9, s9, s10")
    A("s_lshl_b32 s11, s6, 15")
    def dma_groups(stage):
        slot = (stage % 4) * 32768; L = []
        for hlf in range(2):
            for i in range(4):
                g = []
                if i == 0:
                    g.append(f"s_add_u32 m0, s10, {slot + hlf*4096}")
                    g.append(f"s_add_u32 s12, s8, {(8*stage + 4*hlf)*1024}" if stage < 4 else f"s_add_u32 s12, s9, {stage*32768 + hlf*4096}")
                g.append(f"buffer_load_dwordx4 v2, s[36:39], s12 offen offset:{i*1024} lds")
                L.append((g, ("dma", stage)))
        return L
    def h_groups(c):
        L = []
        for t in range(8 * c, 8 * c + 8):
            g = []
            if t % 4 == 0: g.append(f"s_add_u32 s13, s11, {t*1024}")
            g.append(f"buffer_load_dwordx4 a[{4*t}:{4*t+3}], v2, s[40:43], s13 offen offset:{(t%4)*1024}")
            L.append((g, ("h", c)))
        return L
    def emit(gt):
        for l in gt[0]: A(l)
        q.add(gt[1])
    def inter(a, b):
        out = []
        for x, y in zip(a, b): out += [x, y]
        return out
    for gt in inter(dma_groups(0), h_groups(0)): emit(gt)
    srd(A, 44, P_WS, WS_STATS, SZ_STATS); srd(A, 48, P_WS, WS_CS, SZ_CS); srd(A, 52, P_WS, WS_ACT, SZ_ACT)
    SM = 212
    A("v_and_b32 v3, 31, v0"); A("v_lshrrev_b32 v5, 5, v0"); A("v_lshlrev_b32 v4, 7, v3"); A("v_lshl_add_u32 v4, v5, 6, v4")
    A("s_lshl_b32 s14, s6, 12")
    for j in range(4): A(f"buffer_load_dwordx4 v[{SM+4*j}:{SM+4*j+3}], v4, s[44:47], s14 offen offset:{j*16}"); q.add("small")
    A("v_lshl_add_u32 v6, v1, 6, v0"); A("v_min_u32 v6, 223, v6"); A("v_lshlrev_b32 v6, 2, v6")
    A("s_mul_i32 s14, s7, 128")
    A(f"buffer_load_dword v{SM+16}, v6, s[48:51], s14 offen"); q.add("small")
    vpend = inter(dma_groups(1), h_groups(1))
    for _ in range(NPRE): emit(vpend.pop(0))
    vpend += inter(dma_groups(2), h_groups(2)) + inter(dma_groups(3), h_groups(3))
    NM, C1, C2 = 8, 9, 10
    CSL = 131072
    A(f"v_add_u32 v7, {CSL}, v6")
    A(f"v_lshlrev_b32 v11, 4, v5"); A(f"v_add_u32 v11, {CSL}, v11")
    A("v_mov_b32 v12, v2"); A("v_add_u32 v13, 0x10000, v2")
    ACCS = [64 + 16 * i for i in range(7)]
    NAF = 12
    AF = [16 + 4 * i for i in range(NAF)]
    CSR = 176; ET = 192
    A("s_mul_i32 s14, s6, 112"); A("s_add_u32 s14, s14, s7"); A("s_lshl_b32 s14, s14, 10")
    st_l = []
    for j in range(1, 4):
        for e in range(4): st_l.append(f"v_add_f32 v{SM+e}, v{SM+e}, v{SM+4*j+e}")
    st_l += [f"v_add_f32 v{SM}, v{SM}, v{SM+2}", f"v_add_f32 v{SM+1}, v{SM+1}, v{SM+3}",
             f"v_mov_b32 v{SM+4}, v{SM}", f"v_mov_b32 v{SM+5}, v{SM+1}", "s_nop 1",
             f"v_permlane32_swap_b32 v{SM}, v{SM+4}", f"v_permlane32_swap_b32 v{SM+1}, v{SM+5}", "s_nop 1",
             f"v_add_f32 v{SM}, v{SM}, v{SM+4}", f"v_add_f32 v{SM+1}, v{SM+1}, v{SM+5}",
             f"v_mul_f32 v{SM}, {f32(1/512)}, v{SM}", f"v_mul_f32 v{SM+1}, {f32(1/512)}, v{SM+1}",
             f"v_fma_f32 v{SM+1}, -v{SM}, v{SM}, v{SM+1}", f"v_max_f32 v{SM+1}, 0, v{SM+1}", f"v_add_f32 v{SM+1}, {f32(1e-5)}, v{SM+1}",
             f"v_rsq_f32 v{SM+1}, v{SM+1}", f"v_sub_f32 v{NM}, 0, v{SM}",
             f"v_mul_f32 v{C1}, {f32(-LOG2E)}, v{SM+1}", f"v_mul_f32 v{C2}, v{SM+1}, v{SM+1}", f"ds_write_b32 v7, v{SM+16}"]
    seq = []
    for c in range(4):
        for i in range(8):
            for w in range(4): seq.append((w, 8 * c + i, c, w * 8192 + i * 1024))
    for c in range(4, 7):
        for t in range(32): seq.append((c, t, c, t * 1024))
    def aread(n):
        tile, t, stage, off = seq[n]; sl = stage % 4
        A(f"ds_read_b128 v[{AF[n%NAF]}:{AF[n%NAF]+3}], v{13 if sl >= 2 else 12} offset:{(sl%2)*32768 + off}")
    def epi(tile, n0):
        L = []; ac = ACCS[tile]; P = ET + 16; R8 = range(8)
        L += [(n0, f"ds_read_b128 v[{CSR+4*qd}:{CSR+4*qd+3}], v11 offset:{tile*128 + qd*32}") for qd in range(4)]
        L += [("sync", None)]
        M = []
        M += [f"v_fmac_f32 v{ac+r}, v{NM}, v{CSR+r}" for r in range(16)]
        M += [f"v_mul_f32 v{ET+r}, v{C1}, v{ac+r}" for r in R8]
        M += [x for r in R8 for x in (f"v_exp_f32 v{ET+r}, v{ET+r}", f"v_mul_f32 v{ET+8+r}, v{ac+r}, v{ac+8+r}")]
        M += [x for r in R8 for x in (f"v_add_f32 v{ET+r}, 1.0, v{ET+r}", f"v_mul_f32 v{ET+8+r}, v{ET+8+r}, v{C2}")]
        M += [f"v_rcp_f32 v{ET+r}, v{ET+r}" for r in R8]
        M += [f"v_mul_f32 v{ET+8+r}, v{ET+8+r}, v{ET+r}" for r in R8]
        M += [f"v_cvt_pk_bf16_f32 v{P+j}, v{ET+8+2*j}, v{ET+8+2*j+1}" for j in range(4)]
        M += [f"s_add_u32 s15, s14, {tile*1024}", f"buffer_store_dwordx4 v[{P}:{P+3}], v2, s[52:55], s15 offen{STP}"]
        return L + [(n0, m) for m in M]
    cost = lambda l: 2 if (l.startswith("v_exp") or l.startswith("v_rcp") or l.startswith("v_rsq")) else 1
    ts(A, 3, 1)
    A(f"s_waitcnt vmcnt({q.need(('dma', 0), ('h', 0))})")
    A("s_barrier")
    ts(A, 3, 2)
    PF = 8
    for n in range(PF): aread(n)
    N = len(seq)
    pend = []
    started = set()
    hold = -1
    for n in range(N):
        tile, t, stage, off = seq[n]
        budget = 6
        if n + PF < N and seq[n + PF][2] != seq[n + PF - 1][2]:
            ns = seq[n + PF][2]
            tags = [("dma", ns)] + ([("h", ns)] if ns < 4 else []) + (["small"] if ns == 1 else [])
            while any(gt[1] in tags for gt in vpend): emit(vpend.pop(0))
            A(f"s_waitcnt vmcnt({q.need(*tags)})")
            A("s_barrier")
            rs = ns + 2
            if 4 <= rs < 7: vpend += dma_groups(rs)
            budget -= 2
            if ns == 1: pend += [(n, l) for l in st_l]
        if n + PF < N: aread(n + PF); budget -= 1
        if n % 2 == 0:
            A(f"s_waitcnt lgkmcnt({max(0, min(PF, N - 1 - n) - 1)})"); budget -= 1
        ac = ACCS[tile]
        c_in = f"v[{ac}:{ac+15}]" if tile in started else "0"
        started.add(tile)
        A(f"v_mfma_f32_32x32x16_bf16 v[{ac}:{ac+15}], v[{AF[n%NAF]}:{AF[n%NAF]+3}], a[{4*t}:{4*t+3}], {c_in}")
        if n == 127: ts(A, 3, 3)
        if n == 159: ts(A, 3, 5)
        if n == 191: ts(A, 3, 6)
        rate = 1 if (n < VFAST) else 2
        if vpend and n % rate == rate - 1:
            gt = vpend.pop(0); emit(gt); budget -= len(gt[0])
        if n == 128 + 2:
            for tl in range(4): pend += epi(tl, n)
        if n == 128 + 32 + 13: pend += epi(4, n)
        if n == 128 + 64 + 13: pend += epi(5, n)
        if "k3nofill" in EXP and n > 100: pend = []
        while pend and budget > 0 and n >= hold:
            e, l = pend.pop(0)
            if e == "sync":
                hold = n + PF + 2; break
            A(l); budget -= cost(l)
            if l.startswith("buffer_store"): q.add("st")
    ts(A, 3, 4)
    A("s_nop 7"); A("s_nop 3")
    A("s_waitcnt lgkmcnt(0)")
    for e, l in pend + epi(6, 0):
        if e == "sync": A("s_waitcnt lgkmcnt(0)")
        else: A(l)
    ts(A, 3, 7, True)
    A.label("k3_end")
    A("s_endpgm")

def gen_k4(A):
    A.label("k4_kernel")
    prologue(A, 256, "k4_end"); ts(A, 4, 0)
    A("s_and_b32 s4, s2, 7"); A("s_lshr_b32 s5, s2, 3"); A("s_lshr_b32 s6, s5, 3"); A("s_lshl_b32 s4, s4, 2"); A("s_add_u32 s4, s4, s6"); A("s_and_b32 s5, s5, 7")
    srd(A, 36, P_WS, WS_ACT, SZ_ACT); srd(A, 40, P_WS, WS_WD, SZ_WD); srd(A, 44, P_WS, WS_H, SZ_H); srd(A, 48, P_OUT, 0, 2048 * 1024)
    q = VMQ()
    A("v_lshlrev_b32 v2, 4, v0")
    A("s_mul_i32 s8, s3, 28")
    A("s_lshr_b32 s13, s3, 1"); A("s_lshl_b32 s14, s4, 1"); A("s_add_u32 s13, s14, s13")
    A("s_and_b32 s14, s3, 1")
    A("s_mul_i32 s9, s13, 112"); A("s_add_u32 s9, s9, s8"); A("s_lshl_b32 s9, s9, 10")
    A("s_xor_b32 s11, s13, 1"); A("s_mul_i32 s11, s11, 112"); A("s_add_u32 s11, s11, s8"); A("s_lshl_b32 s11, s11, 10")
    A("s_lshl_b32 s10, s5, 1"); A("s_add_u32 s10, s10, s14"); A("s_xor_b32 s12, s10, 1")
    A("s_mul_i32 s10, s10, 112"); A("s_add_u32 s10, s10, s8"); A("s_lshl_b32 s10, s10, 10")
    A("s_mul_i32 s12, s12, 112"); A("s_add_u32 s12, s12, s8"); A("s_lshl_b32 s12, s12, 10")
    D = 5
    bases = [9, 11, 10, 12]
    def loads(t):
        b = (t % D) * 16
        for i in range(4):
            sr = 36 if i < 2 else 40
            if t % 4 == 0 and t > 0: A(f"s_add_u32 s{bases[i]}, s{bases[i]}, 4096")
            A(f"buffer_load_dwordx4 a[{b+4*i}:{b+4*i+3}], v2, s[{sr}:{sr+3}], s{bases[i]} offen offset:{(t%4)*1024}"); q.add(("g", t))
    for t in range(D): loads(t)
    A("s_lshl_b32 s15, s13, 5"); A("s_lshl_b32 s60, s5, 2"); A("s_add_u32 s15, s15, s60"); A("s_lshl_b32 s60, s14, 1"); A("s_add_u32 s15, s15, s60"); A("s_lshl_b32 s15, s15, 10")
    HR = 16
    ACC = 128
    for r in range(64): A(f"v_mov_b32 v{ACC+r}, 0")
    ts(A, 4, 1)
    for t in range(28):
        A(f"s_waitcnt vmcnt({q.need(('g', t))})")
        if t == 1: ts(A, 4, 2)
        b = (t % D) * 16
        for aa in range(2):
            for bb in range(2):
                ac = ACC + 16 * (2 * aa + bb)
                A(f"v_mfma_f32_32x32x16_bf16 v[{ac}:{ac+15}], a[{b+8+4*bb}:{b+8+4*bb+3}], a[{b+4*aa}:{b+4*aa+3}], v[{ac}:{ac+15}]")
        if t + D < 28: loads(t + D)
        if t == 22:
            A(f"buffer_load_dwordx4 v[{HR}:{HR+3}], v2, s[44:47], s15 offen"); q.add("h")
            A(f"buffer_load_dwordx4 v[{HR+4}:{HR+7}], v2, s[44:47], s15 offen offset:1024"); q.add("h")
    ts(A, 4, 3)
    A("s_nop 7"); A("s_nop 3")
    ksplit_reduce(A, "v", ACC, 64, 80)
    ts(A, 4, 4)
    A("s_waitcnt vmcnt(0)")
    for r in range(8):
        t8 = 8 + 2 * (r % 4)
        A(f"v_lshlrev_b32 v{t8}, 16, v{HR+r}"); A(f"v_and_b32 v{t8+1}, 0xffff0000, v{HR+r}")
        A(f"v_pk_add_f32 v[{64+2*r}:{64+2*r+1}], v[{64+2*r}:{64+2*r+1}], v[{t8}:{t8+1}]")
    OP = 96
    for r in range(8): A(f"v_cvt_pk_bf16_f32 v{OP+r}, v{64+2*r}, v{64+2*r+1}")
    A("s_nop 1")
    for p in range(2):
        A(f"v_permlane32_swap_b32 v{OP+4*p}, v{OP+4*p+2}"); A(f"v_permlane32_swap_b32 v{OP+4*p+1}, v{OP+4*p+3}")
    A("v_and_b32 v3, 31, v0"); A("v_lshrrev_b32 v5, 5, v0"); A("v_lshlrev_b32 v6, 10, v3"); A("v_lshl_add_u32 v6, v5, 4, v6")
    A("s_lshl_b32 s8, s13, 15"); A("s_lshl_b32 s9, s5, 7"); A("s_add_u32 s8, s8, s9"); A("s_lshl_b32 s9, s14, 6"); A("s_add_u32 s8, s8, s9")
    for p in range(2): A(f"buffer_store_dwordx4 v[{OP+4*p}:{OP+4*p+3}], v6, s[48:51], s8 offen offset:{p*32}{STP}")
    ts(A, 4, 7, True)
    A.label("k4_end")
    A("s_endpgm")

def build(path, extra_launches=0):
    kernels = [("k1_kernel", gen_k1, (256, 163840, 512), 256, 256),
               ("k2_kernel", gen_k2, (256, 49152, 256), 512, 256),
               ("k3_kernel", gen_k3, (256, 131072 + 1024, 256), 512, 256),
               ("k4_kernel", gen_k4, (256, 49152, 256), 512, 256)]
    hdr = open(f"cdna_kernels/{KNAME}.s.ref").read().split("\n")
    out = [l for l in hdr if l.startswith(";") and "@launch" not in l and "Override launch" not in l and "grid=ceil" not in l]
    for (n, g, (wg, lds, thr), vg, ac) in kernels:
        out.append(f"; @launch kernel={n} grid=({wg},1,1) block=({thr},1,1) lds={lds}")
    out.append('.amdgcn_target "amdgcn-amd-amdhsa--gfx950"'); out.append(".text")
    nerr = 0
    for (n, g, _, vg, ac) in kernels:
        A = Asm(); g(A)
        A.lines = [l for l in A.lines if l is not None]
        for variant in (A.lines, strip_opt(A.lines)):
            errs = check(variant, n)
            for e in errs[:30]: print("CHECK:", e)
            nerr += len(errs)
        out.append(f".globl {n}\n.p2align 8\n.type {n},@function"); out.append(A.text())
    out.append("code_end:\n  s_endpgm")
    out.append('.section .rodata,"a"')
    for (n, g, _, vg, ac) in kernels: out.append(kd(n, vg, ac))
    open(path, "w").write("\n".join(out) + "\n")
    print("written", path, "check errors:", nerr)
    import subprocess
    r = subprocess.run(["clang", "-x", "assembler", "-target", "amdgcn-amd-amdhsa", "-mcpu=gfx950", "-c", path, "-o", "x.o"], capture_output=True, text=True)
    if r.returncode: print(r.stderr[:2000])

if __name__ == "__main__":
    if "--ts" in sys.argv: G.TS = True; sys.argv.remove("--ts")
    build(sys.argv[1])
```

```python
import sys, struct
sys.path.insert(0, "dev")
from asmlib import *
import gen as G
from gen import (KNAME, MB, WS_KVZ, SZ_KVZ, WS_STATS, SZ_STATS, WS_CSP, SZ_CSP, WS_PQ, SZ_PQ, WS_H, SZ_H, WS_ACT, SZ_ACT,
                 WS_WGU, SZ_WGU, WS_WD, SZ_WD, WS_WO, SZ_WO, f32, LOG2E, ONES, P_X, P_WQKV, P_WO, P_BX, P_WG, P_WU, P_WD,
                 P_OUT, P_DBG, P_WS, prologue, srd, halves_sum, kd, strip_opt, WS_TS)
ZERO_CNT = None
SZ_CSP = 16 * 3584 * 4
WS_CS = 0x7C000; SZ_CS = 3584 * 4
def ts(A, k, slot, wait=False): G.ts_mark(A, k, slot, wait)

class VMQ:
    def __init__(self): self.q = []
    def add(self, tag, n=1): self.q += [tag] * n
    def need(self, *tags):
        idx = [i for i, x in enumerate(self.q) if x in tags]
        return len(self.q) - 1 - max(idx)

import os
EXP = set(os.environ.get("EXP", "").split(","))
STP = " sc1" if "nosc1" not in EXP else ""
JOBI = int(os.environ.get("JOBI", "-1"))
JOBF = int(os.environ.get("JOBF", "4"))
NPRE = int(os.environ.get("NPRE", "8"))
VFAST = int(os.environ.get("VFAST", "8"))
BC = "op_sel_hi:[1,0,1]"
def job_issue(A, jl):
    pass

def gen_k1(A):
    A.label("k1_kernel")
    prologue(A, 256, "k1_end")
    A("s_mov_b32 s59, s3")
    A("s_and_b32 s3, s3, 3")
    A("v_and_b32 v1, 3, v1")
    A("s_and_b32 s4, s2, 7")
    A("s_lshr_b32 s5, s2, 3")
    A("s_lshr_b32 s6, s4, 1"); A("s_lshl_b32 s6, s6, 3"); A("s_lshr_b32 s7, s5, 2"); A("s_add_u32 s6, s6, s7")
    A("s_and_b32 s4, s4, 1"); A("s_lshl_b32 s4, s4, 2"); A("s_and_b32 s5, s5, 3"); A("s_add_u32 s5, s5, s4")
    srd(A, 44, P_WS, WS_KVZ, SZ_KVZ)
    srd(A, 48, P_DBG, 0, 256)
    A("s_cmp_ge_u32 s59, 4"); A("s_cbranch_scc1 k1_loader")
    ts(A, 1, 0)
    A("s_cmp_eq_u32 s3, 0"); A("s_cbranch_scc1 k1_w0")
    A("s_cmp_eq_u32 s3, 1"); A("s_cbranch_scc1 k1_w1")
    A("s_cmp_eq_u32 s3, 2"); A("s_cbranch_scc1 k1_w2")
    for w in (3, 0, 1, 2):
        A.label(f"k1_w{w}")
        k1_wave(A, w)
        A("s_branch k1_fin")
    A.label("k1_loader")
    k1_loader(A)
    A("s_branch k1_end")
    A.label("k1_fin")
    ts(A, 1, 7, True)
    A.label("k1_end")
    A("s_endpgm")

def lds_signal(A, addr):
    A(f"v_mov_b32 v18, {addr}"); A("v_mov_b32 v123, 1")
    A("ds_write_b32 v18, v123")

def lds_wait4(A, addr, lab):
    A(f"v_mov_b32 v18, {addr}")
    A.label(lab)
    A("ds_read_b128 v[124:127], v18")
    A("s_waitcnt lgkmcnt(0)")
    A("v_and_b32 v124, v124, v125"); A("v_and_b32 v126, v126, v127"); A("v_and_b32 v124, v124, v126")
    A("s_nop 0")
    A("v_readfirstlane_b32 s14, v124")
    A("s_nop 3")
    A("s_cmp_eq_u32 s14, 0")
    A(f"s_cbranch_scc1 {lab}")

def lds_wait(A, addr, lab):
    A(f"v_mov_b32 v18, {addr}")
    A.label(lab)
    A("ds_read_b32 v123, v18")
    A("s_waitcnt lgkmcnt(0)")
    A("v_readfirstlane_b32 s14, v123")
    A("s_nop 3")
    A("s_cmp_eq_u32 s14, 0")
    A(f"s_cbranch_scc1 {lab}")

def k1_loader(A):
    ts(A, 0, 0)
    q = VMQ()
    srd(A, 36, P_X, 0, 2048 * 1024)
    srd(A, 40, P_WQKV, 0, 512 * 3072)
    A("s_cmp_lg_u32 s6, 0"); A("s_cbranch_scc1 k1_nozero")
    A("v_lshl_add_u32 v8, v1, 6, v0"); A("v_lshlrev_b32 v8, 4, v8")
    for i in range(4): A(f"v_mov_b32 v{12+i}, 0")
    A("s_mul_i32 s12, s5, 4352")
    A("buffer_store_dwordx4 v[12:15], v8, s[44:47], s12 offen sc1")
    A("v_add_u32 v8, 4096, v8"); A("v_cmp_gt_u32 vcc, 4352, v8")
    A("s_and_saveexec_b64 s[14:15], vcc"); A("s_cbranch_execz k1_z2")
    A("buffer_store_dwordx4 v[12:15], v8, s[44:47], s12 offen sc1")
    A.label("k1_z2"); A("s_mov_b64 exec, s[14:15]")
    A.label("k1_nozero")
    if ZERO_CNT:
        A("s_cmp_lg_u32 s2, 2"); A("s_cbranch_scc1 k1_nocz"); A("s_cmp_lg_u32 s3, 0"); A("s_cbranch_scc1 k1_nocz")
        srd(A, 52, P_WS, ZERO_CNT[0], ZERO_CNT[1])
        A("v_lshlrev_b32 v8, 7, v0"); A("v_mov_b32 v12, 0")
        A("buffer_store_dword v12, v8, s[52:55], 0 offen sc1")
        A.label("k1_nocz")
    A("v_lshrrev_b32 v4, 3, v0"); A("v_and_b32 v5, 7, v0"); A("v_lshrrev_b32 v6, 4, v0"); A("v_xor_b32 v5, v5, v6")
    A("v_lshlrev_b32 v5, 4, v5"); A("v_lshl_add_u32 v2, v4, 10, v5"); A("v_xor_b32 v3, 64, v2")
    A("s_lshl_b32 s7, s6, 16"); A("s_lshl_b32 s12, s3, 14"); A("s_add_u32 s7, s7, s12")
    A(f"s_mul_i32 s8, s3, {16*3072}"); A("s_lshl_b32 s12, s5, 7"); A("s_add_u32 s8, s8, s12")
    A("s_lshl_b32 s9, s3, 11"); A(f"s_mul_i32 s10, s3, {6*1024}"); A("s_add_u32 s10, s10, 8192")
    ROT = "rot" in EXP
    if ROT: A("s_and_b32 s58, s6, 7")
    def kst(stage, dst, mul):
        if ROT:
            A(f"s_add_u32 s{dst}, s58, {stage}"); A(f"s_and_b32 s{dst}, s{dst}, 7"); A(f"s_mul_i32 s{dst}, s{dst}, {mul}")
        else:
            A(f"s_mov_b32 s{dst}, {stage*mul}")
    def xdma(stage):
        slot = (stage % 4) * 32768
        kst(stage, 57, 128); A("s_add_u32 s57, s57, s7")
        for i in range(2):
            A(f"s_add_u32 m0, s9, {slot + i*1024}"); A(f"s_add_u32 s13, s57, {i*8192}")
            A(f"buffer_load_dwordx4 v{2+i}, s[36:39], s13 offen lds"); q.add(("st", stage))
    xdma(0)
    A("s_movk_i32 s12, 2731"); A("s_movk_i32 s13, 3072")
    for b in range(3):
        A(f"v_add_u32 v8, {64*b}, v0"); A("v_mul_lo_u32 v9, v8, s12"); A("v_lshrrev_b32 v9, 16, v9")
        A("v_mul_u32_u24 v10, 24, v9"); A("v_sub_u32 v10, v8, v10"); A(f"v_mul_lo_u32 v{4+b}, v9, s13")
        A("v_lshrrev_b32 v11, 3, v10"); A(f"v_lshl_add_u32 v{4+b}, v11, 10, v{4+b}")
        A("v_bfe_u32 v11, v10, 2, 1"); A("v_bfe_u32 v12, v9, 1, 1"); A("v_xor_b32 v11, v11, v12")
        A(f"v_lshl_add_u32 v{4+b}, v11, 6, v{4+b}"); A("v_and_b32 v11, 3, v10"); A(f"v_lshl_add_u32 v{4+b}, v11, 4, v{4+b}")
    def wdma(stage):
        slot = (stage % 4) * 32768
        kst(stage, 56, 64 * 3072); A("s_add_u32 s56, s56, s8")
        for a in range(2):
            for b in range(3):
                A(f"s_add_u32 m0, s10, {slot + (a*3+b)*1024}")
                if b == 0: A(f"s_add_u32 s12, s56, {a*8*3072}")
                else: A("s_nop 0")
                A(f"buffer_load_dwordx4 v{4+b}, s[40:43], s12 offen lds"); q.add(("st", stage))
    wdma(0)
    xdma(1); wdma(1)
    job = "nojob" not in EXP
    A("s_barrier")
    ts(A, 0, 1)
    A(f"s_waitcnt vmcnt({q.need(('st', 0))})")
    A("s_barrier")
    A("s_cmp_lg_u32 s6, 0"); A("s_cbranch_scc1 k1_noflag"); A("s_cmp_lg_u32 s3, 0"); A("s_cbranch_scc1 k1_noflag")
    A("v_mov_b32 v20, 1"); A("s_lshl_b32 s12, s5, 2"); A("v_mov_b32 v21, s12")
    A("s_mov_b64 exec, 1")
    A("buffer_store_dword v20, v21, s[48:51], 0 offen sc1")
    A("s_mov_b64 exec, -1")
    A.label("k1_noflag")
    for st in range(2, 4): xdma(st); wdma(st)
    if JOBI == -1 and job: job_issue(A, q)
    FL = 131072 + 24576 + 4096
    A("s_lshl_b32 s12, s3, 2"); A(f"s_add_u32 s12, s12, {FL + 64}"); A("v_mov_b32 v22, s12"); A("v_mov_b32 v23, 1")
    for st in range(7):
        A(f"s_waitcnt vmcnt({q.need(('st', st + 1))})")
        if st < 4: A("s_barrier")
        else: A(f"ds_write_b32 v22, v23 offset:{(st - 4) * 16}")
        if st + 4 < 8: xdma(st + 4); wdma(st + 4)
        if st == JOBI and job:
            ts(A, 0, 2)
            job_issue(A, q)
    if job:
        A("s_waitcnt vmcnt(0)")
        ts(A, 0, 3)
        job_finish(A)
    ts(A, 0, 7, True)

def k1_wave(A, w):
    wm, wn = w >> 1, w & 1
    q = VMQ()
    A("v_and_b32 v20, 31, v0"); A("v_lshrrev_b32 v21, 5, v0"); A("v_bfe_u32 v22, v0, 1, 3")
    A("v_xor_b32 v22, v22, v21"); A("v_lshlrev_b32 v22, 4, v22"); A("v_lshl_add_u32 v22, v20, 7, v22")
    A(f"v_add_u32 v8, {wm*4096}, v22")
    for t in range(1, 4): A(f"v_xor_b32 v{8+t}, {32*t}, v8")
    for t in range(4): A(f"v_add_u32 v{12+t}, 0x10000, v{8+t}")
    A("v_bfe_u32 v22, v0, 2, 2"); A("v_lshl_add_u32 v23, v21, 3, v22"); A("v_mul_u32_u24 v23, 384, v23")
    A("v_bfe_u32 v22, v0, 3, 1")
    if wn: A("v_xor_b32 v22, 1, v22")
    A("v_lshl_add_u32 v23, v22, 6, v23"); A("v_bfe_u32 v22, v0, 4, 1"); A("v_lshl_add_u32 v23, v22, 5, v23")
    A("v_and_b32 v22, 3, v0"); A("v_lshl_add_u32 v16, v22, 3, v23"); A("v_add_u32 v17, 0x10000, v16")
    XF = [24, 28]; WF = [32, 44]; ACC = 64
    RS, RQ, CS = 112, 114, 116
    RS2, RQ2, CS2 = 232, 234, 236
    for r in list(range(RS, CS + 3)) + list(range(RS2, CS2 + 3)): A(f"v_mov_b32 v{r}, 0")
    def reads(k):
        st, t = divmod(k, 4); sl = st % 4; hi = sl >= 2; off = (sl % 2) * 32768; b = k % 2
        L = [f"ds_read_b128 v[{XF[b]}:{XF[b]+3}], v{(12 if hi else 8)+t} offset:{off}"]
        for p in range(3):
            d = WF[b] + 4 * p; o = off + 8192 + t * 6144 + p * 128
            L.append(f"ds_read_b64_tr_b16 v[{d}:{d+1}], v{17 if hi else 16} offset:{o}")
            L.append(f"ds_read_b64_tr_b16 v[{d+2}:{d+3}], v{17 if hi else 16} offset:{o + 1536}")
        return L
    FL = 131072 + 24576 + 4096
    A(f"v_mov_b32 v18, {FL + w*16}"); A("v_mov_b32 v19, 0")
    A("ds_write_b64 v18, v[18:19]") if False else None
    A("v_mov_b32 v22, 0"); A("v_mov_b32 v23, 0")
    A("v_mov_b32 v24, 0"); A("v_mov_b32 v25, 0"); A("v_mov_b32 v26, 0"); A("v_mov_b32 v27, 0")
    A("ds_write_b128 v18, v[24:27]")
    A("ds_write_b128 v18, v[24:27] offset:64")
    srd(A, 36, P_X, 0, 2048 * 1024); srd(A, 40, P_WQKV, 0, 512 * 3072)
    A("s_lshr_b32 s12, s2, 3"); A("s_lshl_b32 s12, s12, 2"); A(f"s_add_u32 s12, s12, {w}")
    A("s_and_b32 s13, s2, 7")
    A("s_lshr_b32 s15, s13, 1"); A("s_lshl_b32 s15, s15, 19"); A("s_lshl_b32 s14, s12, 12"); A("s_add_u32 s15, s15, s14")
    A("v_lshlrev_b32 v245, 7, v20")
    A("v_min_u32 v22, 47, v0"); A("v_mul_u32_u24 v23, 43, v22"); A("v_lshrrev_b32 v23, 9, v23")
    A("v_mul_u32_u24 v24, 12, v23"); A("v_sub_u32 v24, v22, v24")
    A("v_mul_u32_u24 v23, 3072, v23"); A("v_lshrrev_b32 v25, 2, v24"); A("v_lshl_add_u32 v23, v25, 10, v23")
    A("v_and_b32 v24, 3, v24"); A("v_lshl_add_u32 v23, v24, 7, v23")
    A("s_mul_i32 s14, s12, 12288"); A("s_and_b32 s13, s13, 1"); A("s_lshl_b32 s13, s13, 9"); A("s_add_u32 s14, s14, s13")
    A("s_waitcnt lgkmcnt(0)")
    A("s_barrier")
    if "nopf" not in EXP:
        A("buffer_load_dword v241, v23, s[40:43], s14 offen"); q.add("pf")
    if w == 1 and "tlbpf" in EXP:
        srd(A, 64, P_WS, 0, 24 * MB)
        A("v_lshlrev_b32 v22, 19, v0"); A("v_min_u32 v22, 0x17f0000, v22")
        A("buffer_load_dword v243, v22, s[64:67], 0 offen")
        srd(A, 64, P_OUT, 0, 2 * MB)
        A("v_lshlrev_b32 v22, 15, v0")
        A("buffer_load_dword v244, v22, s[64:67], 0 offen")
    if w == 0 and "codepf" in EXP:
        A("s_getpc_b64 s[64:65]")
        A.label("k1_pc")
        A("s_add_u32 s64, s64, k1_kernel-k1_pc")
        A("s_addc_u32 s65, s65, -1")
        A("s_lshr_b32 s12, s2, 3"); A("s_lshl_b32 s12, s12, 13")
        A("v_lshlrev_b32 v22, 7, v0"); A("v_add_u32 v22, s12, v22")
        A("s_mov_b32 s13, code_end-k1_kernel-4")
        A("s_cmp_gt_u32 s12, s13"); A("s_cbranch_scc1 k1_nocpf")
        A("v_min_u32 v22, s13, v22")
        A("global_load_dword v242, v22, s[64:65]")
        A.label("k1_nocpf")
    ts(A, 1, 1)
    A("s_waitcnt lgkmcnt(0)")
    A("s_barrier")
    if "noxpf" not in EXP: A("buffer_load_dword v240, v245, s[36:39], s15 offen"); q.add("pf")
    ts(A, 1, 2)
    for l in reads(0): A(l)
    A("s_waitcnt lgkmcnt(0)")
    for k in range(32):
        st, t = divmod(k, 4); b = k % 2
        if t == 3 and k + 1 < 32:
            if st < 4: A("s_barrier")
            else: lds_wait4(A, FL + 64 + (st - 4) * 16, f"k1_lf{w}_{st}")
        if k == 28: lds_signal(A, FL + w * 16 + 8)
        if k == 24:
            A("s_lshl_b32 s14, s5, 2"); A("v_mov_b32 v120, s14")
            A("buffer_load_dword v121, v120, s[48:51], 0 offen sc1"); q.add("flag")
        rd = reads(k + 1) if k + 1 < 32 else []
        x = XF[b]; wf = WF[b]
        c0 = "0" if k == 0 else None
        def C(r): return "0" if k == 0 else f"v[{r}:{r+15}]"
        A(f"v_mfma_f32_32x32x16_bf16 v[{ACC}:{ACC+15}], v[{wf}:{wf+3}], v[{x}:{x+3}], {C(ACC)}")
        for l in rd[:4]: A(l)
        A(f"v_mfma_f32_32x32x16_bf16 v[{ACC+16}:{ACC+31}], v[{x}:{x+3}], v[{wf+4}:{wf+7}], {C(ACC+16)}")
        for l in rd[4:]: A(l)
        A(f"v_mfma_f32_32x32x16_bf16 v[{ACC+32}:{ACC+47}], v[{x}:{x+3}], v[{wf+8}:{wf+11}], {C(ACC+32)}")
        if (k & 1) == wn and "nodots" not in EXP:
            for j in range(4):
                A(f"v_dot2c_f32_bf16 v{[RS, RS+1, RS2, RS2+1][j]}, {ONES}, v{x+j}")
                A(f"v_dot2c_f32_bf16 v{[RQ, RQ+1, RQ2, RQ2+1][j]}, v{x+j}, v{x+j}")
        if (k & 1) == wm and "nodots" not in EXP:
            for j in range(4):
                for p in range(3): A(f"v_dot2c_f32_bf16 v{(CS if j & 1 else CS2)+p}, {ONES}, v{wf+4*p+j}")
        A("s_waitcnt lgkmcnt(0)")
    ts(A, 1, 3)
    T = 122
    EX = 65536
    A("s_nop 2")
    A(f"v_add_f32 v{RS}, v{RS}, v{RS+1}"); A(f"v_add_f32 v{RS2}, v{RS2}, v{RS2+1}")
    A(f"v_add_f32 v{RQ}, v{RQ}, v{RQ+1}"); A(f"v_add_f32 v{RQ2}, v{RQ2}, v{RQ2+1}")
    for p in range(3): A(f"v_add_f32 v{CS+p}, v{CS+p}, v{CS2+p}")
    A(f"v_add_f32 v{RS}, v{RS}, v{RS2}"); A(f"v_add_f32 v{RQ}, v{RQ}, v{RQ2}")
    hs = [RS, RQ, CS, CS + 1, CS + 2]
    for i, r in enumerate(hs): A(f"v_mov_b32 v{24+i}, v{r}")
    A("s_nop 1")
    for i, r in enumerate(hs): A(f"v_permlane32_swap_b32 v{r}, v{24+i}")
    A("s_nop 1")
    for i, r in enumerate(hs): A(f"v_add_f32 v{r}, v{r}, v{24+i}")
    for o in range(4):
        if o != w: lds_wait(A, FL + o * 16 + 8, f"k1_d6{w}_{o}")
    A("v_lshlrev_b32 v22, 2, v20"); A(f"v_add_u32 v22, {EX}, v22")
    es = (wm * 2 + wn) * 256; eo = (wm * 2 + (1 - wn)) * 256
    ec = 1024 + (wn * 2 + wm) * 384; eco = 1024 + (wn * 2 + (1 - wm)) * 384
    A(f"ds_write_b32 v22, v{RS} offset:{es}"); A(f"ds_write_b32 v22, v{RQ} offset:{es+128}")
    for p in range(3): A(f"ds_write_b32 v22, v{CS+p} offset:{ec + p*128}")
    C1, CL, CN, CE = 176, 178, 180, 182
    for r, val in ((C1, 1.000001), (CL, LOG2E), (CN, -1.000001 * LOG2E), (CE, 1e-6)):
        A(f"v_mov_b32 v{r}, {f32(val)}"); A(f"v_mov_b32 v{r+1}, {f32(val)}")
    ON = 224
    for j in range(4): A(f"v_mov_b32 v{ON+j}, {ONES}")
    A("v_lshlrev_b32 v23, 4, v21"); A(f"v_add_u32 v23, {EX}, v23")
    lds_signal(A, FL + w * 16)
    lds_wait(A, FL + (wm * 2 + 1 - wn) * 16, f"k1_sp{w}a")
    lds_wait(A, FL + ((1 - wm) * 2 + wn) * 16, f"k1_sp{w}b")
    ts(A, 1, 6)
    A(f"ds_read_b32 v24, v22 offset:{eo}"); A(f"ds_read_b32 v25, v22 offset:{eo+128}")
    for p in range(3): A(f"ds_read_b32 v{26+p}, v22 offset:{eco + p*128}")
    A("s_waitcnt lgkmcnt(0)")
    A(f"v_add_f32 v{RS}, v{RS}, v24"); A(f"v_add_f32 v{RQ}, v{RQ}, v25")
    for p in range(3): A(f"v_add_f32 v{CS+p}, v{CS+p}, v{26+p}")
    PR = 4096 + w * 512
    A(f"ds_write_b32 v22, v{CS} offset:{PR+256}")
    A(f"v_mul_f32 v{RS}, {f32(1/512)}, v{RS}"); A(f"v_mul_f32 v{RQ}, {f32(1/512)}, v{RQ}")
    A(f"v_fma_f32 v{RQ}, -v{RS}, v{RS}, v{RQ}"); A(f"v_max_f32 v{RQ}, 0, v{RQ}"); A(f"v_add_f32 v{RQ}, {f32(1e-5)}, v{RQ}")
    A(f"v_rsq_f32 v{RQ}, v{RQ}"); A("s_nop 0")
    A(f"v_mul_f32 v{RS}, v{RS}, v{RQ}"); A(f"v_sub_f32 v{RS}, 0, v{RS}")
    A(f"ds_write_b32 v22, v{RQ} offset:{PR}"); A(f"ds_write_b32 v22, v{RS} offset:{PR+128}")
    SA, SB, SC = 128, 144, 160
    A(f"v_mov_b32 v184, v{RQ}"); A(f"v_mov_b32 v186, v{RS}"); A(f"v_mov_b32 v188, v{CS+1}"); A(f"v_mov_b32 v190, v{CS+2}")
    A("s_waitcnt lgkmcnt(0)")
    for qd in range(4):
        A(f"ds_read_b128 v[{SA+4*qd}:{SA+4*qd+3}], v23 offset:{PR + qd*32}")
        A(f"ds_read_b128 v[{SB+4*qd}:{SB+4*qd+3}], v23 offset:{PR + 128 + qd*32}")
    for qd in range(4): A(f"ds_read_b128 v[{SC+4*qd}:{SC+4*qd+3}], v23 offset:{PR + 256 + qd*32}")
    A("s_waitcnt lgkmcnt(4)")
    TP = 40
    def phi_vec(base, mode):
        prs = list(range(0, 16, 2))
        for i in prs:
            if mode == "q": A(f"v_pk_fma_f32 v[{TP+i}:{TP+i+1}], v[{SC+i}:{SC+i+1}], v[186:187], v[{C1}:{C1+1}] op_sel_hi:[1,0,1]")
            else:           A(f"v_pk_fma_f32 v[{TP+i}:{TP+i+1}], v[{SB+i}:{SB+i+1}], v[188:189], v[{C1}:{C1+1}] op_sel_hi:[1,0,1]")
        for i in prs:
            r = base + i
            if mode == "q": A(f"v_pk_fma_f32 v[{r}:{r+1}], v[{r}:{r+1}], v[184:185], v[{TP+i}:{TP+i+1}] op_sel_hi:[1,0,1]")
            else:           A(f"v_pk_fma_f32 v[{r}:{r+1}], v[{r}:{r+1}], v[{SA+i}:{SA+i+1}], v[{TP+i}:{TP+i+1}]")
        for i in prs:
            r = base + i
            A(f"v_pk_fma_f32 v[{TP+i}:{TP+i+1}], v[{r}:{r+1}], v[{CL}:{CL+1}], v[{CN}:{CN+1}]")
        for i in range(16): A(f"v_exp_f32_e64 v{TP+i}, v{TP+i} clamp")
        for i in prs: A(f"v_pk_add_f32 v[{TP+i}:{TP+i+1}], v[{TP+i}:{TP+i+1}], v[{CE}:{CE+1}]")
        for i in range(16): A(f"v_max_f32 v{base+i}, v{base+i}, v{TP+i}")
    PK = 200
    for r in range(0, 16, 2): A(f"v_pk_mul_f32 v[{24+r}:{24+r+1}], v[{SB+r}:{SB+r+1}], v[190:191] op_sel_hi:[1,0]")
    for r in range(0, 16, 2):
        rg = ACC + 32 + r
        A(f"v_pk_fma_f32 v[{rg}:{rg+1}], v[{rg}:{rg+1}], v[{SA+r}:{SA+r+1}], v[{24+r}:{24+r+1}]")
    phi_vec(ACC + 16, "k")
    for r in range(8): A(f"v_cvt_pk_bf16_f32 v{PK+16+r}, v{ACC+32+2*r}, v{ACC+32+2*r+1}")
    for r in range(8): A(f"v_cvt_pk_bf16_f32 v{PK+8+r}, v{ACC+16+2*r}, v{ACC+16+2*r+1}")
    A("s_nop 1")
    kp, vp = PK + 8, PK + 16; D = ACC + 16; Z = ACC + 32
    A(f"v_mfma_f32_32x32x16_bf16 v[{D}:{D+15}], v[{vp}:{vp+3}], v[{kp}:{kp+3}], 0")
    A(f"v_mfma_f32_32x32x16_bf16 v[{Z}:{Z+15}], v[{ON}:{ON+3}], v[{kp}:{kp+3}], 0")
    A(f"v_mfma_f32_32x32x16_bf16 v[{D}:{D+15}], v[{vp+4}:{vp+7}], v[{kp+4}:{kp+7}], v[{D}:{D+15}]")
    A(f"v_mfma_f32_32x32x16_bf16 v[{Z}:{Z+15}], v[{ON}:{ON+3}], v[{kp+4}:{kp+7}], v[{Z}:{Z+15}]")
    A("v_and_b32 v22, 16, v0"); A("v_cmp_ne_u32 vcc, 0, v22")
    A("v_lshlrev_b32 v19, 2, v0"); A(f"v_add_u32 v19, {EX + 8192}, v19")
    A("v_bfe_u32 v9, v0, 4, 1"); A("s_movk_i32 s13, 1088"); A("v_mul_lo_u32 v9, v9, s13")
    A("v_and_b32 v10, 15, v0"); A("v_lshl_add_u32 v9, v10, 2, v9"); A("v_lshl_add_u32 v10, v21, 8, v9")
    A("s_lshl_b32 s13, s5, 2"); A(f"s_add_u32 s13, s13, {2*wn}"); A("s_mulk_i32 s13, 1088")
    A("s_nop 7")
    for r in range(8): A(f"v_cndmask_b32 v{24+r}, v{D+r}, v{D+8+r}, vcc")
    keep = list(range(4 * wm, 4 * wm + 4)); send = [r for r in range(8) if r not in keep]
    mine = (wn * 2 + wm) * 2304; other = (wn * 2 + 1 - wm) * 2304
    for r in send: A(f"ds_write_b32 v19, v{24+r} offset:{mine + r*256}")
    if wm == 1: A(f"ds_write_b32 v19, v{Z} offset:{mine + 8*256}")
    lds_signal(A, FL + w * 16 + 4)
    lds_wait(A, FL + ((1 - wm) * 2 + wn) * 16 + 4, f"k1_sp{w}c")
    for i, r in enumerate(keep): A(f"ds_read_b32 v{32+i}, v19 offset:{other + r*256}")
    if wm == 0: A(f"ds_read_b32 v36, v19 offset:{other + 8*256}")
    A(f"s_waitcnt vmcnt({q.need('flag')})")
    A("s_waitcnt lgkmcnt(0)")
    for i, r in enumerate(keep): A(f"v_add_f32 v{24+r}, v{24+r}, v{32+i}")
    if wm == 0: A(f"v_add_f32 v36, v36, v{Z}")
    A.label(f"k1_poll{w}")
    A("v_readfirstlane_b32 s14, v121"); A("s_nop 3"); A("s_cmp_lg_u32 s14, 0"); A(f"s_cbranch_scc1 k1_go{w}")
    A("s_sleep 2"); A("buffer_load_dword v121, v120, s[48:51], 0 offen sc1"); A("s_waitcnt vmcnt(0)"); A(f"s_branch k1_poll{w}")
    A.label(f"k1_go{w}")
    for i, r in enumerate(keep):
        A(f"buffer_atomic_add_f32 v{24+r}, v10, s[44:47], s13 offen offset:{wm*512 + (r&3)*64}")
    if wm == 0:
        A("s_mov_b64 exec, 0xffffffff")
        A("buffer_atomic_add_f32 v36, v9, s[44:47], s13 offen offset:1024")
        A("s_mov_b64 exec, -1")
    ts(A, 1, 4)
    phi_vec(ACC, "q")
    for r in range(8): A(f"v_cvt_pk_bf16_f32 v{PK+r}, v{ACC+2*r}, v{ACC+2*r+1}")
    srd(A, 52, P_WS, WS_PQ, SZ_PQ)
    A("s_lshl_b32 s12, s6, 1"); A(f"s_add_u32 s12, s12, {wm}"); A("s_lshl_b32 s12, s12, 5")
    A("s_lshl_b32 s13, s5, 2"); A("s_add_u32 s12, s12, s13"); A(f"s_add_u32 s12, s12, {2*wn}"); A("s_lshl_b32 s12, s12, 10")
    A("v_lshlrev_b32 v18, 4, v0")
    A(f"buffer_store_dwordx4 v[{PK}:{PK+3}], v18, s[52:55], s12 offen{STP}")
    A(f"buffer_store_dwordx4 v[{PK+4}:{PK+7}], v18, s[52:55], s12 offen offset:1024{STP}")
    ts(A, 1, 5)

def job_issue(A, q):
    A("s_lshl_b32 s70, s3, 8"); A("s_add_u32 s70, s70, s2")
    A("s_lshl_b32 s71, s3, 13"); A("s_add_u32 s71, s71, 131072")
    A("v_lshrrev_b32 v28, 3, v0"); A("v_and_b32 v29, 7, v0"); A("v_lshlrev_b32 v29, 4, v29")
    A("v_lshl_add_u32 v30, v28, 10, v29")
    A("s_mov_b32 s72, 3")
    srd(A, 76, P_WO, 0, 0); srd(A, 80, P_WO, 0, 0)
    A("s_mov_b32 s88, 0"); A("s_mov_b32 s90, 0"); A("s_mov_b32 s91, 0")
    A("s_mov_b32 s62, 0"); A(f"s_mov_b32 s63, {131072 + 24576}")
    A("s_cmp_ge_u32 s70, 736"); A("s_cbranch_scc1 k1_js_done")
    A("s_movk_i32 s62, 1024"); A("s_mov_b32 s63, s71")
    A("s_cmp_lt_u32 s70, 448"); A("s_cbranch_scc1 k1_js_gu")
    A("s_mov_b32 s72, 1")
    A("s_cmp_lt_u32 s70, 672"); A("s_cbranch_scc1 k1_js_wd")
    srd(A, 76, P_WO, 0, 512 * 1024); srd(A, 80, P_WO, 0, 512 * 1024); srd(A, 84, P_WS, WS_WO, SZ_WO)
    A("s_mov_b32 s73, 32"); A("s_sub_u32 s70, s70, 672")
    A("s_branch k1_js_dd")
    A.label("k1_js_wd")
    srd(A, 76, P_WD, 0, 1792 * 1024); srd(A, 80, P_WD, 0, 1792 * 1024); srd(A, 84, P_WS, WS_WD, SZ_WD)
    A("s_mov_b32 s73, 112"); A("s_sub_u32 s70, s70, 448")
    A.label("k1_js_dd")
    A("s_lshr_b32 s74, s70, 3"); A("s_and_b32 s75, s70, 7")
    A("s_lshl_b32 s88, s74, 16"); A("s_lshl_b32 s89, s75, 7"); A("s_add_u32 s88, s88, s89")
    A("s_movk_i32 s90, 8192"); A("s_add_u32 s91, s88, 32768")
    A("s_branch k1_js_done")
    A.label("k1_js_gu")
    A("s_mov_b32 s72, 0")
    srd(A, 76, P_WG, 0, 512 * 3584); srd(A, 80, P_WU, 0, 512 * 3584); srd(A, 84, P_WS, WS_WGU, SZ_WGU)
    A("s_mul_i32 s74, s70, 2341"); A("s_lshr_b32 s74, s74, 16"); A("s_mul_i32 s75, s74, 28"); A("s_sub_u32 s75, s70, s75")
    A("s_movk_i32 s89, 3584"); A("v_mul_lo_u32 v30, v28, s89"); A("v_add_u32 v30, v30, v29")
    A(f"s_mul_i32 s88, s74, {32*3584}"); A("s_lshl_b32 s89, s75, 7"); A("s_add_u32 s88, s88, s89")
    A(f"s_movk_i32 s90, {8*3584}"); A("s_mov_b32 s91, s88")
    A.label("k1_js_done")
    for i in range(8):
        A("s_mov_b32 m0, s63")
        rg = 88 if i < 4 else 91
        A("s_add_u32 s63, s63, s62")
        A(f"buffer_load_dwordx4 v30, s[{76 if i < 4 else 80}:{79 if i < 4 else 83}], s{rg} offen lds"); q.add("job")
        A(f"s_add_u32 s{rg}, s{rg}, s90")

def job_finish(A):
    A("s_cmp_eq_u32 s72, 3"); A("s_cbranch_scc1 k1_jf_end")
    A("v_lshlrev_b32 v34, 4, v0")
    A("v_lshrrev_b32 v35, 5, v0"); A("v_bfe_u32 v36, v0, 2, 2"); A("v_lshl_add_u32 v35, v35, 2, v36"); A("v_lshlrev_b32 v35, 7, v35")
    A("v_and_b32 v36, 3, v0"); A("v_lshl_add_u32 v35, v36, 3, v35"); A("v_add_u32 v35, s71, v35"); A("v_bfe_u32 v36, v0, 4, 1")
    A("s_cmp_eq_u32 s72, 0"); A("s_cbranch_scc1 k1_jf_gu")
    A("v_lshl_add_u32 v35, v36, 5, v35")
    A("s_lshl_b32 s60, s75, 1"); A("s_mul_i32 s60, s60, s73"); A("s_lshl_b32 s61, s74, 2"); A("s_add_u32 s60, s60, s61")
    A("s_lshl_b32 s60, s60, 10"); A("s_lshl_b32 s61, s73, 10")
    for c in range(2):
        for i in range(4):
            d = 40 + (c * 4 + i) * 4
            A(f"ds_read_b64_tr_b16 v[{d}:{d+1}], v35 offset:{i*2048 + c*64}")
            A(f"ds_read_b64_tr_b16 v[{d+2}:{d+3}], v35 offset:{i*2048 + c*64 + 1024}")
    A("s_waitcnt lgkmcnt(0)")
    for c in range(2):
        for i in range(4):
            d = 40 + (c * 4 + i) * 4
            A(f"buffer_store_dwordx4 v[{d}:{d+3}], v34, s[84:87], s60 offen offset:{i*1024}{STP}")
        A("s_add_u32 s60, s60, s61")
    A("s_branch k1_jf_end")
    A.label("k1_jf_gu")
    srd(A, 76, P_WS, WS_CSP, SZ_CSP)
    A("v_lshl_add_u32 v35, v36, 12, v35")
    A("s_lshl_b32 s60, s75, 7"); A("s_lshl_b32 s61, s74, 1"); A("s_add_u32 s60, s60, s61"); A("s_lshl_b32 s60, s60, 10")
    for c in range(8): A(f"v_mov_b32 v{72+c}, 0")
    for c in range(4):
        for i in range(2):
            d = 40 + (c * 2 + i) * 4
            A(f"ds_read_b64_tr_b16 v[{d}:{d+1}], v35 offset:{i*2048 + c*32}")
            A(f"ds_read_b64_tr_b16 v[{d+2}:{d+3}], v35 offset:{i*2048 + c*32 + 1024}")
    A("s_waitcnt lgkmcnt(0)")
    for c in range(4):
        A(f"s_add_u32 s61, s60, {c*32*1024}")
        for i in range(2):
            d = 40 + (c * 2 + i) * 4
            A(f"buffer_store_dwordx4 v[{d}:{d+3}], v34, s[84:87], s61 offen offset:{i*1024}{STP}")
    for j in range(4):
        for i in range(2):
            for c in range(4): A(f"v_dot2c_f32_bf16 v{72+4*i+c}, {ONES}, v{40+(c*2+i)*4+j}")
    A("s_nop 2")
    for c in range(4): A(f"v_add_f32 v{72+c}, v{72+c}, v{76+c}")
    A("s_mulk_i32 s74, 3584"); A("s_lshl_b32 s61, s75, 7"); A("s_add_u32 s74, s74, s61"); A("s_lshl_b32 s74, s74, 2")
    A("v_and_b32 v32, 31, v0"); A("v_lshlrev_b32 v32, 2, v32")
    for c in range(4): halves_sum(A, 72 + c, 33)
    for c in range(4): A(f"buffer_store_dword v{72+c}, v32, s[76:79], s74 offen offset:{c*128}{STP}")
    A.label("k1_jf_end")

def ksplit_reduce(A, pre, ACC, OUT, TMP):
    A("v_lshlrev_b32 v7, 4, v0")
    for qd in range(1, 4):
        A(f"s_xor_b32 s8, s3, {qd}"); A("s_mulk_i32 s8, 12288"); A("v_add_u32 v6, s8, v7")
        for j in range(4):
            r = ACC + 16 * qd + 4 * j
            A(f"ds_write_b128 v6, {pre}[{r}:{r+3}] offset:{(qd-1)*4096 + j*1024}")
    if pre == "a":
        for r in range(16): A(f"v_accvgpr_read_b32 v{OUT+r}, a{ACC+r}")
    A("s_mul_i32 s8, s3, 12288"); A("v_add_u32 v6, s8, v7")
    A("s_waitcnt lgkmcnt(0)")
    A("s_barrier")
    for p in range(3):
        for j in range(4):
            d = TMP + 16 * p + 4 * j
            A(f"ds_read_b128 v[{d}:{d+3}], v6 offset:{p*4096 + j*1024}")
    own = OUT if pre == "a" else ACC
    A("s_waitcnt lgkmcnt(8)")
    for r in range(0, 16, 2): A(f"v_pk_add_f32 v[{OUT+r}:{OUT+r+1}], v[{own+r}:{own+r+1}], v[{TMP+r}:{TMP+r+1}]")
    A("s_waitcnt lgkmcnt(0)")
    for r in range(0, 16, 2): A(f"v_pk_add_f32 v[{TMP+16+r}:{TMP+16+r+1}], v[{TMP+16+r}:{TMP+16+r+1}], v[{TMP+32+r}:{TMP+32+r+1}]")
    for r in range(0, 16, 2): A(f"v_pk_add_f32 v[{OUT+r}:{OUT+r+1}], v[{OUT+r}:{OUT+r+1}], v[{TMP+16+r}:{TMP+16+r+1}]")

def prefetch(A, srdn, soff, dummy, lane128):
    A(f"buffer_load_dword v{dummy}, v{lane128}, s[{srdn}:{srdn+3}], s{soff} offen")

def gen_k2(A):
    A.label("k2_kernel")
    prologue(A, 256, "k2_end"); ts(A, 2, 0)
    A("s_and_b32 s4, s2, 7"); A("s_lshr_b32 s5, s2, 3"); A("s_mov_b32 s61, s4"); A("s_mov_b32 s62, s5")
    A("s_lshr_b32 s6, s5, 3"); A("s_lshl_b32 s4, s4, 2"); A("s_add_u32 s4, s4, s6"); A("s_and_b32 s5, s5, 7")
    srd(A, 36, P_WS, WS_KVZ, SZ_KVZ); srd(A, 40, P_WS, WS_PQ, SZ_PQ); srd(A, 44, P_WS, WS_WO, SZ_WO)
    srd(A, 48, P_X, 0, 2048 * 1024); srd(A, 52, P_WS, WS_H, SZ_H); srd(A, 56, P_WS, WS_STATS, SZ_STATS)
    srd(A, 64, P_WS, WS_WGU, SZ_WGU)
    q = VMQ()
    A("v_lshlrev_b32 v2, 4, v0"); A("v_and_b32 v3, 31, v0"); A("v_min_u32 v4, 16, v3"); A("v_lshlrev_b32 v4, 6, v4")
    A("v_lshrrev_b32 v5, 5, v0"); A("v_lshl_add_u32 v4, v5, 4, v4")
    A("s_lshl_b32 s8, s3, 3"); A("s_mul_i32 s9, s8, 1088")
    A("s_lshr_b32 s12, s3, 1"); A("s_and_b32 s16, s3, 1")
    A("s_lshl_b32 s13, s4, 1"); A("s_add_u32 s13, s13, s12")
    A("s_lshl_b32 s10, s13, 5"); A("s_add_u32 s10, s10, s8"); A("s_lshl_b32 s10, s10, 10")
    A("s_xor_b32 s14, s13, 1"); A("s_lshl_b32 s14, s14, 5"); A("s_add_u32 s14, s14, s8"); A("s_lshl_b32 s14, s14, 10")
    A("s_lshl_b32 s11, s5, 1"); A("s_add_u32 s11, s11, s16"); A("s_xor_b32 s15, s11, 1")
    A("s_lshl_b32 s11, s11, 5"); A("s_add_u32 s11, s11, s8"); A("s_lshl_b32 s11, s11, 10")
    A("s_lshl_b32 s15, s15, 5"); A("s_add_u32 s15, s15, s8"); A("s_lshl_b32 s15, s15, 10")
    KR = 64
    def loads(h):
        A(f"s_add_u32 s12, s9, {h*1088}")
        A(f"buffer_load_dwordx4 v[{KR+8*h}:{KR+8*h+3}], v4, s[36:39], s12 offen"); q.add(("kv", h))
        A(f"buffer_load_dwordx4 v[{KR+8*h+4}:{KR+8*h+7}], v4, s[36:39], s12 offen offset:32"); q.add(("kv", h))
        base = [10, 14, 11, 15]
        dst = [h * 4, (8 + h) * 4, 64 + h * 4, 64 + (8 + h) * 4]
        for i in range(4):
            sr = 40 if i < 2 else 44
            if h == 4: A(f"s_add_u32 s{base[i]}, s{base[i]}, 4096")
            A(f"buffer_load_dwordx4 a[{dst[i]}:{dst[i]+3}], v2, s[{sr}:{sr+3}], s{base[i]} offen offset:{(h%4)*1024}"); q.add(("fr", h))
    for h in range(3): loads(h)
    for r in range(64): A(f"v_accvgpr_write_b32 a{128+r}, 0")
    KA = 32; TT = [[128, 144], [160, 176]]; OF = [[8, 12], [16, 20]]; EPS = 24; XR = 200
    A(f"v_mov_b32 v{EPS}, {f32(1e-6)}")
    ts(A, 2, 1)
    def cv(h): return [f"v_cvt_pk_bf16_f32 v{KA+4*h+j}, v{KR+8*h+2*j}, v{KR+8*h+2*j+1}" for j in range(4)]
    def tm(h, aa):
        T = TT[h % 2][aa]
        return f"v_mfma_f32_32x32x16_bf16 v[{T}:{T+15}], v[{KA+4*h}:{KA+4*h+3}], a[{(aa*8+h)*4}:{(aa*8+h)*4+3}], 0"
    def mm(h, aa, b):
        ac = 128 + 16 * (2 * aa + b); o = OF[h % 2][aa]
        return f"v_mfma_f32_32x32x16_bf16 a[{ac}:{ac+15}], a[{64+(b*8+h)*4}:{64+(b*8+h)*4+3}], v[{o}:{o+3}], a[{ac}:{ac+15}]"
    def valu(h):
        L = []
        T0, T1 = TT[h % 2]; o0, o1 = OF[h % 2]
        L += [f"v_add_f32 v25, v{T0+8}, v{EPS}", f"v_add_f32 v26, v{T1+8}, v{EPS}", "v_rcp_f32 v25, v25", "v_rcp_f32 v26, v26", "s_nop 0"]
        for r in range(8): L += [f"v_mul_f32 v{T0+r}, v{T0+r}, v25", f"v_mul_f32 v{T1+r}, v{T1+r}, v26"]
        for j in range(4): L += [f"v_cvt_pk_bf16_f32 v{o0+j}, v{T0+2*j}, v{T0+2*j+1}", f"v_cvt_pk_bf16_f32 v{o1+j}, v{T1+2*j}, v{T1+2*j+1}"]
        return L
    A(f"s_waitcnt vmcnt({q.need(('fr', 0))})")
    for l in cv(0): A(l)
    ts(A, 2, 2)
    A("s_nop 1")
    A(tm(0, 0)); A(tm(0, 1))
    for h in range(9):
        if h + 3 < 8: loads(h + 3)
        if h == 5:
            A("s_lshl_b32 s17, s13, 15"); A("s_lshl_b32 s60, s5, 7"); A("s_add_u32 s17, s17, s60"); A("s_lshl_b32 s60, s16, 6"); A("s_add_u32 s17, s17, s60")
            A("v_lshlrev_b32 v6, 10, v3"); A("v_lshl_add_u32 v6, v5, 3, v6")
            for qd in range(4):
                A(f"buffer_load_dwordx2 v[{XR+2*qd}:{XR+2*qd+1}], v6, s[48:51], s17 offen offset:{qd*16}"); q.add("x")
            A("s_and_b32 s60, s61, 3"); A("s_mul_i32 s60, s60, 917504"); A("s_mul_i32 s63, s62, 28672"); A("s_add_u32 s60, s60, s63")
            A("s_mul_i32 s63, s3, 7168"); A("s_add_u32 s60, s60, s63")
            A("v_min_u32 v7, 55, v0"); A("v_lshlrev_b32 v7, 7, v7")
            A("buffer_load_dword v208, v7, s[64:67], s60 offen"); q.add("pf")
        if h == 6:
            srd(A, 68, P_WS, WS_CSP, SZ_CSP)
            A("s_lshl_b32 s60, s2, 2"); A("s_add_u32 s60, s60, s3"); A("s_lshl_b32 s63, s60, 8")
            A("v_lshlrev_b32 v7, 2, v0")
            A("s_cmp_ge_u32 s60, 56"); A("s_cbranch_scc1 k2_nocs1")
            A.lines.append(";OPT_BEGIN")
            for kc in range(16):
                A(f"s_add_u32 s60, s63, {kc*3584*4}")
                A(f"buffer_load_dword v{210+kc}, v7, s[68:71], s60 offen")
            A.lines.append(";OPT_END")
            A.label("k2_nocs1")
        ms = []
        if h + 1 < 8:
            A(f"s_waitcnt vmcnt({q.need(('fr', h + 1))})")
            for l in cv(h + 1): A(l)
            A("s_nop 1")
            ms += [tm(h + 1, 0), tm(h + 1, 1)]
        if h >= 1: ms += [mm(h - 1, 0, 0), mm(h - 1, 0, 1), mm(h - 1, 1, 0), mm(h - 1, 1, 1)]
        vl = valu(h) if h < 8 else []
        if h == 0:
            for m_ in ms: A(m_)
            A("s_nop 5")
            for l in vl: A(l)
            A("s_nop 1")
        else:
            per = (len(vl) + len(ms) - 1) // len(ms) if vl else 0
            for m_ in ms:
                A(m_)
                for _ in range(per):
                    if vl: A(vl.pop(0))
            for l in vl: A(l)
            A("s_nop 1")
    ts(A, 2, 3)
    A("s_nop 7"); A("s_nop 3")
    ksplit_reduce(A, "a", 128, 64, 80)
    ts(A, 2, 4)
    A(f"s_waitcnt vmcnt({q.need('x')})")
    for qd in range(4):
        for j in range(2):
            xr = XR + 2 * qd + j; t8 = 8 + 2 * ((2 * qd + j) % 4)
            A(f"v_lshlrev_b32 v{t8}, 16, v{xr}"); A(f"v_and_b32 v{t8+1}, 0xffff0000, v{xr}")
            A(f"v_pk_add_f32 v[{64+4*qd+2*j}:{64+4*qd+2*j+1}], v[{64+4*qd+2*j}:{64+4*qd+2*j+1}], v[{t8}:{t8+1}]")
    HP = 96
    for r in range(8): A(f"v_cvt_pk_bf16_f32 v{HP+r}, v{64+2*r}, v{64+2*r+1}")
    A("s_lshl_b32 s8, s13, 5"); A("s_lshl_b32 s9, s5, 2"); A("s_add_u32 s8, s8, s9"); A("s_lshl_b32 s9, s16, 1"); A("s_add_u32 s8, s8, s9"); A("s_lshl_b32 s8, s8, 10")
    A(f"buffer_store_dwordx4 v[{HP}:{HP+3}], v2, s[52:55], s8 offen{STP}")
    A(f"buffer_store_dwordx4 v[{HP+4}:{HP+7}], v2, s[52:55], s8 offen offset:1024{STP}")
    for r in range(16, 20): A(f"v_mov_b32 v{r}, 0")
    for r in range(8):
        A(f"v_dot2c_f32_bf16 v{16+(r&1)}, {ONES}, v{HP+r}"); A(f"v_dot2c_f32_bf16 v{18+(r&1)}, v{HP+r}, v{HP+r}")
    A("s_nop 2")
    A("v_add_f32 v10, v16, v17"); A("v_add_f32 v11, v18, v19")
    halves_sum(A, 10, 12); halves_sum(A, 11, 12)
    A("s_lshl_b32 s8, s13, 12"); A("s_lshl_b32 s9, s5, 4"); A("s_add_u32 s8, s8, s9"); A("s_lshl_b32 s9, s16, 3"); A("s_add_u32 s8, s8, s9")
    A("v_lshlrev_b32 v6, 7, v3")
    A(f"buffer_store_dwordx2 v[10:11], v6, s[56:59], s8 offen{STP}")
    A("s_lshl_b32 s60, s2, 2"); A("s_add_u32 s60, s60, s3"); A("s_cmp_ge_u32 s60, 56"); A("s_cbranch_scc1 k2_nocs2")
    A("s_waitcnt vmcnt(0)")
    A.lines.append(";OPT_BEGIN")
    for st_ in (8, 4, 2, 1):
        for kc in range(st_): A(f"v_add_f32 v{210+kc}, v{210+kc}, v{210+kc+st_}")
    srd(A, 68, P_WS, WS_CS, SZ_CS)
    A("v_lshlrev_b32 v7, 2, v0")
    A(f"buffer_store_dword v210, v7, s[68:71], s63 offen{STP}")
    A.lines.append(";OPT_END")
    A.label("k2_nocs2")
    ts(A, 2, 7, True)
    A.label("k2_end")
    A("s_endpgm")

def gen_k3(A):
    A.label("k3_kernel")
    prologue(A, 256, "k3_end"); ts(A, 3, 0)
    A("s_and_b32 s4, s2, 7"); A("s_lshr_b32 s5, s2, 3")
    A("s_lshr_b32 s6, s4, 2"); A("s_lshl_b32 s6, s6, 3"); A("s_lshr_b32 s7, s5, 2"); A("s_add_u32 s6, s6, s7")
    A("s_and_b32 s4, s4, 3"); A("s_lshl_b32 s4, s4, 2"); A("s_and_b32 s5, s5, 3"); A("s_add_u32 s5, s5, s4")
    A("s_mov_b32 s4, s6")
    srd(A, 36, P_WS, WS_WGU, SZ_WGU); srd(A, 40, P_WS, WS_H, SZ_H)
    q = VMQ()
    A("v_lshlrev_b32 v2, 4, v0")
    A("s_lshl_b32 s6, s4, 2"); A("s_add_u32 s6, s6, s3")
    A("s_mul_i32 s7, s5, 7")
    A("s_add_u32 s8, s7, s3"); A("s_lshl_b32 s8, s8, 15")
    A("s_lshl_b32 s9, s7, 15"); A("s_lshl_b32 s10, s3, 13"); A("s_add_u32 s9, s9, s10")
    A("s_lshl_b32 s11, s6, 15")
    def dma_groups(stage):
        slot = (stage % 4) * 32768; L = []
        for hlf in range(2):
            for i in range(4):
                g = []
                if i == 0:
                    g.append(f"s_add_u32 m0, s10, {slot + hlf*4096}")
                    g.append(f"s_add_u32 s12, s8, {(8*stage + 4*hlf)*1024}" if stage < 4 else f"s_add_u32 s12, s9, {stage*32768 + hlf*4096}")
                g.append(f"buffer_load_dwordx4 v2, s[36:39], s12 offen offset:{i*1024} lds")
                L.append((g, ("dma", stage)))
        return L
    def h_groups(c):
        L = []
        for t in range(8 * c, 8 * c + 8):
            g = []
            if t % 4 == 0: g.append(f"s_add_u32 s13, s11, {t*1024}")
            g.append(f"buffer_load_dwordx4 a[{4*t}:{4*t+3}], v2, s[40:43], s13 offen offset:{(t%4)*1024}")
            L.append((g, ("h", c)))
        return L
    def emit(gt):
        for l in gt[0]: A(l)
        q.add(gt[1])
    def inter(a, b):
        out = []
        for x, y in zip(a, b): out += [x, y]
        return out
    for gt in inter(dma_groups(0), h_groups(0)): emit(gt)
    srd(A, 44, P_WS, WS_STATS, SZ_STATS); srd(A, 48, P_WS, WS_CS, SZ_CS); srd(A, 52, P_WS, WS_ACT, SZ_ACT)
    SM = 212
    A("v_and_b32 v3, 31, v0"); A("v_lshrrev_b32 v5, 5, v0"); A("v_lshlrev_b32 v4, 7, v3"); A("v_lshl_add_u32 v4, v5, 6, v4")
    A("s_lshl_b32 s14, s6, 12")
    for j in range(4): A(f"buffer_load_dwordx4 v[{SM+4*j}:{SM+4*j+3}], v4, s[44:47], s14 offen offset:{j*16}"); q.add("small")
    A("v_lshl_add_u32 v6, v1, 6, v0"); A("v_min_u32 v6, 223, v6"); A("v_lshlrev_b32 v6, 2, v6")
    A("s_mul_i32 s14, s7, 128")
    A(f"buffer_load_dword v{SM+16}, v6, s[48:51], s14 offen"); q.add("small")
    vpend = inter(dma_groups(1), h_groups(1))
    for _ in range(NPRE): emit(vpend.pop(0))
    vpend += inter(dma_groups(2), h_groups(2)) + inter(dma_groups(3), h_groups(3))
    NM, C1, C2 = 8, 9, 10
    CSL = 131072
    A(f"v_add_u32 v7, {CSL}, v6")
    A(f"v_lshlrev_b32 v11, 4, v5"); A(f"v_add_u32 v11, {CSL}, v11")
    A("v_mov_b32 v12, v2"); A("v_add_u32 v13, 0x10000, v2")
    ACCS = [64 + 16 * i for i in range(7)]
    NAF = 12
    AF = [16 + 4 * i for i in range(NAF)]
    CSR = 176; ET = 192
    A("s_mul_i32 s14, s6, 112"); A("s_add_u32 s14, s14, s7"); A("s_lshl_b32 s14, s14, 10")
    st_l = []
    for j in range(1, 4):
        for e in range(4): st_l.append(f"v_add_f32 v{SM+e}, v{SM+e}, v{SM+4*j+e}")
    st_l += [f"v_add_f32 v{SM}, v{SM}, v{SM+2}", f"v_add_f32 v{SM+1}, v{SM+1}, v{SM+3}",
             f"v_mov_b32 v{SM+4}, v{SM}", f"v_mov_b32 v{SM+5}, v{SM+1}", "s_nop 1",
             f"v_permlane32_swap_b32 v{SM}, v{SM+4}", f"v_permlane32_swap_b32 v{SM+1}, v{SM+5}", "s_nop 1",
             f"v_add_f32 v{SM}, v{SM}, v{SM+4}", f"v_add_f32 v{SM+1}, v{SM+1}, v{SM+5}",
             f"v_mul_f32 v{SM}, {f32(1/512)}, v{SM}", f"v_mul_f32 v{SM+1}, {f32(1/512)}, v{SM+1}",
             f"v_fma_f32 v{SM+1}, -v{SM}, v{SM}, v{SM+1}", f"v_max_f32 v{SM+1}, 0, v{SM+1}", f"v_add_f32 v{SM+1}, {f32(1e-5)}, v{SM+1}",
             f"v_rsq_f32 v{SM+1}, v{SM+1}", f"v_sub_f32 v{NM}, 0, v{SM}",
             f"v_mul_f32 v{C1}, {f32(-LOG2E)}, v{SM+1}", f"v_mul_f32 v{C2}, v{SM+1}, v{SM+1}", f"ds_write_b32 v7, v{SM+16}"]
    seq = []
    for c in range(4):
        for i in range(8):
            for w in range(4): seq.append((w, 8 * c + i, c, w * 8192 + i * 1024))
    for c in range(4, 7):
        for t in range(32): seq.append((c, t, c, t * 1024))
    def aread(n):
        tile, t, stage, off = seq[n]; sl = stage % 4
        A(f"ds_read_b128 v[{AF[n%NAF]}:{AF[n%NAF]+3}], v{13 if sl >= 2 else 12} offset:{(sl%2)*32768 + off}")
    def epi(tile, n0):
        L = []; ac = ACCS[tile]; P = ET + 16; R8 = range(8)
        L += [(n0, f"ds_read_b128 v[{CSR+4*qd}:{CSR+4*qd+3}], v11 offset:{tile*128 + qd*32}") for qd in range(4)]
        L += [("sync", None)]
        M = []
        M += [f"v_fmac_f32 v{ac+r}, v{NM}, v{CSR+r}" for r in range(16)]
        M += [f"v_mul_f32 v{ET+r}, v{C1}, v{ac+r}" for r in R8]
        M += [x for r in R8 for x in (f"v_exp_f32 v{ET+r}, v{ET+r}", f"v_mul_f32 v{ET+8+r}, v{ac+r}, v{ac+8+r}")]
        M += [x for r in R8 for x in (f"v_add_f32 v{ET+r}, 1.0, v{ET+r}", f"v_mul_f32 v{ET+8+r}, v{ET+8+r}, v{C2}")]
        M += [f"v_rcp_f32 v{ET+r}, v{ET+r}" for r in R8]
        M += [f"v_mul_f32 v{ET+8+r}, v{ET+8+r}, v{ET+r}" for r in R8]
        M += [f"v_cvt_pk_bf16_f32 v{P+j}, v{ET+8+2*j}, v{ET+8+2*j+1}" for j in range(4)]
        M += [f"s_add_u32 s15, s14, {tile*1024}", f"buffer_store_dwordx4 v[{P}:{P+3}], v2, s[52:55], s15 offen{STP}"]
        return L + [(n0, m) for m in M]
    cost = lambda l: 2 if (l.startswith("v_exp") or l.startswith("v_rcp") or l.startswith("v_rsq")) else 1
    ts(A, 3, 1)
    A(f"s_waitcnt vmcnt({q.need(('dma', 0), ('h', 0))})")
    A("s_barrier")
    ts(A, 3, 2)
    PF = 8
    for n in range(PF): aread(n)
    N = len(seq)
    pend = []
    started = set()
    hold = -1
    for n in range(N):
        tile, t, stage, off = seq[n]
        budget = 6
        if n + PF < N and seq[n + PF][2] != seq[n + PF - 1][2]:
            ns = seq[n + PF][2]
            tags = [("dma", ns)] + ([("h", ns)] if ns < 4 else []) + (["small"] if ns == 1 else [])
            while any(gt[1] in tags for gt in vpend): emit(vpend.pop(0))
            A(f"s_waitcnt vmcnt({q.need(*tags)})")
            A("s_barrier")
            rs = ns + 2
            if 4 <= rs < 7: vpend += dma_groups(rs)
            budget -= 2
            if ns == 1: pend += [(n, l) for l in st_l]
        if n + PF < N: aread(n + PF); budget -= 1
        if n % 2 == 0:
            A(f"s_waitcnt lgkmcnt({max(0, min(PF, N - 1 - n) - 1)})"); budget -= 1
        ac = ACCS[tile]
        c_in = f"v[{ac}:{ac+15}]" if tile in started else "0"
        started.add(tile)
        A(f"v_mfma_f32_32x32x16_bf16 v[{ac}:{ac+15}], v[{AF[n%NAF]}:{AF[n%NAF]+3}], a[{4*t}:{4*t+3}], {c_in}")
        if n == 127: ts(A, 3, 3)
        if n == 159: ts(A, 3, 5)
        if n == 191: ts(A, 3, 6)
        rate = 1 if (n < VFAST) else 2
        if vpend and n % rate == rate - 1:
            gt = vpend.pop(0); emit(gt); budget -= len(gt[0])
        if n == 128 + 2:
            for tl in range(4): pend += epi(tl, n)
        if n == 128 + 32 + 13: pend += epi(4, n)
        if n == 128 + 64 + 13: pend += epi(5, n)
        if "k3nofill" in EXP and n > 100: pend = []
        while pend and budget > 0 and n >= hold:
            e, l = pend.pop(0)
            if e == "sync":
                hold = n + PF + 2; break
            A(l); budget -= cost(l)
            if l.startswith("buffer_store"): q.add("st")
    ts(A, 3, 4)
    A("s_nop 7"); A("s_nop 3")
    A("s_waitcnt lgkmcnt(0)")
    for e, l in pend + epi(6, 0):
        if e == "sync": A("s_waitcnt lgkmcnt(0)")
        else: A(l)
    ts(A, 3, 7, True)
    A.label("k3_end")
    A("s_endpgm")

def gen_k4(A):
    A.label("k4_kernel")
    prologue(A, 256, "k4_end"); ts(A, 4, 0)
    A("s_and_b32 s4, s2, 7"); A("s_lshr_b32 s5, s2, 3"); A("s_lshr_b32 s6, s5, 3"); A("s_lshl_b32 s4, s4, 2"); A("s_add_u32 s4, s4, s6"); A("s_and_b32 s5, s5, 7")
    srd(A, 36, P_WS, WS_ACT, SZ_ACT); srd(A, 40, P_WS, WS_WD, SZ_WD); srd(A, 44, P_WS, WS_H, SZ_H); srd(A, 48, P_OUT, 0, 2048 * 1024)
    q = VMQ()
    A("v_lshlrev_b32 v2, 4, v0")
    A("s_mul_i32 s8, s3, 28")
    A("s_lshr_b32 s13, s3, 1"); A("s_lshl_b32 s14, s4, 1"); A("s_add_u32 s13, s14, s13")
    A("s_and_b32 s14, s3, 1")
    A("s_mul_i32 s9, s13, 112"); A("s_add_u32 s9, s9, s8"); A("s_lshl_b32 s9, s9, 10")
    A("s_xor_b32 s11, s13, 1"); A("s_mul_i32 s11, s11, 112"); A("s_add_u32 s11, s11, s8"); A("s_lshl_b32 s11, s11, 10")
    A("s_lshl_b32 s10, s5, 1"); A("s_add_u32 s10, s10, s14"); A("s_xor_b32 s12, s10, 1")
    A("s_mul_i32 s10, s10, 112"); A("s_add_u32 s10, s10, s8"); A("s_lshl_b32 s10, s10, 10")
    A("s_mul_i32 s12, s12, 112"); A("s_add_u32 s12, s12, s8"); A("s_lshl_b32 s12, s12, 10")
    D = 5
    bases = [9, 11, 10, 12]
    def loads(t):
        b = (t % D) * 16
        for i in range(4):
            sr = 36 if i < 2 else 40
            if t % 4 == 0 and t > 0: A(f"s_add_u32 s{bases[i]}, s{bases[i]}, 4096")
            A(f"buffer_load_dwordx4 a[{b+4*i}:{b+4*i+3}], v2, s[{sr}:{sr+3}], s{bases[i]} offen offset:{(t%4)*1024}"); q.add(("g", t))
    for t in range(D): loads(t)
    A("s_lshl_b32 s15, s13, 5"); A("s_lshl_b32 s60, s5, 2"); A("s_add_u32 s15, s15, s60"); A("s_lshl_b32 s60, s14, 1"); A("s_add_u32 s15, s15, s60"); A("s_lshl_b32 s15, s15, 10")
    HR = 16
    ACC = 128
    for r in range(64): A(f"v_mov_b32 v{ACC+r}, 0")
    ts(A, 4, 1)
    for t in range(28):
        A(f"s_waitcnt vmcnt({q.need(('g', t))})")
        if t == 1: ts(A, 4, 2)
        b = (t % D) * 16
        for aa in range(2):
            for bb in range(2):
                ac = ACC + 16 * (2 * aa + bb)
                A(f"v_mfma_f32_32x32x16_bf16 v[{ac}:{ac+15}], a[{b+8+4*bb}:{b+8+4*bb+3}], a[{b+4*aa}:{b+4*aa+3}], v[{ac}:{ac+15}]")
        if t + D < 28: loads(t + D)
        if t == 22:
            A(f"buffer_load_dwordx4 v[{HR}:{HR+3}], v2, s[44:47], s15 offen"); q.add("h")
            A(f"buffer_load_dwordx4 v[{HR+4}:{HR+7}], v2, s[44:47], s15 offen offset:1024"); q.add("h")
    ts(A, 4, 3)
    A("s_nop 7"); A("s_nop 3")
    ksplit_reduce(A, "v", ACC, 64, 80)
    ts(A, 4, 4)
    A("s_waitcnt vmcnt(0)")
    for r in range(8):
        t8 = 8 + 2 * (r % 4)
        A(f"v_lshlrev_b32 v{t8}, 16, v{HR+r}"); A(f"v_and_b32 v{t8+1}, 0xffff0000, v{HR+r}")
        A(f"v_pk_add_f32 v[{64+2*r}:{64+2*r+1}], v[{64+2*r}:{64+2*r+1}], v[{t8}:{t8+1}]")
    OP = 96
    for r in range(8): A(f"v_cvt_pk_bf16_f32 v{OP+r}, v{64+2*r}, v{64+2*r+1}")
    A("s_nop 1")
    for p in range(2):
        A(f"v_permlane32_swap_b32 v{OP+4*p}, v{OP+4*p+2}"); A(f"v_permlane32_swap_b32 v{OP+4*p+1}, v{OP+4*p+3}")
    A("v_and_b32 v3, 31, v0"); A("v_lshrrev_b32 v5, 5, v0"); A("v_lshlrev_b32 v6, 10, v3"); A("v_lshl_add_u32 v6, v5, 4, v6")
    A("s_lshl_b32 s8, s13, 15"); A("s_lshl_b32 s9, s5, 7"); A("s_add_u32 s8, s8, s9"); A("s_lshl_b32 s9, s14, 6"); A("s_add_u32 s8, s8, s9")
    for p in range(2): A(f"buffer_store_dwordx4 v[{OP+4*p}:{OP+4*p+3}], v6, s[48:51], s8 offen offset:{p*32}{STP}")
    ts(A, 4, 7, True)
    A.label("k4_end")
    A("s_endpgm")

def build(path, extra_launches=0):
    kernels = [("k1_kernel", gen_k1, (256, 163840, 512), 256, 256),
               ("k2_kernel", gen_k2, (256, 49152, 256), 512, 256),
               ("k3_kernel", gen_k3, (256, 131072 + 1024, 256), 512, 256),
               ("k4_kernel", gen_k4, (256, 49152, 256), 512, 256)]
    hdr = open(f"cdna_kernels/{KNAME}.s.ref").read().split("\n")
    out = [l for l in hdr if l.startswith(";") and "@launch" not in l and "Override launch" not in l and "grid=ceil" not in l]
    for (n, g, (wg, lds, thr), vg, ac) in kernels:
        out.append(f"; @launch kernel={n} grid=({wg},1,1) block=({thr},1,1) lds={lds}")
    out.append('.amdgcn_target "amdgcn-amd-amdhsa--gfx950"'); out.append(".text")
    nerr = 0
    for (n, g, _, vg, ac) in kernels:
        A = Asm(); g(A)
        A.lines = [l for l in A.lines if l is not None]
        for variant in (A.lines, strip_opt(A.lines)):
            errs = check(variant, n)
            for e in errs[:30]: print("CHECK:", e)
            nerr += len(errs)
        out.append(f".globl {n}\n.p2align 8\n.type {n},@function"); out.append(A.text())
    out.append("code_end:\n  s_endpgm")
    out.append('.section .rodata,"a"')
    for (n, g, _, vg, ac) in kernels: out.append(kd(n, vg, ac))
    open(path, "w").write("\n".join(out) + "\n")
    print("written", path, "check errors:", nerr)
    import subprocess
    r = subprocess.run(["clang", "-x", "assembler", "-target", "amdgcn-amd-amdhsa", "-mcpu=gfx950", "-c", path, "-o", "x.o"], capture_output=True, text=True)
    if r.returncode: print(r.stderr[:2000])

if __name__ == "__main__":
    if "--ts" in sys.argv: G.TS = True; sys.argv.remove("--ts")
    build(sys.argv[1])
```

```python
import sys, os
sys.path.insert(0, "dev")
from asmlib import *
import gen as G
import gen3 as G3
from gen3 import *
from gen3 import VMQ, ts, STP, EXP

WS_CNT = 0x78000; SZ_CNT = 4096
LD = " sc1"

def signal(A, cnt_off_sgpr, lab):
    A("s_cmp_lg_u32 s3, 0"); A(f"s_cbranch_scc1 {lab}")
    A("v_mov_b32 v250, 1"); A("v_mov_b32 v251, 0")
    A("s_mov_b64 exec, 1")
    A(f"buffer_atomic_add v250, v251, s[64:67], s{cnt_off_sgpr} offen sc1")
    A("s_mov_b64 exec, -1")
    A.label(lab)

def wait_cnt(A, cnt_off_sgpr, target, lab):
    A("s_cmp_lg_u32 s3, 0"); A(f"s_cbranch_scc1 {lab}_done")
    A("v_mov_b32 v251, 0"); A("s_mov_b32 s76, 0")
    A.label(lab)
    A(f"buffer_load_dword v250, v251, s[64:67], s{cnt_off_sgpr} offen sc1")
    A("s_waitcnt vmcnt(0)")
    A("v_readfirstlane_b32 s77, v250")
    A("s_add_u32 s76, s76, 1")
    A("s_nop 2")
    A(f"s_cmp_ge_u32 s77, {target}"); A(f"s_cbranch_scc1 {lab}_done")
    A("s_cmp_ge_u32 s76, 0x400000"); A(f"s_cbranch_scc1 {lab}_done")
    A("s_sleep 1")
    A(f"s_branch {lab}")
    A.label(f"{lab}_done")
    A("s_barrier")

def reduce4(A, pre, ACC, OUT, TMP, base):
    A("v_lshlrev_b32 v7, 4, v0")
    for qd in range(1, 4):
        A(f"s_xor_b32 s8, s3, {qd}"); A("s_mulk_i32 s8, 12288"); A(f"s_add_u32 s8, s8, {base}"); A("v_add_u32 v6, s8, v7")
        for j in range(4):
            r = ACC + 16 * qd + 4 * j
            A(f"ds_write_b128 v6, {pre}[{r}:{r+3}] offset:{(qd-1)*4096 + j*1024}")
    if pre == "a":
        for r in range(16): A(f"v_accvgpr_read_b32 v{OUT+r}, a{ACC+r}")
    A("s_mul_i32 s8, s3, 12288"); A(f"s_add_u32 s8, s8, {base}"); A("v_add_u32 v6, s8, v7")
    A("s_waitcnt lgkmcnt(0)")
    A("s_barrier")
    for p in range(3):
        for j in range(4):
            d = TMP + 16 * p + 4 * j
            A(f"ds_read_b128 v[{d}:{d+3}], v6 offset:{p*4096 + j*1024}")
    own = OUT if pre == "a" else ACC
    A("s_waitcnt lgkmcnt(8)")
    for r in range(0, 16, 2): A(f"v_pk_add_f32 v[{OUT+r}:{OUT+r+1}], v[{own+r}:{own+r+1}], v[{TMP+r}:{TMP+r+1}]")
    A("s_waitcnt lgkmcnt(0)")
    for r in range(0, 16, 2): A(f"v_pk_add_f32 v[{TMP+16+r}:{TMP+16+r+1}], v[{TMP+16+r}:{TMP+16+r+1}], v[{TMP+32+r}:{TMP+32+r+1}]")
    for r in range(0, 16, 2): A(f"v_pk_add_f32 v[{OUT+r}:{OUT+r+1}], v[{OUT+r}:{OUT+r+1}], v[{TMP+16+r}:{TMP+16+r+1}]")

NWD1 = int(os.environ.get("NWD1", "32"))
def gen_kf(A):
    A.label("kf_kernel")
    prologue(A, 256, "kf_end"); ts(A, 2, 0)
    A("s_and_b32 s74, s2, 7"); A("s_lshr_b32 s75, s2, 3")
    A("s_lshr_b32 s4, s75, 3"); A("s_lshl_b32 s68, s74, 2"); A("s_add_u32 s68, s68, s4"); A("s_and_b32 s69, s75, 7")
    A("s_lshr_b32 s4, s3, 1"); A("s_and_b32 s71, s3, 1"); A("s_lshl_b32 s70, s68, 1"); A("s_add_u32 s70, s70, s4")
    A("s_lshr_b32 s4, s74, 2"); A("s_lshl_b32 s72, s4, 3"); A("s_lshr_b32 s4, s75, 2"); A("s_add_u32 s72, s72, s4")
    A("s_and_b32 s4, s74, 3"); A("s_lshl_b32 s73, s4, 2"); A("s_and_b32 s4, s75, 3"); A("s_add_u32 s73, s73, s4")
    srd(A, 36, P_WS, WS_KVZ, SZ_KVZ); srd(A, 40, P_WS, WS_PQ, SZ_PQ); srd(A, 44, P_WS, WS_WO, SZ_WO)
    q = VMQ()
    A("v_lshlrev_b32 v2, 4, v0"); A("v_and_b32 v3, 31, v0"); A("v_min_u32 v4, 16, v3"); A("v_lshlrev_b32 v4, 6, v4")
    A("v_lshrrev_b32 v5, 5, v0"); A("v_lshl_add_u32 v4, v5, 4, v4")
    A("s_lshl_b32 s8, s3, 3"); A("s_mul_i32 s9, s8, 1088")
    A("s_lshl_b32 s10, s70, 5"); A("s_add_u32 s10, s10, s8"); A("s_lshl_b32 s10, s10, 10")
    A("s_xor_b32 s14, s70, 1"); A("s_lshl_b32 s14, s14, 5"); A("s_add_u32 s14, s14, s8"); A("s_lshl_b32 s14, s14, 10")
    A("s_lshl_b32 s11, s69, 1"); A("s_add_u32 s11, s11, s71"); A("s_xor_b32 s15, s11, 1")
    A("s_lshl_b32 s11, s11, 5"); A("s_add_u32 s11, s11, s8"); A("s_lshl_b32 s11, s11, 10")
    A("s_lshl_b32 s15, s15, 5"); A("s_add_u32 s15, s15, s8"); A("s_lshl_b32 s15, s15, 10")
    KR = 64
    def loads(h):
        A(f"s_add_u32 s12, s9, {h*1088}")
        A(f"buffer_load_dwordx4 v[{KR+8*h}:{KR+8*h+3}], v4, s[36:39], s12 offen"); q.add(("kv", h))
        A(f"buffer_load_dwordx4 v[{KR+8*h+4}:{KR+8*h+7}], v4, s[36:39], s12 offen offset:32"); q.add(("kv", h))
        base = [10, 14, 11, 15]
        dst = [h * 4, (8 + h) * 4, 64 + h * 4, 64 + (8 + h) * 4]
        for i in range(4):
            sr = 40 if i < 2 else 44
            if h == 4: A(f"s_add_u32 s{base[i]}, s{base[i]}, 4096")
            A(f"buffer_load_dwordx4 a[{dst[i]}:{dst[i]+3}], v2, s[{sr}:{sr+3}], s{base[i]} offen offset:{(h%4)*1024}"); q.add(("fr", h))
    for h in range(3): loads(h)
    srd(A, 48, P_X, 0, 2048 * 1024); srd(A, 52, P_WS, WS_H, SZ_H); srd(A, 56, P_WS, WS_STATS, SZ_STATS)
    srd(A, 60, P_WS, WS_WGU, SZ_WGU); srd(A, 64, P_WS, WS_CNT, SZ_CNT)
    for r in range(64): A(f"v_accvgpr_write_b32 a{128+r}, 0")
    KA = 32; TT = [[128, 144], [160, 176]]; OF = [[8, 12], [16, 20]]; EPS = 24; XR = 200
    HPK = 240
    CSV = 208
    A(f"v_mov_b32 v{EPS}, {f32(1e-6)}")
    A("s_mul_i32 s78, s73, 7")
    A("s_add_u32 s79, s78, s3"); A("s_lshl_b32 s79, s79, 15")
    A("s_lshl_b32 s80, s78, 15"); A("s_lshl_b32 s81, s3, 13"); A("s_add_u32 s80, s80, s81")
    def dma_groups(stage):
        slot = (stage % 4) * 32768; L = []
        for hlf in range(2):
            for i in range(4):
                g = []
                if i == 0:
                    g.append(f"s_add_u32 m0, s81, {slot + hlf*4096}")
                    g.append(f"s_add_u32 s82, s79, {(8*stage + 4*hlf)*1024}" if stage < 4 else f"s_add_u32 s82, s80, {stage*32768 + hlf*4096}")
                g.append(f"buffer_load_dwordx4 v2, s[60:63], s82 offen offset:{i*1024} lds")
                L.append((g, ("dma", stage)))
        return L
    def emit(gt):
        for l in gt[0]: A(l)
        q.add(gt[1])
    ts(A, 2, 1)
    def cv(h): return [f"v_cvt_pk_bf16_f32 v{KA+4*h+j}, v{KR+8*h+2*j}, v{KR+8*h+2*j+1}" for j in range(4)]
    def tm(h, aa):
        T = TT[h % 2][aa]
        return f"v_mfma_f32_32x32x16_bf16 v[{T}:{T+15}], v[{KA+4*h}:{KA+4*h+3}], a[{(aa*8+h)*4}:{(aa*8+h)*4+3}], 0"
    def mm(h, aa, b):
        ac = 128 + 16 * (2 * aa + b); o = OF[h % 2][aa]
        return f"v_mfma_f32_32x32x16_bf16 a[{ac}:{ac+15}], a[{64+(b*8+h)*4}:{64+(b*8+h)*4+3}], v[{o}:{o+3}], a[{ac}:{ac+15}]"
    def valu(h):
        L = []
        T0, T1 = TT[h % 2]; o0, o1 = OF[h % 2]
        L += [f"v_add_f32 v25, v{T0+8}, v{EPS}", f"v_add_f32 v26, v{T1+8}, v{EPS}", "v_rcp_f32 v25, v25", "v_rcp_f32 v26, v26", "s_nop 0"]
        for r in range(8): L += [f"v_mul_f32 v{T0+r}, v{T0+r}, v25", f"v_mul_f32 v{T1+r}, v{T1+r}, v26"]
        for j in range(4): L += [f"v_cvt_pk_bf16_f32 v{o0+j}, v{T0+2*j}, v{T0+2*j+1}", f"v_cvt_pk_bf16_f32 v{o1+j}, v{T1+2*j}, v{T1+2*j+1}"]
        return L
    A(f"s_waitcnt vmcnt({q.need(('fr', 0))})")
    for l in cv(0): A(l)
    ts(A, 2, 2)
    A("s_nop 1")
    A(tm(0, 0)); A(tm(0, 1))
    wpend = dma_groups(0) + dma_groups(1) + dma_groups(2)
    for h in range(9):
        if h + 3 < 8: loads(h + 3)
        if h == 5:
            A("s_lshl_b32 s6, s70, 15"); A("s_lshl_b32 s7, s69, 7"); A("s_add_u32 s6, s6, s7"); A("s_lshl_b32 s7, s71, 6"); A("s_add_u32 s6, s6, s7")
            A("v_lshlrev_b32 v6, 10, v3"); A("v_lshl_add_u32 v6, v5, 3, v6")
            for qd in range(4):
                A(f"buffer_load_dwordx2 v[{XR+2*qd}:{XR+2*qd+1}], v6, s[48:51], s6 offen offset:{qd*16}"); q.add("x")
            srd(A, 48, P_WS, WS_CSP, SZ_CSP)
            A("v_lshl_add_u32 v230, v1, 6, v0"); A("v_min_u32 v230, 223, v230"); A("v_lshlrev_b32 v230, 2, v230")
            A("s_mul_i32 s6, s78, 128")
            for kc in range(16):
                A(f"s_add_u32 s7, s6, {kc*3584*4}")
                A(f"buffer_load_dword v{CSV+kc}, v230, s[48:51], s7 offen"); q.add("cs")
        ms = []
        if h + 1 < 8:
            A(f"s_waitcnt vmcnt({q.need(('fr', h + 1))})")
            for l in cv(h + 1): A(l)
            A("s_nop 1")
            ms += [tm(h + 1, 0), tm(h + 1, 1)]
        if h >= 1: ms += [mm(h - 1, 0, 0), mm(h - 1, 0, 1), mm(h - 1, 1, 0), mm(h - 1, 1, 1)]
        vl = valu(h) if h < 8 else []
        if h == 0:
            for m_ in ms: A(m_)
            A("s_nop 5")
            for l in vl: A(l)
            A("s_nop 1")
        else:
            per = (len(vl) + len(ms) - 1) // len(ms) if vl else 0
            for m_ in ms:
                A(m_)
                for _ in range(per):
                    if vl: A(vl.pop(0))
                if h >= 6 and wpend: emit(wpend.pop(0))
            for l in vl: A(l)
            A("s_nop 1")
    ts(A, 2, 3)
    for _ in range(6):
        if wpend: emit(wpend.pop(0))
    A("s_nop 7"); A("s_nop 3") if False else None
    reduce4(A, "a", 128, 64, 80, 98304)
    for gt in wpend: emit(gt)
    wpend = []
    ts(A, 2, 4)
    A(f"s_waitcnt vmcnt({q.need('x')})")
    for qd in range(4):
        for j in range(2):
            xr = XR + 2 * qd + j; t8 = 8 + 2 * ((2 * qd + j) % 4)
            A(f"v_lshlrev_b32 v{t8}, 16, v{xr}"); A(f"v_and_b32 v{t8+1}, 0xffff0000, v{xr}")
            A(f"v_pk_add_f32 v[{64+4*qd+2*j}:{64+4*qd+2*j+1}], v[{64+4*qd+2*j}:{64+4*qd+2*j+1}], v[{t8}:{t8+1}]")
    for r in range(8): A(f"v_cvt_pk_bf16_f32 v{HPK+r}, v{64+2*r}, v{64+2*r+1}")
    A("s_lshl_b32 s8, s70, 5"); A("s_lshl_b32 s9, s69, 2"); A("s_add_u32 s8, s8, s9"); A("s_lshl_b32 s9, s71, 1"); A("s_add_u32 s8, s8, s9"); A("s_lshl_b32 s8, s8, 10")
    A(f"buffer_store_dwordx4 v[{HPK}:{HPK+3}], v2, s[52:55], s8 offen sc1"); q.add("st")
    A(f"buffer_store_dwordx4 v[{HPK+4}:{HPK+7}], v2, s[52:55], s8 offen offset:1024 sc1"); q.add("st")
    for r in range(16, 20): A(f"v_mov_b32 v{r}, 0")
    for r in range(8):
        A(f"v_dot2c_f32_bf16 v{16+(r&1)}, {ONES}, v{HPK+r}"); A(f"v_dot2c_f32_bf16 v{18+(r&1)}, v{HPK+r}, v{HPK+r}")
    A("s_nop 2")
    A("v_add_f32 v10, v16, v17"); A("v_add_f32 v11, v18, v19")
    halves_sum(A, 10, 12); halves_sum(A, 11, 12)
    A("s_lshl_b32 s8, s70, 12"); A("s_lshl_b32 s9, s69, 4"); A("s_add_u32 s8, s8, s9"); A("s_lshl_b32 s9, s71, 3"); A("s_add_u32 s8, s8, s9")
    A("v_lshlrev_b32 v6, 7, v3")
    A("buffer_store_dwordx2 v[10:11], v6, s[56:59], s8 offen sc1"); q.add("st")
    CSL = 147456
    A(f"s_waitcnt vmcnt({q.need('cs')})")
    for st_ in (8, 4, 2, 1):
        for kc in range(st_): A(f"v_add_f32 v{CSV+kc}, v{CSV+kc}, v{CSV+kc+st_}")
    A(f"v_add_u32 v7, {CSL}, v230"); A(f"ds_write_b32 v7, v{CSV}")
    A("s_waitcnt vmcnt(0) lgkmcnt(0)")
    A("s_barrier")
    A("s_lshr_b32 s83, s68, 1"); A("s_lshl_b32 s83, s83, 7")
    signal(A, 83, "kf_sig1")
    ts(A, 2, 5)
    q.q = []
    srd(A, 40, P_WS, WS_H, SZ_H); srd(A, 44, P_WS, WS_STATS, SZ_STATS); srd(A, 52, P_WS, WS_ACT, SZ_ACT); srd(A, 56, P_WS, WS_WD, SZ_WD)
    A("s_lshl_b32 s6, s72, 2"); A("s_add_u32 s6, s6, s3")
    A("s_lshl_b32 s11, s6, 15")
    A("v_lshlrev_b32 v4, 7, v3"); A("v_lshl_add_u32 v4, v5, 6, v4")
    A(f"v_lshlrev_b32 v11, 4, v5"); A(f"v_add_u32 v11, {CSL}, v11")
    A("v_mov_b32 v12, v2"); A("v_add_u32 v13, 0x10000, v2")
    A("s_mul_i32 s14, s6, 112"); A("s_add_u32 s14, s14, s78"); A("s_lshl_b32 s14, s14, 10")
    A("s_mul_i32 s8, s3, 28")
    A("s_lshl_b32 s84, s69, 1"); A("s_add_u32 s84, s84, s71"); A("s_xor_b32 s85, s84, 1")
    A("s_mul_i32 s84, s84, 112"); A("s_add_u32 s84, s84, s8"); A("s_lshl_b32 s84, s84, 10")
    A("s_mul_i32 s85, s85, 112"); A("s_add_u32 s85, s85, s8"); A("s_lshl_b32 s85, s85, 10")
    for gt in dma_groups(3): emit(gt)
    A("s_lshl_b32 s83, s72, 7")
    wait_cnt(A, 83, 16, "kf_w1")
    ts(A, 3, 0)
    def h_groups(c):
        L = []
        for t in range(8 * c, 8 * c + 8):
            g = []
            if t % 4 == 0: g.append(f"s_add_u32 s13, s11, {t*1024}")
            g.append(f"buffer_load_dwordx4 a[{4*t}:{4*t+3}], v2, s[40:43], s13 offen offset:{(t%4)*1024}{LD}")
            L.append((g, ("h", c)))
        return L
    for gt in h_groups(0): emit(gt)
    SM = 212
    A("s_lshl_b32 s15, s6, 12")
    for j in range(4): A(f"buffer_load_dwordx4 v[{SM+4*j}:{SM+4*j+3}], v4, s[44:47], s15 offen offset:{j*16}{LD}"); q.add("small")
    for gt in h_groups(1): emit(gt)
    vpend = h_groups(2) + h_groups(3)
    NM, C1, C2 = 8, 9, 10
    ACCS = [64 + 16 * i for i in range(7)]
    NAF = 12
    AF = [16 + 4 * i for i in range(NAF)]
    CSR = 176; ET = 192
    st_l = []
    for j in range(1, 4):
        for e in range(4): st_l.append(f"v_add_f32 v{SM+e}, v{SM+e}, v{SM+4*j+e}")
    st_l += [f"v_add_f32 v{SM}, v{SM}, v{SM+2}", f"v_add_f32 v{SM+1}, v{SM+1}, v{SM+3}",
             f"v_mov_b32 v{SM+4}, v{SM}", f"v_mov_b32 v{SM+5}, v{SM+1}", "s_nop 1",
             f"v_permlane32_swap_b32 v{SM}, v{SM+4}", f"v_permlane32_swap_b32 v{SM+1}, v{SM+5}", "s_nop 1",
             f"v_add_f32 v{SM}, v{SM}, v{SM+4}", f"v_add_f32 v{SM+1}, v{SM+1}, v{SM+5}",
             f"v_mul_f32 v{SM}, {f32(1/512)}, v{SM}", f"v_mul_f32 v{SM+1}, {f32(1/512)}, v{SM+1}",
             f"v_fma_f32 v{SM+1}, -v{SM}, v{SM}, v{SM+1}", f"v_max_f32 v{SM+1}, 0, v{SM+1}", f"v_add_f32 v{SM+1}, {f32(1e-5)}, v{SM+1}",
             f"v_rsq_f32 v{SM+1}, v{SM+1}", f"v_sub_f32 v{NM}, 0, v{SM}",
             f"v_mul_f32 v{C1}, {f32(-LOG2E)}, v{SM+1}", f"v_mul_f32 v{C2}, v{SM+1}, v{SM+1}"]
    seq = []
    for c in range(4):
        for i in range(8):
            for w in range(4): seq.append((w, 8 * c + i, c, w * 8192 + i * 1024))
    for c in range(4, 7):
        for t in range(32): seq.append((c, t, c, t * 1024))
    def aread(n):
        tile, t, stage, off = seq[n]; sl = stage % 4
        A(f"ds_read_b128 v[{AF[n%NAF]}:{AF[n%NAF]+3}], v{13 if sl >= 2 else 12} offset:{(sl%2)*32768 + off}")
    def epi(tile, n0):
        L = []; ac = ACCS[tile]; P = ET + 16; R8 = range(8)
        L += [(n0, f"ds_read_b128 v[{CSR+4*qd}:{CSR+4*qd+3}], v11 offset:{tile*128 + qd*32}") for qd in range(4)]
        L += [("sync", None)]
        M = []
        M += [f"v_fmac_f32 v{ac+r}, v{NM}, v{CSR+r}" for r in range(16)]
        M += [f"v_mul_f32 v{ET+r}, v{C1}, v{ac+r}" for r in R8]
        M += [x for r in R8 for x in (f"v_exp_f32 v{ET+r}, v{ET+r}", f"v_mul_f32 v{ET+8+r}, v{ac+r}, v{ac+8+r}")]
        M += [x for r in R8 for x in (f"v_add_f32 v{ET+r}, 1.0, v{ET+r}", f"v_mul_f32 v{ET+8+r}, v{ET+8+r}, v{C2}")]
        M += [f"v_rcp_f32 v{ET+r}, v{ET+r}" for r in R8]
        M += [f"v_mul_f32 v{ET+8+r}, v{ET+8+r}, v{ET+r}" for r in R8]
        M += [f"v_cvt_pk_bf16_f32 v{P+j}, v{ET+8+2*j}, v{ET+8+2*j+1}" for j in range(4)]
        M += [f"s_add_u32 s15, s14, {tile*1024}", f"buffer_store_dwordx4 v[{P}:{P+3}], v2, s[52:55], s15 offen sc1"]
        return L + [(n0, m) for m in M]
    def wd_reg(t, b):
        f = 2 * t + b
        return 128 + 4 * f if f < 32 else 4 * (f - 32)
    def wd_load(t, b):
        g = []
        if t % 4 == 0 and t > 0 and b == 0:
            g.append("s_add_u32 s84, s84, 4096"); g.append("s_add_u32 s85, s85, 4096")
        r = wd_reg(t, b)
        g.append(f"buffer_load_dwordx4 a[{r}:{r+3}], v2, s[56:59], s{84+b} offen offset:{(t%4)*1024}")
        return (g, ("wd", t))
    wd_all = [wd_load(t, b) for t in range(28) for b in range(2)]
    cost = lambda l: 2 if (l.startswith("v_exp") or l.startswith("v_rcp") or l.startswith("v_rsq")) else 1
    A(f"s_waitcnt vmcnt({q.need(('h', 0))})")
    ts(A, 3, 2)
    PF = 8
    for n in range(PF): aread(n)
    N = len(seq)
    pend = []; started = set(); hold = -1
    wd_i = 0
    for n in range(N):
        tile, t, stage, off = seq[n]
        budget = 6
        if n + PF < N and seq[n + PF][2] != seq[n + PF - 1][2]:
            ns = seq[n + PF][2]
            if ns >= 2:
                tags = [("dma", ns)] if ns >= 3 else []
                tags = [tg for tg in tags if tg in q.q]
                if tags: A(f"s_waitcnt vmcnt({q.need(*tags)})")
                A("s_barrier"); budget -= 2
                rs = ns + 2
                if 4 <= rs < 7: vpend += dma_groups(rs)
        if n < 128 and n % 32 == 0 and n > 0:
            c = n // 32
            while any(gt[1] == ("h", c) for gt in vpend): emit(vpend.pop(0))
            tags = [("h", c)] + (["small"] if c == 1 else [])
            A(f"s_waitcnt vmcnt({q.need(*tags)})"); budget -= 1
            if c == 1: pend += [(n, l) for l in st_l]
        if n + PF < N: aread(n + PF); budget -= 1
        if n % 2 == 0:
            A(f"s_waitcnt lgkmcnt({max(0, min(PF, N - 1 - n) - 1)})"); budget -= 1
        ac = ACCS[tile]
        c_in = f"v[{ac}:{ac+15}]" if tile in started else "0"
        started.add(tile)
        A(f"v_mfma_f32_32x32x16_bf16 v[{ac}:{ac+15}], v[{AF[n%NAF]}:{AF[n%NAF]+3}], a[{4*t}:{4*t+3}], {c_in}")
        if n == 127: ts(A, 3, 3)
        if vpend and n % 2 == 1:
            gt = vpend.pop(0); emit(gt); budget -= len(gt[0])
        elif not vpend and n >= 138 and wd_i < min(NWD1, 32) and n % 2 == 1:
            gt = wd_all[wd_i]; wd_i += 1; emit(gt); budget -= len(gt[0])
        if n == 128 + 2:
            for tl in range(4): pend += epi(tl, n)
        if n == 128 + 32 + 13: pend += epi(4, n)
        if n == 128 + 64 + 13: pend += epi(5, n)
        while pend and budget > 0 and n >= hold:
            e, l = pend.pop(0)
            if e == "sync":
                hold = n + PF + 2; break
            A(l); budget -= cost(l)
            if l.startswith("buffer_store"): q.add("st")
    ts(A, 3, 4)
    for gt in wd_all[wd_i:32]: emit(gt)
    A("s_nop 7"); A("s_nop 3")
    A("s_waitcnt lgkmcnt(0)")
    rest = wd_all[32:]
    tail = pend + epi(6, 0)
    k_ = 0
    for e, l in tail:
        if e == "sync": A("s_waitcnt lgkmcnt(0)")
        else:
            A(l)
            if l.startswith("buffer_store"): q.add("st")
        k_ += 1
        if k_ % 4 == 0 and rest: emit(rest.pop(0))
    for gt in rest: emit(gt)
    A(f"s_waitcnt vmcnt({q.need('st')})")
    A("s_barrier")
    A("s_lshl_b32 s83, s72, 7"); A("s_add_u32 s83, s83, 2048")
    signal(A, 83, "kf_sig2")
    ts(A, 3, 7)
    srd(A, 36, P_WS, WS_ACT, SZ_ACT); srd(A, 48, P_OUT, 0, 2048 * 1024)
    A("s_mul_i32 s8, s3, 28")
    A("s_mul_i32 s9, s70, 112"); A("s_add_u32 s9, s9, s8"); A("s_lshl_b32 s9, s9, 10")
    A("s_xor_b32 s11, s70, 1"); A("s_mul_i32 s11, s11, 112"); A("s_add_u32 s11, s11, s8"); A("s_lshl_b32 s11, s11, 10")
    A("s_lshr_b32 s83, s68, 1"); A("s_lshl_b32 s83, s83, 7"); A("s_add_u32 s83, s83, 2048")
    wait_cnt(A, 83, 16, "kf_w2")
    ts(A, 4, 0)
    D = 7
    RB = 16
    def aloads(t):
        b = RB + (t % D) * 8
        for i in range(2):
            sg = [9, 11][i]
            if t % 4 == 0 and t > 0: A(f"s_add_u32 s{sg}, s{sg}, 4096")
            A(f"buffer_load_dwordx4 v[{b+4*i}:{b+4*i+3}], v2, s[36:39], s{sg} offen offset:{(t%4)*1024}{LD}"); q.add(("g", t))
    for t in range(D): aloads(t)
    ACC = 128
    ts(A, 4, 1)
    for t in range(28):
        A(f"s_waitcnt vmcnt({q.need(('g', t))})")
        if t == 1: ts(A, 4, 2)
        b = RB + (t % D) * 8
        for aa in range(2):
            for bb in range(2):
                ac = ACC + 16 * (2 * aa + bb); wr = wd_reg(t, bb)
                cin = "0" if t == 0 else f"v[{ac}:{ac+15}]"
                A(f"v_mfma_f32_32x32x16_bf16 v[{ac}:{ac+15}], a[{wr}:{wr+3}], v[{b+4*aa}:{b+4*aa+3}], {cin}")
        if t + D < 28: aloads(t + D)
    ts(A, 4, 3)
    A("s_nop 7"); A("s_nop 3")
    reduce4(A, "v", ACC, 64, 80, 0)
    ts(A, 4, 4)
    for r in range(8):
        t8 = 8 + 2 * (r % 4)
        A(f"v_lshlrev_b32 v{t8}, 16, v{HPK+r}"); A(f"v_and_b32 v{t8+1}, 0xffff0000, v{HPK+r}")
        A(f"v_pk_add_f32 v[{64+2*r}:{64+2*r+1}], v[{64+2*r}:{64+2*r+1}], v[{t8}:{t8+1}]")
    OP = 96
    for r in range(8): A(f"v_cvt_pk_bf16_f32 v{OP+r}, v{64+2*r}, v{64+2*r+1}")
    A("s_nop 1")
    for p in range(2):
        A(f"v_permlane32_swap_b32 v{OP+4*p}, v{OP+4*p+2}"); A(f"v_permlane32_swap_b32 v{OP+4*p+1}, v{OP+4*p+3}")
    A("v_lshlrev_b32 v6, 10, v3"); A("v_lshl_add_u32 v6, v5, 4, v6")
    A("s_lshl_b32 s8, s70, 15"); A("s_lshl_b32 s9, s69, 7"); A("s_add_u32 s8, s8, s9"); A("s_lshl_b32 s9, s71, 6"); A("s_add_u32 s8, s8, s9")
    for p in range(2): A(f"buffer_store_dwordx4 v[{OP+4*p}:{OP+4*p+3}], v6, s[48:51], s8 offen offset:{p*32}")
    ts(A, 4, 7, True)
    A.label("kf_end")
    A("s_endpgm")

def gen_k1z(A):
    G3.ZERO_CNT = (WS_CNT, SZ_CNT)
    G3.gen_k1(A)

def build(path):
    kernels = [("k1_kernel", gen_k1z, (256, 163840, 512), 256, 256),
               ("kf_kernel", gen_kf, (256, 163840, 256), 512, 256)]
    hdr = open(f"cdna_kernels/{KNAME}.s.ref").read().split("\n")
    out = [l for l in hdr if l.startswith(";") and "@launch" not in l and "Override launch" not in l and "grid=ceil" not in l]
    for (n, g, (wg, lds, thr), vg, ac) in kernels:
        out.append(f"; @launch kernel={n} grid=({wg},1,1) block=({thr},1,1) lds={lds}")
    out.append('.amdgcn_target "amdgcn-amd-amdhsa--gfx950"'); out.append(".text")
    nerr = 0
    for (n, g, _, vg, ac) in kernels:
        A = Asm(); g(A)
        A.lines = [l for l in A.lines if l is not None]
        for variant in (A.lines, strip_opt(A.lines)):
            errs = check(variant, n)
            for e in errs[:30]: print("CHECK:", e)
            nerr += len(errs)
        out.append(f".globl {n}\n.p2align 8\n.type {n},@function"); out.append(A.text())
    out.append("code_end:\n  s_endpgm")
    out.append('.section .rodata,"a"')
    for (n, g, _, vg, ac) in kernels: out.append(kd(n, vg, ac))
    open(path, "w").write("\n".join(out) + "\n")
    print("written", path, "check errors:", nerr)
    import subprocess
    r = subprocess.run(["clang", "-x", "assembler", "-target", "amdgcn-amd-amdhsa", "-mcpu=gfx950", "-c", path, "-o", "x.o"], capture_output=True, text=True)
    if r.returncode: print(r.stderr[:2000])

if __name__ == "__main__":
    if "--ts" in sys.argv: G.TS = True; sys.argv.remove("--ts")
    build(sys.argv[1])
```

```python
import sys, struct
sys.path.insert(0, "dev")
from asmlib import *
import gen as G
from gen import (KNAME, MB, WS_KVZ, SZ_KVZ, WS_STATS, SZ_STATS, WS_CSP, SZ_CSP, WS_PQ, SZ_PQ, WS_H, SZ_H, WS_ACT, SZ_ACT,
                 WS_WGU, SZ_WGU, WS_WD, SZ_WD, WS_WO, SZ_WO, f32, LOG2E, ONES, P_X, P_WQKV, P_WO, P_BX, P_WG, P_WU, P_WD,
                 P_OUT, P_DBG, P_WS, prologue, srd, halves_sum, kd, strip_opt, WS_TS)
ZERO_CNT = None
SZ_CSP = 16 * 3584 * 4
WS_CS = 0x7C000; SZ_CS = 3584 * 4
def ts(A, k, slot, wait=False): G.ts_mark(A, k, slot, wait)

class VMQ:
    def __init__(self): self.q = []
    def add(self, tag, n=1): self.q += [tag] * n
    def need(self, *tags):
        idx = [i for i, x in enumerate(self.q) if x in tags]
        return len(self.q) - 1 - max(idx)

import os
EXP = set(os.environ.get("EXP", "").split(","))
STP = " sc1" if "nosc1" not in EXP else ""
JOBI = int(os.environ.get("JOBI", "-1"))
JOBF = int(os.environ.get("JOBF", "4"))
NPRE = int(os.environ.get("NPRE", "8"))
VFAST = int(os.environ.get("VFAST", "8"))
BC = "op_sel_hi:[1,0,1]"
def job_issue(A, jl):
    pass

def gen_k1(A):
    A.label("k1_kernel")
    prologue(A, 256, "k1_end")
    A("s_mov_b32 s59, s3")
    A("s_and_b32 s3, s3, 3")
    A("v_and_b32 v1, 3, v1")
    A("s_and_b32 s4, s2, 7")
    A("s_lshr_b32 s5, s2, 3")
    A("s_lshr_b32 s6, s4, 1"); A("s_lshl_b32 s6, s6, 3"); A("s_lshr_b32 s7, s5, 2"); A("s_add_u32 s6, s6, s7")
    A("s_and_b32 s4, s4, 1"); A("s_lshl_b32 s4, s4, 2"); A("s_and_b32 s5, s5, 3"); A("s_add_u32 s5, s5, s4")
    srd(A, 44, P_WS, WS_KVZ, SZ_KVZ)
    srd(A, 48, P_DBG, 0, 256)
    A("s_cmp_ge_u32 s59, 4"); A("s_cbranch_scc1 k1_loader")
    ts(A, 1, 0)
    A("s_cmp_eq_u32 s3, 0"); A("s_cbranch_scc1 k1_w0")
    A("s_cmp_eq_u32 s3, 1"); A("s_cbranch_scc1 k1_w1")
    A("s_cmp_eq_u32 s3, 2"); A("s_cbranch_scc1 k1_w2")
    for w in (3, 0, 1, 2):
        A.label(f"k1_w{w}")
        if w == 0 and "dbgts" in EXP: dbg_stamp(A, 0, "k1a")
        k1_wave(A, w)
        if w == 0 and "dbgts" in EXP: A("s_waitcnt vmcnt(0)"); dbg_stamp(A, 1, "k1b")
        A("s_branch k1_fin")
    A.label("k1_loader")
    k1_loader(A)
    A("s_branch k1_end")
    A.label("k1_fin")
    ts(A, 1, 7, True)
    A.label("k1_end")
    A("s_endpgm")

def dbg_stamp(A, idx, lab):
    A("s_cmp_lg_u32 s2, 0"); A(f"s_cbranch_scc1 dbg_{lab}")
    A("s_memrealtime s[90:91]")
    srd(A, 92, P_WS, 0x79000, 64)
    A("s_waitcnt lgkmcnt(0)")
    A("v_mov_b32 v254, s90"); A(f"v_mov_b32 v253, {4*idx}")
    A("buffer_store_dword v254, v253, s[92:95], 0 offen sc1")
    A.label(f"dbg_{lab}")

def lds_signal(A, addr):
    A(f"v_mov_b32 v18, {addr}"); A("v_mov_b32 v123, 1")
    A("ds_write_b32 v18, v123")

def lds_wait4(A, addr, lab):
    A(f"v_mov_b32 v18, {addr}")
    A.label(lab)
    A("ds_read_b128 v[124:127], v18")
    A("s_waitcnt lgkmcnt(0)")
    A("v_and_b32 v124, v124, v125"); A("v_and_b32 v126, v126, v127"); A("v_and_b32 v124, v124, v126")
    A("s_nop 0")
    A("v_readfirstlane_b32 s14, v124")
    A("s_nop 3")
    A("s_cmp_eq_u32 s14, 0")
    A(f"s_cbranch_scc1 {lab}")

def lds_wait(A, addr, lab):
    A(f"v_mov_b32 v18, {addr}")
    A.label(lab)
    A("ds_read_b32 v123, v18")
    A("s_waitcnt lgkmcnt(0)")
    A("v_readfirstlane_b32 s14, v123")
    A("s_nop 3")
    A("s_cmp_eq_u32 s14, 0")
    A(f"s_cbranch_scc1 {lab}")

def k1_loader(A):
    ts(A, 0, 0)
    q = VMQ()
    srd(A, 36, P_X, 0, 2048 * 1024)
    srd(A, 40, P_WQKV, 0, 512 * 3072)
    A("s_cmp_lg_u32 s6, 0"); A("s_cbranch_scc1 k1_nozero")
    A("v_lshl_add_u32 v8, v1, 6, v0"); A("v_lshlrev_b32 v8, 4, v8")
    for i in range(4): A(f"v_mov_b32 v{12+i}, 0")
    A("s_mul_i32 s12, s5, 4352")
    A("buffer_store_dwordx4 v[12:15], v8, s[44:47], s12 offen sc1")
    A("v_add_u32 v8, 4096, v8"); A("v_cmp_gt_u32 vcc, 4352, v8")
    A("s_and_saveexec_b64 s[14:15], vcc"); A("s_cbranch_execz k1_z2")
    A("buffer_store_dwordx4 v[12:15], v8, s[44:47], s12 offen sc1")
    A.label("k1_z2"); A("s_mov_b64 exec, s[14:15]")
    A.label("k1_nozero")
    if ZERO_CNT:
        A("s_cmp_lg_u32 s2, 2"); A("s_cbranch_scc1 k1_nocz"); A("s_cmp_lg_u32 s3, 0"); A("s_cbranch_scc1 k1_nocz")
        srd(A, 52, P_WS, ZERO_CNT[0], ZERO_CNT[1])
        A("v_lshlrev_b32 v8, 7, v0"); A("v_mov_b32 v12, 0")
        A("buffer_store_dword v12, v8, s[52:55], 0 offen sc1")
        A.label("k1_nocz")
    A("v_lshrrev_b32 v4, 3, v0"); A("v_and_b32 v5, 7, v0"); A("v_lshrrev_b32 v6, 4, v0"); A("v_xor_b32 v5, v5, v6")
    A("v_lshlrev_b32 v5, 4, v5"); A("v_lshl_add_u32 v2, v4, 10, v5"); A("v_xor_b32 v3, 64, v2")
    A("s_lshl_b32 s7, s6, 16"); A("s_lshl_b32 s12, s3, 14"); A("s_add_u32 s7, s7, s12")
    A(f"s_mul_i32 s8, s3, {16*3072}"); A("s_lshl_b32 s12, s5, 7"); A("s_add_u32 s8, s8, s12")
    A("s_lshl_b32 s9, s3, 11"); A(f"s_mul_i32 s10, s3, {6*1024}"); A("s_add_u32 s10, s10, 8192")
    ROT = "rot" in EXP
    if ROT: A("s_and_b32 s58, s6, 7")
    def kst(stage, dst, mul):
        if ROT:
            A(f"s_add_u32 s{dst}, s58, {stage}"); A(f"s_and_b32 s{dst}, s{dst}, 7"); A(f"s_mul_i32 s{dst}, s{dst}, {mul}")
        else:
            A(f"s_mov_b32 s{dst}, {stage*mul}")
    def xdma(stage):
        slot = (stage % 4) * 32768
        kst(stage, 57, 128); A("s_add_u32 s57, s57, s7")
        for i in range(2):
            A(f"s_add_u32 m0, s9, {slot + i*1024}"); A(f"s_add_u32 s13, s57, {i*8192}")
            A(f"buffer_load_dwordx4 v{2+i}, s[36:39], s13 offen lds"); q.add(("st", stage))
    xdma(0)
    A("s_movk_i32 s12, 2731"); A("s_movk_i32 s13, 3072")
    for b in range(3):
        A(f"v_add_u32 v8, {64*b}, v0"); A("v_mul_lo_u32 v9, v8, s12"); A("v_lshrrev_b32 v9, 16, v9")
        A("v_mul_u32_u24 v10, 24, v9"); A("v_sub_u32 v10, v8, v10"); A(f"v_mul_lo_u32 v{4+b}, v9, s13")
        A("v_lshrrev_b32 v11, 3, v10"); A(f"v_lshl_add_u32 v{4+b}, v11, 10, v{4+b}")
        A("v_bfe_u32 v11, v10, 2, 1"); A("v_bfe_u32 v12, v9, 1, 1"); A("v_xor_b32 v11, v11, v12")
        A(f"v_lshl_add_u32 v{4+b}, v11, 6, v{4+b}"); A("v_and_b32 v11, 3, v10"); A(f"v_lshl_add_u32 v{4+b}, v11, 4, v{4+b}")
    def wdma(stage):
        slot = (stage % 4) * 32768
        kst(stage, 56, 64 * 3072); A("s_add_u32 s56, s56, s8")
        for a in range(2):
            for b in range(3):
                A(f"s_add_u32 m0, s10, {slot + (a*3+b)*1024}")
                if b == 0: A(f"s_add_u32 s12, s56, {a*8*3072}")
                else: A("s_nop 0")
                A(f"buffer_load_dwordx4 v{4+b}, s[40:43], s12 offen lds"); q.add(("st", stage))
    wdma(0)
    xdma(1); wdma(1)
    job = "nojob" not in EXP
    A("s_barrier")
    ts(A, 0, 1)
    A(f"s_waitcnt vmcnt({q.need(('st', 0))})")
    A("s_barrier")
    A("s_cmp_lg_u32 s6, 0"); A("s_cbranch_scc1 k1_noflag"); A("s_cmp_lg_u32 s3, 0"); A("s_cbranch_scc1 k1_noflag")
    A("v_mov_b32 v20, 1"); A("s_lshl_b32 s12, s5, 2"); A("v_mov_b32 v21, s12")
    A("s_mov_b64 exec, 1")
    A("buffer_store_dword v20, v21, s[48:51], 0 offen sc1")
    A("s_mov_b64 exec, -1")
    A.label("k1_noflag")
    for st in range(2, 4): xdma(st); wdma(st)
    if JOBI == -1 and job: job_issue(A, q)
    FL = 131072 + 24576 + 4096
    A("s_lshl_b32 s12, s3, 2"); A(f"s_add_u32 s12, s12, {FL + 64}"); A("v_mov_b32 v22, s12"); A("v_mov_b32 v23, 1")
    for st in range(7):
        A(f"s_waitcnt vmcnt({q.need(('st', st + 1))})")
        if st < 4: A("s_barrier")
        else: A(f"ds_write_b32 v22, v23 offset:{(st - 4) * 16}")
        if st + 4 < 8: xdma(st + 4); wdma(st + 4)
        if st == JOBI and job:
            ts(A, 0, 2)
            job_issue(A, q)
    if job:
        A("s_waitcnt vmcnt(0)")
        ts(A, 0, 3)
        job_finish(A)
    ts(A, 0, 7, True)

def k1_wave(A, w):
    wm, wn = w >> 1, w & 1
    q = VMQ()
    A("v_and_b32 v20, 31, v0"); A("v_lshrrev_b32 v21, 5, v0"); A("v_bfe_u32 v22, v0, 1, 3")
    A("v_xor_b32 v22, v22, v21"); A("v_lshlrev_b32 v22, 4, v22"); A("v_lshl_add_u32 v22, v20, 7, v22")
    A(f"v_add_u32 v8, {wm*4096}, v22")
    for t in range(1, 4): A(f"v_xor_b32 v{8+t}, {32*t}, v8")
    for t in range(4): A(f"v_add_u32 v{12+t}, 0x10000, v{8+t}")
    A("v_bfe_u32 v22, v0, 2, 2"); A("v_lshl_add_u32 v23, v21, 3, v22"); A("v_mul_u32_u24 v23, 384, v23")
    A("v_bfe_u32 v22, v0, 3, 1")
    if wn: A("v_xor_b32 v22, 1, v22")
    A("v_lshl_add_u32 v23, v22, 6, v23"); A("v_bfe_u32 v22, v0, 4, 1"); A("v_lshl_add_u32 v23, v22, 5, v23")
    A("v_and_b32 v22, 3, v0"); A("v_lshl_add_u32 v16, v22, 3, v23"); A("v_add_u32 v17, 0x10000, v16")
    XF = [24, 28]; WF = [32, 44]; ACC = 64
    RS, RQ, CS = 112, 114, 116
    RS2, RQ2, CS2 = 232, 234, 236
    for r in list(range(RS, CS + 3)) + list(range(RS2, CS2 + 3)): A(f"v_mov_b32 v{r}, 0")
    def reads(k):
        st, t = divmod(k, 4); sl = st % 4; hi = sl >= 2; off = (sl % 2) * 32768; b = k % 2
        L = [f"ds_read_b128 v[{XF[b]}:{XF[b]+3}], v{(12 if hi else 8)+t} offset:{off}"]
        for p in range(3):
            d = WF[b] + 4 * p; o = off + 8192 + t * 6144 + p * 128
            L.append(f"ds_read_b64_tr_b16 v[{d}:{d+1}], v{17 if hi else 16} offset:{o}")
            L.append(f"ds_read_b64_tr_b16 v[{d+2}:{d+3}], v{17 if hi else 16} offset:{o + 1536}")
        return L
    FL = 131072 + 24576 + 4096
    A(f"v_mov_b32 v18, {FL + w*16}"); A("v_mov_b32 v19, 0")
    A("ds_write_b64 v18, v[18:19]") if False else None
    A("v_mov_b32 v22, 0"); A("v_mov_b32 v23, 0")
    A("v_mov_b32 v24, 0"); A("v_mov_b32 v25, 0"); A("v_mov_b32 v26, 0"); A("v_mov_b32 v27, 0")
    A("ds_write_b128 v18, v[24:27]")
    A("ds_write_b128 v18, v[24:27] offset:64")
    srd(A, 36, P_X, 0, 2048 * 1024); srd(A, 40, P_WQKV, 0, 512 * 3072)
    A("s_lshr_b32 s12, s2, 3"); A("s_lshl_b32 s12, s12, 2"); A(f"s_add_u32 s12, s12, {w}")
    A("s_and_b32 s13, s2, 7")
    A("s_lshr_b32 s15, s13, 1"); A("s_lshl_b32 s15, s15, 19"); A("s_lshl_b32 s14, s12, 12"); A("s_add_u32 s15, s15, s14")
    A("v_lshlrev_b32 v245, 7, v20")
    A("v_min_u32 v22, 47, v0"); A("v_mul_u32_u24 v23, 43, v22"); A("v_lshrrev_b32 v23, 9, v23")
    A("v_mul_u32_u24 v24, 12, v23"); A("v_sub_u32 v24, v22, v24")
    A("v_mul_u32_u24 v23, 3072, v23"); A("v_lshrrev_b32 v25, 2, v24"); A("v_lshl_add_u32 v23, v25, 10, v23")
    A("v_and_b32 v24, 3, v24"); A("v_lshl_add_u32 v23, v24, 7, v23")
    A("s_mul_i32 s14, s12, 12288"); A("s_and_b32 s13, s13, 1"); A("s_lshl_b32 s13, s13, 9"); A("s_add_u32 s14, s14, s13")
    A("s_waitcnt lgkmcnt(0)")
    A("s_barrier")
    if "nopf" not in EXP:
        A("buffer_load_dword v241, v23, s[40:43], s14 offen"); q.add("pf")
    if w == 1 and "tlbpf" in EXP:
        srd(A, 64, P_WS, 0, 24 * MB)
        A("v_lshlrev_b32 v22, 19, v0"); A("v_min_u32 v22, 0x17f0000, v22")
        A("buffer_load_dword v243, v22, s[64:67], 0 offen")
        srd(A, 64, P_OUT, 0, 2 * MB)
        A("v_lshlrev_b32 v22, 15, v0")
        A("buffer_load_dword v244, v22, s[64:67], 0 offen")
    if w == 0 and "codepf" in EXP:
        A("s_getpc_b64 s[64:65]")
        A.label("k1_pc")
        A("s_add_u32 s64, s64, k1_kernel-k1_pc")
        A("s_addc_u32 s65, s65, -1")
        A("s_lshr_b32 s12, s2, 3"); A("s_lshl_b32 s12, s12, 13")
        A("v_lshlrev_b32 v22, 7, v0"); A("v_add_u32 v22, s12, v22")
        A("s_mov_b32 s13, code_end-k1_kernel-4")
        A("s_cmp_gt_u32 s12, s13"); A("s_cbranch_scc1 k1_nocpf")
        A("v_min_u32 v22, s13, v22")
        A("global_load_dword v242, v22, s[64:65]")
        A.label("k1_nocpf")
    ts(A, 1, 1)
    A("s_waitcnt lgkmcnt(0)")
    A("s_barrier")
    if "noxpf" not in EXP: A("buffer_load_dword v240, v245, s[36:39], s15 offen"); q.add("pf")
    ts(A, 1, 2)
    for l in reads(0): A(l)
    A("s_waitcnt lgkmcnt(0)")
    for k in range(32):
        st, t = divmod(k, 4); b = k % 2
        if t == 3 and k + 1 < 32:
            if st < 4: A("s_barrier")
            else: lds_wait4(A, FL + 64 + (st - 4) * 16, f"k1_lf{w}_{st}")
        if k == 28: lds_signal(A, FL + w * 16 + 8)
        if k == 24:
            A("s_lshl_b32 s14, s5, 2"); A("v_mov_b32 v120, s14")
            A("buffer_load_dword v121, v120, s[48:51], 0 offen sc1"); q.add("flag")
        rd = reads(k + 1) if k + 1 < 32 else []
        x = XF[b]; wf = WF[b]
        c0 = "0" if k == 0 else None
        def C(r): return "0" if k == 0 else f"v[{r}:{r+15}]"
        A(f"v_mfma_f32_32x32x16_bf16 v[{ACC}:{ACC+15}], v[{wf}:{wf+3}], v[{x}:{x+3}], {C(ACC)}")
        for l in rd[:4]: A(l)
        A(f"v_mfma_f32_32x32x16_bf16 v[{ACC+16}:{ACC+31}], v[{x}:{x+3}], v[{wf+4}:{wf+7}], {C(ACC+16)}")
        for l in rd[4:]: A(l)
        A(f"v_mfma_f32_32x32x16_bf16 v[{ACC+32}:{ACC+47}], v[{x}:{x+3}], v[{wf+8}:{wf+11}], {C(ACC+32)}")
        if (k & 1) == wn and "nodots" not in EXP:
            for j in range(4):
                A(f"v_dot2c_f32_bf16 v{[RS, RS+1, RS2, RS2+1][j]}, {ONES}, v{x+j}")
                A(f"v_dot2c_f32_bf16 v{[RQ, RQ+1, RQ2, RQ2+1][j]}, v{x+j}, v{x+j}")
        if (k & 1) == wm and "nodots" not in EXP:
            for j in range(4):
                for p in range(3): A(f"v_dot2c_f32_bf16 v{(CS if j & 1 else CS2)+p}, {ONES}, v{wf+4*p+j}")
        A("s_waitcnt lgkmcnt(0)")
    ts(A, 1, 3)
    T = 122
    EX = 65536
    A("s_nop 2")
    A(f"v_add_f32 v{RS}, v{RS}, v{RS+1}"); A(f"v_add_f32 v{RS2}, v{RS2}, v{RS2+1}")
    A(f"v_add_f32 v{RQ}, v{RQ}, v{RQ+1}"); A(f"v_add_f32 v{RQ2}, v{RQ2}, v{RQ2+1}")
    for p in range(3): A(f"v_add_f32 v{CS+p}, v{CS+p}, v{CS2+p}")
    A(f"v_add_f32 v{RS}, v{RS}, v{RS2}"); A(f"v_add_f32 v{RQ}, v{RQ}, v{RQ2}")
    hs = [RS, RQ, CS, CS + 1, CS + 2]
    for i, r in enumerate(hs): A(f"v_mov_b32 v{24+i}, v{r}")
    A("s_nop 1")
    for i, r in enumerate(hs): A(f"v_permlane32_swap_b32 v{r}, v{24+i}")
    A("s_nop 1")
    for i, r in enumerate(hs): A(f"v_add_f32 v{r}, v{r}, v{24+i}")
    for o in range(4):
        if o != w: lds_wait(A, FL + o * 16 + 8, f"k1_d6{w}_{o}")
    A("v_lshlrev_b32 v22, 2, v20"); A(f"v_add_u32 v22, {EX}, v22")
    es = (wm * 2 + wn) * 256; eo = (wm * 2 + (1 - wn)) * 256
    ec = 1024 + (wn * 2 + wm) * 384; eco = 1024 + (wn * 2 + (1 - wm)) * 384
    A(f"ds_write_b32 v22, v{RS} offset:{es}"); A(f"ds_write_b32 v22, v{RQ} offset:{es+128}")
    for p in range(3): A(f"ds_write_b32 v22, v{CS+p} offset:{ec + p*128}")
    C1, CL, CN, CE = 176, 178, 180, 182
    for r, val in ((C1, 1.000001), (CL, LOG2E), (CN, -1.000001 * LOG2E), (CE, 1e-6)):
        A(f"v_mov_b32 v{r}, {f32(val)}"); A(f"v_mov_b32 v{r+1}, {f32(val)}")
    ON = 224
    for j in range(4): A(f"v_mov_b32 v{ON+j}, {ONES}")
    A("v_lshlrev_b32 v23, 4, v21"); A(f"v_add_u32 v23, {EX}, v23")
    lds_signal(A, FL + w * 16)
    lds_wait(A, FL + (wm * 2 + 1 - wn) * 16, f"k1_sp{w}a")
    lds_wait(A, FL + ((1 - wm) * 2 + wn) * 16, f"k1_sp{w}b")
    ts(A, 1, 6)
    A(f"ds_read_b32 v24, v22 offset:{eo}"); A(f"ds_read_b32 v25, v22 offset:{eo+128}")
    for p in range(3): A(f"ds_read_b32 v{26+p}, v22 offset:{eco + p*128}")
    A("s_waitcnt lgkmcnt(0)")
    A(f"v_add_f32 v{RS}, v{RS}, v24"); A(f"v_add_f32 v{RQ}, v{RQ}, v25")
    for p in range(3): A(f"v_add_f32 v{CS+p}, v{CS+p}, v{26+p}")
    PR = 4096 + w * 512
    A(f"ds_write_b32 v22, v{CS} offset:{PR+256}")
    A(f"v_mul_f32 v{RS}, {f32(1/512)}, v{RS}"); A(f"v_mul_f32 v{RQ}, {f32(1/512)}, v{RQ}")
    A(f"v_fma_f32 v{RQ}, -v{RS}, v{RS}, v{RQ}"); A(f"v_max_f32 v{RQ}, 0, v{RQ}"); A(f"v_add_f32 v{RQ}, {f32(1e-5)}, v{RQ}")
    A(f"v_rsq_f32 v{RQ}, v{RQ}"); A("s_nop 0")
    A(f"v_mul_f32 v{RS}, v{RS}, v{RQ}"); A(f"v_sub_f32 v{RS}, 0, v{RS}")
    A(f"ds_write_b32 v22, v{RQ} offset:{PR}"); A(f"ds_write_b32 v22, v{RS} offset:{PR+128}")
    SA, SB, SC = 128, 144, 160
    A(f"v_mov_b32 v184, v{RQ}"); A(f"v_mov_b32 v186, v{RS}"); A(f"v_mov_b32 v188, v{CS+1}"); A(f"v_mov_b32 v190, v{CS+2}")
    A("s_waitcnt lgkmcnt(0)")
    for qd in range(4):
        A(f"ds_read_b128 v[{SA+4*qd}:{SA+4*qd+3}], v23 offset:{PR + qd*32}")
        A(f"ds_read_b128 v[{SB+4*qd}:{SB+4*qd+3}], v23 offset:{PR + 128 + qd*32}")
    for qd in range(4): A(f"ds_read_b128 v[{SC+4*qd}:{SC+4*qd+3}], v23 offset:{PR + 256 + qd*32}")
    A("s_waitcnt lgkmcnt(4)")
    TP = 40
    def phi_vec(base, mode):
        prs = list(range(0, 16, 2))
        for i in prs:
            if mode == "q": A(f"v_pk_fma_f32 v[{TP+i}:{TP+i+1}], v[{SC+i}:{SC+i+1}], v[186:187], v[{C1}:{C1+1}] op_sel_hi:[1,0,1]")
            else:           A(f"v_pk_fma_f32 v[{TP+i}:{TP+i+1}], v[{SB+i}:{SB+i+1}], v[188:189], v[{C1}:{C1+1}] op_sel_hi:[1,0,1]")
        for i in prs:
            r = base + i
            if mode == "q": A(f"v_pk_fma_f32 v[{r}:{r+1}], v[{r}:{r+1}], v[184:185], v[{TP+i}:{TP+i+1}] op_sel_hi:[1,0,1]")
            else:           A(f"v_pk_fma_f32 v[{r}:{r+1}], v[{r}:{r+1}], v[{SA+i}:{SA+i+1}], v[{TP+i}:{TP+i+1}]")
        for i in prs:
            r = base + i
            A(f"v_pk_fma_f32 v[{TP+i}:{TP+i+1}], v[{r}:{r+1}], v[{CL}:{CL+1}], v[{CN}:{CN+1}]")
        for i in range(16): A(f"v_exp_f32_e64 v{TP+i}, v{TP+i} clamp")
        for i in prs: A(f"v_pk_add_f32 v[{TP+i}:{TP+i+1}], v[{TP+i}:{TP+i+1}], v[{CE}:{CE+1}]")
        for i in range(16): A(f"v_max_f32 v{base+i}, v{base+i}, v{TP+i}")
    PK = 200
    for r in range(0, 16, 2): A(f"v_pk_mul_f32 v[{24+r}:{24+r+1}], v[{SB+r}:{SB+r+1}], v[190:191] op_sel_hi:[1,0]")
    for r in range(0, 16, 2):
        rg = ACC + 32 + r
        A(f"v_pk_fma_f32 v[{rg}:{rg+1}], v[{rg}:{rg+1}], v[{SA+r}:{SA+r+1}], v[{24+r}:{24+r+1}]")
    phi_vec(ACC + 16, "k")
    for r in range(8): A(f"v_cvt_pk_bf16_f32 v{PK+16+r}, v{ACC+32+2*r}, v{ACC+32+2*r+1}")
    for r in range(8): A(f"v_cvt_pk_bf16_f32 v{PK+8+r}, v{ACC+16+2*r}, v{ACC+16+2*r+1}")
    A("s_nop 1")
    kp, vp = PK + 8, PK + 16; D = ACC + 16; Z = ACC + 32
    A(f"v_mfma_f32_32x32x16_bf16 v[{D}:{D+15}], v[{vp}:{vp+3}], v[{kp}:{kp+3}], 0")
    A(f"v_mfma_f32_32x32x16_bf16 v[{Z}:{Z+15}], v[{ON}:{ON+3}], v[{kp}:{kp+3}], 0")
    A(f"v_mfma_f32_32x32x16_bf16 v[{D}:{D+15}], v[{vp+4}:{vp+7}], v[{kp+4}:{kp+7}], v[{D}:{D+15}]")
    A(f"v_mfma_f32_32x32x16_bf16 v[{Z}:{Z+15}], v[{ON}:{ON+3}], v[{kp+4}:{kp+7}], v[{Z}:{Z+15}]")
    A("v_and_b32 v22, 16, v0"); A("v_cmp_ne_u32 vcc, 0, v22")
    A("v_lshlrev_b32 v19, 2, v0"); A(f"v_add_u32 v19, {EX + 8192}, v19")
    A("v_bfe_u32 v9, v0, 4, 1"); A("s_movk_i32 s13, 1088"); A("v_mul_lo_u32 v9, v9, s13")
    A("v_and_b32 v10, 15, v0"); A("v_lshl_add_u32 v9, v10, 2, v9"); A("v_lshl_add_u32 v10, v21, 8, v9")
    A("s_lshl_b32 s13, s5, 2"); A(f"s_add_u32 s13, s13, {2*wn}"); A("s_mulk_i32 s13, 1088")
    A("s_nop 7")
    for r in range(8): A(f"v_cndmask_b32 v{24+r}, v{D+r}, v{D+8+r}, vcc")
    keep = list(range(4 * wm, 4 * wm + 4)); send = [r for r in range(8) if r not in keep]
    mine = (wn * 2 + wm) * 2304; other = (wn * 2 + 1 - wm) * 2304
    for r in send: A(f"ds_write_b32 v19, v{24+r} offset:{mine + r*256}")
    if wm == 1: A(f"ds_write_b32 v19, v{Z} offset:{mine + 8*256}")
    lds_signal(A, FL + w * 16 + 4)
    lds_wait(A, FL + ((1 - wm) * 2 + wn) * 16 + 4, f"k1_sp{w}c")
    for i, r in enumerate(keep): A(f"ds_read_b32 v{32+i}, v19 offset:{other + r*256}")
    if wm == 0: A(f"ds_read_b32 v36, v19 offset:{other + 8*256}")
    A(f"s_waitcnt vmcnt({q.need('flag')})")
    A("s_waitcnt lgkmcnt(0)")
    for i, r in enumerate(keep): A(f"v_add_f32 v{24+r}, v{24+r}, v{32+i}")
    if wm == 0: A(f"v_add_f32 v36, v36, v{Z}")
    A.label(f"k1_poll{w}")
    A("v_readfirstlane_b32 s14, v121"); A("s_nop 3"); A("s_cmp_lg_u32 s14, 0"); A(f"s_cbranch_scc1 k1_go{w}")
    A("s_sleep 2"); A("buffer_load_dword v121, v120, s[48:51], 0 offen sc1"); A("s_waitcnt vmcnt(0)"); A(f"s_branch k1_poll{w}")
    A.label(f"k1_go{w}")
    for i, r in enumerate(keep):
        A(f"buffer_atomic_add_f32 v{24+r}, v10, s[44:47], s13 offen offset:{wm*512 + (r&3)*64}")
    if wm == 0:
        A("s_mov_b64 exec, 0xffffffff")
        A("buffer_atomic_add_f32 v36, v9, s[44:47], s13 offen offset:1024")
        A("s_mov_b64 exec, -1")
    ts(A, 1, 4)
    phi_vec(ACC, "q")
    for r in range(8): A(f"v_cvt_pk_bf16_f32 v{PK+r}, v{ACC+2*r}, v{ACC+2*r+1}")
    srd(A, 52, P_WS, WS_PQ, SZ_PQ)
    A("s_lshl_b32 s12, s6, 1"); A(f"s_add_u32 s12, s12, {wm}"); A("s_lshl_b32 s12, s12, 5")
    A("s_lshl_b32 s13, s5, 2"); A("s_add_u32 s12, s12, s13"); A(f"s_add_u32 s12, s12, {2*wn}"); A("s_lshl_b32 s12, s12, 10")
    A("v_lshlrev_b32 v18, 4, v0")
    A(f"buffer_store_dwordx4 v[{PK}:{PK+3}], v18, s[52:55], s12 offen{STP}")
    A(f"buffer_store_dwordx4 v[{PK+4}:{PK+7}], v18, s[52:55], s12 offen offset:1024{STP}")
    ts(A, 1, 5)

def job_issue(A, q):
    A("s_lshl_b32 s70, s3, 8"); A("s_add_u32 s70, s70, s2")
    A("s_lshl_b32 s71, s3, 13"); A("s_add_u32 s71, s71, 131072")
    A("v_lshrrev_b32 v28, 3, v0"); A("v_and_b32 v29, 7, v0"); A("v_lshlrev_b32 v29, 4, v29")
    A("v_lshl_add_u32 v30, v28, 10, v29")
    A("s_mov_b32 s72, 3")
    srd(A, 76, P_WO, 0, 0); srd(A, 80, P_WO, 0, 0)
    A("s_mov_b32 s88, 0"); A("s_mov_b32 s90, 0"); A("s_mov_b32 s91, 0")
    A("s_mov_b32 s62, 0"); A(f"s_mov_b32 s63, {131072 + 24576}")
    A("s_cmp_ge_u32 s70, 736"); A("s_cbranch_scc1 k1_js_done")
    A("s_movk_i32 s62, 1024"); A("s_mov_b32 s63, s71")
    A("s_cmp_lt_u32 s70, 448"); A("s_cbranch_scc1 k1_js_gu")
    A("s_mov_b32 s72, 1")
    A("s_cmp_lt_u32 s70, 672"); A("s_cbranch_scc1 k1_js_wd")
    srd(A, 76, P_WO, 0, 512 * 1024); srd(A, 80, P_WO, 0, 512 * 1024); srd(A, 84, P_WS, WS_WO, SZ_WO)
    A("s_mov_b32 s73, 32"); A("s_sub_u32 s70, s70, 672")
    A("s_branch k1_js_dd")
    A.label("k1_js_wd")
    srd(A, 76, P_WD, 0, 1792 * 1024); srd(A, 80, P_WD, 0, 1792 * 1024); srd(A, 84, P_WS, WS_WD, SZ_WD)
    A("s_mov_b32 s73, 112"); A("s_sub_u32 s70, s70, 448")
    A.label("k1_js_dd")
    A("s_lshr_b32 s74, s70, 3"); A("s_and_b32 s75, s70, 7")
    A("s_lshl_b32 s88, s74, 16"); A("s_lshl_b32 s89, s75, 7"); A("s_add_u32 s88, s88, s89")
    A("s_movk_i32 s90, 8192"); A("s_add_u32 s91, s88, 32768")
    A("s_branch k1_js_done")
    A.label("k1_js_gu")
    A("s_mov_b32 s72, 0")
    srd(A, 76, P_WG, 0, 512 * 3584); srd(A, 80, P_WU, 0, 512 * 3584); srd(A, 84, P_WS, WS_WGU, SZ_WGU)
    A("s_mul_i32 s74, s70, 2341"); A("s_lshr_b32 s74, s74, 16"); A("s_mul_i32 s75, s74, 28"); A("s_sub_u32 s75, s70, s75")
    A("s_movk_i32 s89, 3584"); A("v_mul_lo_u32 v30, v28, s89"); A("v_add_u32 v30, v30, v29")
    A(f"s_mul_i32 s88, s74, {32*3584}"); A("s_lshl_b32 s89, s75, 7"); A("s_add_u32 s88, s88, s89")
    A(f"s_movk_i32 s90, {8*3584}"); A("s_mov_b32 s91, s88")
    A.label("k1_js_done")
    for i in range(8):
        A("s_mov_b32 m0, s63")
        rg = 88 if i < 4 else 91
        A("s_add_u32 s63, s63, s62")
        A(f"buffer_load_dwordx4 v30, s[{76 if i < 4 else 80}:{79 if i < 4 else 83}], s{rg} offen lds"); q.add("job")
        A(f"s_add_u32 s{rg}, s{rg}, s90")

def job_finish(A):
    A("s_cmp_eq_u32 s72, 3"); A("s_cbranch_scc1 k1_jf_end")
    A("v_lshlrev_b32 v34, 4, v0")
    A("v_lshrrev_b32 v35, 5, v0"); A("v_bfe_u32 v36, v0, 2, 2"); A("v_lshl_add_u32 v35, v35, 2, v36"); A("v_lshlrev_b32 v35, 7, v35")
    A("v_and_b32 v36, 3, v0"); A("v_lshl_add_u32 v35, v36, 3, v35"); A("v_add_u32 v35, s71, v35"); A("v_bfe_u32 v36, v0, 4, 1")
    A("s_cmp_eq_u32 s72, 0"); A("s_cbranch_scc1 k1_jf_gu")
    A("v_lshl_add_u32 v35, v36, 5, v35")
    A("s_lshl_b32 s60, s75, 1"); A("s_mul_i32 s60, s60, s73"); A("s_lshl_b32 s61, s74, 2"); A("s_add_u32 s60, s60, s61")
    A("s_lshl_b32 s60, s60, 10"); A("s_lshl_b32 s61, s73, 10")
    for c in range(2):
        for i in range(4):
            d = 40 + (c * 4 + i) * 4
            A(f"ds_read_b64_tr_b16 v[{d}:{d+1}], v35 offset:{i*2048 + c*64}")
            A(f"ds_read_b64_tr_b16 v[{d+2}:{d+3}], v35 offset:{i*2048 + c*64 + 1024}")
    A("s_waitcnt lgkmcnt(0)")
    for c in range(2):
        for i in range(4):
            d = 40 + (c * 4 + i) * 4
            A(f"buffer_store_dwordx4 v[{d}:{d+3}], v34, s[84:87], s60 offen offset:{i*1024}{STP}")
        A("s_add_u32 s60, s60, s61")
    A("s_branch k1_jf_end")
    A.label("k1_jf_gu")
    srd(A, 76, P_WS, WS_CSP, SZ_CSP)
    A("v_lshl_add_u32 v35, v36, 12, v35")
    A("s_lshl_b32 s60, s75, 7"); A("s_lshl_b32 s61, s74, 1"); A("s_add_u32 s60, s60, s61"); A("s_lshl_b32 s60, s60, 10")
    for c in range(8): A(f"v_mov_b32 v{72+c}, 0")
    for c in range(4):
        for i in range(2):
            d = 40 + (c * 2 + i) * 4
            A(f"ds_read_b64_tr_b16 v[{d}:{d+1}], v35 offset:{i*2048 + c*32}")
            A(f"ds_read_b64_tr_b16 v[{d+2}:{d+3}], v35 offset:{i*2048 + c*32 + 1024}")
    A("s_waitcnt lgkmcnt(0)")
    for c in range(4):
        A(f"s_add_u32 s61, s60, {c*32*1024}")
        for i in range(2):
            d = 40 + (c * 2 + i) * 4
            A(f"buffer_store_dwordx4 v[{d}:{d+3}], v34, s[84:87], s61 offen offset:{i*1024}{STP}")
    for j in range(4):
        for i in range(2):
            for c in range(4): A(f"v_dot2c_f32_bf16 v{72+4*i+c}, {ONES}, v{40+(c*2+i)*4+j}")
    A("s_nop 2")
    for c in range(4): A(f"v_add_f32 v{72+c}, v{72+c}, v{76+c}")
    A("s_mulk_i32 s74, 3584"); A("s_lshl_b32 s61, s75, 7"); A("s_add_u32 s74, s74, s61"); A("s_lshl_b32 s74, s74, 2")
    A("v_and_b32 v32, 31, v0"); A("v_lshlrev_b32 v32, 2, v32")
    for c in range(4): halves_sum(A, 72 + c, 33)
    for c in range(4): A(f"buffer_store_dword v{72+c}, v32, s[76:79], s74 offen offset:{c*128}{STP}")
    A.label("k1_jf_end")

def ksplit_reduce(A, pre, ACC, OUT, TMP):
    A("v_lshlrev_b32 v7, 4, v0")
    for qd in range(1, 4):
        A(f"s_xor_b32 s8, s3, {qd}"); A("s_mulk_i32 s8, 12288"); A("v_add_u32 v6, s8, v7")
        for j in range(4):
            r = ACC + 16 * qd + 4 * j
            A(f"ds_write_b128 v6, {pre}[{r}:{r+3}] offset:{(qd-1)*4096 + j*1024}")
    if pre == "a":
        for r in range(16): A(f"v_accvgpr_read_b32 v{OUT+r}, a{ACC+r}")
    A("s_mul_i32 s8, s3, 12288"); A("v_add_u32 v6, s8, v7")
    A("s_waitcnt lgkmcnt(0)")
    A("s_barrier")
    for p in range(3):
        for j in range(4):
            d = TMP + 16 * p + 4 * j
            A(f"ds_read_b128 v[{d}:{d+3}], v6 offset:{p*4096 + j*1024}")
    own = OUT if pre == "a" else ACC
    A("s_waitcnt lgkmcnt(8)")
    for r in range(0, 16, 2): A(f"v_pk_add_f32 v[{OUT+r}:{OUT+r+1}], v[{own+r}:{own+r+1}], v[{TMP+r}:{TMP+r+1}]")
    A("s_waitcnt lgkmcnt(0)")
    for r in range(0, 16, 2): A(f"v_pk_add_f32 v[{TMP+16+r}:{TMP+16+r+1}], v[{TMP+16+r}:{TMP+16+r+1}], v[{TMP+32+r}:{TMP+32+r+1}]")
    for r in range(0, 16, 2): A(f"v_pk_add_f32 v[{OUT+r}:{OUT+r+1}], v[{OUT+r}:{OUT+r+1}], v[{TMP+16+r}:{TMP+16+r+1}]")

def prefetch(A, srdn, soff, dummy, lane128):
    A(f"buffer_load_dword v{dummy}, v{lane128}, s[{srdn}:{srdn+3}], s{soff} offen")

def gen_k2(A):
    A.label("k2_kernel")
    prologue(A, 256, "k2_end"); ts(A, 2, 0)
    A("s_and_b32 s4, s2, 7"); A("s_lshr_b32 s5, s2, 3"); A("s_mov_b32 s61, s4"); A("s_mov_b32 s62, s5")
    A("s_lshr_b32 s6, s5, 3"); A("s_lshl_b32 s4, s4, 2"); A("s_add_u32 s4, s4, s6"); A("s_and_b32 s5, s5, 7")
    srd(A, 36, P_WS, WS_KVZ, SZ_KVZ); srd(A, 40, P_WS, WS_PQ, SZ_PQ); srd(A, 44, P_WS, WS_WO, SZ_WO)
    srd(A, 48, P_X, 0, 2048 * 1024); srd(A, 52, P_WS, WS_H, SZ_H); srd(A, 56, P_WS, WS_STATS, SZ_STATS)
    srd(A, 64, P_WS, WS_WGU, SZ_WGU)
    q = VMQ()
    A("v_lshlrev_b32 v2, 4, v0"); A("v_and_b32 v3, 31, v0"); A("v_min_u32 v4, 16, v3"); A("v_lshlrev_b32 v4, 6, v4")
    A("v_lshrrev_b32 v5, 5, v0"); A("v_lshl_add_u32 v4, v5, 4, v4")
    A("s_lshl_b32 s8, s3, 3"); A("s_mul_i32 s9, s8, 1088")
    A("s_lshr_b32 s12, s3, 1"); A("s_and_b32 s16, s3, 1")
    A("s_lshl_b32 s13, s4, 1"); A("s_add_u32 s13, s13, s12")
    A("s_lshl_b32 s10, s13, 5"); A("s_add_u32 s10, s10, s8"); A("s_lshl_b32 s10, s10, 10")
    A("s_xor_b32 s14, s13, 1"); A("s_lshl_b32 s14, s14, 5"); A("s_add_u32 s14, s14, s8"); A("s_lshl_b32 s14, s14, 10")
    A("s_lshl_b32 s11, s5, 1"); A("s_add_u32 s11, s11, s16"); A("s_xor_b32 s15, s11, 1")
    A("s_lshl_b32 s11, s11, 5"); A("s_add_u32 s11, s11, s8"); A("s_lshl_b32 s11, s11, 10")
    A("s_lshl_b32 s15, s15, 5"); A("s_add_u32 s15, s15, s8"); A("s_lshl_b32 s15, s15, 10")
    KR = 64
    def loads(h):
        A(f"s_add_u32 s12, s9, {h*1088}")
        A(f"buffer_load_dwordx4 v[{KR+8*h}:{KR+8*h+3}], v4, s[36:39], s12 offen"); q.add(("kv", h))
        A(f"buffer_load_dwordx4 v[{KR+8*h+4}:{KR+8*h+7}], v4, s[36:39], s12 offen offset:32"); q.add(("kv", h))
        base = [10, 14, 11, 15]
        dst = [h * 4, (8 + h) * 4, 64 + h * 4, 64 + (8 + h) * 4]
        for i in range(4):
            sr = 40 if i < 2 else 44
            if h == 4: A(f"s_add_u32 s{base[i]}, s{base[i]}, 4096")
            A(f"buffer_load_dwordx4 a[{dst[i]}:{dst[i]+3}], v2, s[{sr}:{sr+3}], s{base[i]} offen offset:{(h%4)*1024}"); q.add(("fr", h))
    for h in range(3): loads(h)
    for r in range(64): A(f"v_accvgpr_write_b32 a{128+r}, 0")
    KA = 32; TT = [[128, 144], [160, 176]]; OF = [[8, 12], [16, 20]]; EPS = 24; XR = 200
    A(f"v_mov_b32 v{EPS}, {f32(1e-6)}")
    ts(A, 2, 1)
    def cv(h): return [f"v_cvt_pk_bf16_f32 v{KA+4*h+j}, v{KR+8*h+2*j}, v{KR+8*h+2*j+1}" for j in range(4)]
    def tm(h, aa):
        T = TT[h % 2][aa]
        return f"v_mfma_f32_32x32x16_bf16 v[{T}:{T+15}], v[{KA+4*h}:{KA+4*h+3}], a[{(aa*8+h)*4}:{(aa*8+h)*4+3}], 0"
    def mm(h, aa, b):
        ac = 128 + 16 * (2 * aa + b); o = OF[h % 2][aa]
        return f"v_mfma_f32_32x32x16_bf16 a[{ac}:{ac+15}], a[{64+(b*8+h)*4}:{64+(b*8+h)*4+3}], v[{o}:{o+3}], a[{ac}:{ac+15}]"
    def valu(h):
        L = []
        T0, T1 = TT[h % 2]; o0, o1 = OF[h % 2]
        L += [f"v_add_f32 v25, v{T0+8}, v{EPS}", f"v_add_f32 v26, v{T1+8}, v{EPS}", "v_rcp_f32 v25, v25", "v_rcp_f32 v26, v26", "s_nop 0"]
        for r in range(8): L += [f"v_mul_f32 v{T0+r}, v{T0+r}, v25", f"v_mul_f32 v{T1+r}, v{T1+r}, v26"]
        for j in range(4): L += [f"v_cvt_pk_bf16_f32 v{o0+j}, v{T0+2*j}, v{T0+2*j+1}", f"v_cvt_pk_bf16_f32 v{o1+j}, v{T1+2*j}, v{T1+2*j+1}"]
        return L
    A(f"s_waitcnt vmcnt({q.need(('fr', 0))})")
    for l in cv(0): A(l)
    ts(A, 2, 2)
    A("s_nop 1")
    A(tm(0, 0)); A(tm(0, 1))
    for h in range(9):
        if h + 3 < 8: loads(h + 3)
        if h == 5:
            A("s_lshl_b32 s17, s13, 15"); A("s_lshl_b32 s60, s5, 7"); A("s_add_u32 s17, s17, s60"); A("s_lshl_b32 s60, s16, 6"); A("s_add_u32 s17, s17, s60")
            A("v_lshlrev_b32 v6, 10, v3"); A("v_lshl_add_u32 v6, v5, 3, v6")
            for qd in range(4):
                A(f"buffer_load_dwordx2 v[{XR+2*qd}:{XR+2*qd+1}], v6, s[48:51], s17 offen offset:{qd*16}"); q.add("x")
            A("s_and_b32 s60, s61, 3"); A("s_mul_i32 s60, s60, 917504"); A("s_mul_i32 s63, s62, 28672"); A("s_add_u32 s60, s60, s63")
            A("s_mul_i32 s63, s3, 7168"); A("s_add_u32 s60, s60, s63")
            A("v_min_u32 v7, 55, v0"); A("v_lshlrev_b32 v7, 7, v7")
            A("buffer_load_dword v208, v7, s[64:67], s60 offen"); q.add("pf")
        if h == 6:
            srd(A, 68, P_WS, WS_CSP, SZ_CSP)
            A("s_lshl_b32 s60, s2, 2"); A("s_add_u32 s60, s60, s3"); A("s_lshl_b32 s63, s60, 8")
            A("v_lshlrev_b32 v7, 2, v0")
            A("s_cmp_ge_u32 s60, 56"); A("s_cbranch_scc1 k2_nocs1")
            A.lines.append(";OPT_BEGIN")
            for kc in range(16):
                A(f"s_add_u32 s60, s63, {kc*3584*4}")
                A(f"buffer_load_dword v{210+kc}, v7, s[68:71], s60 offen")
            A.lines.append(";OPT_END")
            A.label("k2_nocs1")
        ms = []
        if h + 1 < 8:
            A(f"s_waitcnt vmcnt({q.need(('fr', h + 1))})")
            for l in cv(h + 1): A(l)
            A("s_nop 1")
            ms += [tm(h + 1, 0), tm(h + 1, 1)]
        if h >= 1: ms += [mm(h - 1, 0, 0), mm(h - 1, 0, 1), mm(h - 1, 1, 0), mm(h - 1, 1, 1)]
        vl = valu(h) if h < 8 else []
        if h == 0:
            for m_ in ms: A(m_)
            A("s_nop 5")
            for l in vl: A(l)
            A("s_nop 1")
        else:
            per = (len(vl) + len(ms) - 1) // len(ms) if vl else 0
            for m_ in ms:
                A(m_)
                for _ in range(per):
                    if vl: A(vl.pop(0))
            for l in vl: A(l)
            A("s_nop 1")
    ts(A, 2, 3)
    A("s_nop 7"); A("s_nop 3")
    ksplit_reduce(A, "a", 128, 64, 80)
    ts(A, 2, 4)
    A(f"s_waitcnt vmcnt({q.need('x')})")
    for qd in range(4):
        for j in range(2):
            xr = XR + 2 * qd + j; t8 = 8 + 2 * ((2 * qd + j) % 4)
            A(f"v_lshlrev_b32 v{t8}, 16, v{xr}"); A(f"v_and_b32 v{t8+1}, 0xffff0000, v{xr}")
            A(f"v_pk_add_f32 v[{64+4*qd+2*j}:{64+4*qd+2*j+1}], v[{64+4*qd+2*j}:{64+4*qd+2*j+1}], v[{t8}:{t8+1}]")
    HP = 96
    for r in range(8): A(f"v_cvt_pk_bf16_f32 v{HP+r}, v{64+2*r}, v{64+2*r+1}")
    A("s_lshl_b32 s8, s13, 5"); A("s_lshl_b32 s9, s5, 2"); A("s_add_u32 s8, s8, s9"); A("s_lshl_b32 s9, s16, 1"); A("s_add_u32 s8, s8, s9"); A("s_lshl_b32 s8, s8, 10")
    A(f"buffer_store_dwordx4 v[{HP}:{HP+3}], v2, s[52:55], s8 offen{STP}")
    A(f"buffer_store_dwordx4 v[{HP+4}:{HP+7}], v2, s[52:55], s8 offen offset:1024{STP}")
    for r in range(16, 20): A(f"v_mov_b32 v{r}, 0")
    for r in range(8):
        A(f"v_dot2c_f32_bf16 v{16+(r&1)}, {ONES}, v{HP+r}"); A(f"v_dot2c_f32_bf16 v{18+(r&1)}, v{HP+r}, v{HP+r}")
    A("s_nop 2")
    A("v_add_f32 v10, v16, v17"); A("v_add_f32 v11, v18, v19")
    halves_sum(A, 10, 12); halves_sum(A, 11, 12)
    A("s_lshl_b32 s8, s13, 12"); A("s_lshl_b32 s9, s5, 4"); A("s_add_u32 s8, s8, s9"); A("s_lshl_b32 s9, s16, 3"); A("s_add_u32 s8, s8, s9")
    A("v_lshlrev_b32 v6, 7, v3")
    A(f"buffer_store_dwordx2 v[10:11], v6, s[56:59], s8 offen{STP}")
    A("s_lshl_b32 s60, s2, 2"); A("s_add_u32 s60, s60, s3"); A("s_cmp_ge_u32 s60, 56"); A("s_cbranch_scc1 k2_nocs2")
    A("s_waitcnt vmcnt(0)")
    A.lines.append(";OPT_BEGIN")
    for st_ in (8, 4, 2, 1):
        for kc in range(st_): A(f"v_add_f32 v{210+kc}, v{210+kc}, v{210+kc+st_}")
    srd(A, 68, P_WS, WS_CS, SZ_CS)
    A("v_lshlrev_b32 v7, 2, v0")
    A(f"buffer_store_dword v210, v7, s[68:71], s63 offen{STP}")
    A.lines.append(";OPT_END")
    A.label("k2_nocs2")
    ts(A, 2, 7, True)
    A.label("k2_end")
    A("s_endpgm")

def gen_k3(A):
    A.label("k3_kernel")
    prologue(A, 256, "k3_end"); ts(A, 3, 0)
    A("s_and_b32 s4, s2, 7"); A("s_lshr_b32 s5, s2, 3")
    A("s_lshr_b32 s6, s4, 2"); A("s_lshl_b32 s6, s6, 3"); A("s_lshr_b32 s7, s5, 2"); A("s_add_u32 s6, s6, s7")
    A("s_and_b32 s4, s4, 3"); A("s_lshl_b32 s4, s4, 2"); A("s_and_b32 s5, s5, 3"); A("s_add_u32 s5, s5, s4")
    A("s_mov_b32 s4, s6")
    srd(A, 36, P_WS, WS_WGU, SZ_WGU); srd(A, 40, P_WS, WS_H, SZ_H)
    q = VMQ()
    A("v_lshlrev_b32 v2, 4, v0")
    A("s_lshl_b32 s6, s4, 2"); A("s_add_u32 s6, s6, s3")
    A("s_mul_i32 s7, s5, 7")
    A("s_add_u32 s8, s7, s3"); A("s_lshl_b32 s8, s8, 15")
    A("s_lshl_b32 s9, s7, 15"); A("s_lshl_b32 s10, s3, 13"); A("s_add_u32 s9, s9, s10")
    A("s_lshl_b32 s11, s6, 15")
    def dma_groups(stage):
        slot = (stage % 4) * 32768; L = []
        for hlf in range(2):
            for i in range(4):
                g = []
                if i == 0:
                    g.append(f"s_add_u32 m0, s10, {slot + hlf*4096}")
                    g.append(f"s_add_u32 s12, s8, {(8*stage + 4*hlf)*1024}" if stage < 4 else f"s_add_u32 s12, s9, {stage*32768 + hlf*4096}")
                g.append(f"buffer_load_dwordx4 v2, s[36:39], s12 offen offset:{i*1024} lds")
                L.append((g, ("dma", stage)))
        return L
    def h_groups(c):
        L = []
        for t in range(8 * c, 8 * c + 8):
            g = []
            if t % 4 == 0: g.append(f"s_add_u32 s13, s11, {t*1024}")
            g.append(f"buffer_load_dwordx4 a[{4*t}:{4*t+3}], v2, s[40:43], s13 offen offset:{(t%4)*1024}")
            L.append((g, ("h", c)))
        return L
    def emit(gt):
        for l in gt[0]: A(l)
        q.add(gt[1])
    def inter(a, b):
        out = []
        for x, y in zip(a, b): out += [x, y]
        return out
    for gt in inter(dma_groups(0), h_groups(0)): emit(gt)
    srd(A, 44, P_WS, WS_STATS, SZ_STATS); srd(A, 48, P_WS, WS_CS, SZ_CS); srd(A, 52, P_WS, WS_ACT, SZ_ACT)
    SM = 212
    A("v_and_b32 v3, 31, v0"); A("v_lshrrev_b32 v5, 5, v0"); A("v_lshlrev_b32 v4, 7, v3"); A("v_lshl_add_u32 v4, v5, 6, v4")
    A("s_lshl_b32 s14, s6, 12")
    for j in range(4): A(f"buffer_load_dwordx4 v[{SM+4*j}:{SM+4*j+3}], v4, s[44:47], s14 offen offset:{j*16}"); q.add("small")
    A("v_lshl_add_u32 v6, v1, 6, v0"); A("v_min_u32 v6, 223, v6"); A("v_lshlrev_b32 v6, 2, v6")
    A("s_mul_i32 s14, s7, 128")
    A(f"buffer_load_dword v{SM+16}, v6, s[48:51], s14 offen"); q.add("small")
    vpend = inter(dma_groups(1), h_groups(1))
    for _ in range(NPRE): emit(vpend.pop(0))
    vpend += inter(dma_groups(2), h_groups(2)) + inter(dma_groups(3), h_groups(3))
    NM, C1, C2 = 8, 9, 10
    CSL = 131072
    A(f"v_add_u32 v7, {CSL}, v6")
    A(f"v_lshlrev_b32 v11, 4, v5"); A(f"v_add_u32 v11, {CSL}, v11")
    A("v_mov_b32 v12, v2"); A("v_add_u32 v13, 0x10000, v2")
    ACCS = [64 + 16 * i for i in range(7)]
    NAF = 12
    AF = [16 + 4 * i for i in range(NAF)]
    CSR = 176; ET = 192
    A("s_mul_i32 s14, s6, 112"); A("s_add_u32 s14, s14, s7"); A("s_lshl_b32 s14, s14, 10")
    st_l = []
    for j in range(1, 4):
        for e in range(4): st_l.append(f"v_add_f32 v{SM+e}, v{SM+e}, v{SM+4*j+e}")
    st_l += [f"v_add_f32 v{SM}, v{SM}, v{SM+2}", f"v_add_f32 v{SM+1}, v{SM+1}, v{SM+3}",
             f"v_mov_b32 v{SM+4}, v{SM}", f"v_mov_b32 v{SM+5}, v{SM+1}", "s_nop 1",
             f"v_permlane32_swap_b32 v{SM}, v{SM+4}", f"v_permlane32_swap_b32 v{SM+1}, v{SM+5}", "s_nop 1",
             f"v_add_f32 v{SM}, v{SM}, v{SM+4}", f"v_add_f32 v{SM+1}, v{SM+1}, v{SM+5}",
             f"v_mul_f32 v{SM}, {f32(1/512)}, v{SM}", f"v_mul_f32 v{SM+1}, {f32(1/512)}, v{SM+1}",
             f"v_fma_f32 v{SM+1}, -v{SM}, v{SM}, v{SM+1}", f"v_max_f32 v{SM+1}, 0, v{SM+1}", f"v_add_f32 v{SM+1}, {f32(1e-5)}, v{SM+1}",
             f"v_rsq_f32 v{SM+1}, v{SM+1}", f"v_sub_f32 v{NM}, 0, v{SM}",
             f"v_mul_f32 v{C1}, {f32(-LOG2E)}, v{SM+1}", f"v_mul_f32 v{C2}, v{SM+1}, v{SM+1}", f"ds_write_b32 v7, v{SM+16}"]
    seq = []
    for c in range(4):
        for i in range(8):
            for w in range(4): seq.append((w, 8 * c + i, c, w * 8192 + i * 1024))
    for c in range(4, 7):
        for t in range(32): seq.append((c, t, c, t * 1024))
    def aread(n):
        tile, t, stage, off = seq[n]; sl = stage % 4
        A(f"ds_read_b128 v[{AF[n%NAF]}:{AF[n%NAF]+3}], v{13 if sl >= 2 else 12} offset:{(sl%2)*32768 + off}")
    def epi(tile, n0):
        L = []; ac = ACCS[tile]; P = ET + 16; R8 = range(8)
        L += [(n0, f"ds_read_b128 v[{CSR+4*qd}:{CSR+4*qd+3}], v11 offset:{tile*128 + qd*32}") for qd in range(4)]
        L += [("sync", None)]
        M = []
        M += [f"v_fmac_f32 v{ac+r}, v{NM}, v{CSR+r}" for r in range(16)]
        M += [f"v_mul_f32 v{ET+r}, v{C1}, v{ac+r}" for r in R8]
        M += [x for r in R8 for x in (f"v_exp_f32 v{ET+r}, v{ET+r}", f"v_mul_f32 v{ET+8+r}, v{ac+r}, v{ac+8+r}")]
        M += [x for r in R8 for x in (f"v_add_f32 v{ET+r}, 1.0, v{ET+r}", f"v_mul_f32 v{ET+8+r}, v{ET+8+r}, v{C2}")]
        M += [f"v_rcp_f32 v{ET+r}, v{ET+r}" for r in R8]
        M += [f"v_mul_f32 v{ET+8+r}, v{ET+8+r}, v{ET+r}" for r in R8]
        M += [f"v_cvt_pk_bf16_f32 v{P+j}, v{ET+8+2*j}, v{ET+8+2*j+1}" for j in range(4)]
        M += [f"s_add_u32 s15, s14, {tile*1024}", f"buffer_store_dwordx4 v[{P}:{P+3}], v2, s[52:55], s15 offen{STP}"]
        return L + [(n0, m) for m in M]
    cost = lambda l: 2 if (l.startswith("v_exp") or l.startswith("v_rcp") or l.startswith("v_rsq")) else 1
    ts(A, 3, 1)
    A(f"s_waitcnt vmcnt({q.need(('dma', 0), ('h', 0))})")
    A("s_barrier")
    ts(A, 3, 2)
    PF = 8
    for n in range(PF): aread(n)
    N = len(seq)
    pend = []
    started = set()
    hold = -1
    for n in range(N):
        tile, t, stage, off = seq[n]
        budget = 6
        if n + PF < N and seq[n + PF][2] != seq[n + PF - 1][2]:
            ns = seq[n + PF][2]
            tags = [("dma", ns)] + ([("h", ns)] if ns < 4 else []) + (["small"] if ns == 1 else [])
            while any(gt[1] in tags for gt in vpend): emit(vpend.pop(0))
            A(f"s_waitcnt vmcnt({q.need(*tags)})")
            A("s_barrier")
            rs = ns + 2
            if 4 <= rs < 7: vpend += dma_groups(rs)
            budget -= 2
            if ns == 1: pend += [(n, l) for l in st_l]
        if n + PF < N: aread(n + PF); budget -= 1
        if n % 2 == 0:
            A(f"s_waitcnt lgkmcnt({max(0, min(PF, N - 1 - n) - 1)})"); budget -= 1
        ac = ACCS[tile]
        c_in = f"v[{ac}:{ac+15}]" if tile in started else "0"
        started.add(tile)
        A(f"v_mfma_f32_32x32x16_bf16 v[{ac}:{ac+15}], v[{AF[n%NAF]}:{AF[n%NAF]+3}], a[{4*t}:{4*t+3}], {c_in}")
        if n == 127: ts(A, 3, 3)
        if n == 159: ts(A, 3, 5)
        if n == 191: ts(A, 3, 6)
        rate = 1 if (n < VFAST) else 2
        if vpend and n % rate == rate - 1:
            gt = vpend.pop(0); emit(gt); budget -= len(gt[0])
        if n == 128 + 2:
            for tl in range(4): pend += epi(tl, n)
        if n == 128 + 32 + 13: pend += epi(4, n)
        if n == 128 + 64 + 13: pend += epi(5, n)
        if "k3nofill" in EXP and n > 100: pend = []
        while pend and budget > 0 and n >= hold:
            e, l = pend.pop(0)
            if e == "sync":
                hold = n + PF + 2; break
            A(l); budget -= cost(l)
            if l.startswith("buffer_store"): q.add("st")
    ts(A, 3, 4)
    A("s_nop 7"); A("s_nop 3")
    A("s_waitcnt lgkmcnt(0)")
    for e, l in pend + epi(6, 0):
        if e == "sync": A("s_waitcnt lgkmcnt(0)")
        else: A(l)
    ts(A, 3, 7, True)
    A.label("k3_end")
    A("s_endpgm")

def gen_k4(A):
    A.label("k4_kernel")
    prologue(A, 256, "k4_end"); ts(A, 4, 0)
    A("s_and_b32 s4, s2, 7"); A("s_lshr_b32 s5, s2, 3"); A("s_lshr_b32 s6, s5, 3"); A("s_lshl_b32 s4, s4, 2"); A("s_add_u32 s4, s4, s6"); A("s_and_b32 s5, s5, 7")
    srd(A, 36, P_WS, WS_ACT, SZ_ACT); srd(A, 40, P_WS, WS_WD, SZ_WD); srd(A, 44, P_WS, WS_H, SZ_H); srd(A, 48, P_OUT, 0, 2048 * 1024)
    q = VMQ()
    A("v_lshlrev_b32 v2, 4, v0")
    A("s_mul_i32 s8, s3, 28")
    A("s_lshr_b32 s13, s3, 1"); A("s_lshl_b32 s14, s4, 1"); A("s_add_u32 s13, s14, s13")
    A("s_and_b32 s14, s3, 1")
    A("s_mul_i32 s9, s13, 112"); A("s_add_u32 s9, s9, s8"); A("s_lshl_b32 s9, s9, 10")
    A("s_xor_b32 s11, s13, 1"); A("s_mul_i32 s11, s11, 112"); A("s_add_u32 s11, s11, s8"); A("s_lshl_b32 s11, s11, 10")
    A("s_lshl_b32 s10, s5, 1"); A("s_add_u32 s10, s10, s14"); A("s_xor_b32 s12, s10, 1")
    A("s_mul_i32 s10, s10, 112"); A("s_add_u32 s10, s10, s8"); A("s_lshl_b32 s10, s10, 10")
    A("s_mul_i32 s12, s12, 112"); A("s_add_u32 s12, s12, s8"); A("s_lshl_b32 s12, s12, 10")
    D = 5
    bases = [9, 11, 10, 12]
    def loads(t):
        b = (t % D) * 16
        for i in range(4):
            sr = 36 if i < 2 else 40
            if t % 4 == 0 and t > 0: A(f"s_add_u32 s{bases[i]}, s{bases[i]}, 4096")
            A(f"buffer_load_dwordx4 a[{b+4*i}:{b+4*i+3}], v2, s[{sr}:{sr+3}], s{bases[i]} offen offset:{(t%4)*1024}"); q.add(("g", t))
    for t in range(D): loads(t)
    A("s_lshl_b32 s15, s13, 5"); A("s_lshl_b32 s60, s5, 2"); A("s_add_u32 s15, s15, s60"); A("s_lshl_b32 s60, s14, 1"); A("s_add_u32 s15, s15, s60"); A("s_lshl_b32 s15, s15, 10")
    HR = 16
    ACC = 128
    for r in range(64): A(f"v_mov_b32 v{ACC+r}, 0")
    ts(A, 4, 1)
    for t in range(28):
        A(f"s_waitcnt vmcnt({q.need(('g', t))})")
        if t == 1: ts(A, 4, 2)
        b = (t % D) * 16
        for aa in range(2):
            for bb in range(2):
                ac = ACC + 16 * (2 * aa + bb)
                A(f"v_mfma_f32_32x32x16_bf16 v[{ac}:{ac+15}], a[{b+8+4*bb}:{b+8+4*bb+3}], a[{b+4*aa}:{b+4*aa+3}], v[{ac}:{ac+15}]")
        if t + D < 28: loads(t + D)
        if t == 22:
            A(f"buffer_load_dwordx4 v[{HR}:{HR+3}], v2, s[44:47], s15 offen"); q.add("h")
            A(f"buffer_load_dwordx4 v[{HR+4}:{HR+7}], v2, s[44:47], s15 offen offset:1024"); q.add("h")
    ts(A, 4, 3)
    A("s_nop 7"); A("s_nop 3")
    ksplit_reduce(A, "v", ACC, 64, 80)
    ts(A, 4, 4)
    A("s_waitcnt vmcnt(0)")
    for r in range(8):
        t8 = 8 + 2 * (r % 4)
        A(f"v_lshlrev_b32 v{t8}, 16, v{HR+r}"); A(f"v_and_b32 v{t8+1}, 0xffff0000, v{HR+r}")
        A(f"v_pk_add_f32 v[{64+2*r}:{64+2*r+1}], v[{64+2*r}:{64+2*r+1}], v[{t8}:{t8+1}]")
    OP = 96
    for r in range(8): A(f"v_cvt_pk_bf16_f32 v{OP+r}, v{64+2*r}, v{64+2*r+1}")
    A("s_nop 1")
    for p in range(2):
        A(f"v_permlane32_swap_b32 v{OP+4*p}, v{OP+4*p+2}"); A(f"v_permlane32_swap_b32 v{OP+4*p+1}, v{OP+4*p+3}")
    A("v_and_b32 v3, 31, v0"); A("v_lshrrev_b32 v5, 5, v0"); A("v_lshlrev_b32 v6, 10, v3"); A("v_lshl_add_u32 v6, v5, 4, v6")
    A("s_lshl_b32 s8, s13, 15"); A("s_lshl_b32 s9, s5, 7"); A("s_add_u32 s8, s8, s9"); A("s_lshl_b32 s9, s14, 6"); A("s_add_u32 s8, s8, s9")
    for p in range(2): A(f"buffer_store_dwordx4 v[{OP+4*p}:{OP+4*p+3}], v6, s[48:51], s8 offen offset:{p*32}{STP}")
    ts(A, 4, 7, True)
    A.label("k4_end")
    A("s_endpgm")

def build(path, extra_launches=0):
    kernels = [("k1_kernel", gen_k1, (256, 163840, 512), 256, 256),
               ("k2_kernel", gen_k2, (256, 49152, 256), 512, 256),
               ("k3_kernel", gen_k3, (256, 131072 + 1024, 256), 512, 256),
               ("k4_kernel", gen_k4, (256, 49152, 256), 512, 256)]
    hdr = open(f"cdna_kernels/{KNAME}.s.ref").read().split("\n")
    out = [l for l in hdr if l.startswith(";") and "@launch" not in l and "Override launch" not in l and "grid=ceil" not in l]
    for (n, g, (wg, lds, thr), vg, ac) in kernels:
        out.append(f"; @launch kernel={n} grid=({wg},1,1) block=({thr},1,1) lds={lds}")
    out.append('.amdgcn_target "amdgcn-amd-amdhsa--gfx950"'); out.append(".text")
    nerr = 0
    for (n, g, _, vg, ac) in kernels:
        A = Asm(); g(A)
        A.lines = [l for l in A.lines if l is not None]
        for variant in (A.lines, strip_opt(A.lines)):
            errs = check(variant, n)
            for e in errs[:30]: print("CHECK:", e)
            nerr += len(errs)
        out.append(f".globl {n}\n.p2align 8\n.type {n},@function"); out.append(A.text())
    out.append("code_end:\n  s_endpgm")
    out.append('.section .rodata,"a"')
    for (n, g, _, vg, ac) in kernels: out.append(kd(n, vg, ac))
    open(path, "w").write("\n".join(out) + "\n")
    print("written", path, "check errors:", nerr)
    import subprocess
    r = subprocess.run(["clang", "-x", "assembler", "-target", "amdgcn-amd-amdhsa", "-mcpu=gfx950", "-c", path, "-o", "x.o"], capture_output=True, text=True)
    if r.returncode: print(r.stderr[:2000])

if __name__ == "__main__":
    if "--ts" in sys.argv: G.TS = True; sys.argv.remove("--ts")
    build(sys.argv[1])
```

```python
import sys, os
sys.path.insert(0, "dev")
from asmlib import *
import gen as G
import gen3 as G3
from gen3 import *
from gen3 import VMQ, ts, STP, EXP, dbg_stamp

WS_CNT = 0x78000; SZ_CNT = 4096
LD = " sc1"

def signal(A, cnt_off_sgpr, lab):
    A("s_cmp_lg_u32 s3, 0"); A(f"s_cbranch_scc1 {lab}")
    A("v_mov_b32 v250, 1"); A("v_mov_b32 v251, 0")
    A("s_mov_b64 exec, 1")
    A(f"buffer_atomic_add v250, v251, s[64:67], s{cnt_off_sgpr} offen sc1")
    A("s_mov_b64 exec, -1")
    A.label(lab)

def wait_cnt(A, cnt_off_sgpr, target, lab):
    A("s_cmp_lg_u32 s3, 0"); A(f"s_cbranch_scc1 {lab}_done")
    A("v_mov_b32 v251, 0"); A("s_mov_b32 s76, 0")
    A.label(lab)
    A(f"buffer_load_dword v250, v251, s[64:67], s{cnt_off_sgpr} offen sc1")
    A("s_waitcnt vmcnt(0)")
    A("v_readfirstlane_b32 s77, v250")
    A("s_add_u32 s76, s76, 1")
    A("s_nop 2")
    A(f"s_cmp_ge_u32 s77, {target}"); A(f"s_cbranch_scc1 {lab}_done")
    A("s_cmp_ge_u32 s76, 0x400000"); A(f"s_cbranch_scc1 {lab}_done")
    A("s_sleep 1")
    A(f"s_branch {lab}")
    A.label(f"{lab}_done")
    A("s_barrier")

def reduce4(A, pre, ACC, OUT, TMP, base):
    A("v_lshlrev_b32 v7, 4, v0")
    for qd in range(1, 4):
        A(f"s_xor_b32 s8, s3, {qd}"); A("s_mulk_i32 s8, 12288"); A(f"s_add_u32 s8, s8, {base}"); A("v_add_u32 v6, s8, v7")
        for j in range(4):
            r = ACC + 16 * qd + 4 * j
            A(f"ds_write_b128 v6, {pre}[{r}:{r+3}] offset:{(qd-1)*4096 + j*1024}")
    if pre == "a":
        for r in range(16): A(f"v_accvgpr_read_b32 v{OUT+r}, a{ACC+r}")
    A("s_mul_i32 s8, s3, 12288"); A(f"s_add_u32 s8, s8, {base}"); A("v_add_u32 v6, s8, v7")
    A("s_waitcnt lgkmcnt(0)")
    A("s_barrier")
    for p in range(3):
        for j in range(4):
            d = TMP + 16 * p + 4 * j
            A(f"ds_read_b128 v[{d}:{d+3}], v6 offset:{p*4096 + j*1024}")
    own = OUT if pre == "a" else ACC
    A("s_waitcnt lgkmcnt(8)")
    for r in range(0, 16, 2): A(f"v_pk_add_f32 v[{OUT+r}:{OUT+r+1}], v[{own+r}:{own+r+1}], v[{TMP+r}:{TMP+r+1}]")
    A("s_waitcnt lgkmcnt(0)")
    for r in range(0, 16, 2): A(f"v_pk_add_f32 v[{TMP+16+r}:{TMP+16+r+1}], v[{TMP+16+r}:{TMP+16+r+1}], v[{TMP+32+r}:{TMP+32+r+1}]")
    for r in range(0, 16, 2): A(f"v_pk_add_f32 v[{OUT+r}:{OUT+r+1}], v[{OUT+r}:{OUT+r+1}], v[{TMP+16+r}:{TMP+16+r+1}]")

NWD1 = int(os.environ.get("NWD1", "32"))
def gen_kf(A):
    A.label("kf_kernel")
    prologue(A, 256, "kf_end"); ts(A, 2, 0)
    if "dbgts" in EXP:
        A("s_cmp_lg_u32 s3, 0"); A("s_cbranch_scc1 dbgx_f0"); dbg_stamp(A, 2, "f0"); A.label("dbgx_f0")
    A("s_and_b32 s74, s2, 7"); A("s_lshr_b32 s75, s2, 3")
    A("s_lshr_b32 s4, s75, 3"); A("s_lshl_b32 s68, s74, 2"); A("s_add_u32 s68, s68, s4"); A("s_and_b32 s69, s75, 7")
    A("s_lshr_b32 s4, s3, 1"); A("s_and_b32 s71, s3, 1"); A("s_lshl_b32 s70, s68, 1"); A("s_add_u32 s70, s70, s4")
    A("s_lshr_b32 s4, s74, 2"); A("s_lshl_b32 s72, s4, 3"); A("s_lshr_b32 s4, s75, 2"); A("s_add_u32 s72, s72, s4")
    A("s_and_b32 s4, s74, 3"); A("s_lshl_b32 s73, s4, 2"); A("s_and_b32 s4, s75, 3"); A("s_add_u32 s73, s73, s4")
    srd(A, 36, P_WS, WS_KVZ, SZ_KVZ); srd(A, 40, P_WS, WS_PQ, SZ_PQ); srd(A, 44, P_WS, WS_WO, SZ_WO)
    q = VMQ()
    A("v_lshlrev_b32 v2, 4, v0"); A("v_and_b32 v3, 31, v0"); A("v_min_u32 v4, 16, v3"); A("v_lshlrev_b32 v4, 6, v4")
    A("v_lshrrev_b32 v5, 5, v0"); A("v_lshl_add_u32 v4, v5, 4, v4")
    A("s_lshl_b32 s8, s3, 3"); A("s_mul_i32 s9, s8, 1088")
    A("s_lshl_b32 s10, s70, 5"); A("s_add_u32 s10, s10, s8"); A("s_lshl_b32 s10, s10, 10")
    A("s_xor_b32 s14, s70, 1"); A("s_lshl_b32 s14, s14, 5"); A("s_add_u32 s14, s14, s8"); A("s_lshl_b32 s14, s14, 10")
    A("s_lshl_b32 s11, s69, 1"); A("s_add_u32 s11, s11, s71"); A("s_xor_b32 s15, s11, 1")
    A("s_lshl_b32 s11, s11, 5"); A("s_add_u32 s11, s11, s8"); A("s_lshl_b32 s11, s11, 10")
    A("s_lshl_b32 s15, s15, 5"); A("s_add_u32 s15, s15, s8"); A("s_lshl_b32 s15, s15, 10")
    KR = 64
    def loads(h):
        A(f"s_add_u32 s12, s9, {h*1088}")
        A(f"buffer_load_dwordx4 v[{KR+8*h}:{KR+8*h+3}], v4, s[36:39], s12 offen"); q.add(("kv", h))
        A(f"buffer_load_dwordx4 v[{KR+8*h+4}:{KR+8*h+7}], v4, s[36:39], s12 offen offset:32"); q.add(("kv", h))
        base = [10, 14, 11, 15]
        dst = [h * 4, (8 + h) * 4, 64 + h * 4, 64 + (8 + h) * 4]
        for i in range(4):
            sr = 40 if i < 2 else 44
            if h == 4: A(f"s_add_u32 s{base[i]}, s{base[i]}, 4096")
            A(f"buffer_load_dwordx4 a[{dst[i]}:{dst[i]+3}], v2, s[{sr}:{sr+3}], s{base[i]} offen offset:{(h%4)*1024}"); q.add(("fr", h))
    for h in range(3): loads(h)
    srd(A, 48, P_X, 0, 2048 * 1024); srd(A, 52, P_WS, WS_H, SZ_H); srd(A, 56, P_WS, WS_STATS, SZ_STATS)
    srd(A, 60, P_WS, WS_WGU, SZ_WGU); srd(A, 64, P_WS, WS_CNT, SZ_CNT)
    for r in range(64): A(f"v_accvgpr_write_b32 a{128+r}, 0")
    KA = 32; TT = [[128, 144], [160, 176]]; OF = [[8, 12], [16, 20]]; EPS = 24; XR = 200
    HPK = 240
    CSV = 208
    A(f"v_mov_b32 v{EPS}, {f32(1e-6)}")
    A("s_mul_i32 s78, s73, 7")
    A("s_add_u32 s79, s78, s3"); A("s_lshl_b32 s79, s79, 15")
    A("s_lshl_b32 s80, s78, 15"); A("s_lshl_b32 s81, s3, 13"); A("s_add_u32 s80, s80, s81")
    def dma_groups(stage):
        slot = (stage % 4) * 32768; L = []
        for hlf in range(2):
            for i in range(4):
                g = []
                if i == 0:
                    g.append(f"s_add_u32 m0, s81, {slot + hlf*4096}")
                    g.append(f"s_add_u32 s82, s79, {(8*stage + 4*hlf)*1024}" if stage < 4 else f"s_add_u32 s82, s80, {stage*32768 + hlf*4096}")
                g.append(f"buffer_load_dwordx4 v2, s[60:63], s82 offen offset:{i*1024} lds")
                L.append((g, ("dma", stage)))
        return L
    def emit(gt):
        for l in gt[0]: A(l)
        q.add(gt[1])
    ts(A, 2, 1)
    def cv(h): return [f"v_cvt_pk_bf16_f32 v{KA+4*h+j}, v{KR+8*h+2*j}, v{KR+8*h+2*j+1}" for j in range(4)]
    def tm(h, aa):
        T = TT[h % 2][aa]
        return f"v_mfma_f32_32x32x16_bf16 v[{T}:{T+15}], v[{KA+4*h}:{KA+4*h+3}], a[{(aa*8+h)*4}:{(aa*8+h)*4+3}], 0"
    def mm(h, aa, b):
        ac = 128 + 16 * (2 * aa + b); o = OF[h % 2][aa]
        return f"v_mfma_f32_32x32x16_bf16 a[{ac}:{ac+15}], a[{64+(b*8+h)*4}:{64+(b*8+h)*4+3}], v[{o}:{o+3}], a[{ac}:{ac+15}]"
    def valu(h):
        L = []
        T0, T1 = TT[h % 2]; o0, o1 = OF[h % 2]
        L += [f"v_add_f32 v25, v{T0+8}, v{EPS}", f"v_add_f32 v26, v{T1+8}, v{EPS}", "v_rcp_f32 v25, v25", "v_rcp_f32 v26, v26", "s_nop 0"]
        for r in range(8): L += [f"v_mul_f32 v{T0+r}, v{T0+r}, v25", f"v_mul_f32 v{T1+r}, v{T1+r}, v26"]
        for j in range(4): L += [f"v_cvt_pk_bf16_f32 v{o0+j}, v{T0+2*j}, v{T0+2*j+1}", f"v_cvt_pk_bf16_f32 v{o1+j}, v{T1+2*j}, v{T1+2*j+1}"]
        return L
    A(f"s_waitcnt vmcnt({q.need(('fr', 0))})")
    for l in cv(0): A(l)
    ts(A, 2, 2)
    A("s_nop 1")
    A(tm(0, 0)); A(tm(0, 1))
    wpend = dma_groups(0) + dma_groups(1) + dma_groups(2)
    for h in range(9):
        if h + 3 < 8: loads(h + 3)
        if h == 5:
            A("s_lshl_b32 s6, s70, 15"); A("s_lshl_b32 s7, s69, 7"); A("s_add_u32 s6, s6, s7"); A("s_lshl_b32 s7, s71, 6"); A("s_add_u32 s6, s6, s7")
            A("v_lshlrev_b32 v6, 10, v3"); A("v_lshl_add_u32 v6, v5, 3, v6")
            for qd in range(4):
                A(f"buffer_load_dwordx2 v[{XR+2*qd}:{XR+2*qd+1}], v6, s[48:51], s6 offen offset:{qd*16}"); q.add("x")
            srd(A, 48, P_WS, WS_CSP, SZ_CSP)
            A("v_lshl_add_u32 v230, v1, 6, v0"); A("v_min_u32 v230, 223, v230"); A("v_lshlrev_b32 v230, 2, v230")
            A("s_mul_i32 s6, s78, 128")
            for kc in range(16):
                A(f"s_add_u32 s7, s6, {kc*3584*4}")
                A(f"buffer_load_dword v{CSV+kc}, v230, s[48:51], s7 offen"); q.add("cs")
        ms = []
        if h + 1 < 8:
            A(f"s_waitcnt vmcnt({q.need(('fr', h + 1))})")
            for l in cv(h + 1): A(l)
            A("s_nop 1")
            ms += [tm(h + 1, 0), tm(h + 1, 1)]
        if h >= 1: ms += [mm(h - 1, 0, 0), mm(h - 1, 0, 1), mm(h - 1, 1, 0), mm(h - 1, 1, 1)]
        vl = valu(h) if h < 8 else []
        if h == 0:
            for m_ in ms: A(m_)
            A("s_nop 5")
            for l in vl: A(l)
            A("s_nop 1")
        else:
            per = (len(vl) + len(ms) - 1) // len(ms) if vl else 0
            for m_ in ms:
                A(m_)
                for _ in range(per):
                    if vl: A(vl.pop(0))
                if h >= 6 and wpend: emit(wpend.pop(0))
            for l in vl: A(l)
            A("s_nop 1")
    ts(A, 2, 3)
    for _ in range(6):
        if wpend: emit(wpend.pop(0))
    A("s_nop 7"); A("s_nop 3") if False else None
    reduce4(A, "a", 128, 64, 80, 98304)
    for gt in wpend: emit(gt)
    wpend = []
    ts(A, 2, 4)
    A(f"s_waitcnt vmcnt({q.need('x')})")
    for qd in range(4):
        for j in range(2):
            xr = XR + 2 * qd + j; t8 = 8 + 2 * ((2 * qd + j) % 4)
            A(f"v_lshlrev_b32 v{t8}, 16, v{xr}"); A(f"v_and_b32 v{t8+1}, 0xffff0000, v{xr}")
            A(f"v_pk_add_f32 v[{64+4*qd+2*j}:{64+4*qd+2*j+1}], v[{64+4*qd+2*j}:{64+4*qd+2*j+1}], v[{t8}:{t8+1}]")
    for r in range(8): A(f"v_cvt_pk_bf16_f32 v{HPK+r}, v{64+2*r}, v{64+2*r+1}")
    A("s_lshl_b32 s8, s70, 5"); A("s_lshl_b32 s9, s69, 2"); A("s_add_u32 s8, s8, s9"); A("s_lshl_b32 s9, s71, 1"); A("s_add_u32 s8, s8, s9"); A("s_lshl_b32 s8, s8, 10")
    A(f"buffer_store_dwordx4 v[{HPK}:{HPK+3}], v2, s[52:55], s8 offen sc1"); q.add("st")
    A(f"buffer_store_dwordx4 v[{HPK+4}:{HPK+7}], v2, s[52:55], s8 offen offset:1024 sc1"); q.add("st")
    for r in range(16, 20): A(f"v_mov_b32 v{r}, 0")
    for r in range(8):
        A(f"v_dot2c_f32_bf16 v{16+(r&1)}, {ONES}, v{HPK+r}"); A(f"v_dot2c_f32_bf16 v{18+(r&1)}, v{HPK+r}, v{HPK+r}")
    A("s_nop 2")
    A("v_add_f32 v10, v16, v17"); A("v_add_f32 v11, v18, v19")
    halves_sum(A, 10, 12); halves_sum(A, 11, 12)
    A("s_lshl_b32 s8, s70, 12"); A("s_lshl_b32 s9, s69, 4"); A("s_add_u32 s8, s8, s9"); A("s_lshl_b32 s9, s71, 3"); A("s_add_u32 s8, s8, s9")
    A("v_lshlrev_b32 v6, 7, v3")
    A("buffer_store_dwordx2 v[10:11], v6, s[56:59], s8 offen sc1"); q.add("st")
    CSL = 147456
    A(f"s_waitcnt vmcnt({q.need('cs')})")
    for st_ in (8, 4, 2, 1):
        for kc in range(st_): A(f"v_add_f32 v{CSV+kc}, v{CSV+kc}, v{CSV+kc+st_}")
    A(f"v_add_u32 v7, {CSL}, v230"); A(f"ds_write_b32 v7, v{CSV}")
    A("s_waitcnt vmcnt(0) lgkmcnt(0)")
    A("s_barrier")
    A("s_lshr_b32 s83, s68, 1"); A("s_lshl_b32 s83, s83, 7")
    signal(A, 83, "kf_sig1")
    ts(A, 2, 5)
    if "dbgts" in EXP:
        A("s_cmp_lg_u32 s3, 0"); A("s_cbranch_scc1 dbgx_f1"); dbg_stamp(A, 3, "f1"); A.label("dbgx_f1")
    q.q = []
    srd(A, 40, P_WS, WS_H, SZ_H); srd(A, 44, P_WS, WS_STATS, SZ_STATS); srd(A, 52, P_WS, WS_ACT, SZ_ACT); srd(A, 56, P_WS, WS_WD, SZ_WD)
    A("s_lshl_b32 s6, s72, 2"); A("s_add_u32 s6, s6, s3")
    A("s_lshl_b32 s11, s6, 15")
    A("v_lshlrev_b32 v4, 7, v3"); A("v_lshl_add_u32 v4, v5, 6, v4")
    A(f"v_lshlrev_b32 v11, 4, v5"); A(f"v_add_u32 v11, {CSL}, v11")
    A("v_mov_b32 v12, v2"); A("v_add_u32 v13, 0x10000, v2")
    A("s_mul_i32 s14, s6, 112"); A("s_add_u32 s14, s14, s78"); A("s_lshl_b32 s14, s14, 10")
    A("s_mul_i32 s8, s3, 28")
    A("s_lshl_b32 s84, s69, 1"); A("s_add_u32 s84, s84, s71"); A("s_xor_b32 s85, s84, 1")
    A("s_mul_i32 s84, s84, 112"); A("s_add_u32 s84, s84, s8"); A("s_lshl_b32 s84, s84, 10")
    A("s_mul_i32 s85, s85, 112"); A("s_add_u32 s85, s85, s8"); A("s_lshl_b32 s85, s85, 10")
    for gt in dma_groups(3): emit(gt)
    A("s_lshl_b32 s83, s72, 7")
    wait_cnt(A, 83, 16, "kf_w1")
    ts(A, 3, 0)
    if "dbgts" in EXP:
        A("s_cmp_lg_u32 s3, 0"); A("s_cbranch_scc1 dbgx_f2"); dbg_stamp(A, 4, "f2"); A.label("dbgx_f2")
    def h_groups(c):
        L = []
        for t in range(8 * c, 8 * c + 8):
            g = []
            if t % 4 == 0: g.append(f"s_add_u32 s13, s11, {t*1024}")
            g.append(f"buffer_load_dwordx4 a[{4*t}:{4*t+3}], v2, s[40:43], s13 offen offset:{(t%4)*1024}{LD}")
            L.append((g, ("h", c)))
        return L
    for gt in h_groups(0): emit(gt)
    SM = 212
    A("s_lshl_b32 s15, s6, 12")
    for j in range(4): A(f"buffer_load_dwordx4 v[{SM+4*j}:{SM+4*j+3}], v4, s[44:47], s15 offen offset:{j*16}{LD}"); q.add("small")
    for gt in h_groups(1): emit(gt)
    vpend = h_groups(2) + h_groups(3)
    NM, C1, C2 = 8, 9, 10
    ACCS = [64 + 16 * i for i in range(7)]
    NAF = 12
    AF = [16 + 4 * i for i in range(NAF)]
    CSR = 176; ET = 192
    st_l = []
    for j in range(1, 4):
        for e in range(4): st_l.append(f"v_add_f32 v{SM+e}, v{SM+e}, v{SM+4*j+e}")
    st_l += [f"v_add_f32 v{SM}, v{SM}, v{SM+2}", f"v_add_f32 v{SM+1}, v{SM+1}, v{SM+3}",
             f"v_mov_b32 v{SM+4}, v{SM}", f"v_mov_b32 v{SM+5}, v{SM+1}", "s_nop 1",
             f"v_permlane32_swap_b32 v{SM}, v{SM+4}", f"v_permlane32_swap_b32 v{SM+1}, v{SM+5}", "s_nop 1",
             f"v_add_f32 v{SM}, v{SM}, v{SM+4}", f"v_add_f32 v{SM+1}, v{SM+1}, v{SM+5}",
             f"v_mul_f32 v{SM}, {f32(1/512)}, v{SM}", f"v_mul_f32 v{SM+1}, {f32(1/512)}, v{SM+1}",
             f"v_fma_f32 v{SM+1}, -v{SM}, v{SM}, v{SM+1}", f"v_max_f32 v{SM+1}, 0, v{SM+1}", f"v_add_f32 v{SM+1}, {f32(1e-5)}, v{SM+1}",
             f"v_rsq_f32 v{SM+1}, v{SM+1}", f"v_sub_f32 v{NM}, 0, v{SM}",
             f"v_mul_f32 v{C1}, {f32(-LOG2E)}, v{SM+1}", f"v_mul_f32 v{C2}, v{SM+1}, v{SM+1}"]
    seq = []
    for c in range(4):
        for i in range(8):
            for w in range(4): seq.append((w, 8 * c + i, c, w * 8192 + i * 1024))
    for c in range(4, 7):
        for t in range(32): seq.append((c, t, c, t * 1024))
    def aread(n):
        tile, t, stage, off = seq[n]; sl = stage % 4
        A(f"ds_read_b128 v[{AF[n%NAF]}:{AF[n%NAF]+3}], v{13 if sl >= 2 else 12} offset:{(sl%2)*32768 + off}")
    def epi(tile, n0):
        L = []; ac = ACCS[tile]; P = ET + 16; R8 = range(8)
        L += [(n0, f"ds_read_b128 v[{CSR+4*qd}:{CSR+4*qd+3}], v11 offset:{tile*128 + qd*32}") for qd in range(4)]
        L += [("sync", None)]
        M = []
        M += [f"v_fmac_f32 v{ac+r}, v{NM}, v{CSR+r}" for r in range(16)]
        M += [f"v_mul_f32 v{ET+r}, v{C1}, v{ac+r}" for r in R8]
        M += [x for r in R8 for x in (f"v_exp_f32 v{ET+r}, v{ET+r}", f"v_mul_f32 v{ET+8+r}, v{ac+r}, v{ac+8+r}")]
        M += [x for r in R8 for x in (f"v_add_f32 v{ET+r}, 1.0, v{ET+r}", f"v_mul_f32 v{ET+8+r}, v{ET+8+r}, v{C2}")]
        M += [f"v_rcp_f32 v{ET+r}, v{ET+r}" for r in R8]
        M += [f"v_mul_f32 v{ET+8+r}, v{ET+8+r}, v{ET+r}" for r in R8]
        M += [f"v_cvt_pk_bf16_f32 v{P+j}, v{ET+8+2*j}, v{ET+8+2*j+1}" for j in range(4)]
        M += [f"s_add_u32 s15, s14, {tile*1024}", f"buffer_store_dwordx4 v[{P}:{P+3}], v2, s[52:55], s15 offen sc1"]
        return L + [(n0, m) for m in M]
    def wd_reg(t, b):
        f = 2 * t + b
        return 128 + 4 * f if f < 32 else 4 * (f - 32)
    def wd_load(t, b):
        g = []
        if t % 4 == 0 and t > 0 and b == 0:
            g.append("s_add_u32 s84, s84, 4096"); g.append("s_add_u32 s85, s85, 4096")
        r = wd_reg(t, b)
        g.append(f"buffer_load_dwordx4 a[{r}:{r+3}], v2, s[56:59], s{84+b} offen offset:{(t%4)*1024}")
        return (g, ("wd", t))
    wd_all = [wd_load(t, b) for t in range(28) for b in range(2)]
    cost = lambda l: 2 if (l.startswith("v_exp") or l.startswith("v_rcp") or l.startswith("v_rsq")) else 1
    A(f"s_waitcnt vmcnt({q.need(('h', 0))})")
    ts(A, 3, 2)
    PF = 8
    for n in range(PF): aread(n)
    N = len(seq)
    pend = []; started = set(); hold = -1
    wd_i = 0
    for n in range(N):
        tile, t, stage, off = seq[n]
        budget = 6
        if n + PF < N and seq[n + PF][2] != seq[n + PF - 1][2]:
            ns = seq[n + PF][2]
            if ns >= 2:
                tags = [("dma", ns)] if ns >= 3 else []
                tags = [tg for tg in tags if tg in q.q]
                if tags: A(f"s_waitcnt vmcnt({q.need(*tags)})")
                A("s_barrier"); budget -= 2
                rs = ns + 2
                if 4 <= rs < 7: vpend += dma_groups(rs)
        if n < 128 and n % 32 == 0 and n > 0:
            c = n // 32
            while any(gt[1] == ("h", c) for gt in vpend): emit(vpend.pop(0))
            tags = [("h", c)] + (["small"] if c == 1 else [])
            A(f"s_waitcnt vmcnt({q.need(*tags)})"); budget -= 1
            if c == 1: pend += [(n, l) for l in st_l]
        if n + PF < N: aread(n + PF); budget -= 1
        if n % 2 == 0:
            A(f"s_waitcnt lgkmcnt({max(0, min(PF, N - 1 - n) - 1)})"); budget -= 1
        ac = ACCS[tile]
        c_in = f"v[{ac}:{ac+15}]" if tile in started else "0"
        started.add(tile)
        A(f"v_mfma_f32_32x32x16_bf16 v[{ac}:{ac+15}], v[{AF[n%NAF]}:{AF[n%NAF]+3}], a[{4*t}:{4*t+3}], {c_in}")
        if n == 127: ts(A, 3, 3)
        if vpend and n % 2 == 1:
            gt = vpend.pop(0); emit(gt); budget -= len(gt[0])
        elif not vpend and n >= 138 and wd_i < min(NWD1, 32) and n % 2 == 1:
            gt = wd_all[wd_i]; wd_i += 1; emit(gt); budget -= len(gt[0])
        if n == 128 + 2:
            for tl in range(4): pend += epi(tl, n)
        if n == 128 + 32 + 13: pend += epi(4, n)
        if n == 128 + 64 + 13: pend += epi(5, n)
        while pend and budget > 0 and n >= hold:
            e, l = pend.pop(0)
            if e == "sync":
                hold = n + PF + 2; break
            A(l); budget -= cost(l)
            if l.startswith("buffer_store"): q.add("st")
    ts(A, 3, 4)
    for gt in wd_all[wd_i:32]: emit(gt)
    A("s_nop 7"); A("s_nop 3")
    A("s_waitcnt lgkmcnt(0)")
    rest = wd_all[32:]
    tail = pend + epi(6, 0)
    k_ = 0
    for e, l in tail:
        if e == "sync": A("s_waitcnt lgkmcnt(0)")
        else:
            A(l)
            if l.startswith("buffer_store"): q.add("st")
        k_ += 1
        if k_ % 4 == 0 and rest: emit(rest.pop(0))
    for gt in rest: emit(gt)
    A(f"s_waitcnt vmcnt({q.need('st')})")
    A("s_barrier")
    A("s_lshl_b32 s83, s72, 7"); A("s_add_u32 s83, s83, 2048")
    signal(A, 83, "kf_sig2")
    ts(A, 3, 7)
    if "dbgts" in EXP:
        A("s_cmp_lg_u32 s3, 0"); A("s_cbranch_scc1 dbgx_f3"); dbg_stamp(A, 5, "f3"); A.label("dbgx_f3")
    srd(A, 36, P_WS, WS_ACT, SZ_ACT); srd(A, 48, P_OUT, 0, 2048 * 1024)
    A("s_mul_i32 s8, s3, 28")
    A("s_mul_i32 s9, s70, 112"); A("s_add_u32 s9, s9, s8"); A("s_lshl_b32 s9, s9, 10")
    A("s_xor_b32 s11, s70, 1"); A("s_mul_i32 s11, s11, 112"); A("s_add_u32 s11, s11, s8"); A("s_lshl_b32 s11, s11, 10")
    A("s_lshr_b32 s83, s68, 1"); A("s_lshl_b32 s83, s83, 7"); A("s_add_u32 s83, s83, 2048")
    wait_cnt(A, 83, 16, "kf_w2")
    ts(A, 4, 0)
    if "dbgts" in EXP:
        A("s_cmp_lg_u32 s3, 0"); A("s_cbranch_scc1 dbgx_f4"); dbg_stamp(A, 6, "f4"); A.label("dbgx_f4")
    D = 7
    RB = 16
    def aloads(t):
        b = RB + (t % D) * 8
        for i in range(2):
            sg = [9, 11][i]
            if t % 4 == 0 and t > 0: A(f"s_add_u32 s{sg}, s{sg}, 4096")
            A(f"buffer_load_dwordx4 v[{b+4*i}:{b+4*i+3}], v2, s[36:39], s{sg} offen offset:{(t%4)*1024}{LD}"); q.add(("g", t))
    for t in range(D): aloads(t)
    ACC = 128
    ts(A, 4, 1)
    for t in range(28):
        A(f"s_waitcnt vmcnt({q.need(('g', t))})")
        if t == 1: ts(A, 4, 2)
        b = RB + (t % D) * 8
        for aa in range(2):
            for bb in range(2):
                ac = ACC + 16 * (2 * aa + bb); wr = wd_reg(t, bb)
                cin = "0" if t == 0 else f"v[{ac}:{ac+15}]"
                A(f"v_mfma_f32_32x32x16_bf16 v[{ac}:{ac+15}], a[{wr}:{wr+3}], v[{b+4*aa}:{b+4*aa+3}], {cin}")
        if t + D < 28: aloads(t + D)
    ts(A, 4, 3)
    A("s_nop 7"); A("s_nop 3")
    reduce4(A, "v", ACC, 64, 80, 0)
    ts(A, 4, 4)
    for r in range(8):
        t8 = 8 + 2 * (r % 4)
        A(f"v_lshlrev_b32 v{t8}, 16, v{HPK+r}"); A(f"v_and_b32 v{t8+1}, 0xffff0000, v{HPK+r}")
        A(f"v_pk_add_f32 v[{64+2*r}:{64+2*r+1}], v[{64+2*r}:{64+2*r+1}], v[{t8}:{t8+1}]")
    OP = 96
    for r in range(8): A(f"v_cvt_pk_bf16_f32 v{OP+r}, v{64+2*r}, v{64+2*r+1}")
    A("s_nop 1")
    for p in range(2):
        A(f"v_permlane32_swap_b32 v{OP+4*p}, v{OP+4*p+2}"); A(f"v_permlane32_swap_b32 v{OP+4*p+1}, v{OP+4*p+3}")
    A("v_lshlrev_b32 v6, 10, v3"); A("v_lshl_add_u32 v6, v5, 4, v6")
    A("s_lshl_b32 s8, s70, 15"); A("s_lshl_b32 s9, s69, 7"); A("s_add_u32 s8, s8, s9"); A("s_lshl_b32 s9, s71, 6"); A("s_add_u32 s8, s8, s9")
    for p in range(2): A(f"buffer_store_dwordx4 v[{OP+4*p}:{OP+4*p+3}], v6, s[48:51], s8 offen offset:{p*32}")
    ts(A, 4, 7, True)
    if "dbgts" in EXP:
        A("s_cmp_lg_u32 s3, 0"); A("s_cbranch_scc1 kf_end"); A("s_cmp_lg_u32 s2, 0"); A("s_cbranch_scc1 kf_end")
        A("s_waitcnt vmcnt(0)")
        dbg_stamp(A, 7, "f5")
        A("s_waitcnt vmcnt(0)")
        srd(A, 92, P_WS, 0x79000, 64); srd(A, 84, P_DBG, 0, 256)
        A("v_lshlrev_b32 v253, 2, v0"); A("v_mov_b32 v252, 0")
        A("buffer_load_dword v254, v253, s[92:95], 0 offen sc1"); A("buffer_load_dword v251, v252, s[92:95], 0 offen sc1")
        A("s_waitcnt vmcnt(0)")
        A("v_sub_u32 v254, v254, v251")
        A("buffer_store_dword v254, v253, s[84:87], 0 offen")
    A.label("kf_end")
    A("s_endpgm")

def gen_k1z(A):
    G3.ZERO_CNT = (WS_CNT, SZ_CNT)
    G3.gen_k1(A)

def build(path):
    kernels = [("k1_kernel", gen_k1z, (256, 163840, 512), 256, 256),
               ("kf_kernel", gen_kf, (256, 163840, 256), 512, 256)]
    hdr = open(f"cdna_kernels/{KNAME}.s.ref").read().split("\n")
    out = [l for l in hdr if l.startswith(";") and "@launch" not in l and "Override launch" not in l and "grid=ceil" not in l]
    for (n, g, (wg, lds, thr), vg, ac) in kernels:
        out.append(f"; @launch kernel={n} grid=({wg},1,1) block=({thr},1,1) lds={lds}")
    out.append('.amdgcn_target "amdgcn-amd-amdhsa--gfx950"'); out.append(".text")
    nerr = 0
    for (n, g, _, vg, ac) in kernels:
        A = Asm(); g(A)
        A.lines = [l for l in A.lines if l is not None]
        for variant in (A.lines, strip_opt(A.lines)):
            errs = check(variant, n)
            for e in errs[:30]: print("CHECK:", e)
            nerr += len(errs)
        out.append(f".globl {n}\n.p2align 8\n.type {n},@function"); out.append(A.text())
    out.append("code_end:\n  s_endpgm")
    out.append('.section .rodata,"a"')
    for (n, g, _, vg, ac) in kernels: out.append(kd(n, vg, ac))
    open(path, "w").write("\n".join(out) + "\n")
    print("written", path, "check errors:", nerr)
    import subprocess
    r = subprocess.run(["clang", "-x", "assembler", "-target", "amdgcn-amd-amdhsa", "-mcpu=gfx950", "-c", path, "-o", "x.o"], capture_output=True, text=True)
    if r.returncode: print(r.stderr[:2000])

if __name__ == "__main__":
    if "--ts" in sys.argv: G.TS = True; sys.argv.remove("--ts")
    build(sys.argv[1])
```

```python
import sys, struct
sys.path.insert(0, "dev")
from asmlib import *
import gen as G
from gen import (KNAME, MB, WS_KVZ, SZ_KVZ, WS_STATS, SZ_STATS, WS_CSP, SZ_CSP, WS_PQ, SZ_PQ, WS_H, SZ_H, WS_ACT, SZ_ACT,
                 WS_WGU, SZ_WGU, WS_WD, SZ_WD, WS_WO, SZ_WO, f32, LOG2E, ONES, P_X, P_WQKV, P_WO, P_BX, P_WG, P_WU, P_WD,
                 P_OUT, P_DBG, P_WS, prologue, srd, halves_sum, kd, strip_opt, WS_TS)
ZERO_CNT = None
SZ_CSP = 16 * 3584 * 4
WS_CS = 0x7C000; SZ_CS = 3584 * 4
def ts(A, k, slot, wait=False): G.ts_mark(A, k, slot, wait)

class VMQ:
    def __init__(self): self.q = []
    def add(self, tag, n=1): self.q += [tag] * n
    def need(self, *tags):
        idx = [i for i, x in enumerate(self.q) if x in tags]
        return len(self.q) - 1 - max(idx)

import os
EXP = set(os.environ.get("EXP", "").split(","))
STP = " sc1" if "nosc1" not in EXP else ""
JOBI = int(os.environ.get("JOBI", "3"))
JOBF = int(os.environ.get("JOBF", "4"))
NPRE = int(os.environ.get("NPRE", "8"))
VFAST = int(os.environ.get("VFAST", "8"))
BC = "op_sel_hi:[1,0,1]"
def job_issue(A, jl):
    pass

def gen_k1(A):
    A.label("k1_kernel")
    prologue(A, 256, "k1_end")
    A("s_mov_b32 s59, s3")
    A("s_and_b32 s3, s3, 3")
    A("v_and_b32 v1, 3, v1")
    A("s_and_b32 s4, s2, 7")
    A("s_lshr_b32 s5, s2, 3")
    A("s_lshr_b32 s6, s4, 1"); A("s_lshl_b32 s6, s6, 3"); A("s_lshr_b32 s7, s5, 2"); A("s_add_u32 s6, s6, s7")
    A("s_and_b32 s4, s4, 1"); A("s_lshl_b32 s4, s4, 2"); A("s_and_b32 s5, s5, 3"); A("s_add_u32 s5, s5, s4")
    srd(A, 44, P_WS, WS_KVZ, SZ_KVZ)
    srd(A, 48, P_DBG, 0, 256)
    A("s_cmp_ge_u32 s59, 4"); A("s_cbranch_scc1 k1_loader")
    ts(A, 1, 0)
    A("s_cmp_eq_u32 s3, 0"); A("s_cbranch_scc1 k1_w0")
    A("s_cmp_eq_u32 s3, 1"); A("s_cbranch_scc1 k1_w1")
    A("s_cmp_eq_u32 s3, 2"); A("s_cbranch_scc1 k1_w2")
    for w in (3, 0, 1, 2):
        A.label(f"k1_w{w}")
        if w == 0 and "dbgts" in EXP: dbg_stamp(A, 0, "k1a")
        k1_wave(A, w)
        if w == 0 and "dbgts" in EXP: A("s_waitcnt vmcnt(0)"); dbg_stamp(A, 1, "k1b")
        A("s_branch k1_fin")
    A.label("k1_loader")
    k1_loader(A)
    A("s_branch k1_end")
    A.label("k1_fin")
    ts(A, 1, 7, True)
    A.label("k1_end")
    A("s_endpgm")

def dbg_stamp(A, idx, lab):
    A("s_cmp_lg_u32 s2, 0"); A(f"s_cbranch_scc1 dbg_{lab}")
    A("s_memrealtime s[90:91]")
    srd(A, 92, P_WS, 0x79000, 64)
    A("s_waitcnt lgkmcnt(0)")
    A("v_mov_b32 v254, s90"); A(f"v_mov_b32 v253, {4*idx}")
    A("buffer_store_dword v254, v253, s[92:95], 0 offen sc1")
    A.label(f"dbg_{lab}")

def lds_signal(A, addr):
    A(f"v_mov_b32 v18, {addr}"); A("v_mov_b32 v123, 1")
    A("ds_write_b32 v18, v123")

def lds_wait4(A, addr, lab):
    A(f"v_mov_b32 v18, {addr}")
    A.label(lab)
    A("ds_read_b128 v[124:127], v18")
    A("s_waitcnt lgkmcnt(0)")
    A("v_and_b32 v124, v124, v125"); A("v_and_b32 v126, v126, v127"); A("v_and_b32 v124, v124, v126")
    A("s_nop 0")
    A("v_readfirstlane_b32 s14, v124")
    A("s_nop 3")
    A("s_cmp_eq_u32 s14, 0")
    A(f"s_cbranch_scc1 {lab}")

def lds_wait(A, addr, lab):
    A(f"v_mov_b32 v18, {addr}")
    A.label(lab)
    A("ds_read_b32 v123, v18")
    A("s_waitcnt lgkmcnt(0)")
    A("v_readfirstlane_b32 s14, v123")
    A("s_nop 3")
    A("s_cmp_eq_u32 s14, 0")
    A(f"s_cbranch_scc1 {lab}")

def k1_loader(A):
    ts(A, 0, 0)
    q = VMQ()
    srd(A, 36, P_X, 0, 2048 * 1024)
    srd(A, 40, P_WQKV, 0, 512 * 3072)
    A("s_cmp_lg_u32 s6, 0"); A("s_cbranch_scc1 k1_nozero")
    A("v_lshl_add_u32 v8, v1, 6, v0"); A("v_lshlrev_b32 v8, 4, v8")
    for i in range(4): A(f"v_mov_b32 v{12+i}, 0")
    A("s_mul_i32 s12, s5, 4352")
    A("buffer_store_dwordx4 v[12:15], v8, s[44:47], s12 offen sc1")
    A("v_add_u32 v8, 4096, v8"); A("v_cmp_gt_u32 vcc, 4352, v8")
    A("s_and_saveexec_b64 s[14:15], vcc"); A("s_cbranch_execz k1_z2")
    A("buffer_store_dwordx4 v[12:15], v8, s[44:47], s12 offen sc1")
    A.label("k1_z2"); A("s_mov_b64 exec, s[14:15]")
    A.label("k1_nozero")
    if ZERO_CNT:
        A("s_cmp_lg_u32 s2, 2"); A("s_cbranch_scc1 k1_nocz"); A("s_cmp_lg_u32 s3, 0"); A("s_cbranch_scc1 k1_nocz")
        srd(A, 52, P_WS, ZERO_CNT[0], ZERO_CNT[1])
        A("v_lshlrev_b32 v8, 7, v0"); A("v_mov_b32 v12, 0")
        A("buffer_store_dword v12, v8, s[52:55], 0 offen sc1")
        A.label("k1_nocz")
    A("v_lshrrev_b32 v4, 3, v0"); A("v_and_b32 v5, 7, v0"); A("v_lshrrev_b32 v6, 4, v0"); A("v_xor_b32 v5, v5, v6")
    A("v_lshlrev_b32 v5, 4, v5"); A("v_lshl_add_u32 v2, v4, 10, v5"); A("v_xor_b32 v3, 64, v2")
    A("s_lshl_b32 s7, s6, 16"); A("s_lshl_b32 s12, s3, 14"); A("s_add_u32 s7, s7, s12")
    A(f"s_mul_i32 s8, s3, {16*3072}"); A("s_lshl_b32 s12, s5, 7"); A("s_add_u32 s8, s8, s12")
    A("s_lshl_b32 s9, s3, 11"); A(f"s_mul_i32 s10, s3, {6*1024}"); A("s_add_u32 s10, s10, 8192")
    ROT = "rot" in EXP
    if ROT: A("s_and_b32 s58, s6, 7")
    def kst(stage, dst, mul):
        if ROT:
            A(f"s_add_u32 s{dst}, s58, {stage}"); A(f"s_and_b32 s{dst}, s{dst}, 7"); A(f"s_mul_i32 s{dst}, s{dst}, {mul}")
        else:
            A(f"s_mov_b32 s{dst}, {stage*mul}")
    def xdma(stage):
        slot = (stage % 4) * 32768
        kst(stage, 57, 128); A("s_add_u32 s57, s57, s7")
        for i in range(2):
            A(f"s_add_u32 m0, s9, {slot + i*1024}"); A(f"s_add_u32 s13, s57, {i*8192}")
            A(f"buffer_load_dwordx4 v{2+i}, s[36:39], s13 offen lds"); q.add(("st", stage))
    xdma(0)
    A("s_movk_i32 s12, 2731"); A("s_movk_i32 s13, 3072")
    for b in range(3):
        A(f"v_add_u32 v8, {64*b}, v0"); A("v_mul_lo_u32 v9, v8, s12"); A("v_lshrrev_b32 v9, 16, v9")
        A("v_mul_u32_u24 v10, 24, v9"); A("v_sub_u32 v10, v8, v10"); A(f"v_mul_lo_u32 v{4+b}, v9, s13")
        A("v_lshrrev_b32 v11, 3, v10"); A(f"v_lshl_add_u32 v{4+b}, v11, 10, v{4+b}")
        A("v_bfe_u32 v11, v10, 2, 1"); A("v_bfe_u32 v12, v9, 1, 1"); A("v_xor_b32 v11, v11, v12")
        A(f"v_lshl_add_u32 v{4+b}, v11, 6, v{4+b}"); A("v_and_b32 v11, 3, v10"); A(f"v_lshl_add_u32 v{4+b}, v11, 4, v{4+b}")
    def wdma(stage):
        slot = (stage % 4) * 32768
        kst(stage, 56, 64 * 3072); A("s_add_u32 s56, s56, s8")
        for a in range(2):
            for b in range(3):
                A(f"s_add_u32 m0, s10, {slot + (a*3+b)*1024}")
                if b == 0: A(f"s_add_u32 s12, s56, {a*8*3072}")
                else: A("s_nop 0")
                A(f"buffer_load_dwordx4 v{4+b}, s[40:43], s12 offen lds"); q.add(("st", stage))
    wdma(0)
    xdma(1); wdma(1)
    job = "nojob" not in EXP
    A("s_barrier")
    ts(A, 0, 1)
    A(f"s_waitcnt vmcnt({q.need(('st', 0))})")
    A("s_barrier")
    A("s_cmp_lg_u32 s6, 0"); A("s_cbranch_scc1 k1_noflag"); A("s_cmp_lg_u32 s3, 0"); A("s_cbranch_scc1 k1_noflag")
    A("v_mov_b32 v20, 1"); A("s_lshl_b32 s12, s5, 2"); A("v_mov_b32 v21, s12")
    A("s_mov_b64 exec, 1")
    A("buffer_store_dword v20, v21, s[48:51], 0 offen sc1")
    A("s_mov_b64 exec, -1")
    A.label("k1_noflag")
    for st in range(2, 4): xdma(st); wdma(st)
    if JOBI == -1 and job: job_issue(A, q)
    FL = 131072 + 24576 + 4096
    A("s_lshl_b32 s12, s3, 2"); A(f"s_add_u32 s12, s12, {FL + 64}"); A("v_mov_b32 v22, s12"); A("v_mov_b32 v23, 1")
    for st in range(7):
        A(f"s_waitcnt vmcnt({q.need(('st', st + 1))})")
        if st < 4: A("s_barrier")
        else: A(f"ds_write_b32 v22, v23 offset:{(st - 4) * 16}")
        if st + 4 < 8: xdma(st + 4); wdma(st + 4)
        if st == JOBI and job:
            ts(A, 0, 2)
            job_issue(A, q)
    if job:
        A("s_waitcnt vmcnt(0)")
        ts(A, 0, 3)
        job_finish(A)
    ts(A, 0, 7, True)

def k1_wave(A, w):
    wm, wn = w >> 1, w & 1
    q = VMQ()
    A("v_and_b32 v20, 31, v0"); A("v_lshrrev_b32 v21, 5, v0"); A("v_bfe_u32 v22, v0, 1, 3")
    A("v_xor_b32 v22, v22, v21"); A("v_lshlrev_b32 v22, 4, v22"); A("v_lshl_add_u32 v22, v20, 7, v22")
    A(f"v_add_u32 v8, {wm*4096}, v22")
    for t in range(1, 4): A(f"v_xor_b32 v{8+t}, {32*t}, v8")
    for t in range(4): A(f"v_add_u32 v{12+t}, 0x10000, v{8+t}")
    A("v_bfe_u32 v22, v0, 2, 2"); A("v_lshl_add_u32 v23, v21, 3, v22"); A("v_mul_u32_u24 v23, 384, v23")
    A("v_bfe_u32 v22, v0, 3, 1")
    if wn: A("v_xor_b32 v22, 1, v22")
    A("v_lshl_add_u32 v23, v22, 6, v23"); A("v_bfe_u32 v22, v0, 4, 1"); A("v_lshl_add_u32 v23, v22, 5, v23")
    A("v_and_b32 v22, 3, v0"); A("v_lshl_add_u32 v16, v22, 3, v23"); A("v_add_u32 v17, 0x10000, v16")
    XF = [24, 28]; WF = [32, 44]; ACC = 64
    RS, RQ, CS = 112, 114, 116
    RS2, RQ2, CS2 = 232, 234, 236
    for r in list(range(RS, CS + 3)) + list(range(RS2, CS2 + 3)): A(f"v_mov_b32 v{r}, 0")
    def reads(k):
        st, t = divmod(k, 4); sl = st % 4; hi = sl >= 2; off = (sl % 2) * 32768; b = k % 2
        L = [f"ds_read_b128 v[{XF[b]}:{XF[b]+3}], v{(12 if hi else 8)+t} offset:{off}"]
        for p in range(3):
            d = WF[b] + 4 * p; o = off + 8192 + t * 6144 + p * 128
            L.append(f"ds_read_b64_tr_b16 v[{d}:{d+1}], v{17 if hi else 16} offset:{o}")
            L.append(f"ds_read_b64_tr_b16 v[{d+2}:{d+3}], v{17 if hi else 16} offset:{o + 1536}")
        return L
    FL = 131072 + 24576 + 4096
    A(f"v_mov_b32 v18, {FL + w*16}"); A("v_mov_b32 v19, 0")
    A("ds_write_b64 v18, v[18:19]") if False else None
    A("v_mov_b32 v22, 0"); A("v_mov_b32 v23, 0")
    A("v_mov_b32 v24, 0"); A("v_mov_b32 v25, 0"); A("v_mov_b32 v26, 0"); A("v_mov_b32 v27, 0")
    A("ds_write_b128 v18, v[24:27]")
    A("ds_write_b128 v18, v[24:27] offset:64")
    srd(A, 36, P_X, 0, 2048 * 1024); srd(A, 40, P_WQKV, 0, 512 * 3072)
    A("s_lshr_b32 s12, s2, 3"); A("s_lshl_b32 s12, s12, 2"); A(f"s_add_u32 s12, s12, {w}")
    A("s_and_b32 s13, s2, 7")
    A("s_lshr_b32 s15, s13, 1"); A("s_lshl_b32 s15, s15, 19"); A("s_lshl_b32 s14, s12, 12"); A("s_add_u32 s15, s15, s14")
    A("v_lshlrev_b32 v245, 7, v20")
    A("v_min_u32 v22, 47, v0"); A("v_mul_u32_u24 v23, 43, v22"); A("v_lshrrev_b32 v23, 9, v23")
    A("v_mul_u32_u24 v24, 12, v23"); A("v_sub_u32 v24, v22, v24")
    A("v_mul_u32_u24 v23, 3072, v23"); A("v_lshrrev_b32 v25, 2, v24"); A("v_lshl_add_u32 v23, v25, 10, v23")
    A("v_and_b32 v24, 3, v24"); A("v_lshl_add_u32 v23, v24, 7, v23")
    A("s_mul_i32 s14, s12, 12288"); A("s_and_b32 s13, s13, 1"); A("s_lshl_b32 s13, s13, 9"); A("s_add_u32 s14, s14, s13")
    A("s_waitcnt lgkmcnt(0)")
    A("s_barrier")
    if "nopf" not in EXP:
        A("buffer_load_dword v241, v23, s[40:43], s14 offen"); q.add("pf")
    if w == 1 and "tlbpf" in EXP:
        srd(A, 64, P_WS, 0, 24 * MB)
        A("v_lshlrev_b32 v22, 19, v0"); A("v_min_u32 v22, 0x17f0000, v22")
        A("buffer_load_dword v243, v22, s[64:67], 0 offen")
        srd(A, 64, P_OUT, 0, 2 * MB)
        A("v_lshlrev_b32 v22, 15, v0")
        A("buffer_load_dword v244, v22, s[64:67], 0 offen")
    if w == 0 and "codepf" in EXP:
        A("s_getpc_b64 s[64:65]")
        A.label("k1_pc")
        A("s_add_u32 s64, s64, k1_kernel-k1_pc")
        A("s_addc_u32 s65, s65, -1")
        A("s_lshr_b32 s12, s2, 3"); A("s_lshl_b32 s12, s12, 13")
        A("v_lshlrev_b32 v22, 7, v0"); A("v_add_u32 v22, s12, v22")
        A("s_mov_b32 s13, code_end-k1_kernel-4")
        A("s_cmp_gt_u32 s12, s13"); A("s_cbranch_scc1 k1_nocpf")
        A("v_min_u32 v22, s13, v22")
        A("global_load_dword v242, v22, s[64:65]")
        A.label("k1_nocpf")
    ts(A, 1, 1)
    A("s_waitcnt lgkmcnt(0)")
    A("s_barrier")
    if "noxpf" not in EXP: A("buffer_load_dword v240, v245, s[36:39], s15 offen"); q.add("pf")
    ts(A, 1, 2)
    for l in reads(0): A(l)
    A("s_waitcnt lgkmcnt(0)")
    for k in range(32):
        st, t = divmod(k, 4); b = k % 2
        if t == 3 and k + 1 < 32:
            if st < 4: A("s_barrier")
            else: lds_wait4(A, FL + 64 + (st - 4) * 16, f"k1_lf{w}_{st}")
        if k == 28: lds_signal(A, FL + w * 4)
        if k == 24:
            A("s_lshl_b32 s14, s5, 2"); A("v_mov_b32 v120, s14")
            A("buffer_load_dword v121, v120, s[48:51], 0 offen sc1"); q.add("flag")
        rd = reads(k + 1) if k + 1 < 32 else []
        x = XF[b]; wf = WF[b]
        c0 = "0" if k == 0 else None
        def C(r): return "0" if k == 0 else f"v[{r}:{r+15}]"
        A(f"v_mfma_f32_32x32x16_bf16 v[{ACC}:{ACC+15}], v[{wf}:{wf+3}], v[{x}:{x+3}], {C(ACC)}")
        for l in rd[:4]: A(l)
        A(f"v_mfma_f32_32x32x16_bf16 v[{ACC+16}:{ACC+31}], v[{x}:{x+3}], v[{wf+4}:{wf+7}], {C(ACC+16)}")
        for l in rd[4:]: A(l)
        A(f"v_mfma_f32_32x32x16_bf16 v[{ACC+32}:{ACC+47}], v[{x}:{x+3}], v[{wf+8}:{wf+11}], {C(ACC+32)}")
        if (k & 1) == wn and "nodots" not in EXP:
            for j in range(4):
                A(f"v_dot2c_f32_bf16 v{[RS, RS+1, RS2, RS2+1][j]}, {ONES}, v{x+j}")
                A(f"v_dot2c_f32_bf16 v{[RQ, RQ+1, RQ2, RQ2+1][j]}, v{x+j}, v{x+j}")
        if (k & 1) == wm and "nodots" not in EXP:
            for j in range(4):
                for p in range(3): A(f"v_dot2c_f32_bf16 v{(CS if j & 1 else CS2)+p}, {ONES}, v{wf+4*p+j}")
        A("s_waitcnt lgkmcnt(0)")
    ts(A, 1, 3)
    T = 122
    EX = 65536
    A("s_nop 2")
    A(f"v_add_f32 v{RS}, v{RS}, v{RS+1}"); A(f"v_add_f32 v{RS2}, v{RS2}, v{RS2+1}")
    A(f"v_add_f32 v{RQ}, v{RQ}, v{RQ+1}"); A(f"v_add_f32 v{RQ2}, v{RQ2}, v{RQ2+1}")
    for p in range(3): A(f"v_add_f32 v{CS+p}, v{CS+p}, v{CS2+p}")
    A(f"v_add_f32 v{RS}, v{RS}, v{RS2}"); A(f"v_add_f32 v{RQ}, v{RQ}, v{RQ2}")
    hs = [RS, RQ, CS, CS + 1, CS + 2]
    for i, r in enumerate(hs): A(f"v_mov_b32 v{24+i}, v{r}")
    A("s_nop 1")
    for i, r in enumerate(hs): A(f"v_permlane32_swap_b32 v{r}, v{24+i}")
    A("s_nop 1")
    for i, r in enumerate(hs): A(f"v_add_f32 v{r}, v{r}, v{24+i}")
    lds_wait4(A, FL, f"k1_d6{w}")
    A("v_lshlrev_b32 v22, 2, v20"); A(f"v_add_u32 v22, {EX}, v22")
    es = (wm * 2 + wn) * 256; eo = (wm * 2 + (1 - wn)) * 256
    ec = 1024 + (wn * 2 + wm) * 384; eco = 1024 + (wn * 2 + (1 - wm)) * 384
    A(f"ds_write_b32 v22, v{RS} offset:{es}"); A(f"ds_write_b32 v22, v{RQ} offset:{es+128}")
    for p in range(3): A(f"ds_write_b32 v22, v{CS+p} offset:{ec + p*128}")
    C1, CL, CN, CE = 176, 178, 180, 182
    for r, val in ((C1, 1.000001), (CL, LOG2E), (CN, -1.000001 * LOG2E), (CE, 1e-6)):
        A(f"v_mov_b32 v{r}, {f32(val)}"); A(f"v_mov_b32 v{r+1}, {f32(val)}")
    ON = 224
    for j in range(4): A(f"v_mov_b32 v{ON+j}, {ONES}")
    A("v_lshlrev_b32 v23, 4, v21"); A(f"v_add_u32 v23, {EX}, v23")
    lds_signal(A, FL + 16 + w * 4)
    lds_wait4(A, FL + 16, f"k1_sp{w}a")
    ts(A, 1, 6)
    A(f"ds_read_b32 v24, v22 offset:{eo}"); A(f"ds_read_b32 v25, v22 offset:{eo+128}")
    for p in range(3): A(f"ds_read_b32 v{26+p}, v22 offset:{eco + p*128}")
    A("s_waitcnt lgkmcnt(0)")
    A(f"v_add_f32 v{RS}, v{RS}, v24"); A(f"v_add_f32 v{RQ}, v{RQ}, v25")
    for p in range(3): A(f"v_add_f32 v{CS+p}, v{CS+p}, v{26+p}")
    PR = 4096 + w * 512
    A(f"ds_write_b32 v22, v{CS} offset:{PR+256}")
    A(f"v_mul_f32 v{RS}, {f32(1/512)}, v{RS}"); A(f"v_mul_f32 v{RQ}, {f32(1/512)}, v{RQ}")
    A(f"v_fma_f32 v{RQ}, -v{RS}, v{RS}, v{RQ}"); A(f"v_max_f32 v{RQ}, 0, v{RQ}"); A(f"v_add_f32 v{RQ}, {f32(1e-5)}, v{RQ}")
    A(f"v_rsq_f32 v{RQ}, v{RQ}"); A("s_nop 0")
    A(f"v_mul_f32 v{RS}, v{RS}, v{RQ}"); A(f"v_sub_f32 v{RS}, 0, v{RS}")
    A(f"ds_write_b32 v22, v{RQ} offset:{PR}"); A(f"ds_write_b32 v22, v{RS} offset:{PR+128}")
    SA, SB, SC = 128, 144, 160
    A(f"v_mov_b32 v184, v{RQ}"); A(f"v_mov_b32 v186, v{RS}"); A(f"v_mov_b32 v188, v{CS+1}"); A(f"v_mov_b32 v190, v{CS+2}")
    A("s_waitcnt lgkmcnt(0)")
    for qd in range(4):
        A(f"ds_read_b128 v[{SA+4*qd}:{SA+4*qd+3}], v23 offset:{PR + qd*32}")
        A(f"ds_read_b128 v[{SB+4*qd}:{SB+4*qd+3}], v23 offset:{PR + 128 + qd*32}")
    for qd in range(4): A(f"ds_read_b128 v[{SC+4*qd}:{SC+4*qd+3}], v23 offset:{PR + 256 + qd*32}")
    A("s_waitcnt lgkmcnt(4)")
    TP = 40
    def phi_vec(base, mode):
        prs = list(range(0, 16, 2))
        for i in prs:
            if mode == "q": A(f"v_pk_fma_f32 v[{TP+i}:{TP+i+1}], v[{SC+i}:{SC+i+1}], v[186:187], v[{C1}:{C1+1}] op_sel_hi:[1,0,1]")
            else:           A(f"v_pk_fma_f32 v[{TP+i}:{TP+i+1}], v[{SB+i}:{SB+i+1}], v[188:189], v[{C1}:{C1+1}] op_sel_hi:[1,0,1]")
        for i in prs:
            r = base + i
            if mode == "q": A(f"v_pk_fma_f32 v[{r}:{r+1}], v[{r}:{r+1}], v[184:185], v[{TP+i}:{TP+i+1}] op_sel_hi:[1,0,1]")
            else:           A(f"v_pk_fma_f32 v[{r}:{r+1}], v[{r}:{r+1}], v[{SA+i}:{SA+i+1}], v[{TP+i}:{TP+i+1}]")
        for i in prs:
            r = base + i
            A(f"v_pk_fma_f32 v[{TP+i}:{TP+i+1}], v[{r}:{r+1}], v[{CL}:{CL+1}], v[{CN}:{CN+1}]")
        for i in range(16): A(f"v_exp_f32_e64 v{TP+i}, v{TP+i} clamp")
        for i in prs: A(f"v_pk_add_f32 v[{TP+i}:{TP+i+1}], v[{TP+i}:{TP+i+1}], v[{CE}:{CE+1}]")
        for i in range(16): A(f"v_max_f32 v{base+i}, v{base+i}, v{TP+i}")
    PK = 200
    for r in range(0, 16, 2): A(f"v_pk_mul_f32 v[{24+r}:{24+r+1}], v[{SB+r}:{SB+r+1}], v[190:191] op_sel_hi:[1,0]")
    for r in range(0, 16, 2):
        rg = ACC + 32 + r
        A(f"v_pk_fma_f32 v[{rg}:{rg+1}], v[{rg}:{rg+1}], v[{SA+r}:{SA+r+1}], v[{24+r}:{24+r+1}]")
    phi_vec(ACC + 16, "k")
    for r in range(8): A(f"v_cvt_pk_bf16_f32 v{PK+16+r}, v{ACC+32+2*r}, v{ACC+32+2*r+1}")
    for r in range(8): A(f"v_cvt_pk_bf16_f32 v{PK+8+r}, v{ACC+16+2*r}, v{ACC+16+2*r+1}")
    A("s_nop 1")
    kp, vp = PK + 8, PK + 16; D = ACC + 16; Z = ACC + 32
    A(f"v_mfma_f32_32x32x16_bf16 v[{D}:{D+15}], v[{vp}:{vp+3}], v[{kp}:{kp+3}], 0")
    A(f"v_mfma_f32_32x32x16_bf16 v[{Z}:{Z+15}], v[{ON}:{ON+3}], v[{kp}:{kp+3}], 0")
    A(f"v_mfma_f32_32x32x16_bf16 v[{D}:{D+15}], v[{vp+4}:{vp+7}], v[{kp+4}:{kp+7}], v[{D}:{D+15}]")
    A(f"v_mfma_f32_32x32x16_bf16 v[{Z}:{Z+15}], v[{ON}:{ON+3}], v[{kp+4}:{kp+7}], v[{Z}:{Z+15}]")
    A("v_and_b32 v22, 16, v0"); A("v_cmp_ne_u32 vcc, 0, v22")
    A("v_lshlrev_b32 v19, 2, v0"); A(f"v_add_u32 v19, {EX + 8192}, v19")
    A("v_bfe_u32 v9, v0, 4, 1"); A("s_movk_i32 s13, 1088"); A("v_mul_lo_u32 v9, v9, s13")
    A("v_and_b32 v10, 15, v0"); A("v_lshl_add_u32 v9, v10, 2, v9"); A("v_lshl_add_u32 v10, v21, 8, v9")
    A("s_lshl_b32 s13, s5, 2"); A(f"s_add_u32 s13, s13, {2*wn}"); A("s_mulk_i32 s13, 1088")
    A("s_nop 7")
    for r in range(8): A(f"v_cndmask_b32 v{24+r}, v{D+r}, v{D+8+r}, vcc")
    keep = list(range(4 * wm, 4 * wm + 4)); send = [r for r in range(8) if r not in keep]
    mine = (wn * 2 + wm) * 2304; other = (wn * 2 + 1 - wm) * 2304
    for r in send: A(f"ds_write_b32 v19, v{24+r} offset:{mine + r*256}")
    if wm == 1: A(f"ds_write_b32 v19, v{Z} offset:{mine + 8*256}")
    lds_signal(A, FL + 32 + w * 4)
    lds_wait(A, FL + 32 + ((1 - wm) * 2 + wn) * 4, f"k1_sp{w}c")
    for i, r in enumerate(keep): A(f"ds_read_b32 v{32+i}, v19 offset:{other + r*256}")
    if wm == 0: A(f"ds_read_b32 v36, v19 offset:{other + 8*256}")
    A(f"s_waitcnt vmcnt({q.need('flag')})")
    A("s_waitcnt lgkmcnt(0)")
    for i, r in enumerate(keep): A(f"v_add_f32 v{24+r}, v{24+r}, v{32+i}")
    if wm == 0: A(f"v_add_f32 v36, v36, v{Z}")
    A("s_mov_b32 s15, 0")
    A.label(f"k1_poll{w}")
    A("v_readfirstlane_b32 s14, v121"); A("s_add_u32 s15, s15, 1"); A("s_nop 2"); A("s_cmp_lg_u32 s14, 0"); A(f"s_cbranch_scc1 k1_go{w}")
    A("s_cmp_ge_u32 s15, 0x20000"); A(f"s_cbranch_scc1 k1_go{w}")
    A("s_sleep 2"); A("buffer_load_dword v121, v120, s[48:51], 0 offen sc1"); A("s_waitcnt vmcnt(0)"); A(f"s_branch k1_poll{w}")
    A.label(f"k1_go{w}")
    for i, r in enumerate(keep):
        A(f"buffer_atomic_add_f32 v{24+r}, v10, s[44:47], s13 offen offset:{wm*512 + (r&3)*64}")
    if wm == 0:
        A("s_mov_b64 exec, 0xffffffff")
        A("buffer_atomic_add_f32 v36, v9, s[44:47], s13 offen offset:1024")
        A("s_mov_b64 exec, -1")
    ts(A, 1, 4)
    phi_vec(ACC, "q")
    for r in range(8): A(f"v_cvt_pk_bf16_f32 v{PK+r}, v{ACC+2*r}, v{ACC+2*r+1}")
    srd(A, 52, P_WS, WS_PQ, SZ_PQ)
    A("s_lshl_b32 s12, s6, 1"); A(f"s_add_u32 s12, s12, {wm}"); A("s_lshl_b32 s12, s12, 5")
    A("s_lshl_b32 s13, s5, 2"); A("s_add_u32 s12, s12, s13"); A(f"s_add_u32 s12, s12, {2*wn}"); A("s_lshl_b32 s12, s12, 10")
    A("v_lshlrev_b32 v18, 4, v0")
    A(f"buffer_store_dwordx4 v[{PK}:{PK+3}], v18, s[52:55], s12 offen{STP}")
    A(f"buffer_store_dwordx4 v[{PK+4}:{PK+7}], v18, s[52:55], s12 offen offset:1024{STP}")
    ts(A, 1, 5)

def job_issue(A, q):
    A("s_lshl_b32 s70, s3, 8"); A("s_add_u32 s70, s70, s2")
    A("s_lshl_b32 s71, s3, 13"); A("s_add_u32 s71, s71, 131072")
    A("v_lshrrev_b32 v28, 3, v0"); A("v_and_b32 v29, 7, v0"); A("v_lshlrev_b32 v29, 4, v29")
    A("v_lshl_add_u32 v30, v28, 10, v29")
    A("s_mov_b32 s72, 3")
    srd(A, 76, P_WO, 0, 0); srd(A, 80, P_WO, 0, 0)
    A("s_mov_b32 s88, 0"); A("s_mov_b32 s90, 0"); A("s_mov_b32 s91, 0")
    A("s_mov_b32 s62, 0"); A(f"s_mov_b32 s63, {131072 + 24576}")
    A("s_cmp_ge_u32 s70, 736"); A("s_cbranch_scc1 k1_js_done")
    A("s_movk_i32 s62, 1024"); A("s_mov_b32 s63, s71")
    A("s_cmp_lt_u32 s70, 448"); A("s_cbranch_scc1 k1_js_gu")
    A("s_mov_b32 s72, 1")
    A("s_cmp_lt_u32 s70, 672"); A("s_cbranch_scc1 k1_js_wd")
    srd(A, 76, P_WO, 0, 512 * 1024); srd(A, 80, P_WO, 0, 512 * 1024); srd(A, 84, P_WS, WS_WO, SZ_WO)
    A("s_mov_b32 s73, 32"); A("s_sub_u32 s70, s70, 672")
    A("s_branch k1_js_dd")
    A.label("k1_js_wd")
    srd(A, 76, P_WD, 0, 1792 * 1024); srd(A, 80, P_WD, 0, 1792 * 1024); srd(A, 84, P_WS, WS_WD, SZ_WD)
    A("s_mov_b32 s73, 112"); A("s_sub_u32 s70, s70, 448")
    A.label("k1_js_dd")
    A("s_lshr_b32 s74, s70, 3"); A("s_and_b32 s75, s70, 7")
    A("s_lshl_b32 s88, s74, 16"); A("s_lshl_b32 s89, s75, 7"); A("s_add_u32 s88, s88, s89")
    A("s_movk_i32 s90, 8192"); A("s_add_u32 s91, s88, 32768")
    A("s_branch k1_js_done")
    A.label("k1_js_gu")
    A("s_mov_b32 s72, 0")
    srd(A, 76, P_WG, 0, 512 * 3584); srd(A, 80, P_WU, 0, 512 * 3584); srd(A, 84, P_WS, WS_WGU, SZ_WGU)
    A("s_mul_i32 s74, s70, 2341"); A("s_lshr_b32 s74, s74, 16"); A("s_mul_i32 s75, s74, 28"); A("s_sub_u32 s75, s70, s75")
    A("s_movk_i32 s89, 3584"); A("v_mul_lo_u32 v30, v28, s89"); A("v_add_u32 v30, v30, v29")
    A(f"s_mul_i32 s88, s74, {32*3584}"); A("s_lshl_b32 s89, s75, 7"); A("s_add_u32 s88, s88, s89")
    A(f"s_movk_i32 s90, {8*3584}"); A("s_mov_b32 s91, s88")
    A.label("k1_js_done")
    for i in range(8):
        A("s_mov_b32 m0, s63")
        rg = 88 if i < 4 else 91
        A("s_add_u32 s63, s63, s62")
        A(f"buffer_load_dwordx4 v30, s[{76 if i < 4 else 80}:{79 if i < 4 else 83}], s{rg} offen lds"); q.add("job")
        A(f"s_add_u32 s{rg}, s{rg}, s90")

def job_finish(A):
    A("s_cmp_eq_u32 s72, 3"); A("s_cbranch_scc1 k1_jf_end")
    A("v_lshlrev_b32 v34, 4, v0")
    A("v_lshrrev_b32 v35, 5, v0"); A("v_bfe_u32 v36, v0, 2, 2"); A("v_lshl_add_u32 v35, v35, 2, v36"); A("v_lshlrev_b32 v35, 7, v35")
    A("v_and_b32 v36, 3, v0"); A("v_lshl_add_u32 v35, v36, 3, v35"); A("v_add_u32 v35, s71, v35"); A("v_bfe_u32 v36, v0, 4, 1")
    A("s_cmp_eq_u32 s72, 0"); A("s_cbranch_scc1 k1_jf_gu")
    A("v_lshl_add_u32 v35, v36, 5, v35")
    A("s_lshl_b32 s60, s75, 1"); A("s_mul_i32 s60, s60, s73"); A("s_lshl_b32 s61, s74, 2"); A("s_add_u32 s60, s60, s61")
    A("s_lshl_b32 s60, s60, 10"); A("s_lshl_b32 s61, s73, 10")
    for c in range(2):
        for i in range(4):
            d = 40 + (c * 4 + i) * 4
            A(f"ds_read_b64_tr_b16 v[{d}:{d+1}], v35 offset:{i*2048 + c*64}")
            A(f"ds_read_b64_tr_b16 v[{d+2}:{d+3}], v35 offset:{i*2048 + c*64 + 1024}")
    A("s_waitcnt lgkmcnt(0)")
    for c in range(2):
        for i in range(4):
            d = 40 + (c * 4 + i) * 4
            A(f"buffer_store_dwordx4 v[{d}:{d+3}], v34, s[84:87], s60 offen offset:{i*1024}{STP}")
        A("s_add_u32 s60, s60, s61")
    A("s_branch k1_jf_end")
    A.label("k1_jf_gu")
    srd(A, 76, P_WS, WS_CSP, SZ_CSP)
    A("v_lshl_add_u32 v35, v36, 12, v35")
    A("s_lshl_b32 s60, s75, 7"); A("s_lshl_b32 s61, s74, 1"); A("s_add_u32 s60, s60, s61"); A("s_lshl_b32 s60, s60, 10")
    for c in range(8): A(f"v_mov_b32 v{72+c}, 0")
    for c in range(4):
        for i in range(2):
            d = 40 + (c * 2 + i) * 4
            A(f"ds_read_b64_tr_b16 v[{d}:{d+1}], v35 offset:{i*2048 + c*32}")
            A(f"ds_read_b64_tr_b16 v[{d+2}:{d+3}], v35 offset:{i*2048 + c*32 + 1024}")
    A("s_waitcnt lgkmcnt(0)")
    for c in range(4):
        A(f"s_add_u32 s61, s60, {c*32*1024}")
        for i in range(2):
            d = 40 + (c * 2 + i) * 4
            A(f"buffer_store_dwordx4 v[{d}:{d+3}], v34, s[84:87], s61 offen offset:{i*1024}{STP}")
    for j in range(4):
        for i in range(2):
            for c in range(4): A(f"v_dot2c_f32_bf16 v{72+4*i+c}, {ONES}, v{40+(c*2+i)*4+j}")
    A("s_nop 2")
    for c in range(4): A(f"v_add_f32 v{72+c}, v{72+c}, v{76+c}")
    A("s_mulk_i32 s74, 3584"); A("s_lshl_b32 s61, s75, 7"); A("s_add_u32 s74, s74, s61"); A("s_lshl_b32 s74, s74, 2")
    A("v_and_b32 v32, 31, v0"); A("v_lshlrev_b32 v32, 2, v32")
    for c in range(4): halves_sum(A, 72 + c, 33)
    for c in range(4): A(f"buffer_store_dword v{72+c}, v32, s[76:79], s74 offen offset:{c*128}{STP}")
    A.label("k1_jf_end")

def ksplit_reduce(A, pre, ACC, OUT, TMP):
    A("v_lshlrev_b32 v7, 4, v0")
    for qd in range(1, 4):
        A(f"s_xor_b32 s8, s3, {qd}"); A("s_mulk_i32 s8, 12288"); A("v_add_u32 v6, s8, v7")
        for j in range(4):
            r = ACC + 16 * qd + 4 * j
            A(f"ds_write_b128 v6, {pre}[{r}:{r+3}] offset:{(qd-1)*4096 + j*1024}")
    if pre == "a":
        for r in range(16): A(f"v_accvgpr_read_b32 v{OUT+r}, a{ACC+r}")
    A("s_mul_i32 s8, s3, 12288"); A("v_add_u32 v6, s8, v7")
    A("s_waitcnt lgkmcnt(0)")
    A("s_barrier")
    for p in range(3):
        for j in range(4):
            d = TMP + 16 * p + 4 * j
            A(f"ds_read_b128 v[{d}:{d+3}], v6 offset:{p*4096 + j*1024}")
    own = OUT if pre == "a" else ACC
    A("s_waitcnt lgkmcnt(8)")
    for r in range(0, 16, 2): A(f"v_pk_add_f32 v[{OUT+r}:{OUT+r+1}], v[{own+r}:{own+r+1}], v[{TMP+r}:{TMP+r+1}]")
    A("s_waitcnt lgkmcnt(0)")
    for r in range(0, 16, 2): A(f"v_pk_add_f32 v[{TMP+16+r}:{TMP+16+r+1}], v[{TMP+16+r}:{TMP+16+r+1}], v[{TMP+32+r}:{TMP+32+r+1}]")
    for r in range(0, 16, 2): A(f"v_pk_add_f32 v[{OUT+r}:{OUT+r+1}], v[{OUT+r}:{OUT+r+1}], v[{TMP+16+r}:{TMP+16+r+1}]")

def prefetch(A, srdn, soff, dummy, lane128):
    A(f"buffer_load_dword v{dummy}, v{lane128}, s[{srdn}:{srdn+3}], s{soff} offen")

def gen_k2(A):
    A.label("k2_kernel")
    prologue(A, 256, "k2_end"); ts(A, 2, 0)
    A("s_and_b32 s4, s2, 7"); A("s_lshr_b32 s5, s2, 3"); A("s_mov_b32 s61, s4"); A("s_mov_b32 s62, s5")
    A("s_lshr_b32 s6, s5, 3"); A("s_lshl_b32 s4, s4, 2"); A("s_add_u32 s4, s4, s6"); A("s_and_b32 s5, s5, 7")
    srd(A, 36, P_WS, WS_KVZ, SZ_KVZ); srd(A, 40, P_WS, WS_PQ, SZ_PQ); srd(A, 44, P_WS, WS_WO, SZ_WO)
    srd(A, 48, P_X, 0, 2048 * 1024); srd(A, 52, P_WS, WS_H, SZ_H); srd(A, 56, P_WS, WS_STATS, SZ_STATS)
    srd(A, 64, P_WS, WS_WGU, SZ_WGU)
    q = VMQ()
    A("v_lshlrev_b32 v2, 4, v0"); A("v_and_b32 v3, 31, v0"); A("v_min_u32 v4, 16, v3"); A("v_lshlrev_b32 v4, 6, v4")
    A("v_lshrrev_b32 v5, 5, v0"); A("v_lshl_add_u32 v4, v5, 4, v4")
    A("s_lshl_b32 s8, s3, 3"); A("s_mul_i32 s9, s8, 1088")
    A("s_lshr_b32 s12, s3, 1"); A("s_and_b32 s16, s3, 1")
    A("s_lshl_b32 s13, s4, 1"); A("s_add_u32 s13, s13, s12")
    A("s_lshl_b32 s10, s13, 5"); A("s_add_u32 s10, s10, s8"); A("s_lshl_b32 s10, s10, 10")
    A("s_xor_b32 s14, s13, 1"); A("s_lshl_b32 s14, s14, 5"); A("s_add_u32 s14, s14, s8"); A("s_lshl_b32 s14, s14, 10")
    A("s_lshl_b32 s11, s5, 1"); A("s_add_u32 s11, s11, s16"); A("s_xor_b32 s15, s11, 1")
    A("s_lshl_b32 s11, s11, 5"); A("s_add_u32 s11, s11, s8"); A("s_lshl_b32 s11, s11, 10")
    A("s_lshl_b32 s15, s15, 5"); A("s_add_u32 s15, s15, s8"); A("s_lshl_b32 s15, s15, 10")
    KR = 64
    def loads(h):
        A(f"s_add_u32 s12, s9, {h*1088}")
        A(f"buffer_load_dwordx4 v[{KR+8*h}:{KR+8*h+3}], v4, s[36:39], s12 offen"); q.add(("kv", h))
        A(f"buffer_load_dwordx4 v[{KR+8*h+4}:{KR+8*h+7}], v4, s[36:39], s12 offen offset:32"); q.add(("kv", h))
        base = [10, 14, 11, 15]
        dst = [h * 4, (8 + h) * 4, 64 + h * 4, 64 + (8 + h) * 4]
        for i in range(4):
            sr = 40 if i < 2 else 44
            if h == 4: A(f"s_add_u32 s{base[i]}, s{base[i]}, 4096")
            A(f"buffer_load_dwordx4 a[{dst[i]}:{dst[i]+3}], v2, s[{sr}:{sr+3}], s{base[i]} offen offset:{(h%4)*1024}"); q.add(("fr", h))
    for h in range(3): loads(h)
    for r in range(64): A(f"v_accvgpr_write_b32 a{128+r}, 0")
    KA = 32; TT = [[128, 144], [160, 176]]; OF = [[8, 12], [16, 20]]; EPS = 24; XR = 200
    A(f"v_mov_b32 v{EPS}, {f32(1e-6)}")
    ts(A, 2, 1)
    def cv(h): return [f"v_cvt_pk_bf16_f32 v{KA+4*h+j}, v{KR+8*h+2*j}, v{KR+8*h+2*j+1}" for j in range(4)]
    def tm(h, aa):
        T = TT[h % 2][aa]
        return f"v_mfma_f32_32x32x16_bf16 v[{T}:{T+15}], v[{KA+4*h}:{KA+4*h+3}], a[{(aa*8+h)*4}:{(aa*8+h)*4+3}], 0"
    def mm(h, aa, b):
        ac = 128 + 16 * (2 * aa + b); o = OF[h % 2][aa]
        return f"v_mfma_f32_32x32x16_bf16 a[{ac}:{ac+15}], a[{64+(b*8+h)*4}:{64+(b*8+h)*4+3}], v[{o}:{o+3}], a[{ac}:{ac+15}]"
    def valu(h):
        L = []
        T0, T1 = TT[h % 2]; o0, o1 = OF[h % 2]
        L += [f"v_add_f32 v25, v{T0+8}, v{EPS}", f"v_add_f32 v26, v{T1+8}, v{EPS}", "v_rcp_f32 v25, v25", "v_rcp_f32 v26, v26", "s_nop 0"]
        for r in range(8): L += [f"v_mul_f32 v{T0+r}, v{T0+r}, v25", f"v_mul_f32 v{T1+r}, v{T1+r}, v26"]
        for j in range(4): L += [f"v_cvt_pk_bf16_f32 v{o0+j}, v{T0+2*j}, v{T0+2*j+1}", f"v_cvt_pk_bf16_f32 v{o1+j}, v{T1+2*j}, v{T1+2*j+1}"]
        return L
    A(f"s_waitcnt vmcnt({q.need(('fr', 0))})")
    for l in cv(0): A(l)
    ts(A, 2, 2)
    A("s_nop 1")
    A(tm(0, 0)); A(tm(0, 1))
    for h in range(9):
        if h + 3 < 8: loads(h + 3)
        if h == 5:
            A("s_lshl_b32 s17, s13, 15"); A("s_lshl_b32 s60, s5, 7"); A("s_add_u32 s17, s17, s60"); A("s_lshl_b32 s60, s16, 6"); A("s_add_u32 s17, s17, s60")
            A("v_lshlrev_b32 v6, 10, v3"); A("v_lshl_add_u32 v6, v5, 3, v6")
            for qd in range(4):
                A(f"buffer_load_dwordx2 v[{XR+2*qd}:{XR+2*qd+1}], v6, s[48:51], s17 offen offset:{qd*16}"); q.add("x")
            A("s_and_b32 s60, s61, 3"); A("s_mul_i32 s60, s60, 917504"); A("s_mul_i32 s63, s62, 28672"); A("s_add_u32 s60, s60, s63")
            A("s_mul_i32 s63, s3, 7168"); A("s_add_u32 s60, s60, s63")
            A("v_min_u32 v7, 55, v0"); A("v_lshlrev_b32 v7, 7, v7")
            A("buffer_load_dword v208, v7, s[64:67], s60 offen"); q.add("pf")
        if h == 6:
            srd(A, 68, P_WS, WS_CSP, SZ_CSP)
            A("s_lshl_b32 s60, s2, 2"); A("s_add_u32 s60, s60, s3"); A("s_lshl_b32 s63, s60, 8")
            A("v_lshlrev_b32 v7, 2, v0")
            A("s_cmp_ge_u32 s60, 56"); A("s_cbranch_scc1 k2_nocs1")
            A.lines.append(";OPT_BEGIN")
            for kc in range(16):
                A(f"s_add_u32 s60, s63, {kc*3584*4}")
                A(f"buffer_load_dword v{210+kc}, v7, s[68:71], s60 offen")
            A.lines.append(";OPT_END")
            A.label("k2_nocs1")
        ms = []
        if h + 1 < 8:
            A(f"s_waitcnt vmcnt({q.need(('fr', h + 1))})")
            for l in cv(h + 1): A(l)
            A("s_nop 1")
            ms += [tm(h + 1, 0), tm(h + 1, 1)]
        if h >= 1: ms += [mm(h - 1, 0, 0), mm(h - 1, 0, 1), mm(h - 1, 1, 0), mm(h - 1, 1, 1)]
        vl = valu(h) if h < 8 else []
        if h == 0:
            for m_ in ms: A(m_)
            A("s_nop 5")
            for l in vl: A(l)
            A("s_nop 1")
        else:
            per = (len(vl) + len(ms) - 1) // len(ms) if vl else 0
            for m_ in ms:
                A(m_)
                for _ in range(per):
                    if vl: A(vl.pop(0))
            for l in vl: A(l)
            A("s_nop 1")
    ts(A, 2, 3)
    A("s_nop 7"); A("s_nop 3")
    ksplit_reduce(A, "a", 128, 64, 80)
    ts(A, 2, 4)
    A(f"s_waitcnt vmcnt({q.need('x')})")
    for qd in range(4):
        for j in range(2):
            xr = XR + 2 * qd + j; t8 = 8 + 2 * ((2 * qd + j) % 4)
            A(f"v_lshlrev_b32 v{t8}, 16, v{xr}"); A(f"v_and_b32 v{t8+1}, 0xffff0000, v{xr}")
            A(f"v_pk_add_f32 v[{64+4*qd+2*j}:{64+4*qd+2*j+1}], v[{64+4*qd+2*j}:{64+4*qd+2*j+1}], v[{t8}:{t8+1}]")
    HP = 96
    for r in range(8): A(f"v_cvt_pk_bf16_f32 v{HP+r}, v{64+2*r}, v{64+2*r+1}")
    A("s_lshl_b32 s8, s13, 5"); A("s_lshl_b32 s9, s5, 2"); A("s_add_u32 s8, s8, s9"); A("s_lshl_b32 s9, s16, 1"); A("s_add_u32 s8, s8, s9"); A("s_lshl_b32 s8, s8, 10")
    A(f"buffer_store_dwordx4 v[{HP}:{HP+3}], v2, s[52:55], s8 offen{STP}")
    A(f"buffer_store_dwordx4 v[{HP+4}:{HP+7}], v2, s[52:55], s8 offen offset:1024{STP}")
    for r in range(16, 20): A(f"v_mov_b32 v{r}, 0")
    for r in range(8):
        A(f"v_dot2c_f32_bf16 v{16+(r&1)}, {ONES}, v{HP+r}"); A(f"v_dot2c_f32_bf16 v{18+(r&1)}, v{HP+r}, v{HP+r}")
    A("s_nop 2")
    A("v_add_f32 v10, v16, v17"); A("v_add_f32 v11, v18, v19")
    halves_sum(A, 10, 12); halves_sum(A, 11, 12)
    A("s_lshl_b32 s8, s13, 12"); A("s_lshl_b32 s9, s5, 4"); A("s_add_u32 s8, s8, s9"); A("s_lshl_b32 s9, s16, 3"); A("s_add_u32 s8, s8, s9")
    A("v_lshlrev_b32 v6, 7, v3")
    A(f"buffer_store_dwordx2 v[10:11], v6, s[56:59], s8 offen{STP}")
    A("s_lshl_b32 s60, s2, 2"); A("s_add_u32 s60, s60, s3"); A("s_cmp_ge_u32 s60, 56"); A("s_cbranch_scc1 k2_nocs2")
    A("s_waitcnt vmcnt(0)")
    A.lines.append(";OPT_BEGIN")
    for st_ in (8, 4, 2, 1):
        for kc in range(st_): A(f"v_add_f32 v{210+kc}, v{210+kc}, v{210+kc+st_}")
    srd(A, 68, P_WS, WS_CS, SZ_CS)
    A("v_lshlrev_b32 v7, 2, v0")
    A(f"buffer_store_dword v210, v7, s[68:71], s63 offen{STP}")
    A.lines.append(";OPT_END")
    A.label("k2_nocs2")
    ts(A, 2, 7, True)
    A.label("k2_end")
    A("s_endpgm")

def gen_k3(A):
    A.label("k3_kernel")
    prologue(A, 256, "k3_end"); ts(A, 3, 0)
    A("s_and_b32 s4, s2, 7"); A("s_lshr_b32 s5, s2, 3")
    A("s_lshr_b32 s6, s4, 2"); A("s_lshl_b32 s6, s6, 3"); A("s_lshr_b32 s7, s5, 2"); A("s_add_u32 s6, s6, s7")
    A("s_and_b32 s4, s4, 3"); A("s_lshl_b32 s4, s4, 2"); A("s_and_b32 s5, s5, 3"); A("s_add_u32 s5, s5, s4")
    A("s_mov_b32 s4, s6")
    srd(A, 36, P_WS, WS_WGU, SZ_WGU); srd(A, 40, P_WS, WS_H, SZ_H)
    q = VMQ()
    A("v_lshlrev_b32 v2, 4, v0")
    A("s_lshl_b32 s6, s4, 2"); A("s_add_u32 s6, s6, s3")
    A("s_mul_i32 s7, s5, 7")
    A("s_add_u32 s8, s7, s3"); A("s_lshl_b32 s8, s8, 15")
    A("s_lshl_b32 s9, s7, 15"); A("s_lshl_b32 s10, s3, 13"); A("s_add_u32 s9, s9, s10")
    A("s_lshl_b32 s11, s6, 15")
    def dma_groups(stage):
        slot = (stage % 4) * 32768; L = []
        for hlf in range(2):
            for i in range(4):
                g = []
                if i == 0:
                    g.append(f"s_add_u32 m0, s10, {slot + hlf*4096}")
                    g.append(f"s_add_u32 s12, s8, {(8*stage + 4*hlf)*1024}" if stage < 4 else f"s_add_u32 s12, s9, {stage*32768 + hlf*4096}")
                g.append(f"buffer_load_dwordx4 v2, s[36:39], s12 offen offset:{i*1024} lds")
                L.append((g, ("dma", stage)))
        return L
    def h_groups(c):
        L = []
        for t in range(8 * c, 8 * c + 8):
            g = []
            if t % 4 == 0: g.append(f"s_add_u32 s13, s11, {t*1024}")
            g.append(f"buffer_load_dwordx4 a[{4*t}:{4*t+3}], v2, s[40:43], s13 offen offset:{(t%4)*1024}")
            L.append((g, ("h", c)))
        return L
    def emit(gt):
        for l in gt[0]: A(l)
        q.add(gt[1])
    def inter(a, b):
        out = []
        for x, y in zip(a, b): out += [x, y]
        return out
    for gt in inter(dma_groups(0), h_groups(0)): emit(gt)
    srd(A, 44, P_WS, WS_STATS, SZ_STATS); srd(A, 48, P_WS, WS_CS, SZ_CS); srd(A, 52, P_WS, WS_ACT, SZ_ACT)
    SM = 212
    A("v_and_b32 v3, 31, v0"); A("v_lshrrev_b32 v5, 5, v0"); A("v_lshlrev_b32 v4, 7, v3"); A("v_lshl_add_u32 v4, v5, 6, v4")
    A("s_lshl_b32 s14, s6, 12")
    for j in range(4): A(f"buffer_load_dwordx4 v[{SM+4*j}:{SM+4*j+3}], v4, s[44:47], s14 offen offset:{j*16}"); q.add("small")
    A("v_lshl_add_u32 v6, v1, 6, v0"); A("v_min_u32 v6, 223, v6"); A("v_lshlrev_b32 v6, 2, v6")
    A("s_mul_i32 s14, s7, 128")
    A(f"buffer_load_dword v{SM+16}, v6, s[48:51], s14 offen"); q.add("small")
    vpend = inter(dma_groups(1), h_groups(1))
    for _ in range(NPRE): emit(vpend.pop(0))
    vpend += inter(dma_groups(2), h_groups(2)) + inter(dma_groups(3), h_groups(3))
    NM, C1, C2 = 8, 9, 10
    CSL = 131072
    A(f"v_add_u32 v7, {CSL}, v6")
    A(f"v_lshlrev_b32 v11, 4, v5"); A(f"v_add_u32 v11, {CSL}, v11")
    A("v_mov_b32 v12, v2"); A("v_add_u32 v13, 0x10000, v2")
    ACCS = [64 + 16 * i for i in range(7)]
    NAF = 12
    AF = [16 + 4 * i for i in range(NAF)]
    CSR = 176; ET = 192
    A("s_mul_i32 s14, s6, 112"); A("s_add_u32 s14, s14, s7"); A("s_lshl_b32 s14, s14, 10")
    st_l = []
    for j in range(1, 4):
        for e in range(4): st_l.append(f"v_add_f32 v{SM+e}, v{SM+e}, v{SM+4*j+e}")
    st_l += [f"v_add_f32 v{SM}, v{SM}, v{SM+2}", f"v_add_f32 v{SM+1}, v{SM+1}, v{SM+3}",
             f"v_mov_b32 v{SM+4}, v{SM}", f"v_mov_b32 v{SM+5}, v{SM+1}", "s_nop 1",
             f"v_permlane32_swap_b32 v{SM}, v{SM+4}", f"v_permlane32_swap_b32 v{SM+1}, v{SM+5}", "s_nop 1",
             f"v_add_f32 v{SM}, v{SM}, v{SM+4}", f"v_add_f32 v{SM+1}, v{SM+1}, v{SM+5}",
             f"v_mul_f32 v{SM}, {f32(1/512)}, v{SM}", f"v_mul_f32 v{SM+1}, {f32(1/512)}, v{SM+1}",
             f"v_fma_f32 v{SM+1}, -v{SM}, v{SM}, v{SM+1}", f"v_max_f32 v{SM+1}, 0, v{SM+1}", f"v_add_f32 v{SM+1}, {f32(1e-5)}, v{SM+1}",
             f"v_rsq_f32 v{SM+1}, v{SM+1}", f"v_sub_f32 v{NM}, 0, v{SM}",
             f"v_mul_f32 v{C1}, {f32(-LOG2E)}, v{SM+1}", f"v_mul_f32 v{C2}, v{SM+1}, v{SM+1}", f"ds_write_b32 v7, v{SM+16}"]
    seq = []
    for c in range(4):
        for i in range(8):
            for w in range(4): seq.append((w, 8 * c + i, c, w * 8192 + i * 1024))
    for c in range(4, 7):
        for t in range(32): seq.append((c, t, c, t * 1024))
    def aread(n):
        tile, t, stage, off = seq[n]; sl = stage % 4
        A(f"ds_read_b128 v[{AF[n%NAF]}:{AF[n%NAF]+3}], v{13 if sl >= 2 else 12} offset:{(sl%2)*32768 + off}")
    def epi(tile, n0):
        L = []; ac = ACCS[tile]; P = ET + 16; R8 = range(8)
        L += [(n0, f"ds_read_b128 v[{CSR+4*qd}:{CSR+4*qd+3}], v11 offset:{tile*128 + qd*32}") for qd in range(4)]
        L += [("sync", None)]
        M = []
        M += [f"v_fmac_f32 v{ac+r}, v{NM}, v{CSR+r}" for r in range(16)]
        M += [f"v_mul_f32 v{ET+r}, v{C1}, v{ac+r}" for r in R8]
        M += [x for r in R8 for x in (f"v_exp_f32 v{ET+r}, v{ET+r}", f"v_mul_f32 v{ET+8+r}, v{ac+r}, v{ac+8+r}")]
        M += [x for r in R8 for x in (f"v_add_f32 v{ET+r}, 1.0, v{ET+r}", f"v_mul_f32 v{ET+8+r}, v{ET+8+r}, v{C2}")]
        M += [f"v_rcp_f32 v{ET+r}, v{ET+r}" for r in R8]
        M += [f"v_mul_f32 v{ET+8+r}, v{ET+8+r}, v{ET+r}" for r in R8]
        M += [f"v_cvt_pk_bf16_f32 v{P+j}, v{ET+8+2*j}, v{ET+8+2*j+1}" for j in range(4)]
        M += [f"s_add_u32 s15, s14, {tile*1024}", f"buffer_store_dwordx4 v[{P}:{P+3}], v2, s[52:55], s15 offen{STP}"]
        return L + [(n0, m) for m in M]
    cost = lambda l: 2 if (l.startswith("v_exp") or l.startswith("v_rcp") or l.startswith("v_rsq")) else 1
    ts(A, 3, 1)
    A(f"s_waitcnt vmcnt({q.need(('dma', 0), ('h', 0))})")
    A("s_barrier")
    ts(A, 3, 2)
    PF = 8
    for n in range(PF): aread(n)
    N = len(seq)
    pend = []
    started = set()
    hold = -1
    for n in range(N):
        tile, t, stage, off = seq[n]
        budget = 6
        if n + PF < N and seq[n + PF][2] != seq[n + PF - 1][2]:
            ns = seq[n + PF][2]
            tags = [("dma", ns)] + ([("h", ns)] if ns < 4 else []) + (["small"] if ns == 1 else [])
            while any(gt[1] in tags for gt in vpend): emit(vpend.pop(0))
            A(f"s_waitcnt vmcnt({q.need(*tags)})")
            A("s_barrier")
            rs = ns + 2
            if 4 <= rs < 7: vpend += dma_groups(rs)
            budget -= 2
            if ns == 1: pend += [(n, l) for l in st_l]
        if n + PF < N: aread(n + PF); budget -= 1
        if n % 2 == 0:
            A(f"s_waitcnt lgkmcnt({max(0, min(PF, N - 1 - n) - 1)})"); budget -= 1
        ac = ACCS[tile]
        c_in = f"v[{ac}:{ac+15}]" if tile in started else "0"
        started.add(tile)
        A(f"v_mfma_f32_32x32x16_bf16 v[{ac}:{ac+15}], v[{AF[n%NAF]}:{AF[n%NAF]+3}], a[{4*t}:{4*t+3}], {c_in}")
        if n == 127: ts(A, 3, 3)
        if n == 159: ts(A, 3, 5)
        if n == 191: ts(A, 3, 6)
        rate = 1 if (n < VFAST) else 2
        if vpend and n % rate == rate - 1:
            gt = vpend.pop(0); emit(gt); budget -= len(gt[0])
        if n == 128 + 2:
            for tl in range(4): pend += epi(tl, n)
        if n == 128 + 32 + 13: pend += epi(4, n)
        if n == 128 + 64 + 13: pend += epi(5, n)
        if "k3nofill" in EXP and n > 100: pend = []
        while pend and budget > 0 and n >= hold:
            e, l = pend.pop(0)
            if e == "sync":
                hold = n + PF + 2; break
            A(l); budget -= cost(l)
            if l.startswith("buffer_store"): q.add("st")
    ts(A, 3, 4)
    A("s_nop 7"); A("s_nop 3")
    A("s_waitcnt lgkmcnt(0)")
    for e, l in pend + epi(6, 0):
        if e == "sync": A("s_waitcnt lgkmcnt(0)")
        else: A(l)
    ts(A, 3, 7, True)
    A.label("k3_end")
    A("s_endpgm")

def gen_k4(A):
    A.label("k4_kernel")
    prologue(A, 256, "k4_end"); ts(A, 4, 0)
    A("s_and_b32 s4, s2, 7"); A("s_lshr_b32 s5, s2, 3"); A("s_lshr_b32 s6, s5, 3"); A("s_lshl_b32 s4, s4, 2"); A("s_add_u32 s4, s4, s6"); A("s_and_b32 s5, s5, 7")
    srd(A, 36, P_WS, WS_ACT, SZ_ACT); srd(A, 40, P_WS, WS_WD, SZ_WD); srd(A, 44, P_WS, WS_H, SZ_H); srd(A, 48, P_OUT, 0, 2048 * 1024)
    q = VMQ()
    A("v_lshlrev_b32 v2, 4, v0")
    A("s_mul_i32 s8, s3, 28")
    A("s_lshr_b32 s13, s3, 1"); A("s_lshl_b32 s14, s4, 1"); A("s_add_u32 s13, s14, s13")
    A("s_and_b32 s14, s3, 1")
    A("s_mul_i32 s9, s13, 112"); A("s_add_u32 s9, s9, s8"); A("s_lshl_b32 s9, s9, 10")
    A("s_xor_b32 s11, s13, 1"); A("s_mul_i32 s11, s11, 112"); A("s_add_u32 s11, s11, s8"); A("s_lshl_b32 s11, s11, 10")
    A("s_lshl_b32 s10, s5, 1"); A("s_add_u32 s10, s10, s14"); A("s_xor_b32 s12, s10, 1")
    A("s_mul_i32 s10, s10, 112"); A("s_add_u32 s10, s10, s8"); A("s_lshl_b32 s10, s10, 10")
    A("s_mul_i32 s12, s12, 112"); A("s_add_u32 s12, s12, s8"); A("s_lshl_b32 s12, s12, 10")
    D = 5
    bases = [9, 11, 10, 12]
    def loads(t):
        b = (t % D) * 16
        for i in range(4):
            sr = 36 if i < 2 else 40
            if t % 4 == 0 and t > 0: A(f"s_add_u32 s{bases[i]}, s{bases[i]}, 4096")
            A(f"buffer_load_dwordx4 a[{b+4*i}:{b+4*i+3}], v2, s[{sr}:{sr+3}], s{bases[i]} offen offset:{(t%4)*1024}"); q.add(("g", t))
    for t in range(D): loads(t)
    A("s_lshl_b32 s15, s13, 5"); A("s_lshl_b32 s60, s5, 2"); A("s_add_u32 s15, s15, s60"); A("s_lshl_b32 s60, s14, 1"); A("s_add_u32 s15, s15, s60"); A("s_lshl_b32 s15, s15, 10")
    HR = 16
    ACC = 128
    for r in range(64): A(f"v_mov_b32 v{ACC+r}, 0")
    ts(A, 4, 1)
    for t in range(28):
        A(f"s_waitcnt vmcnt({q.need(('g', t))})")
        if t == 1: ts(A, 4, 2)
        b = (t % D) * 16
        for aa in range(2):
            for bb in range(2):
                ac = ACC + 16 * (2 * aa + bb)
                A(f"v_mfma_f32_32x32x16_bf16 v[{ac}:{ac+15}], a[{b+8+4*bb}:{b+8+4*bb+3}], a[{b+4*aa}:{b+4*aa+3}], v[{ac}:{ac+15}]")
        if t + D < 28: loads(t + D)
        if t == 22:
            A(f"buffer_load_dwordx4 v[{HR}:{HR+3}], v2, s[44:47], s15 offen"); q.add("h")
            A(f"buffer_load_dwordx4 v[{HR+4}:{HR+7}], v2, s[44:47], s15 offen offset:1024"); q.add("h")
    ts(A, 4, 3)
    A("s_nop 7"); A("s_nop 3")
    ksplit_reduce(A, "v", ACC, 64, 80)
    ts(A, 4, 4)
    A("s_waitcnt vmcnt(0)")
    for r in range(8):
        t8 = 8 + 2 * (r % 4)
        A(f"v_lshlrev_b32 v{t8}, 16, v{HR+r}"); A(f"v_and_b32 v{t8+1}, 0xffff0000, v{HR+r}")
        A(f"v_pk_add_f32 v[{64+2*r}:{64+2*r+1}], v[{64+2*r}:{64+2*r+1}], v[{t8}:{t8+1}]")
    OP = 96
    for r in range(8): A(f"v_cvt_pk_bf16_f32 v{OP+r}, v{64+2*r}, v{64+2*r+1}")
    A("s_nop 1")
    for p in range(2):
        A(f"v_permlane32_swap_b32 v{OP+4*p}, v{OP+4*p+2}"); A(f"v_permlane32_swap_b32 v{OP+4*p+1}, v{OP+4*p+3}")
    A("v_and_b32 v3, 31, v0"); A("v_lshrrev_b32 v5, 5, v0"); A("v_lshlrev_b32 v6, 10, v3"); A("v_lshl_add_u32 v6, v5, 4, v6")
    A("s_lshl_b32 s8, s13, 15"); A("s_lshl_b32 s9, s5, 7"); A("s_add_u32 s8, s8, s9"); A("s_lshl_b32 s9, s14, 6"); A("s_add_u32 s8, s8, s9")
    for p in range(2): A(f"buffer_store_dwordx4 v[{OP+4*p}:{OP+4*p+3}], v6, s[48:51], s8 offen offset:{p*32}{STP}")
    ts(A, 4, 7, True)
    A.label("k4_end")
    A("s_endpgm")

def build(path, extra_launches=0):
    kernels = [("k1_kernel", gen_k1, (256, 163840, 512), 256, 256),
               ("k2_kernel", gen_k2, (256, 49152, 256), 512, 256),
               ("k3_kernel", gen_k3, (256, 131072 + 1024, 256), 512, 256),
               ("k4_kernel", gen_k4, (256, 49152, 256), 512, 256)]
    hdr = open(f"cdna_kernels/{KNAME}.s.ref").read().split("\n")
    out = [l for l in hdr if l.startswith(";") and "@launch" not in l and "Override launch" not in l and "grid=ceil" not in l]
    for (n, g, (wg, lds, thr), vg, ac) in kernels:
        out.append(f"; @launch kernel={n} grid=({wg},1,1) block=({thr},1,1) lds={lds}")
    out.append('.amdgcn_target "amdgcn-amd-amdhsa--gfx950"'); out.append(".text")
    nerr = 0
    for (n, g, _, vg, ac) in kernels:
        A = Asm(); g(A)
        A.lines = [l for l in A.lines if l is not None]
        for variant in (A.lines, strip_opt(A.lines)):
            errs = check(variant, n)
            for e in errs[:30]: print("CHECK:", e)
            nerr += len(errs)
        out.append(f".globl {n}\n.p2align 8\n.type {n},@function"); out.append(A.text())
    out.append("code_end:\n  s_endpgm")
    out.append('.section .rodata,"a"')
    for (n, g, _, vg, ac) in kernels: out.append(kd(n, vg, ac))
    open(path, "w").write("\n".join(out) + "\n")
    print("written", path, "check errors:", nerr)
    import subprocess
    r = subprocess.run(["clang", "-x", "assembler", "-target", "amdgcn-amd-amdhsa", "-mcpu=gfx950", "-c", path, "-o", "x.o"], capture_output=True, text=True)
    if r.returncode: print(r.stderr[:2000])

if __name__ == "__main__":
    if "--ts" in sys.argv: G.TS = True; sys.argv.remove("--ts")
    build(sys.argv[1])
```

```python
import sys, os
sys.path.insert(0, "dev")
from asmlib import *
import gen as G
import gen3 as G3
from gen3 import *
from gen3 import VMQ, ts, STP, EXP, dbg_stamp

WS_CNT = 0x78000; SZ_CNT = 4096
LD = " sc1"

def signal(A, cnt_off_sgpr, lab):
    A("s_cmp_lg_u32 s3, 0"); A(f"s_cbranch_scc1 {lab}")
    A("v_mov_b32 v250, 1"); A("v_mov_b32 v251, 0")
    A("s_mov_b64 exec, 1")
    A(f"buffer_atomic_add v250, v251, s[64:67], s{cnt_off_sgpr} offen sc1")
    A("s_mov_b64 exec, -1")
    A.label(lab)

def wait_cnt(A, cnt_off_sgpr, target, lab):
    A("s_cmp_lg_u32 s3, 0"); A(f"s_cbranch_scc1 {lab}_done")
    A("v_mov_b32 v251, 0"); A("s_mov_b32 s76, 0")
    A.label(lab)
    A(f"buffer_load_dword v250, v251, s[64:67], s{cnt_off_sgpr} offen sc1")
    A("s_waitcnt vmcnt(0)")
    A("v_readfirstlane_b32 s77, v250")
    A("s_add_u32 s76, s76, 1")
    A("s_nop 2")
    A(f"s_cmp_ge_u32 s77, {target}"); A(f"s_cbranch_scc1 {lab}_done")
    A("s_cmp_ge_u32 s76, 0x20000"); A(f"s_cbranch_scc1 {lab}_done")
    A("s_sleep 1")
    A(f"s_branch {lab}")
    A.label(f"{lab}_done")
    A("s_barrier")

def reduce4(A, pre, ACC, OUT, TMP, base):
    A("v_lshlrev_b32 v7, 4, v0")
    for qd in range(1, 4):
        A(f"s_xor_b32 s8, s3, {qd}"); A("s_mulk_i32 s8, 12288"); A(f"s_add_u32 s8, s8, {base}"); A("v_add_u32 v6, s8, v7")
        for j in range(4):
            r = ACC + 16 * qd + 4 * j
            A(f"ds_write_b128 v6, {pre}[{r}:{r+3}] offset:{(qd-1)*4096 + j*1024}")
    if pre == "a":
        for r in range(16): A(f"v_accvgpr_read_b32 v{OUT+r}, a{ACC+r}")
    A("s_mul_i32 s8, s3, 12288"); A(f"s_add_u32 s8, s8, {base}"); A("v_add_u32 v6, s8, v7")
    A("s_waitcnt lgkmcnt(0)")
    A("s_barrier")
    for p in range(3):
        for j in range(4):
            d = TMP + 16 * p + 4 * j
            A(f"ds_read_b128 v[{d}:{d+3}], v6 offset:{p*4096 + j*1024}")
    own = OUT if pre == "a" else ACC
    A("s_waitcnt lgkmcnt(8)")
    for r in range(0, 16, 2): A(f"v_pk_add_f32 v[{OUT+r}:{OUT+r+1}], v[{own+r}:{own+r+1}], v[{TMP+r}:{TMP+r+1}]")
    A("s_waitcnt lgkmcnt(0)")
    for r in range(0, 16, 2): A(f"v_pk_add_f32 v[{TMP+16+r}:{TMP+16+r+1}], v[{TMP+16+r}:{TMP+16+r+1}], v[{TMP+32+r}:{TMP+32+r+1}]")
    for r in range(0, 16, 2): A(f"v_pk_add_f32 v[{OUT+r}:{OUT+r+1}], v[{OUT+r}:{OUT+r+1}], v[{TMP+16+r}:{TMP+16+r+1}]")

BUD = int(os.environ.get("BUD", "6"))
HPRE = int(os.environ.get("HPRE", "16"))
WD0 = int(os.environ.get("WD0", "138"))
NW0 = int(os.environ.get("NW0", "8"))
NWD1 = int(os.environ.get("NWD1", "32"))
def gen_kf(A):
    A.label("kf_kernel")
    prologue(A, 256, "kf_end"); ts(A, 2, 0)
    if "dbgts" in EXP:
        A("s_cmp_lg_u32 s3, 0"); A("s_cbranch_scc1 dbgx_f0"); dbg_stamp(A, 2, "f0"); A.label("dbgx_f0")
    A("s_and_b32 s74, s2, 7"); A("s_lshr_b32 s75, s2, 3")
    A("s_lshr_b32 s4, s75, 3"); A("s_lshl_b32 s68, s74, 2"); A("s_add_u32 s68, s68, s4"); A("s_and_b32 s69, s75, 7")
    A("s_lshr_b32 s4, s3, 1"); A("s_and_b32 s71, s3, 1"); A("s_lshl_b32 s70, s68, 1"); A("s_add_u32 s70, s70, s4")
    A("s_lshr_b32 s4, s74, 2"); A("s_lshl_b32 s72, s4, 3"); A("s_lshr_b32 s4, s75, 2"); A("s_add_u32 s72, s72, s4")
    A("s_and_b32 s4, s74, 3"); A("s_lshl_b32 s73, s4, 2"); A("s_and_b32 s4, s75, 3"); A("s_add_u32 s73, s73, s4")
    srd(A, 36, P_WS, WS_KVZ, SZ_KVZ); srd(A, 40, P_WS, WS_PQ, SZ_PQ); srd(A, 44, P_WS, WS_WO, SZ_WO)
    q = VMQ()
    A("v_lshlrev_b32 v2, 4, v0"); A("v_and_b32 v3, 31, v0"); A("v_min_u32 v4, 16, v3"); A("v_lshlrev_b32 v4, 6, v4")
    A("v_lshrrev_b32 v5, 5, v0"); A("v_lshl_add_u32 v4, v5, 4, v4")
    A("s_lshl_b32 s8, s3, 3"); A("s_mul_i32 s9, s8, 1088")
    A("s_lshl_b32 s10, s70, 5"); A("s_add_u32 s10, s10, s8"); A("s_lshl_b32 s10, s10, 10")
    A("s_xor_b32 s14, s70, 1"); A("s_lshl_b32 s14, s14, 5"); A("s_add_u32 s14, s14, s8"); A("s_lshl_b32 s14, s14, 10")
    A("s_lshl_b32 s11, s69, 1"); A("s_add_u32 s11, s11, s71"); A("s_xor_b32 s15, s11, 1")
    A("s_lshl_b32 s11, s11, 5"); A("s_add_u32 s11, s11, s8"); A("s_lshl_b32 s11, s11, 10")
    A("s_lshl_b32 s15, s15, 5"); A("s_add_u32 s15, s15, s8"); A("s_lshl_b32 s15, s15, 10")
    KR = 64
    def loads(h):
        A(f"s_add_u32 s12, s9, {h*1088}")
        A(f"buffer_load_dwordx4 v[{KR+8*h}:{KR+8*h+3}], v4, s[36:39], s12 offen"); q.add(("kv", h))
        A(f"buffer_load_dwordx4 v[{KR+8*h+4}:{KR+8*h+7}], v4, s[36:39], s12 offen offset:32"); q.add(("kv", h))
        base = [10, 14, 11, 15]
        dst = [h * 4, (8 + h) * 4, 64 + h * 4, 64 + (8 + h) * 4]
        for i in range(4):
            sr = 40 if i < 2 else 44
            if h == 4: A(f"s_add_u32 s{base[i]}, s{base[i]}, 4096")
            A(f"buffer_load_dwordx4 a[{dst[i]}:{dst[i]+3}], v2, s[{sr}:{sr+3}], s{base[i]} offen offset:{(h%4)*1024}"); q.add(("fr", h))
    for h in range(3): loads(h)
    srd(A, 48, P_X, 0, 2048 * 1024); srd(A, 52, P_WS, WS_H, SZ_H); srd(A, 56, P_WS, WS_STATS, SZ_STATS)
    srd(A, 60, P_WS, WS_WGU, SZ_WGU); srd(A, 64, P_WS, WS_CNT, SZ_CNT)
    for r in range(64): A(f"v_accvgpr_write_b32 a{128+r}, 0")
    KA = 32; TT = [[128, 144], [160, 176]]; OF = [[8, 12], [16, 20]]; EPS = 24; XR = 200
    HPK = 240
    CSV = 208
    A(f"v_mov_b32 v{EPS}, {f32(1e-6)}")
    A("s_mul_i32 s78, s73, 7")
    A("s_lshr_b32 s79, s3, 1"); A("s_add_u32 s79, s79, s78"); A("s_lshl_b32 s79, s79, 15")
    A("s_and_b32 s81, s3, 1"); A("s_lshl_b32 s81, s81, 13"); A("s_add_u32 s79, s79, s81")
    A("s_lshl_b32 s80, s78, 15"); A("s_lshl_b32 s81, s3, 13"); A("s_add_u32 s80, s80, s81")
    def dma_groups(stage):
        slot = (stage % 4) * 32768; L = []
        for hlf in range(2):
            for i in range(4):
                g = []
                if i == 0:
                    g.append(f"s_add_u32 m0, s81, {slot + hlf*4096}")
                    g.append(f"s_add_u32 s82, s79, {stage*16384 + hlf*4096}" if stage < 2 else f"s_add_u32 s82, s80, {stage*32768 + hlf*4096}")
                g.append(f"buffer_load_dwordx4 v2, s[60:63], s82 offen offset:{i*1024} lds")
                L.append((g, ("dma", stage)))
        return L
    def emit(gt):
        for l in gt[0]: A(l)
        q.add(gt[1])
    ts(A, 2, 1)
    def cv(h): return [f"v_cvt_pk_bf16_f32 v{KA+4*h+j}, v{KR+8*h+2*j}, v{KR+8*h+2*j+1}" for j in range(4)]
    def tm(h, aa):
        T = TT[h % 2][aa]
        return f"v_mfma_f32_32x32x16_bf16 v[{T}:{T+15}], v[{KA+4*h}:{KA+4*h+3}], a[{(aa*8+h)*4}:{(aa*8+h)*4+3}], 0"
    def mm(h, aa, b):
        ac = 128 + 16 * (2 * aa + b); o = OF[h % 2][aa]
        return f"v_mfma_f32_32x32x16_bf16 a[{ac}:{ac+15}], a[{64+(b*8+h)*4}:{64+(b*8+h)*4+3}], v[{o}:{o+3}], a[{ac}:{ac+15}]"
    def valu(h):
        L = []
        T0, T1 = TT[h % 2]; o0, o1 = OF[h % 2]
        L += [f"v_add_f32 v25, v{T0+8}, v{EPS}", f"v_add_f32 v26, v{T1+8}, v{EPS}", "v_rcp_f32 v25, v25", "v_rcp_f32 v26, v26", "s_nop 0"]
        for r in range(8): L += [f"v_mul_f32 v{T0+r}, v{T0+r}, v25", f"v_mul_f32 v{T1+r}, v{T1+r}, v26"]
        for j in range(4): L += [f"v_cvt_pk_bf16_f32 v{o0+j}, v{T0+2*j}, v{T0+2*j+1}", f"v_cvt_pk_bf16_f32 v{o1+j}, v{T1+2*j}, v{T1+2*j+1}"]
        return L
    A(f"s_waitcnt vmcnt({q.need(('fr', 0))})")
    for l in cv(0): A(l)
    ts(A, 2, 2)
    A("s_nop 1")
    A(tm(0, 0)); A(tm(0, 1))
    wpend = dma_groups(0) + dma_groups(1) + dma_groups(2)
    for h in range(9):
        if h + 3 < 8: loads(h + 3)
        if h == 5:
            A("s_lshl_b32 s6, s70, 15"); A("s_lshl_b32 s7, s69, 7"); A("s_add_u32 s6, s6, s7"); A("s_lshl_b32 s7, s71, 6"); A("s_add_u32 s6, s6, s7")
            A("v_lshlrev_b32 v6, 10, v3"); A("v_lshl_add_u32 v6, v5, 3, v6")
            for qd in range(4):
                A(f"buffer_load_dwordx2 v[{XR+2*qd}:{XR+2*qd+1}], v6, s[48:51], s6 offen offset:{qd*16}"); q.add("x")
            srd(A, 48, P_WS, WS_CSP, SZ_CSP)
            A("v_lshl_add_u32 v230, v1, 6, v0"); A("v_min_u32 v230, 223, v230"); A("v_lshlrev_b32 v230, 2, v230")
            A("s_mul_i32 s6, s78, 128")
            for kc in range(16):
                A(f"s_add_u32 s7, s6, {kc*3584*4}")
                A(f"buffer_load_dword v{CSV+kc}, v230, s[48:51], s7 offen"); q.add("cs")
            if "nokfpf" not in EXP:
                A("s_and_b32 s6, s74, 3"); A("s_mul_i32 s6, s6, 917504"); A("s_mul_i32 s7, s75, 28672"); A("s_add_u32 s6, s6, s7")
                A("s_mul_i32 s7, s3, 7168"); A("s_add_u32 s6, s6, s7")
                A("v_min_u32 v7, 55, v0"); A("v_lshlrev_b32 v7, 7, v7")
                A("buffer_load_dword v231, v7, s[60:63], s6 offen"); q.add("pf")
        ms = []
        if h + 1 < 8:
            A(f"s_waitcnt vmcnt({q.need(('fr', h + 1))})")
            for l in cv(h + 1): A(l)
            A("s_nop 1")
            ms += [tm(h + 1, 0), tm(h + 1, 1)]
        if h >= 1: ms += [mm(h - 1, 0, 0), mm(h - 1, 0, 1), mm(h - 1, 1, 0), mm(h - 1, 1, 1)]
        vl = valu(h) if h < 8 else []
        if h == 0:
            for m_ in ms: A(m_)
            A("s_nop 5")
            for l in vl: A(l)
            A("s_nop 1")
        else:
            per = (len(vl) + len(ms) - 1) // len(ms) if vl else 0
            for m_ in ms:
                A(m_)
                for _ in range(per):
                    if vl: A(vl.pop(0))
                if h >= 6 and wpend and "wearly" in EXP: emit(wpend.pop(0))
            for l in vl: A(l)
            A("s_nop 1")
    ts(A, 2, 3)
    A("s_nop 7"); A("s_nop 3")
    reduce4(A, "a", 128, 64, 80, 98304)
    ts(A, 2, 4)
    A(f"s_waitcnt vmcnt({q.need('x')})")
    for qd in range(4):
        for j in range(2):
            xr = XR + 2 * qd + j; t8 = 8 + 2 * ((2 * qd + j) % 4)
            A(f"v_lshlrev_b32 v{t8}, 16, v{xr}"); A(f"v_and_b32 v{t8+1}, 0xffff0000, v{xr}")
            A(f"v_pk_add_f32 v[{64+4*qd+2*j}:{64+4*qd+2*j+1}], v[{64+4*qd+2*j}:{64+4*qd+2*j+1}], v[{t8}:{t8+1}]")
    for r in range(8): A(f"v_cvt_pk_bf16_f32 v{HPK+r}, v{64+2*r}, v{64+2*r+1}")
    A("s_lshl_b32 s8, s70, 5"); A("s_lshl_b32 s9, s69, 2"); A("s_add_u32 s8, s8, s9"); A("s_lshl_b32 s9, s71, 1"); A("s_add_u32 s8, s8, s9"); A("s_lshl_b32 s8, s8, 10")
    A(f"buffer_store_dwordx4 v[{HPK}:{HPK+3}], v2, s[52:55], s8 offen sc1"); q.add("st")
    A(f"buffer_store_dwordx4 v[{HPK+4}:{HPK+7}], v2, s[52:55], s8 offen offset:1024 sc1"); q.add("st")
    for r in range(16, 20): A(f"v_mov_b32 v{r}, 0")
    for r in range(8):
        A(f"v_dot2c_f32_bf16 v{16+(r&1)}, {ONES}, v{HPK+r}"); A(f"v_dot2c_f32_bf16 v{18+(r&1)}, v{HPK+r}, v{HPK+r}")
    A("s_nop 2")
    A("v_add_f32 v10, v16, v17"); A("v_add_f32 v11, v18, v19")
    halves_sum(A, 10, 12); halves_sum(A, 11, 12)
    A("s_lshl_b32 s8, s70, 12"); A("s_lshl_b32 s9, s69, 4"); A("s_add_u32 s8, s8, s9"); A("s_lshl_b32 s9, s71, 3"); A("s_add_u32 s8, s8, s9")
    A("v_lshlrev_b32 v6, 7, v3")
    A("buffer_store_dwordx2 v[10:11], v6, s[56:59], s8 offen sc1"); q.add("st")
    CSL = 147456
    A(f"s_waitcnt vmcnt({q.need('cs')})")
    for st_ in (8, 4, 2, 1):
        for kc in range(st_): A(f"v_add_f32 v{CSV+kc}, v{CSV+kc}, v{CSV+kc+st_}")
    A(f"v_add_u32 v7, {CSL}, v230"); A(f"ds_write_b32 v7, v{CSV}")
    for gt in wpend[:NW0]: emit(gt)
    A(f"s_waitcnt vmcnt({q.need('st')}) lgkmcnt(0)")
    A("s_barrier")
    A("s_lshr_b32 s83, s68, 1"); A("s_lshl_b32 s83, s83, 7")
    signal(A, 83, "kf_sig1")
    ts(A, 2, 5)
    for gt in wpend[NW0:]: emit(gt)
    srd(A, 40, P_WS, WS_H, SZ_H); srd(A, 44, P_WS, WS_STATS, SZ_STATS); srd(A, 52, P_WS, WS_ACT, SZ_ACT); srd(A, 56, P_WS, WS_WD, SZ_WD)
    A("s_lshl_b32 s6, s72, 2"); A("s_add_u32 s6, s6, s3")
    A("s_lshl_b32 s11, s6, 15")
    A("v_lshlrev_b32 v4, 7, v3"); A("v_lshl_add_u32 v4, v5, 6, v4")
    A(f"v_lshlrev_b32 v11, 4, v5"); A(f"v_add_u32 v11, {CSL}, v11")
    A("v_mov_b32 v12, v2"); A("v_add_u32 v13, 0x10000, v2")
    A("s_mul_i32 s14, s6, 112"); A("s_add_u32 s14, s14, s78"); A("s_lshl_b32 s14, s14, 10")
    A("s_mul_i32 s8, s3, 28")
    A("s_lshl_b32 s84, s69, 1"); A("s_add_u32 s84, s84, s71"); A("s_xor_b32 s85, s84, 1")
    A("s_mul_i32 s84, s84, 112"); A("s_add_u32 s84, s84, s8"); A("s_lshl_b32 s84, s84, 10")
    A("s_mul_i32 s85, s85, 112"); A("s_add_u32 s85, s85, s8"); A("s_lshl_b32 s85, s85, 10")
    for gt in dma_groups(3): emit(gt)
    A("s_lshl_b32 s83, s72, 7")
    wait_cnt(A, 83, 16, "kf_w1")
    ts(A, 3, 0)
    if "dbgts" in EXP:
        A("s_cmp_lg_u32 s3, 0"); A("s_cbranch_scc1 dbgx_f2"); dbg_stamp(A, 4, "f2"); A.label("dbgx_f2")
    def h_groups(c):
        L = []
        for t in range(8 * c, 8 * c + 8):
            g = []
            if t % 4 == 0: g.append(f"s_add_u32 s13, s11, {t*1024}")
            g.append(f"buffer_load_dwordx4 a[{4*t}:{4*t+3}], v2, s[40:43], s13 offen offset:{(t%4)*1024}{LD}")
            L.append((g, ("h", t)))
        return L
    SM = 212
    hall = h_groups(0) + h_groups(1) + h_groups(2) + h_groups(3)
    for gt in hall[:HPRE]: emit(gt)
    vpend = hall[HPRE:]
    smalls = [([f"s_lshl_b32 s15, s6, 12", f"buffer_load_dwordx4 v[{SM}:{SM+3}], v4, s[44:47], s15 offen{LD}"], "small")]
    smalls += [([f"buffer_load_dwordx4 v[{SM+4*j}:{SM+4*j+3}], v4, s[44:47], s15 offen offset:{j*16}{LD}"], "small") for j in range(1, 4)]
    vpend += smalls
    NM, C1, C2 = 8, 9, 10
    ACCS = [64 + 16 * i for i in range(7)]
    NAF = 12
    AF = [16 + 4 * i for i in range(NAF)]
    CSR = 176; ET = 192
    st_l = []
    for j in range(1, 4):
        for e in range(4): st_l.append(f"v_add_f32 v{SM+e}, v{SM+e}, v{SM+4*j+e}")
    st_l += [f"v_add_f32 v{SM}, v{SM}, v{SM+2}", f"v_add_f32 v{SM+1}, v{SM+1}, v{SM+3}",
             f"v_mov_b32 v{SM+4}, v{SM}", f"v_mov_b32 v{SM+5}, v{SM+1}", "s_nop 1",
             f"v_permlane32_swap_b32 v{SM}, v{SM+4}", f"v_permlane32_swap_b32 v{SM+1}, v{SM+5}", "s_nop 1",
             f"v_add_f32 v{SM}, v{SM}, v{SM+4}", f"v_add_f32 v{SM+1}, v{SM+1}, v{SM+5}",
             f"v_mul_f32 v{SM}, {f32(1/512)}, v{SM}", f"v_mul_f32 v{SM+1}, {f32(1/512)}, v{SM+1}",
             f"v_fma_f32 v{SM+1}, -v{SM}, v{SM}, v{SM+1}", f"v_max_f32 v{SM+1}, 0, v{SM+1}", f"v_add_f32 v{C2}, {f32(1e-5)}, v{SM+1}",
             f"v_rsq_f32 v{SM+1}, v{C2}", f"v_sub_f32 v{NM}, 0, v{SM}",
             f"v_mul_f32 v{C1}, {f32(-LOG2E)}, v{SM+1}"]
    seq = []
    for c in range(2):
        for i in range(16):
            for b in range(2): seq.append((b, 16 * c + i, c, b * 16384 + i * 1024))
    for c in range(2, 7):
        for t in range(32): seq.append((c, t, c, t * 1024))
    def aread(n):
        tile, t, stage, off = seq[n]; sl = stage % 4
        A(f"ds_read_b128 v[{AF[n%NAF]}:{AF[n%NAF]+3}], v{13 if sl >= 2 else 12} offset:{(sl%2)*32768 + off}")
    def csreads(tile): return [f"ds_read_b128 v[{CSR+4*qd}:{CSR+4*qd+3}], v11 offset:{tile*128 + qd*32}" for qd in range(4)]
    def epi(tile, n0):
        L = []; ac = ACCS[tile]; P = ET + 16; R8 = range(8)
        M = []
        M += [f"v_fmac_f32 v{ac+r}, v{NM}, v{CSR+r}" for r in range(16)]
        if tile < 6: M += csreads(tile + 1)
        M += [f"v_mul_f32 v{ET+r}, v{C1}, v{ac+r}" for r in R8]
        M += [x for r in R8 for x in (f"v_exp_f32 v{ET+r}, v{ET+r}", f"v_mul_f32 v{ET+8+r}, v{ac+r}, v{ac+8+r}")]
        M += [f"v_fma_f32 v{ET+r}, v{ET+r}, v{C2}, v{C2}" for r in R8]
        M += [f"v_rcp_f32 v{ET+r}, v{ET+r}" for r in R8]
        M += [f"v_mul_f32 v{ET+8+r}, v{ET+8+r}, v{ET+r}" for r in R8]
        M += [f"v_cvt_pk_bf16_f32 v{P+j}, v{ET+8+2*j}, v{ET+8+2*j+1}" for j in range(4)]
        M += [f"s_add_u32 s15, s14, {tile*1024}", f"buffer_store_dwordx4 v[{P}:{P+3}], v2, s[52:55], s15 offen sc1"]
        return [(n0, m) for m in M]
    def wd_reg(t, b):
        f = 2 * t + b
        return 128 + 4 * f if f < 32 else 4 * (f - 32)
    def wd_load(t, b):
        g = []
        if t % 4 == 0 and t > 0 and b == 0:
            g.append("s_add_u32 s84, s84, 4096"); g.append("s_add_u32 s85, s85, 4096")
        r = wd_reg(t, b)
        g.append(f"buffer_load_dwordx4 a[{r}:{r+3}], v2, s[56:59], s{84+b} offen offset:{(t%4)*1024}")
        return (g, ("wd", t))
    wd_all = [wd_load(t, b) for t in range(28) for b in range(2)]
    cost = lambda l: 2 if (l.startswith("v_exp") or l.startswith("v_rcp") or l.startswith("v_rsq")) else 1
    A(f"s_waitcnt vmcnt({q.need(('h', 0))})")
    ts(A, 3, 2)
    PF = 8
    A("s_barrier")
    for n in range(PF): aread(n)
    N = len(seq)
    pend = []; started = set(); hold = -1
    wd_i = 0
    hw = set()
    done_at = {0: 62, 1: 63, 2: 95, 3: 127, 4: 159, 5: 191}
    for n in range(N):
        tile, t, stage, off = seq[n]
        budget = BUD
        if n + PF < N and seq[n + PF][2] != seq[n + PF - 1][2]:
            ns = seq[n + PF][2]
            if ns >= 2:
                tags = [tg for tg in [("dma", ns)] if ns >= 3]
                if tags:
                    while any(gt[1] in tags for gt in vpend): emit(vpend.pop(0))
                    A(f"s_waitcnt vmcnt({q.need(*tags)})")
                A("s_barrier"); budget -= 2
                rs = ns + 2
                if 4 <= rs < 7: vpend += dma_groups(rs)
        if n < 64 and t not in hw and t % 2 == 0:
            hw.add(t); hw.add(t + 1)
            while any(gt[1] in (("h", t), ("h", t + 1)) for gt in vpend): emit(vpend.pop(0))
            A(f"s_waitcnt vmcnt({q.need(('h', t), ('h', t + 1))})"); budget -= 1
        if n == 50: pend += [(n, l) for l in csreads(0)]
        if n == 66:
            while any(gt[1] == "small" for gt in vpend): emit(vpend.pop(0))
            A(f"s_waitcnt vmcnt({q.need('small')})"); budget -= 1
            pend = [(n, l) for l in st_l] + pend
        if n + PF < N: aread(n + PF); budget -= 1
        if n % 2 == 0:
            A(f"s_waitcnt lgkmcnt({max(0, min(PF, N - 1 - n) - 1)})"); budget -= 1
        ac = ACCS[tile]
        c_in = f"v[{ac}:{ac+15}]" if tile in started else "0"
        started.add(tile)
        A(f"v_mfma_f32_32x32x16_bf16 v[{ac}:{ac+15}], v[{AF[n%NAF]}:{AF[n%NAF]+3}], a[{4*t}:{4*t+3}], {c_in}")
        if n == 63: ts(A, 3, 3)
        if vpend and n % 2 == 1:
            gt = vpend.pop(0); emit(gt); budget -= len(gt[0])
        elif not vpend and n >= WD0 and wd_i < min(NWD1, 32) and n % 2 == 1 and n <= 202:
            gt = wd_all[wd_i]; wd_i += 1; emit(gt); budget -= len(gt[0])
        for tl, dn in done_at.items():
            if n == max(dn + 5, 68): pend += epi(tl, n)
        if "nofill" in EXP and n > 70: pend = []
        while pend and budget >= cost(pend[0][1]) and n >= hold:
            e, l = pend.pop(0)
            A(l); budget -= cost(l)
            if l.startswith("buffer_store"): q.add("st")
    ts(A, 3, 4)
    print('leftover fillers', len(pend))
    A("s_nop 7"); A("s_nop 3")
    A("s_waitcnt lgkmcnt(0)")
    for e, l in pend + epi(6, 0):
        if e == "sync": A("s_waitcnt lgkmcnt(0)")
        else:
            A(l)
            if l.startswith("buffer_store"): q.add("st")
    for gt in wd_all[wd_i:wd_i+4]: emit(gt)
    wd_i += 4
    A(f"s_waitcnt vmcnt({q.need('st')})")
    A("s_barrier")
    A("s_lshl_b32 s83, s72, 7"); A("s_add_u32 s83, s83, 2048")
    signal(A, 83, "kf_sig2")
    ts(A, 3, 7)
    for gt in wd_all[wd_i:]: emit(gt)
    srd(A, 36, P_WS, WS_ACT, SZ_ACT); srd(A, 48, P_OUT, 0, 2048 * 1024)
    A("s_mul_i32 s8, s3, 28")
    A("s_mul_i32 s9, s70, 112"); A("s_add_u32 s9, s9, s8"); A("s_lshl_b32 s9, s9, 10")
    A("s_xor_b32 s11, s70, 1"); A("s_mul_i32 s11, s11, 112"); A("s_add_u32 s11, s11, s8"); A("s_lshl_b32 s11, s11, 10")
    A("s_lshr_b32 s83, s68, 1"); A("s_lshl_b32 s83, s83, 7"); A("s_add_u32 s83, s83, 2048")
    wait_cnt(A, 83, 16, "kf_w2")
    ts(A, 4, 0)
    if "dbgts" in EXP:
        A("s_cmp_lg_u32 s3, 0"); A("s_cbranch_scc1 dbgx_f4"); dbg_stamp(A, 6, "f4"); A.label("dbgx_f4")
    D = 7
    RB = 16
    def aloads(t):
        b = RB + (t % D) * 8
        for i in range(2):
            sg = [9, 11][i]
            if t % 4 == 0 and t > 0: A(f"s_add_u32 s{sg}, s{sg}, 4096")
            A(f"buffer_load_dwordx4 v[{b+4*i}:{b+4*i+3}], v2, s[36:39], s{sg} offen offset:{(t%4)*1024}{LD}"); q.add(("g", t))
    for t in range(D): aloads(t)
    ACC = 128
    ts(A, 4, 1)
    for t in range(28):
        A(f"s_waitcnt vmcnt({q.need(('g', t))})")
        if t == 1: ts(A, 4, 2)
        b = RB + (t % D) * 8
        for aa in range(2):
            for bb in range(2):
                ac = ACC + 16 * (2 * aa + bb); wr = wd_reg(t, bb)
                cin = "0" if t == 0 else f"v[{ac}:{ac+15}]"
                A(f"v_mfma_f32_32x32x16_bf16 v[{ac}:{ac+15}], a[{wr}:{wr+3}], v[{b+4*aa}:{b+4*aa+3}], {cin}")
        if t + D < 28: aloads(t + D)
    ts(A, 4, 3)
    A("s_nop 7"); A("s_nop 3")
    reduce4(A, "v", ACC, 64, 80, 0)
    ts(A, 4, 4)
    for r in range(8):
        t8 = 8 + 2 * (r % 4)
        A(f"v_lshlrev_b32 v{t8}, 16, v{HPK+r}"); A(f"v_and_b32 v{t8+1}, 0xffff0000, v{HPK+r}")
        A(f"v_pk_add_f32 v[{64+2*r}:{64+2*r+1}], v[{64+2*r}:{64+2*r+1}], v[{t8}:{t8+1}]")
    OP = 96
    for r in range(8): A(f"v_cvt_pk_bf16_f32 v{OP+r}, v{64+2*r}, v{64+2*r+1}")
    A("s_nop 1")
    for p in range(2):
        A(f"v_permlane32_swap_b32 v{OP+4*p}, v{OP+4*p+2}"); A(f"v_permlane32_swap_b32 v{OP+4*p+1}, v{OP+4*p+3}")
    A("v_lshlrev_b32 v6, 10, v3"); A("v_lshl_add_u32 v6, v5, 4, v6")
    A("s_lshl_b32 s8, s70, 15"); A("s_lshl_b32 s9, s69, 7"); A("s_add_u32 s8, s8, s9"); A("s_lshl_b32 s9, s71, 6"); A("s_add_u32 s8, s8, s9")
    for p in range(2): A(f"buffer_store_dwordx4 v[{OP+4*p}:{OP+4*p+3}], v6, s[48:51], s8 offen offset:{p*32}")
    ts(A, 4, 7, True)
    if "dbgts" in EXP:
        A("s_cmp_lg_u32 s3, 0"); A("s_cbranch_scc1 kf_end"); A("s_cmp_lg_u32 s2, 0"); A("s_cbranch_scc1 kf_end")
        A("s_waitcnt vmcnt(0)")
        dbg_stamp(A, 7, "f5")
        A("s_waitcnt vmcnt(0)")
        srd(A, 92, P_WS, 0x79000, 64); srd(A, 84, P_DBG, 0, 256)
        A("v_lshlrev_b32 v253, 2, v0"); A("v_mov_b32 v252, 0")
        A("buffer_load_dword v254, v253, s[92:95], 0 offen sc1"); A("buffer_load_dword v251, v252, s[92:95], 0 offen sc1")
        A("s_waitcnt vmcnt(0)")
        A("v_sub_u32 v254, v254, v251")
        A("buffer_store_dword v254, v253, s[84:87], 0 offen")
    A.label("kf_end")
    A("s_endpgm")

def gen_k1z(A):
    G3.ZERO_CNT = (WS_CNT, SZ_CNT)
    G3.gen_k1(A)

def build(path):
    kernels = [("k1_kernel", gen_k1z, (256, 163840, 512), 256, 256),
               ("kf_kernel", gen_kf, (256, 163840, 256), 512, 256)]
    hdr = open(f"cdna_kernels/{KNAME}.s.ref").read().split("\n")
    out = [l for l in hdr if l.startswith(";") and "@launch" not in l and "Override launch" not in l and "grid=ceil" not in l]
    for (n, g, (wg, lds, thr), vg, ac) in kernels:
        out.append(f"; @launch kernel={n} grid=({wg},1,1) block=({thr},1,1) lds={lds}")
    out.append('.amdgcn_target "amdgcn-amd-amdhsa--gfx950"'); out.append(".text")
    nerr = 0
    for (n, g, _, vg, ac) in kernels:
        A = Asm(); g(A)
        A.lines = [l for l in A.lines if l is not None]
        for variant in (A.lines, strip_opt(A.lines)):
            errs = check(variant, n)
            for e in errs[:30]: print("CHECK:", e)
            nerr += len(errs)
        out.append(f".globl {n}\n.p2align 8\n.type {n},@function"); out.append(A.text())
    out.append("code_end:\n  s_endpgm")
    out.append('.section .rodata,"a"')
    for (n, g, _, vg, ac) in kernels: out.append(kd(n, vg, ac))
    open(path, "w").write("\n".join(out) + "\n")
    print("written", path, "check errors:", nerr)
    import subprocess
    r = subprocess.run(["clang", "-x", "assembler", "-target", "amdgcn-amd-amdhsa", "-mcpu=gfx950", "-c", path, "-o", "x.o"], capture_output=True, text=True)
    if r.returncode: print(r.stderr[:2000])

if __name__ == "__main__":
    if "--ts" in sys.argv: G.TS = True; sys.argv.remove("--ts")
    build(sys.argv[1])
```

```python
import sys, struct
sys.path.insert(0, "dev")
from asmlib import *
import gen as G
from gen import (KNAME, MB, WS_KVZ, SZ_KVZ, WS_STATS, SZ_STATS, WS_CSP, SZ_CSP, WS_PQ, SZ_PQ, WS_H, SZ_H, WS_ACT, SZ_ACT,
                 WS_WGU, SZ_WGU, WS_WD, SZ_WD, WS_WO, SZ_WO, f32, LOG2E, ONES, P_X, P_WQKV, P_WO, P_BX, P_WG, P_WU, P_WD,
                 P_OUT, P_DBG, P_WS, prologue, srd, halves_sum, kd, strip_opt, WS_TS)
ZERO_CNT = None
SZ_CSP = 16 * 3584 * 4
WS_CS = 0x7C000; SZ_CS = 3584 * 4
def ts(A, k, slot, wait=False): G.ts_mark(A, k, slot, wait)

class VMQ:
    def __init__(self): self.q = []
    def add(self, tag, n=1): self.q += [tag] * n
    def need(self, *tags):
        idx = [i for i, x in enumerate(self.q) if x in tags]
        return len(self.q) - 1 - max(idx)

import os
EXP = set(os.environ.get("EXP", "").split(","))
STP = " sc1" if "nosc1" not in EXP else ""
JOBI = int(os.environ.get("JOBI", "3"))
JOBF = int(os.environ.get("JOBF", "4"))
SLP = int(os.environ.get("SLP", "2"))
NPRE = int(os.environ.get("NPRE", "8"))
VFAST = int(os.environ.get("VFAST", "8"))
BC = "op_sel_hi:[1,0,1]"
def job_issue(A, jl):
    pass

def gen_k1(A):
    A.label("k1_kernel")
    prologue(A, 256, "k1_end")
    A("s_mov_b32 s59, s3")
    A("s_and_b32 s3, s3, 3")
    A("v_and_b32 v1, 3, v1")
    A("s_and_b32 s4, s2, 7")
    A("s_lshr_b32 s5, s2, 3")
    A("s_lshr_b32 s6, s4, 1"); A("s_lshl_b32 s6, s6, 3"); A("s_lshr_b32 s7, s5, 2"); A("s_add_u32 s6, s6, s7")
    A("s_and_b32 s4, s4, 1"); A("s_lshl_b32 s4, s4, 2"); A("s_and_b32 s5, s5, 3"); A("s_add_u32 s5, s5, s4")
    srd(A, 44, P_WS, WS_KVZ, SZ_KVZ)
    srd(A, 48, P_DBG, 0, 256)
    A("s_cmp_ge_u32 s59, 4"); A("s_cbranch_scc1 k1_loader")
    ts(A, 1, 0)
    A("s_cmp_eq_u32 s3, 0"); A("s_cbranch_scc1 k1_w0")
    A("s_cmp_eq_u32 s3, 1"); A("s_cbranch_scc1 k1_w1")
    A("s_cmp_eq_u32 s3, 2"); A("s_cbranch_scc1 k1_w2")
    for w in (3, 0, 1, 2):
        A.label(f"k1_w{w}")
        if w == 0 and "dbgts" in EXP: dbg_stamp(A, 0, "k1a")
        k1_wave(A, w)
        if w == 0 and "dbgts" in EXP: A("s_waitcnt vmcnt(0)"); dbg_stamp(A, 1, "k1b")
        A("s_branch k1_fin")
    A.label("k1_loader")
    k1_loader(A)
    A("s_branch k1_end")
    A.label("k1_fin")
    if "k1st" not in EXP: ts(A, 1, 7, True)
    A.label("k1_end")
    A("s_endpgm")

def dbg_stamp(A, idx, lab):
    A("s_cmp_lg_u32 s2, 0"); A(f"s_cbranch_scc1 dbg_{lab}")
    A("s_memrealtime s[90:91]")
    srd(A, 92, P_WS, 0x79000, 64)
    A("s_waitcnt lgkmcnt(0)")
    A("v_mov_b32 v254, s90"); A(f"v_mov_b32 v253, {4*idx}")
    A("buffer_store_dword v254, v253, s[92:95], 0 offen sc1")
    A.label(f"dbg_{lab}")

def lds_signal(A, addr):
    A(f"v_mov_b32 v18, {addr}"); A("v_mov_b32 v123, 1")
    A("ds_write_b32 v18, v123")

def lds_wait4(A, addr, lab, sleep=0):
    A(f"v_mov_b32 v18, {addr}")
    if sleep: A(f"s_branch {lab}_first")
    A.label(lab)
    if sleep:
        A(f"s_sleep {sleep}")
        A.label(f"{lab}_first")
    A("ds_read_b128 v[124:127], v18")
    A("s_waitcnt lgkmcnt(0)")
    A("v_and_b32 v124, v124, v125"); A("v_and_b32 v126, v126, v127"); A("v_and_b32 v124, v124, v126")
    A("s_nop 0")
    A("v_readfirstlane_b32 s14, v124")
    A("s_nop 3")
    A("s_cmp_eq_u32 s14, 0")
    A(f"s_cbranch_scc1 {lab}")

def lds_wait(A, addr, lab):
    A(f"v_mov_b32 v18, {addr}")
    A.label(lab)
    A("ds_read_b32 v122, v18")
    A("s_waitcnt lgkmcnt(0)")
    A("v_readfirstlane_b32 s14, v122")
    A("s_nop 3")
    A("s_cmp_eq_u32 s14, 0")
    A(f"s_cbranch_scc1 {lab}")

def k1_loader(A):
    ts(A, 0, 0)
    q = VMQ()
    srd(A, 36, P_X, 0, 2048 * 1024)
    srd(A, 40, P_WQKV, 0, 512 * 3072)
    A("s_cmp_lg_u32 s6, 0"); A("s_cbranch_scc1 k1_nozero")
    A("v_lshl_add_u32 v8, v1, 6, v0"); A("v_lshlrev_b32 v8, 4, v8")
    for i in range(4): A(f"v_mov_b32 v{12+i}, 0")
    A("s_mul_i32 s12, s5, 4352")
    A("buffer_store_dwordx4 v[12:15], v8, s[44:47], s12 offen sc1")
    A("v_add_u32 v8, 4096, v8"); A("v_cmp_gt_u32 vcc, 4352, v8")
    A("s_and_saveexec_b64 s[14:15], vcc"); A("s_cbranch_execz k1_z2")
    A("buffer_store_dwordx4 v[12:15], v8, s[44:47], s12 offen sc1")
    A.label("k1_z2"); A("s_mov_b64 exec, s[14:15]")
    A.label("k1_nozero")
    if ZERO_CNT:
        A("s_cmp_lg_u32 s2, 2"); A("s_cbranch_scc1 k1_nocz"); A("s_cmp_lg_u32 s3, 0"); A("s_cbranch_scc1 k1_nocz")
        srd(A, 52, P_WS, ZERO_CNT[0], ZERO_CNT[1])
        A("v_lshlrev_b32 v8, 7, v0"); A("v_mov_b32 v12, 0")
        A("buffer_store_dword v12, v8, s[52:55], 0 offen sc1")
        A.label("k1_nocz")
    A("v_lshrrev_b32 v4, 3, v0"); A("v_and_b32 v5, 7, v0"); A("v_lshrrev_b32 v6, 4, v0"); A("v_xor_b32 v5, v5, v6")
    A("v_lshlrev_b32 v5, 4, v5"); A("v_lshl_add_u32 v2, v4, 10, v5"); A("v_xor_b32 v3, 64, v2")
    A("s_lshl_b32 s7, s6, 16"); A("s_lshl_b32 s12, s3, 14"); A("s_add_u32 s7, s7, s12")
    A(f"s_mul_i32 s8, s3, {16*3072}"); A("s_lshl_b32 s12, s5, 7"); A("s_add_u32 s8, s8, s12")
    A("s_lshl_b32 s9, s3, 11"); A(f"s_mul_i32 s10, s3, {6*1024}"); A("s_add_u32 s10, s10, 8192")
    ROT = "rot" in EXP
    if ROT: A("s_and_b32 s58, s6, 7")
    def kst(stage, dst, mul):
        if ROT:
            A(f"s_add_u32 s{dst}, s58, {stage}"); A(f"s_and_b32 s{dst}, s{dst}, 7"); A(f"s_mul_i32 s{dst}, s{dst}, {mul}")
        else:
            A(f"s_mov_b32 s{dst}, {stage*mul}")
    def xdma(stage):
        slot = (stage % 4) * 32768
        kst(stage, 57, 128); A("s_add_u32 s57, s57, s7")
        for i in range(2):
            A(f"s_add_u32 m0, s9, {slot + i*1024}"); A(f"s_add_u32 s13, s57, {i*8192}")
            A(f"buffer_load_dwordx4 v{2+i}, s[36:39], s13 offen lds"); q.add(("st", stage))
    xdma(0)
    A("s_movk_i32 s12, 2731"); A("s_movk_i32 s13, 3072")
    for b in range(3):
        A(f"v_add_u32 v8, {64*b}, v0"); A("v_mul_lo_u32 v9, v8, s12"); A("v_lshrrev_b32 v9, 16, v9")
        A("v_mul_u32_u24 v10, 24, v9"); A("v_sub_u32 v10, v8, v10"); A(f"v_mul_lo_u32 v{4+b}, v9, s13")
        A("v_lshrrev_b32 v11, 3, v10"); A(f"v_lshl_add_u32 v{4+b}, v11, 10, v{4+b}")
        A("v_bfe_u32 v11, v10, 2, 1"); A("v_bfe_u32 v12, v9, 1, 1"); A("v_xor_b32 v11, v11, v12")
        A(f"v_lshl_add_u32 v{4+b}, v11, 6, v{4+b}"); A("v_and_b32 v11, 3, v10"); A(f"v_lshl_add_u32 v{4+b}, v11, 4, v{4+b}")
    def wdma(stage):
        slot = (stage % 4) * 32768
        kst(stage, 56, 64 * 3072); A("s_add_u32 s56, s56, s8")
        for a in range(2):
            for b in range(3):
                A(f"s_add_u32 m0, s10, {slot + (a*3+b)*1024}")
                if b == 0: A(f"s_add_u32 s12, s56, {a*8*3072}")
                else: A("s_nop 0")
                A(f"buffer_load_dwordx4 v{4+b}, s[40:43], s12 offen lds"); q.add(("st", stage))
    wdma(0)
    xdma(1); wdma(1)
    job = "nojob" not in EXP
    A("s_barrier")
    ts(A, 0, 1)
    FL = 131072 + 24576 + 4096
    A("s_lshl_b32 s12, s3, 2"); A(f"s_add_u32 s12, s12, {FL + 64}"); A("v_mov_b32 v22, s12"); A("v_mov_b32 v23, 1")
    def land(st):
        A(f"s_waitcnt vmcnt({q.need(('st', st))})")
        A(f"ds_write_b32 v22, v23 offset:{st * 16}")
    xdma(2); wdma(2)
    A(f"s_waitcnt vmcnt({q.need(('st', 0))})")
    A("s_barrier")
    A("s_cmp_lg_u32 s6, 0"); A("s_cbranch_scc1 k1_noflag"); A("s_cmp_lg_u32 s3, 0"); A("s_cbranch_scc1 k1_noflag")
    A("v_mov_b32 v20, 1"); A("s_lshl_b32 s12, s5, 2"); A("v_mov_b32 v21, s12")
    A("s_mov_b64 exec, 1")
    A("buffer_store_dword v20, v21, s[48:51], 0 offen sc1")
    A("s_mov_b64 exec, -1")
    A.label("k1_noflag")
    xdma(3); wdma(3)
    for st in range(7):
        if st < 4:
            A(f"s_waitcnt vmcnt({q.need(('st', st + 1))})"); A("s_barrier")
        else: land(st + 1)
        if st + 4 < 8: xdma(st + 4); wdma(st + 4)
        if st == JOBI and job:
            ts(A, 0, 2)
            job_issue(A, q)
    if job:
        A("s_waitcnt vmcnt(0)")
        ts(A, 0, 3)
        job_finish(A)
    ts(A, 0, 7, True)

def k1_wave(A, w):
    wm, wn = w >> 1, w & 1
    q = VMQ()
    A("v_and_b32 v20, 31, v0"); A("v_lshrrev_b32 v21, 5, v0"); A("v_bfe_u32 v22, v0, 1, 3")
    A("v_xor_b32 v22, v22, v21"); A("v_lshlrev_b32 v22, 4, v22"); A("v_lshl_add_u32 v22, v20, 7, v22")
    A(f"v_add_u32 v8, {wm*4096}, v22")
    for t in range(1, 4): A(f"v_xor_b32 v{8+t}, {32*t}, v8")
    for t in range(4): A(f"v_add_u32 v{12+t}, 0x10000, v{8+t}")
    A("v_bfe_u32 v22, v0, 2, 2"); A("v_lshl_add_u32 v23, v21, 3, v22"); A("v_mul_u32_u24 v23, 384, v23")
    A("v_bfe_u32 v22, v0, 3, 1")
    if wn: A("v_xor_b32 v22, 1, v22")
    A("v_lshl_add_u32 v23, v22, 6, v23"); A("v_bfe_u32 v22, v0, 4, 1"); A("v_lshl_add_u32 v23, v22, 5, v23")
    A("v_and_b32 v22, 3, v0"); A("v_lshl_add_u32 v16, v22, 3, v23"); A("v_add_u32 v17, 0x10000, v16")
    XF = [24, 28]; WF = [32, 44]; ACC = 64
    RS, RQ, CS = 112, 114, 116
    RS2, RQ2, CS2 = 232, 234, 236
    for r in list(range(RS, CS + 3)) + list(range(RS2, CS2 + 3)): A(f"v_mov_b32 v{r}, 0")
    def reads(k):
        st, t = divmod(k, 4); sl = st % 4; hi = sl >= 2; off = (sl % 2) * 32768; b = k % 2
        L = [f"ds_read_b128 v[{XF[b]}:{XF[b]+3}], v{(12 if hi else 8)+t} offset:{off}"]
        for p in range(3):
            d = WF[b] + 4 * p; o = off + 8192 + t * 6144 + p * 128
            L.append(f"ds_read_b64_tr_b16 v[{d}:{d+1}], v{17 if hi else 16} offset:{o}")
            L.append(f"ds_read_b64_tr_b16 v[{d+2}:{d+3}], v{17 if hi else 16} offset:{o + 1536}")
        return L
    FL = 131072 + 24576 + 4096
    A("v_and_b32 v18, 3, v0"); A("v_lshlrev_b32 v18, 4, v18"); A(f"v_add_u32 v18, {FL + w*64}, v18")
    A("v_mov_b32 v24, 0"); A("v_mov_b32 v25, 0"); A("v_mov_b32 v26, 0"); A("v_mov_b32 v27, 0")
    A("ds_write_b128 v18, v[24:27]")
    A(f"v_mov_b32 v119, {FL}"); A("v_mov_b32 v123, 1")
    srd(A, 36, P_X, 0, 2048 * 1024); srd(A, 40, P_WQKV, 0, 512 * 3072)
    A("s_lshr_b32 s12, s2, 3"); A("s_lshl_b32 s12, s12, 2"); A(f"s_add_u32 s12, s12, {w}")
    A("s_and_b32 s13, s2, 7")
    A("s_lshr_b32 s15, s13, 1"); A("s_lshl_b32 s15, s15, 19"); A("s_lshl_b32 s14, s12, 12"); A("s_add_u32 s15, s15, s14")
    A("v_lshlrev_b32 v245, 7, v20")
    A("v_min_u32 v22, 47, v0"); A("v_mul_u32_u24 v23, 43, v22"); A("v_lshrrev_b32 v23, 9, v23")
    A("v_mul_u32_u24 v24, 12, v23"); A("v_sub_u32 v24, v22, v24")
    A("v_mul_u32_u24 v23, 3072, v23"); A("v_lshrrev_b32 v25, 2, v24"); A("v_lshl_add_u32 v23, v25, 10, v23")
    A("v_and_b32 v24, 3, v24"); A("v_lshl_add_u32 v23, v24, 7, v23")
    A("s_mul_i32 s14, s12, 12288"); A("s_and_b32 s13, s13, 1"); A("s_lshl_b32 s13, s13, 9"); A("s_add_u32 s14, s14, s13")
    A("s_waitcnt lgkmcnt(0)")
    A("s_barrier")
    if "nopf" not in EXP:
        A("buffer_load_dword v241, v23, s[40:43], s14 offen"); q.add("pf")
    if w == 1 and "tlbpf" in EXP:
        srd(A, 64, P_WS, 0, 24 * MB)
        A("v_lshlrev_b32 v22, 19, v0"); A("v_min_u32 v22, 0x17f0000, v22")
        A("buffer_load_dword v243, v22, s[64:67], 0 offen")
        srd(A, 64, P_OUT, 0, 2 * MB)
        A("v_lshlrev_b32 v22, 15, v0")
        A("buffer_load_dword v244, v22, s[64:67], 0 offen")
    if w == 0 and "codepf" in EXP:
        A("s_getpc_b64 s[64:65]")
        A.label("k1_pc")
        A("s_add_u32 s64, s64, k1_kernel-k1_pc")
        A("s_addc_u32 s65, s65, -1")
        A("s_lshr_b32 s12, s2, 3"); A("s_lshl_b32 s12, s12, 13")
        A("v_lshlrev_b32 v22, 7, v0"); A("v_add_u32 v22, s12, v22")
        A("s_mov_b32 s13, code_end-k1_kernel-4")
        A("s_cmp_gt_u32 s12, s13"); A("s_cbranch_scc1 k1_nocpf")
        A("v_min_u32 v22, s13, v22")
        A("global_load_dword v242, v22, s[64:65]")
        A.label("k1_nocpf")
    ts(A, 1, 1)
    A("s_barrier")
    if "noxpf" not in EXP: A("buffer_load_dword v240, v245, s[36:39], s15 offen"); q.add("pf")
    ts(A, 1, 2)
    for l in reads(0): A(l)
    A("s_waitcnt lgkmcnt(0)")
    for k in range(32):
        st, t = divmod(k, 4); b = k % 2
        if t == 3 and k + 1 < 32:
            if st < 4: A("s_barrier")
            else:
                lab = f"k1_lf{w}_{st}"
                A("v_and_b32 v124, v124, v125"); A("v_and_b32 v126, v126, v127"); A("v_and_b32 v124, v124, v126")
                A("s_nop 0")
                A("v_readfirstlane_b32 s14, v124"); A("s_nop 3")
                A("s_cmp_lg_u32 s14, 0"); A(f"s_cbranch_scc1 {lab}_ok")
                lds_wait4(A, FL + 64 + (st + 1) * 16, lab)
                A.label(f"{lab}_ok")
        if k == 28: lds_signal(A, FL + w * 4)
        if k == 24:
            A("s_lshl_b32 s14, s5, 2"); A("v_mov_b32 v120, s14")
            A("buffer_load_dword v121, v120, s[48:51], 0 offen sc1"); q.add("flag")
        if "k1st" in EXP and k in (4, 8, 16, 24): ts(A, 1, {4: 4, 8: 5, 16: 6, 24: 7}[k])
        rd = reads(k + 1) if k + 1 < 32 else []
        if t == 2 and 4 <= st < 7: rd.append(f"ds_read_b128 v[124:127], v119 offset:{64 + (st + 1) * 16}")
        x = XF[b]; wf = WF[b]
        c0 = "0" if k == 0 else None
        def C(r): return "0" if k == 0 else f"v[{r}:{r+15}]"
        A(f"v_mfma_f32_32x32x16_bf16 v[{ACC}:{ACC+15}], v[{wf}:{wf+3}], v[{x}:{x+3}], {C(ACC)}")
        for l in rd[:4]: A(l)
        A(f"v_mfma_f32_32x32x16_bf16 v[{ACC+16}:{ACC+31}], v[{x}:{x+3}], v[{wf+4}:{wf+7}], {C(ACC+16)}")
        for l in rd[4:]: A(l)
        A(f"v_mfma_f32_32x32x16_bf16 v[{ACC+32}:{ACC+47}], v[{x}:{x+3}], v[{wf+8}:{wf+11}], {C(ACC+32)}")
        if (k & 1) == wn and "nodots" not in EXP:
            for j in range(4):
                A(f"v_dot2c_f32_bf16 v{[RS, RS+1, RS2, RS2+1][j]}, {ONES}, v{x+j}")
                A(f"v_dot2c_f32_bf16 v{[RQ, RQ+1, RQ2, RQ2+1][j]}, v{x+j}, v{x+j}")
        if (k & 1) == wm and "nodots" not in EXP:
            for j in range(4):
                for p in range(3): A(f"v_dot2c_f32_bf16 v{(CS if j & 1 else CS2)+p}, {ONES}, v{wf+4*p+j}")
        A("s_waitcnt lgkmcnt(0)")
    ts(A, 1, 3)
    T = 122
    EX = 65536
    A("s_nop 2")
    A(f"v_add_f32 v{RS}, v{RS}, v{RS+1}"); A(f"v_add_f32 v{RS2}, v{RS2}, v{RS2+1}")
    A(f"v_add_f32 v{RQ}, v{RQ}, v{RQ+1}"); A(f"v_add_f32 v{RQ2}, v{RQ2}, v{RQ2+1}")
    for p in range(3): A(f"v_add_f32 v{CS+p}, v{CS+p}, v{CS2+p}")
    A(f"v_add_f32 v{RS}, v{RS}, v{RS2}"); A(f"v_add_f32 v{RQ}, v{RQ}, v{RQ2}")
    hs = [RS, RQ, CS, CS + 1, CS + 2]
    for i, r in enumerate(hs): A(f"v_mov_b32 v{24+i}, v{r}")
    A("s_nop 1")
    for i, r in enumerate(hs): A(f"v_permlane32_swap_b32 v{r}, v{24+i}")
    A("s_nop 1")
    for i, r in enumerate(hs): A(f"v_add_f32 v{r}, v{r}, v{24+i}")
    lds_wait4(A, FL, f"k1_d6{w}")
    A("v_lshlrev_b32 v22, 2, v20"); A(f"v_add_u32 v22, {EX}, v22")
    es = (wm * 2 + wn) * 256; eo = (wm * 2 + (1 - wn)) * 256
    ec = 1024 + (wn * 2 + wm) * 384; eco = 1024 + (wn * 2 + (1 - wm)) * 384
    A(f"ds_write_b32 v22, v{RS} offset:{es}"); A(f"ds_write_b32 v22, v{RQ} offset:{es+128}")
    for p in range(3): A(f"ds_write_b32 v22, v{CS+p} offset:{ec + p*128}")
    C1, CL, CN, CE = 176, 178, 180, 182
    for r, val in ((C1, 1.000001), (CL, LOG2E), (CN, -1.000001 * LOG2E), (CE, 1e-6)):
        A(f"v_mov_b32 v{r}, {f32(val)}"); A(f"v_mov_b32 v{r+1}, {f32(val)}")
    ON = 224
    for j in range(4): A(f"v_mov_b32 v{ON+j}, {ONES}")
    A("v_lshlrev_b32 v23, 4, v21"); A(f"v_add_u32 v23, {EX}, v23")
    lds_signal(A, FL + 16 + w * 4)
    lds_wait4(A, FL + 16, f"k1_sp{w}a")
    if "k1st" not in EXP: ts(A, 1, 6)
    A(f"ds_read_b32 v24, v22 offset:{eo}"); A(f"ds_read_b32 v25, v22 offset:{eo+128}")
    for p in range(3): A(f"ds_read_b32 v{26+p}, v22 offset:{eco + p*128}")
    A("s_waitcnt lgkmcnt(0)")
    A(f"v_add_f32 v{RS}, v{RS}, v24"); A(f"v_add_f32 v{RQ}, v{RQ}, v25")
    for p in range(3): A(f"v_add_f32 v{CS+p}, v{CS+p}, v{26+p}")
    PR = 4096 + w * 512
    A(f"ds_write_b32 v22, v{CS} offset:{PR+256}")
    A(f"v_mul_f32 v{RS}, {f32(1/512)}, v{RS}"); A(f"v_mul_f32 v{RQ}, {f32(1/512)}, v{RQ}")
    A(f"v_fma_f32 v{RQ}, -v{RS}, v{RS}, v{RQ}"); A(f"v_max_f32 v{RQ}, 0, v{RQ}"); A(f"v_add_f32 v{RQ}, {f32(1e-5)}, v{RQ}")
    A(f"v_rsq_f32 v{RQ}, v{RQ}"); A("s_nop 0")
    A(f"v_mul_f32 v{RS}, v{RS}, v{RQ}"); A(f"v_sub_f32 v{RS}, 0, v{RS}")
    A(f"ds_write_b32 v22, v{RQ} offset:{PR}"); A(f"ds_write_b32 v22, v{RS} offset:{PR+128}")
    SA, SB, SC = 128, 144, 160
    A(f"v_mov_b32 v184, v{RQ}"); A(f"v_mov_b32 v186, v{RS}"); A(f"v_mov_b32 v188, v{CS+1}"); A(f"v_mov_b32 v190, v{CS+2}")
    A("s_waitcnt lgkmcnt(0)")
    for qd in range(4):
        A(f"ds_read_b128 v[{SA+4*qd}:{SA+4*qd+3}], v23 offset:{PR + qd*32}")
        A(f"ds_read_b128 v[{SB+4*qd}:{SB+4*qd+3}], v23 offset:{PR + 128 + qd*32}")
    for qd in range(4): A(f"ds_read_b128 v[{SC+4*qd}:{SC+4*qd+3}], v23 offset:{PR + 256 + qd*32}")
    A("s_waitcnt lgkmcnt(4)")
    TP = 40
    def phi_vec(base, mode):
        prs = list(range(0, 16, 2))
        for i in prs:
            if mode == "q": A(f"v_pk_fma_f32 v[{TP+i}:{TP+i+1}], v[{SC+i}:{SC+i+1}], v[186:187], v[{C1}:{C1+1}] op_sel_hi:[1,0,1]")
            else:           A(f"v_pk_fma_f32 v[{TP+i}:{TP+i+1}], v[{SB+i}:{SB+i+1}], v[188:189], v[{C1}:{C1+1}] op_sel_hi:[1,0,1]")
        for i in prs:
            r = base + i
            if mode == "q": A(f"v_pk_fma_f32 v[{r}:{r+1}], v[{r}:{r+1}], v[184:185], v[{TP+i}:{TP+i+1}] op_sel_hi:[1,0,1]")
            else:           A(f"v_pk_fma_f32 v[{r}:{r+1}], v[{r}:{r+1}], v[{SA+i}:{SA+i+1}], v[{TP+i}:{TP+i+1}]")
        for i in prs:
            r = base + i
            A(f"v_pk_fma_f32 v[{TP+i}:{TP+i+1}], v[{r}:{r+1}], v[{CL}:{CL+1}], v[{CN}:{CN+1}]")
        for i in range(16): A(f"v_exp_f32_e64 v{TP+i}, v{TP+i} clamp")
        for i in prs: A(f"v_pk_add_f32 v[{TP+i}:{TP+i+1}], v[{TP+i}:{TP+i+1}], v[{CE}:{CE+1}]")
        for i in range(16): A(f"v_max_f32 v{base+i}, v{base+i}, v{TP+i}")
    PK = 200
    for r in range(0, 16, 2): A(f"v_pk_mul_f32 v[{24+r}:{24+r+1}], v[{SB+r}:{SB+r+1}], v[190:191] op_sel_hi:[1,0]")
    for r in range(0, 16, 2):
        rg = ACC + 32 + r
        A(f"v_pk_fma_f32 v[{rg}:{rg+1}], v[{rg}:{rg+1}], v[{SA+r}:{SA+r+1}], v[{24+r}:{24+r+1}]")
    phi_vec(ACC + 16, "k")
    for r in range(8): A(f"v_cvt_pk_bf16_f32 v{PK+16+r}, v{ACC+32+2*r}, v{ACC+32+2*r+1}")
    for r in range(8): A(f"v_cvt_pk_bf16_f32 v{PK+8+r}, v{ACC+16+2*r}, v{ACC+16+2*r+1}")
    A("s_nop 1")
    kp, vp = PK + 8, PK + 16; D = ACC + 16; Z = ACC + 32
    A(f"v_mfma_f32_32x32x16_bf16 v[{D}:{D+15}], v[{vp}:{vp+3}], v[{kp}:{kp+3}], 0")
    A(f"v_mfma_f32_32x32x16_bf16 v[{Z}:{Z+15}], v[{ON}:{ON+3}], v[{kp}:{kp+3}], 0")
    A(f"v_mfma_f32_32x32x16_bf16 v[{D}:{D+15}], v[{vp+4}:{vp+7}], v[{kp+4}:{kp+7}], v[{D}:{D+15}]")
    A(f"v_mfma_f32_32x32x16_bf16 v[{Z}:{Z+15}], v[{ON}:{ON+3}], v[{kp+4}:{kp+7}], v[{Z}:{Z+15}]")
    A("v_and_b32 v22, 16, v0"); A("v_cmp_ne_u32 vcc, 0, v22")
    A("v_lshlrev_b32 v19, 2, v0"); A(f"v_add_u32 v19, {EX + 8192}, v19")
    A("v_bfe_u32 v9, v0, 4, 1"); A("s_movk_i32 s13, 1088"); A("v_mul_lo_u32 v9, v9, s13")
    A("v_and_b32 v10, 15, v0"); A("v_lshl_add_u32 v9, v10, 2, v9"); A("v_lshl_add_u32 v10, v21, 8, v9")
    A("s_lshl_b32 s13, s5, 2"); A(f"s_add_u32 s13, s13, {2*wn}"); A("s_mulk_i32 s13, 1088")
    A("s_nop 7")
    for r in range(8): A(f"v_cndmask_b32 v{24+r}, v{D+r}, v{D+8+r}, vcc")
    keep = list(range(4 * wm, 4 * wm + 4)); send = [r for r in range(8) if r not in keep]
    mine = (wn * 2 + wm) * 2304; other = (wn * 2 + 1 - wm) * 2304
    for r in send: A(f"ds_write_b32 v19, v{24+r} offset:{mine + r*256}")
    if wm == 1: A(f"ds_write_b32 v19, v{Z} offset:{mine + 8*256}")
    lds_signal(A, FL + 32 + w * 4)
    lds_wait(A, FL + 32 + ((1 - wm) * 2 + wn) * 4, f"k1_sp{w}c")
    for i, r in enumerate(keep): A(f"ds_read_b32 v{32+i}, v19 offset:{other + r*256}")
    if wm == 0: A(f"ds_read_b32 v36, v19 offset:{other + 8*256}")
    A(f"s_waitcnt vmcnt({q.need('flag')})")
    A("s_waitcnt lgkmcnt(0)")
    for i, r in enumerate(keep): A(f"v_add_f32 v{24+r}, v{24+r}, v{32+i}")
    if wm == 0: A(f"v_add_f32 v36, v36, v{Z}")
    A("s_mov_b32 s15, 0")
    A.label(f"k1_poll{w}")
    A("v_readfirstlane_b32 s14, v121"); A("s_add_u32 s15, s15, 1"); A("s_nop 2"); A("s_cmp_lg_u32 s14, 0"); A(f"s_cbranch_scc1 k1_go{w}")
    A("s_cmp_ge_u32 s15, 0x20000"); A(f"s_cbranch_scc1 k1_go{w}")
    A("s_sleep 2"); A("buffer_load_dword v121, v120, s[48:51], 0 offen sc1"); A("s_waitcnt vmcnt(0)"); A(f"s_branch k1_poll{w}")
    A.label(f"k1_go{w}")
    for i, r in enumerate(keep):
        A(f"buffer_atomic_add_f32 v{24+r}, v10, s[44:47], s13 offen offset:{wm*512 + (r&3)*64}")
    if wm == 0:
        A("s_mov_b64 exec, 0xffffffff")
        A("buffer_atomic_add_f32 v36, v9, s[44:47], s13 offen offset:1024")
        A("s_mov_b64 exec, -1")
    if "k1st" not in EXP: ts(A, 1, 4)
    phi_vec(ACC, "q")
    for r in range(8): A(f"v_cvt_pk_bf16_f32 v{PK+r}, v{ACC+2*r}, v{ACC+2*r+1}")
    srd(A, 52, P_WS, WS_PQ, SZ_PQ)
    A("s_lshl_b32 s12, s6, 1"); A(f"s_add_u32 s12, s12, {wm}"); A("s_lshl_b32 s12, s12, 5")
    A("s_lshl_b32 s13, s5, 2"); A("s_add_u32 s12, s12, s13"); A(f"s_add_u32 s12, s12, {2*wn}"); A("s_lshl_b32 s12, s12, 10")
    A("v_lshlrev_b32 v18, 4, v0")
    A(f"buffer_store_dwordx4 v[{PK}:{PK+3}], v18, s[52:55], s12 offen{STP}")
    A(f"buffer_store_dwordx4 v[{PK+4}:{PK+7}], v18, s[52:55], s12 offen offset:1024{STP}")
    if "k1st" not in EXP: ts(A, 1, 5)

def job_issue(A, q):
    A("s_lshl_b32 s70, s3, 8"); A("s_add_u32 s70, s70, s2")
    A("s_lshl_b32 s71, s3, 13"); A("s_add_u32 s71, s71, 131072")
    A("v_lshrrev_b32 v28, 3, v0"); A("v_and_b32 v29, 7, v0"); A("v_lshlrev_b32 v29, 4, v29")
    A("v_lshl_add_u32 v30, v28, 10, v29")
    A("s_mov_b32 s72, 3")
    srd(A, 76, P_WO, 0, 0); srd(A, 80, P_WO, 0, 0)
    A("s_mov_b32 s88, 0"); A("s_mov_b32 s90, 0"); A("s_mov_b32 s91, 0")
    A("s_mov_b32 s62, 0"); A(f"s_mov_b32 s63, {131072 + 24576}")
    A("s_cmp_ge_u32 s70, 736"); A("s_cbranch_scc1 k1_js_done")
    A("s_movk_i32 s62, 1024"); A("s_mov_b32 s63, s71")
    A("s_cmp_lt_u32 s70, 448"); A("s_cbranch_scc1 k1_js_gu")
    A("s_mov_b32 s72, 1")
    A("s_cmp_lt_u32 s70, 672"); A("s_cbranch_scc1 k1_js_wd")
    srd(A, 76, P_WO, 0, 512 * 1024); srd(A, 80, P_WO, 0, 512 * 1024); srd(A, 84, P_WS, WS_WO, SZ_WO)
    A("s_mov_b32 s73, 32"); A("s_sub_u32 s70, s70, 672")
    A("s_branch k1_js_dd")
    A.label("k1_js_wd")
    srd(A, 76, P_WD, 0, 1792 * 1024); srd(A, 80, P_WD, 0, 1792 * 1024); srd(A, 84, P_WS, WS_WD, SZ_WD)
    A("s_mov_b32 s73, 112"); A("s_sub_u32 s70, s70, 448")
    A.label("k1_js_dd")
    A("s_lshr_b32 s74, s70, 3"); A("s_and_b32 s75, s70, 7")
    A("s_lshl_b32 s88, s74, 16"); A("s_lshl_b32 s89, s75, 7"); A("s_add_u32 s88, s88, s89")
    A("s_movk_i32 s90, 8192"); A("s_add_u32 s91, s88, 32768")
    A("s_branch k1_js_done")
    A.label("k1_js_gu")
    A("s_mov_b32 s72, 0")
    srd(A, 76, P_WG, 0, 512 * 3584); srd(A, 80, P_WU, 0, 512 * 3584); srd(A, 84, P_WS, WS_WGU, SZ_WGU)
    A("s_mul_i32 s74, s70, 2341"); A("s_lshr_b32 s74, s74, 16"); A("s_mul_i32 s75, s74, 28"); A("s_sub_u32 s75, s70, s75")
    A("s_movk_i32 s89, 3584"); A("v_mul_lo_u32 v30, v28, s89"); A("v_add_u32 v30, v30, v29")
    A(f"s_mul_i32 s88, s74, {32*3584}"); A("s_lshl_b32 s89, s75, 7"); A("s_add_u32 s88, s88, s89")
    A(f"s_movk_i32 s90, {8*3584}"); A("s_mov_b32 s91, s88")
    A.label("k1_js_done")
    for i in range(8):
        A("s_mov_b32 m0, s63")
        rg = 88 if i < 4 else 91
        A("s_add_u32 s63, s63, s62")
        A(f"buffer_load_dwordx4 v30, s[{76 if i < 4 else 80}:{79 if i < 4 else 83}], s{rg} offen lds"); q.add("job")
        A(f"s_add_u32 s{rg}, s{rg}, s90")

def job_finish(A):
    A("s_cmp_eq_u32 s72, 3"); A("s_cbranch_scc1 k1_jf_end")
    A("v_lshlrev_b32 v34, 4, v0")
    A("v_lshrrev_b32 v35, 5, v0"); A("v_bfe_u32 v36, v0, 2, 2"); A("v_lshl_add_u32 v35, v35, 2, v36"); A("v_lshlrev_b32 v35, 7, v35")
    A("v_and_b32 v36, 3, v0"); A("v_lshl_add_u32 v35, v36, 3, v35"); A("v_add_u32 v35, s71, v35"); A("v_bfe_u32 v36, v0, 4, 1")
    A("s_cmp_eq_u32 s72, 0"); A("s_cbranch_scc1 k1_jf_gu")
    A("v_lshl_add_u32 v35, v36, 5, v35")
    A("s_lshl_b32 s60, s75, 1"); A("s_mul_i32 s60, s60, s73"); A("s_lshl_b32 s61, s74, 2"); A("s_add_u32 s60, s60, s61")
    A("s_lshl_b32 s60, s60, 10"); A("s_lshl_b32 s61, s73, 10")
    for c in range(2):
        for i in range(4):
            d = 40 + (c * 4 + i) * 4
            A(f"ds_read_b64_tr_b16 v[{d}:{d+1}], v35 offset:{i*2048 + c*64}")
            A(f"ds_read_b64_tr_b16 v[{d+2}:{d+3}], v35 offset:{i*2048 + c*64 + 1024}")
    A("s_waitcnt lgkmcnt(0)")
    for c in range(2):
        for i in range(4):
            d = 40 + (c * 4 + i) * 4
            A(f"buffer_store_dwordx4 v[{d}:{d+3}], v34, s[84:87], s60 offen offset:{i*1024}{STP}")
        A("s_add_u32 s60, s60, s61")
    A("s_branch k1_jf_end")
    A.label("k1_jf_gu")
    srd(A, 76, P_WS, WS_CSP, SZ_CSP)
    A("v_lshl_add_u32 v35, v36, 12, v35")
    A("s_lshl_b32 s60, s75, 7"); A("s_lshl_b32 s61, s74, 1"); A("s_add_u32 s60, s60, s61"); A("s_lshl_b32 s60, s60, 10")
    for c in range(8): A(f"v_mov_b32 v{72+c}, 0")
    for c in range(4):
        for i in range(2):
            d = 40 + (c * 2 + i) * 4
            A(f"ds_read_b64_tr_b16 v[{d}:{d+1}], v35 offset:{i*2048 + c*32}")
            A(f"ds_read_b64_tr_b16 v[{d+2}:{d+3}], v35 offset:{i*2048 + c*32 + 1024}")
    A("s_waitcnt lgkmcnt(0)")
    for c in range(4):
        A(f"s_add_u32 s61, s60, {c*32*1024}")
        for i in range(2):
            d = 40 + (c * 2 + i) * 4
            A(f"buffer_store_dwordx4 v[{d}:{d+3}], v34, s[84:87], s61 offen offset:{i*1024}{STP}")
    for j in range(4):
        for i in range(2):
            for c in range(4): A(f"v_dot2c_f32_bf16 v{72+4*i+c}, {ONES}, v{40+(c*2+i)*4+j}")
    A("s_nop 2")
    for c in range(4): A(f"v_add_f32 v{72+c}, v{72+c}, v{76+c}")
    A("s_mulk_i32 s74, 3584"); A("s_lshl_b32 s61, s75, 7"); A("s_add_u32 s74, s74, s61"); A("s_lshl_b32 s74, s74, 2")
    A("v_and_b32 v32, 31, v0"); A("v_lshlrev_b32 v32, 2, v32")
    for c in range(4): halves_sum(A, 72 + c, 33)
    for c in range(4): A(f"buffer_store_dword v{72+c}, v32, s[76:79], s74 offen offset:{c*128}{STP}")
    A.label("k1_jf_end")

def ksplit_reduce(A, pre, ACC, OUT, TMP):
    A("v_lshlrev_b32 v7, 4, v0")
    for qd in range(1, 4):
        A(f"s_xor_b32 s8, s3, {qd}"); A("s_mulk_i32 s8, 12288"); A("v_add_u32 v6, s8, v7")
        for j in range(4):
            r = ACC + 16 * qd + 4 * j
            A(f"ds_write_b128 v6, {pre}[{r}:{r+3}] offset:{(qd-1)*4096 + j*1024}")
    if pre == "a":
        for r in range(16): A(f"v_accvgpr_read_b32 v{OUT+r}, a{ACC+r}")
    A("s_mul_i32 s8, s3, 12288"); A("v_add_u32 v6, s8, v7")
    A("s_waitcnt lgkmcnt(0)")
    A("s_barrier")
    for p in range(3):
        for j in range(4):
            d = TMP + 16 * p + 4 * j
            A(f"ds_read_b128 v[{d}:{d+3}], v6 offset:{p*4096 + j*1024}")
    own = OUT if pre == "a" else ACC
    A("s_waitcnt lgkmcnt(8)")
    for r in range(0, 16, 2): A(f"v_pk_add_f32 v[{OUT+r}:{OUT+r+1}], v[{own+r}:{own+r+1}], v[{TMP+r}:{TMP+r+1}]")
    A("s_waitcnt lgkmcnt(0)")
    for r in range(0, 16, 2): A(f"v_pk_add_f32 v[{TMP+16+r}:{TMP+16+r+1}], v[{TMP+16+r}:{TMP+16+r+1}], v[{TMP+32+r}:{TMP+32+r+1}]")
    for r in range(0, 16, 2): A(f"v_pk_add_f32 v[{OUT+r}:{OUT+r+1}], v[{OUT+r}:{OUT+r+1}], v[{TMP+16+r}:{TMP+16+r+1}]")

def prefetch(A, srdn, soff, dummy, lane128):
    A(f"buffer_load_dword v{dummy}, v{lane128}, s[{srdn}:{srdn+3}], s{soff} offen")

def gen_k2(A):
    A.label("k2_kernel")
    prologue(A, 256, "k2_end"); ts(A, 2, 0)
    A("s_and_b32 s4, s2, 7"); A("s_lshr_b32 s5, s2, 3"); A("s_mov_b32 s61, s4"); A("s_mov_b32 s62, s5")
    A("s_lshr_b32 s6, s5, 3"); A("s_lshl_b32 s4, s4, 2"); A("s_add_u32 s4, s4, s6"); A("s_and_b32 s5, s5, 7")
    srd(A, 36, P_WS, WS_KVZ, SZ_KVZ); srd(A, 40, P_WS, WS_PQ, SZ_PQ); srd(A, 44, P_WS, WS_WO, SZ_WO)
    srd(A, 48, P_X, 0, 2048 * 1024); srd(A, 52, P_WS, WS_H, SZ_H); srd(A, 56, P_WS, WS_STATS, SZ_STATS)
    srd(A, 64, P_WS, WS_WGU, SZ_WGU)
    q = VMQ()
    A("v_lshlrev_b32 v2, 4, v0"); A("v_and_b32 v3, 31, v0"); A("v_min_u32 v4, 16, v3"); A("v_lshlrev_b32 v4, 6, v4")
    A("v_lshrrev_b32 v5, 5, v0"); A("v_lshl_add_u32 v4, v5, 4, v4")
    A("s_lshl_b32 s8, s3, 3"); A("s_mul_i32 s9, s8, 1088")
    A("s_lshr_b32 s12, s3, 1"); A("s_and_b32 s16, s3, 1")
    A("s_lshl_b32 s13, s4, 1"); A("s_add_u32 s13, s13, s12")
    A("s_lshl_b32 s10, s13, 5"); A("s_add_u32 s10, s10, s8"); A("s_lshl_b32 s10, s10, 10")
    A("s_xor_b32 s14, s13, 1"); A("s_lshl_b32 s14, s14, 5"); A("s_add_u32 s14, s14, s8"); A("s_lshl_b32 s14, s14, 10")
    A("s_lshl_b32 s11, s5, 1"); A("s_add_u32 s11, s11, s16"); A("s_xor_b32 s15, s11, 1")
    A("s_lshl_b32 s11, s11, 5"); A("s_add_u32 s11, s11, s8"); A("s_lshl_b32 s11, s11, 10")
    A("s_lshl_b32 s15, s15, 5"); A("s_add_u32 s15, s15, s8"); A("s_lshl_b32 s15, s15, 10")
    KR = 64
    def loads(h):
        A(f"s_add_u32 s12, s9, {h*1088}")
        A(f"buffer_load_dwordx4 v[{KR+8*h}:{KR+8*h+3}], v4, s[36:39], s12 offen"); q.add(("kv", h))
        A(f"buffer_load_dwordx4 v[{KR+8*h+4}:{KR+8*h+7}], v4, s[36:39], s12 offen offset:32"); q.add(("kv", h))
        base = [10, 14, 11, 15]
        dst = [h * 4, (8 + h) * 4, 64 + h * 4, 64 + (8 + h) * 4]
        for i in range(4):
            sr = 40 if i < 2 else 44
            if h == 4: A(f"s_add_u32 s{base[i]}, s{base[i]}, 4096")
            A(f"buffer_load_dwordx4 a[{dst[i]}:{dst[i]+3}], v2, s[{sr}:{sr+3}], s{base[i]} offen offset:{(h%4)*1024}"); q.add(("fr", h))
    for h in range(3): loads(h)
    for r in range(64): A(f"v_accvgpr_write_b32 a{128+r}, 0")
    KA = 32; TT = [[128, 144], [160, 176]]; OF = [[8, 12], [16, 20]]; EPS = 24; XR = 200
    A(f"v_mov_b32 v{EPS}, {f32(1e-6)}")
    ts(A, 2, 1)
    def cv(h): return [f"v_cvt_pk_bf16_f32 v{KA+4*h+j}, v{KR+8*h+2*j}, v{KR+8*h+2*j+1}" for j in range(4)]
    def tm(h, aa):
        T = TT[h % 2][aa]
        return f"v_mfma_f32_32x32x16_bf16 v[{T}:{T+15}], v[{KA+4*h}:{KA+4*h+3}], a[{(aa*8+h)*4}:{(aa*8+h)*4+3}], 0"
    def mm(h, aa, b):
        ac = 128 + 16 * (2 * aa + b); o = OF[h % 2][aa]
        return f"v_mfma_f32_32x32x16_bf16 a[{ac}:{ac+15}], a[{64+(b*8+h)*4}:{64+(b*8+h)*4+3}], v[{o}:{o+3}], a[{ac}:{ac+15}]"
    def valu(h):
        L = []
        T0, T1 = TT[h % 2]; o0, o1 = OF[h % 2]
        L += [f"v_add_f32 v25, v{T0+8}, v{EPS}", f"v_add_f32 v26, v{T1+8}, v{EPS}", "v_rcp_f32 v25, v25", "v_rcp_f32 v26, v26", "s_nop 0"]
        for r in range(8): L += [f"v_mul_f32 v{T0+r}, v{T0+r}, v25", f"v_mul_f32 v{T1+r}, v{T1+r}, v26"]
        for j in range(4): L += [f"v_cvt_pk_bf16_f32 v{o0+j}, v{T0+2*j}, v{T0+2*j+1}", f"v_cvt_pk_bf16_f32 v{o1+j}, v{T1+2*j}, v{T1+2*j+1}"]
        return L
    A(f"s_waitcnt vmcnt({q.need(('fr', 0))})")
    for l in cv(0): A(l)
    ts(A, 2, 2)
    A("s_nop 1")
    A(tm(0, 0)); A(tm(0, 1))
    for h in range(9):
        if h + 3 < 8: loads(h + 3)
        if h == 5:
            A("s_lshl_b32 s17, s13, 15"); A("s_lshl_b32 s60, s5, 7"); A("s_add_u32 s17, s17, s60"); A("s_lshl_b32 s60, s16, 6"); A("s_add_u32 s17, s17, s60")
            A("v_lshlrev_b32 v6, 10, v3"); A("v_lshl_add_u32 v6, v5, 3, v6")
            for qd in range(4):
                A(f"buffer_load_dwordx2 v[{XR+2*qd}:{XR+2*qd+1}], v6, s[48:51], s17 offen offset:{qd*16}"); q.add("x")
            A("s_and_b32 s60, s61, 3"); A("s_mul_i32 s60, s60, 917504"); A("s_mul_i32 s63, s62, 28672"); A("s_add_u32 s60, s60, s63")
            A("s_mul_i32 s63, s3, 7168"); A("s_add_u32 s60, s60, s63")
            A("v_min_u32 v7, 55, v0"); A("v_lshlrev_b32 v7, 7, v7")
            A("buffer_load_dword v208, v7, s[64:67], s60 offen"); q.add("pf")
        if h == 6:
            srd(A, 68, P_WS, WS_CSP, SZ_CSP)
            A("s_lshl_b32 s60, s2, 2"); A("s_add_u32 s60, s60, s3"); A("s_lshl_b32 s63, s60, 8")
            A("v_lshlrev_b32 v7, 2, v0")
            A("s_cmp_ge_u32 s60, 56"); A("s_cbranch_scc1 k2_nocs1")
            A.lines.append(";OPT_BEGIN")
            for kc in range(16):
                A(f"s_add_u32 s60, s63, {kc*3584*4}")
                A(f"buffer_load_dword v{210+kc}, v7, s[68:71], s60 offen")
            A.lines.append(";OPT_END")
            A.label("k2_nocs1")
        ms = []
        if h + 1 < 8:
            A(f"s_waitcnt vmcnt({q.need(('fr', h + 1))})")
            for l in cv(h + 1): A(l)
            A("s_nop 1")
            ms += [tm(h + 1, 0), tm(h + 1, 1)]
        if h >= 1: ms += [mm(h - 1, 0, 0), mm(h - 1, 0, 1), mm(h - 1, 1, 0), mm(h - 1, 1, 1)]
        vl = valu(h) if h < 8 else []
        if h == 0:
            for m_ in ms: A(m_)
            A("s_nop 5")
            for l in vl: A(l)
            A("s_nop 1")
        else:
            per = (len(vl) + len(ms) - 1) // len(ms) if vl else 0
            for m_ in ms:
                A(m_)
                for _ in range(per):
                    if vl: A(vl.pop(0))
            for l in vl: A(l)
            A("s_nop 1")
    ts(A, 2, 3)
    A("s_nop 7"); A("s_nop 3")
    ksplit_reduce(A, "a", 128, 64, 80)
    ts(A, 2, 4)
    A(f"s_waitcnt vmcnt({q.need('x')})")
    for qd in range(4):
        for j in range(2):
            xr = XR + 2 * qd + j; t8 = 8 + 2 * ((2 * qd + j) % 4)
            A(f"v_lshlrev_b32 v{t8}, 16, v{xr}"); A(f"v_and_b32 v{t8+1}, 0xffff0000, v{xr}")
            A(f"v_pk_add_f32 v[{64+4*qd+2*j}:{64+4*qd+2*j+1}], v[{64+4*qd+2*j}:{64+4*qd+2*j+1}], v[{t8}:{t8+1}]")
    HP = 96
    for r in range(8): A(f"v_cvt_pk_bf16_f32 v{HP+r}, v{64+2*r}, v{64+2*r+1}")
    A("s_lshl_b32 s8, s13, 5"); A("s_lshl_b32 s9, s5, 2"); A("s_add_u32 s8, s8, s9"); A("s_lshl_b32 s9, s16, 1"); A("s_add_u32 s8, s8, s9"); A("s_lshl_b32 s8, s8, 10")
    A(f"buffer_store_dwordx4 v[{HP}:{HP+3}], v2, s[52:55], s8 offen{STP}")
    A(f"buffer_store_dwordx4 v[{HP+4}:{HP+7}], v2, s[52:55], s8 offen offset:1024{STP}")
    for r in range(16, 20): A(f"v_mov_b32 v{r}, 0")
    for r in range(8):
        A(f"v_dot2c_f32_bf16 v{16+(r&1)}, {ONES}, v{HP+r}"); A(f"v_dot2c_f32_bf16 v{18+(r&1)}, v{HP+r}, v{HP+r}")
    A("s_nop 2")
    A("v_add_f32 v10, v16, v17"); A("v_add_f32 v11, v18, v19")
    halves_sum(A, 10, 12); halves_sum(A, 11, 12)
    A("s_lshl_b32 s8, s13, 12"); A("s_lshl_b32 s9, s5, 4"); A("s_add_u32 s8, s8, s9"); A("s_lshl_b32 s9, s16, 3"); A("s_add_u32 s8, s8, s9")
    A("v_lshlrev_b32 v6, 7, v3")
    A(f"buffer_store_dwordx2 v[10:11], v6, s[56:59], s8 offen{STP}")
    A("s_lshl_b32 s60, s2, 2"); A("s_add_u32 s60, s60, s3"); A("s_cmp_ge_u32 s60, 56"); A("s_cbranch_scc1 k2_nocs2")
    A("s_waitcnt vmcnt(0)")
    A.lines.append(";OPT_BEGIN")
    for st_ in (8, 4, 2, 1):
        for kc in range(st_): A(f"v_add_f32 v{210+kc}, v{210+kc}, v{210+kc+st_}")
    srd(A, 68, P_WS, WS_CS, SZ_CS)
    A("v_lshlrev_b32 v7, 2, v0")
    A(f"buffer_store_dword v210, v7, s[68:71], s63 offen{STP}")
    A.lines.append(";OPT_END")
    A.label("k2_nocs2")
    ts(A, 2, 7, True)
    A.label("k2_end")
    A("s_endpgm")

def gen_k3(A):
    A.label("k3_kernel")
    prologue(A, 256, "k3_end"); ts(A, 3, 0)
    A("s_and_b32 s4, s2, 7"); A("s_lshr_b32 s5, s2, 3")
    A("s_lshr_b32 s6, s4, 2"); A("s_lshl_b32 s6, s6, 3"); A("s_lshr_b32 s7, s5, 2"); A("s_add_u32 s6, s6, s7")
    A("s_and_b32 s4, s4, 3"); A("s_lshl_b32 s4, s4, 2"); A("s_and_b32 s5, s5, 3"); A("s_add_u32 s5, s5, s4")
    A("s_mov_b32 s4, s6")
    srd(A, 36, P_WS, WS_WGU, SZ_WGU); srd(A, 40, P_WS, WS_H, SZ_H)
    q = VMQ()
    A("v_lshlrev_b32 v2, 4, v0")
    A("s_lshl_b32 s6, s4, 2"); A("s_add_u32 s6, s6, s3")
    A("s_mul_i32 s7, s5, 7")
    A("s_add_u32 s8, s7, s3"); A("s_lshl_b32 s8, s8, 15")
    A("s_lshl_b32 s9, s7, 15"); A("s_lshl_b32 s10, s3, 13"); A("s_add_u32 s9, s9, s10")
    A("s_lshl_b32 s11, s6, 15")
    def dma_groups(stage):
        slot = (stage % 4) * 32768; L = []
        for hlf in range(2):
            for i in range(4):
                g = []
                if i == 0:
                    g.append(f"s_add_u32 m0, s10, {slot + hlf*4096}")
                    g.append(f"s_add_u32 s12, s8, {(8*stage + 4*hlf)*1024}" if stage < 4 else f"s_add_u32 s12, s9, {stage*32768 + hlf*4096}")
                g.append(f"buffer_load_dwordx4 v2, s[36:39], s12 offen offset:{i*1024} lds")
                L.append((g, ("dma", stage)))
        return L
    def h_groups(c):
        L = []
        for t in range(8 * c, 8 * c + 8):
            g = []
            if t % 4 == 0: g.append(f"s_add_u32 s13, s11, {t*1024}")
            g.append(f"buffer_load_dwordx4 a[{4*t}:{4*t+3}], v2, s[40:43], s13 offen offset:{(t%4)*1024}")
            L.append((g, ("h", c)))
        return L
    def emit(gt):
        for l in gt[0]: A(l)
        q.add(gt[1])
    def inter(a, b):
        out = []
        for x, y in zip(a, b): out += [x, y]
        return out
    for gt in inter(dma_groups(0), h_groups(0)): emit(gt)
    srd(A, 44, P_WS, WS_STATS, SZ_STATS); srd(A, 48, P_WS, WS_CS, SZ_CS); srd(A, 52, P_WS, WS_ACT, SZ_ACT)
    SM = 212
    A("v_and_b32 v3, 31, v0"); A("v_lshrrev_b32 v5, 5, v0"); A("v_lshlrev_b32 v4, 7, v3"); A("v_lshl_add_u32 v4, v5, 6, v4")
    A("s_lshl_b32 s14, s6, 12")
    for j in range(4): A(f"buffer_load_dwordx4 v[{SM+4*j}:{SM+4*j+3}], v4, s[44:47], s14 offen offset:{j*16}"); q.add("small")
    A("v_lshl_add_u32 v6, v1, 6, v0"); A("v_min_u32 v6, 223, v6"); A("v_lshlrev_b32 v6, 2, v6")
    A("s_mul_i32 s14, s7, 128")
    A(f"buffer_load_dword v{SM+16}, v6, s[48:51], s14 offen"); q.add("small")
    vpend = inter(dma_groups(1), h_groups(1))
    for _ in range(NPRE): emit(vpend.pop(0))
    vpend += inter(dma_groups(2), h_groups(2)) + inter(dma_groups(3), h_groups(3))
    NM, C1, C2 = 8, 9, 10
    CSL = 131072
    A(f"v_add_u32 v7, {CSL}, v6")
    A(f"v_lshlrev_b32 v11, 4, v5"); A(f"v_add_u32 v11, {CSL}, v11")
    A("v_mov_b32 v12, v2"); A("v_add_u32 v13, 0x10000, v2")
    ACCS = [64 + 16 * i for i in range(7)]
    NAF = 12
    AF = [16 + 4 * i for i in range(NAF)]
    CSR = 176; ET = 192
    A("s_mul_i32 s14, s6, 112"); A("s_add_u32 s14, s14, s7"); A("s_lshl_b32 s14, s14, 10")
    st_l = []
    for j in range(1, 4):
        for e in range(4): st_l.append(f"v_add_f32 v{SM+e}, v{SM+e}, v{SM+4*j+e}")
    st_l += [f"v_add_f32 v{SM}, v{SM}, v{SM+2}", f"v_add_f32 v{SM+1}, v{SM+1}, v{SM+3}",
             f"v_mov_b32 v{SM+4}, v{SM}", f"v_mov_b32 v{SM+5}, v{SM+1}", "s_nop 1",
             f"v_permlane32_swap_b32 v{SM}, v{SM+4}", f"v_permlane32_swap_b32 v{SM+1}, v{SM+5}", "s_nop 1",
             f"v_add_f32 v{SM}, v{SM}, v{SM+4}", f"v_add_f32 v{SM+1}, v{SM+1}, v{SM+5}",
             f"v_mul_f32 v{SM}, {f32(1/512)}, v{SM}", f"v_mul_f32 v{SM+1}, {f32(1/512)}, v{SM+1}",
             f"v_fma_f32 v{SM+1}, -v{SM}, v{SM}, v{SM+1}", f"v_max_f32 v{SM+1}, 0, v{SM+1}", f"v_add_f32 v{SM+1}, {f32(1e-5)}, v{SM+1}",
             f"v_rsq_f32 v{SM+1}, v{SM+1}", f"v_sub_f32 v{NM}, 0, v{SM}",
             f"v_mul_f32 v{C1}, {f32(-LOG2E)}, v{SM+1}", f"v_mul_f32 v{C2}, v{SM+1}, v{SM+1}", f"ds_write_b32 v7, v{SM+16}"]
    seq = []
    for c in range(4):
        for i in range(8):
            for w in range(4): seq.append((w, 8 * c + i, c, w * 8192 + i * 1024))
    for c in range(4, 7):
        for t in range(32): seq.append((c, t, c, t * 1024))
    def aread(n):
        tile, t, stage, off = seq[n]; sl = stage % 4
        A(f"ds_read_b128 v[{AF[n%NAF]}:{AF[n%NAF]+3}], v{13 if sl >= 2 else 12} offset:{(sl%2)*32768 + off}")
    def epi(tile, n0):
        L = []; ac = ACCS[tile]; P = ET + 16; R8 = range(8)
        L += [(n0, f"ds_read_b128 v[{CSR+4*qd}:{CSR+4*qd+3}], v11 offset:{tile*128 + qd*32}") for qd in range(4)]
        L += [("sync", None)]
        M = []
        M += [f"v_fmac_f32 v{ac+r}, v{NM}, v{CSR+r}" for r in range(16)]
        M += [f"v_mul_f32 v{ET+r}, v{C1}, v{ac+r}" for r in R8]
        M += [x for r in R8 for x in (f"v_exp_f32 v{ET+r}, v{ET+r}", f"v_mul_f32 v{ET+8+r}, v{ac+r}, v{ac+8+r}")]
        M += [x for r in R8 for x in (f"v_add_f32 v{ET+r}, 1.0, v{ET+r}", f"v_mul_f32 v{ET+8+r}, v{ET+8+r}, v{C2}")]
        M += [f"v_rcp_f32 v{ET+r}, v{ET+r}" for r in R8]
        M += [f"v_mul_f32 v{ET+8+r}, v{ET+8+r}, v{ET+r}" for r in R8]
        M += [f"v_cvt_pk_bf16_f32 v{P+j}, v{ET+8+2*j}, v{ET+8+2*j+1}" for j in range(4)]
        M += [f"s_add_u32 s15, s14, {tile*1024}", f"buffer_store_dwordx4 v[{P}:{P+3}], v2, s[52:55], s15 offen{STP}"]
        return L + [(n0, m) for m in M]
    cost = lambda l: 2 if (l.startswith("v_exp") or l.startswith("v_rcp") or l.startswith("v_rsq")) else 1
    ts(A, 3, 1)
    A(f"s_waitcnt vmcnt({q.need(('dma', 0), ('h', 0))})")
    A("s_barrier")
    ts(A, 3, 2)
    PF = 8
    for n in range(PF): aread(n)
    N = len(seq)
    pend = []
    started = set()
    hold = -1
    for n in range(N):
        tile, t, stage, off = seq[n]
        budget = 6
        if n + PF < N and seq[n + PF][2] != seq[n + PF - 1][2]:
            ns = seq[n + PF][2]
            tags = [("dma", ns)] + ([("h", ns)] if ns < 4 else []) + (["small"] if ns == 1 else [])
            while any(gt[1] in tags for gt in vpend): emit(vpend.pop(0))
            A(f"s_waitcnt vmcnt({q.need(*tags)})")
            A("s_barrier")
            rs = ns + 2
            if 4 <= rs < 7: vpend += dma_groups(rs)
            budget -= 2
            if ns == 1: pend += [(n, l) for l in st_l]
        if n + PF < N: aread(n + PF); budget -= 1
        if n % 2 == 0:
            A(f"s_waitcnt lgkmcnt({max(0, min(PF, N - 1 - n) - 1)})"); budget -= 1
        ac = ACCS[tile]
        c_in = f"v[{ac}:{ac+15}]" if tile in started else "0"
        started.add(tile)
        A(f"v_mfma_f32_32x32x16_bf16 v[{ac}:{ac+15}], v[{AF[n%NAF]}:{AF[n%NAF]+3}], a[{4*t}:{4*t+3}], {c_in}")
        if n == 127: ts(A, 3, 3)
        if n == 159: ts(A, 3, 5)
        if n == 191: ts(A, 3, 6)
        rate = 1 if (n < VFAST) else 2
        if vpend and n % rate == rate - 1:
            gt = vpend.pop(0); emit(gt); budget -= len(gt[0])
        if n == 128 + 2:
            for tl in range(4): pend += epi(tl, n)
        if n == 128 + 32 + 13: pend += epi(4, n)
        if n == 128 + 64 + 13: pend += epi(5, n)
        if "k3nofill" in EXP and n > 100: pend = []
        while pend and budget > 0 and n >= hold:
            e, l = pend.pop(0)
            if e == "sync":
                hold = n + PF + 2; break
            A(l); budget -= cost(l)
            if l.startswith("buffer_store"): q.add("st")
    ts(A, 3, 4)
    A("s_nop 7"); A("s_nop 3")
    A("s_waitcnt lgkmcnt(0)")
    for e, l in pend + epi(6, 0):
        if e == "sync": A("s_waitcnt lgkmcnt(0)")
        else: A(l)
    ts(A, 3, 7, True)
    A.label("k3_end")
    A("s_endpgm")

def gen_k4(A):
    A.label("k4_kernel")
    prologue(A, 256, "k4_end"); ts(A, 4, 0)
    A("s_and_b32 s4, s2, 7"); A("s_lshr_b32 s5, s2, 3"); A("s_lshr_b32 s6, s5, 3"); A("s_lshl_b32 s4, s4, 2"); A("s_add_u32 s4, s4, s6"); A("s_and_b32 s5, s5, 7")
    srd(A, 36, P_WS, WS_ACT, SZ_ACT); srd(A, 40, P_WS, WS_WD, SZ_WD); srd(A, 44, P_WS, WS_H, SZ_H); srd(A, 48, P_OUT, 0, 2048 * 1024)
    q = VMQ()
    A("v_lshlrev_b32 v2, 4, v0")
    A("s_mul_i32 s8, s3, 28")
    A("s_lshr_b32 s13, s3, 1"); A("s_lshl_b32 s14, s4, 1"); A("s_add_u32 s13, s14, s13")
    A("s_and_b32 s14, s3, 1")
    A("s_mul_i32 s9, s13, 112"); A("s_add_u32 s9, s9, s8"); A("s_lshl_b32 s9, s9, 10")
    A("s_xor_b32 s11, s13, 1"); A("s_mul_i32 s11, s11, 112"); A("s_add_u32 s11, s11, s8"); A("s_lshl_b32 s11, s11, 10")
    A("s_lshl_b32 s10, s5, 1"); A("s_add_u32 s10, s10, s14"); A("s_xor_b32 s12, s10, 1")
    A("s_mul_i32 s10, s10, 112"); A("s_add_u32 s10, s10, s8"); A("s_lshl_b32 s10, s10, 10")
    A("s_mul_i32 s12, s12, 112"); A("s_add_u32 s12, s12, s8"); A("s_lshl_b32 s12, s12, 10")
    D = 5
    bases = [9, 11, 10, 12]
    def loads(t):
        b = (t % D) * 16
        for i in range(4):
            sr = 36 if i < 2 else 40
            if t % 4 == 0 and t > 0: A(f"s_add_u32 s{bases[i]}, s{bases[i]}, 4096")
            A(f"buffer_load_dwordx4 a[{b+4*i}:{b+4*i+3}], v2, s[{sr}:{sr+3}], s{bases[i]} offen offset:{(t%4)*1024}"); q.add(("g", t))
    for t in range(D): loads(t)
    A("s_lshl_b32 s15, s13, 5"); A("s_lshl_b32 s60, s5, 2"); A("s_add_u32 s15, s15, s60"); A("s_lshl_b32 s60, s14, 1"); A("s_add_u32 s15, s15, s60"); A("s_lshl_b32 s15, s15, 10")
    HR = 16
    ACC = 128
    for r in range(64): A(f"v_mov_b32 v{ACC+r}, 0")
    ts(A, 4, 1)
    for t in range(28):
        A(f"s_waitcnt vmcnt({q.need(('g', t))})")
        if t == 1: ts(A, 4, 2)
        b = (t % D) * 16
        for aa in range(2):
            for bb in range(2):
                ac = ACC + 16 * (2 * aa + bb)
                A(f"v_mfma_f32_32x32x16_bf16 v[{ac}:{ac+15}], a[{b+8+4*bb}:{b+8+4*bb+3}], a[{b+4*aa}:{b+4*aa+3}], v[{ac}:{ac+15}]")
        if t + D < 28: loads(t + D)
        if t == 22:
            A(f"buffer_load_dwordx4 v[{HR}:{HR+3}], v2, s[44:47], s15 offen"); q.add("h")
            A(f"buffer_load_dwordx4 v[{HR+4}:{HR+7}], v2, s[44:47], s15 offen offset:1024"); q.add("h")
    ts(A, 4, 3)
    A("s_nop 7"); A("s_nop 3")
    ksplit_reduce(A, "v", ACC, 64, 80)
    ts(A, 4, 4)
    A("s_waitcnt vmcnt(0)")
    for r in range(8):
        t8 = 8 + 2 * (r % 4)
        A(f"v_lshlrev_b32 v{t8}, 16, v{HR+r}"); A(f"v_and_b32 v{t8+1}, 0xffff0000, v{HR+r}")
        A(f"v_pk_add_f32 v[{64+2*r}:{64+2*r+1}], v[{64+2*r}:{64+2*r+1}], v[{t8}:{t8+1}]")
    OP = 96
    for r in range(8): A(f"v_cvt_pk_bf16_f32 v{OP+r}, v{64+2*r}, v{64+2*r+1}")
    A("s_nop 1")
    for p in range(2):
        A(f"v_permlane32_swap_b32 v{OP+4*p}, v{OP+4*p+2}"); A(f"v_permlane32_swap_b32 v{OP+4*p+1}, v{OP+4*p+3}")
    A("v_and_b32 v3, 31, v0"); A("v_lshrrev_b32 v5, 5, v0"); A("v_lshlrev_b32 v6, 10, v3"); A("v_lshl_add_u32 v6, v5, 4, v6")
    A("s_lshl_b32 s8, s13, 15"); A("s_lshl_b32 s9, s5, 7"); A("s_add_u32 s8, s8, s9"); A("s_lshl_b32 s9, s14, 6"); A("s_add_u32 s8, s8, s9")
    for p in range(2): A(f"buffer_store_dwordx4 v[{OP+4*p}:{OP+4*p+3}], v6, s[48:51], s8 offen offset:{p*32}{STP}")
    ts(A, 4, 7, True)
    A.label("k4_end")
    A("s_endpgm")

def build(path, extra_launches=0):
    kernels = [("k1_kernel", gen_k1, (256, 163840, 512), 256, 256),
               ("k2_kernel", gen_k2, (256, 49152, 256), 512, 256),
               ("k3_kernel", gen_k3, (256, 131072 + 1024, 256), 512, 256),
               ("k4_kernel", gen_k4, (256, 49152, 256), 512, 256)]
    hdr = open(f"cdna_kernels/{KNAME}.s.ref").read().split("\n")
    out = [l for l in hdr if l.startswith(";") and "@launch" not in l and "Override launch" not in l and "grid=ceil" not in l]
    for (n, g, (wg, lds, thr), vg, ac) in kernels:
        out.append(f"; @launch kernel={n} grid=({wg},1,1) block=({thr},1,1) lds={lds}")
    out.append('.amdgcn_target "amdgcn-amd-amdhsa--gfx950"'); out.append(".text")
    nerr = 0
    for (n, g, _, vg, ac) in kernels:
        A = Asm(); g(A)
        A.lines = [l for l in A.lines if l is not None]
        for variant in (A.lines, strip_opt(A.lines)):
            errs = check(variant, n)
            for e in errs[:30]: print("CHECK:", e)
            nerr += len(errs)
        out.append(f".globl {n}\n.p2align 8\n.type {n},@function"); out.append(A.text())
    out.append("code_end:\n  s_endpgm")
    out.append('.section .rodata,"a"')
    for (n, g, _, vg, ac) in kernels: out.append(kd(n, vg, ac))
    open(path, "w").write("\n".join(out) + "\n")
    print("written", path, "check errors:", nerr)
    import subprocess
    r = subprocess.run(["clang", "-x", "assembler", "-target", "amdgcn-amd-amdhsa", "-mcpu=gfx950", "-c", path, "-o", "x.o"], capture_output=True, text=True)
    if r.returncode: print(r.stderr[:2000])

if __name__ == "__main__":
    if "--ts" in sys.argv: G.TS = True; sys.argv.remove("--ts")
    build(sys.argv[1])
```

```python
import sys, os
sys.path.insert(0, "dev")
from asmlib import *
import gen as G
import gen3 as G3
from gen3 import *
from gen3 import VMQ, ts, STP, EXP, dbg_stamp

WS_CNT = 0x78000; SZ_CNT = 4096
LD = " sc1"

def signal(A, cnt_off_sgpr, lab):
    A("s_cmp_lg_u32 s3, 0"); A(f"s_cbranch_scc1 {lab}")
    A("v_mov_b32 v250, 1"); A("v_mov_b32 v251, 0")
    A("s_mov_b64 exec, 1")
    A(f"buffer_atomic_add v250, v251, s[64:67], s{cnt_off_sgpr} offen sc1")
    A("s_mov_b64 exec, -1")
    A.label(lab)

def wait_cnt(A, cnt_off_sgpr, target, lab):
    A("s_cmp_lg_u32 s3, 0"); A(f"s_cbranch_scc1 {lab}_done")
    A("v_mov_b32 v251, 0"); A("s_mov_b32 s76, 0")
    A.label(lab)
    A(f"buffer_load_dword v250, v251, s[64:67], s{cnt_off_sgpr} offen sc1")
    A("s_waitcnt vmcnt(0)")
    A("v_readfirstlane_b32 s77, v250")
    A("s_add_u32 s76, s76, 1")
    A("s_nop 2")
    A(f"s_cmp_ge_u32 s77, {target}"); A(f"s_cbranch_scc1 {lab}_done")
    A("s_cmp_ge_u32 s76, 0x20000"); A(f"s_cbranch_scc1 {lab}_done")
    A(f"s_sleep {PSL}")
    A(f"s_branch {lab}")
    A.label(f"{lab}_done")
    A("s_barrier")

def reduce4(A, pre, ACC, OUT, TMP, base):
    A("v_lshlrev_b32 v7, 4, v0")
    for qd in range(1, 4):
        A(f"s_xor_b32 s8, s3, {qd}"); A("s_mulk_i32 s8, 12288"); A(f"s_add_u32 s8, s8, {base}"); A("v_add_u32 v6, s8, v7")
        for j in range(4):
            r = ACC + 16 * qd + 4 * j
            A(f"ds_write_b128 v6, {pre}[{r}:{r+3}] offset:{(qd-1)*4096 + j*1024}")
    if pre == "a":
        for r in range(16): A(f"v_accvgpr_read_b32 v{OUT+r}, a{ACC+r}")
    A("s_mul_i32 s8, s3, 12288"); A(f"s_add_u32 s8, s8, {base}"); A("v_add_u32 v6, s8, v7")
    A("s_waitcnt lgkmcnt(0)")
    A("s_barrier")
    for p in range(3):
        for j in range(4):
            d = TMP + 16 * p + 4 * j
            A(f"ds_read_b128 v[{d}:{d+3}], v6 offset:{p*4096 + j*1024}")
    own = OUT if pre == "a" else ACC
    A("s_waitcnt lgkmcnt(8)")
    for r in range(0, 16, 2): A(f"v_pk_add_f32 v[{OUT+r}:{OUT+r+1}], v[{own+r}:{own+r+1}], v[{TMP+r}:{TMP+r+1}]")
    A("s_waitcnt lgkmcnt(0)")
    for r in range(0, 16, 2): A(f"v_pk_add_f32 v[{TMP+16+r}:{TMP+16+r+1}], v[{TMP+16+r}:{TMP+16+r+1}], v[{TMP+32+r}:{TMP+32+r+1}]")
    for r in range(0, 16, 2): A(f"v_pk_add_f32 v[{OUT+r}:{OUT+r+1}], v[{OUT+r}:{OUT+r+1}], v[{TMP+16+r}:{TMP+16+r+1}]")

BUD = int(os.environ.get("BUD", "6"))
DP4 = int(os.environ.get("DP4", "7"))
PSL = int(os.environ.get("PSL", "1"))
HPRE = int(os.environ.get("HPRE", "16"))
WD0 = int(os.environ.get("WD0", "138"))
NW0 = int(os.environ.get("NW0", "8"))
NWD1 = int(os.environ.get("NWD1", "32"))
def gen_kf(A):
    A.label("kf_kernel")
    prologue(A, 256, "kf_end"); ts(A, 2, 0)
    if "dbgts" in EXP:
        A("s_cmp_lg_u32 s3, 0"); A("s_cbranch_scc1 dbgx_f0"); dbg_stamp(A, 2, "f0"); A.label("dbgx_f0")
    A("s_and_b32 s74, s2, 7"); A("s_lshr_b32 s75, s2, 3")
    A("s_lshr_b32 s4, s75, 3"); A("s_lshl_b32 s68, s74, 2"); A("s_add_u32 s68, s68, s4"); A("s_and_b32 s69, s75, 7")
    A("s_lshr_b32 s4, s3, 1"); A("s_and_b32 s71, s3, 1"); A("s_lshl_b32 s70, s68, 1"); A("s_add_u32 s70, s70, s4")
    A("s_lshr_b32 s4, s74, 2"); A("s_lshl_b32 s72, s4, 3"); A("s_lshr_b32 s4, s75, 2"); A("s_add_u32 s72, s72, s4")
    A("s_and_b32 s4, s74, 3"); A("s_lshl_b32 s73, s4, 2"); A("s_and_b32 s4, s75, 3"); A("s_add_u32 s73, s73, s4")
    srd(A, 36, P_WS, WS_KVZ, SZ_KVZ); srd(A, 40, P_WS, WS_PQ, SZ_PQ); srd(A, 44, P_WS, WS_WO, SZ_WO)
    q = VMQ()
    A("v_lshlrev_b32 v2, 4, v0"); A("v_and_b32 v3, 31, v0"); A("v_min_u32 v4, 16, v3"); A("v_lshlrev_b32 v4, 6, v4")
    A("v_lshrrev_b32 v5, 5, v0"); A("v_lshl_add_u32 v4, v5, 4, v4")
    A("s_lshl_b32 s8, s3, 3"); A("s_mul_i32 s9, s8, 1088")
    A("s_lshl_b32 s10, s70, 5"); A("s_add_u32 s10, s10, s8"); A("s_lshl_b32 s10, s10, 10")
    A("s_xor_b32 s14, s70, 1"); A("s_lshl_b32 s14, s14, 5"); A("s_add_u32 s14, s14, s8"); A("s_lshl_b32 s14, s14, 10")
    A("s_lshl_b32 s11, s69, 1"); A("s_add_u32 s11, s11, s71"); A("s_xor_b32 s15, s11, 1")
    A("s_lshl_b32 s11, s11, 5"); A("s_add_u32 s11, s11, s8"); A("s_lshl_b32 s11, s11, 10")
    A("s_lshl_b32 s15, s15, 5"); A("s_add_u32 s15, s15, s8"); A("s_lshl_b32 s15, s15, 10")
    KR = 64
    KVL = "kvlds" in EXP
    def loads(h):
        if not KVL:
            A(f"s_add_u32 s12, s9, {h*1088}")
            A(f"buffer_load_dwordx4 v[{KR+8*h}:{KR+8*h+3}], v4, s[36:39], s12 offen"); q.add(("kv", h))
            A(f"buffer_load_dwordx4 v[{KR+8*h+4}:{KR+8*h+7}], v4, s[36:39], s12 offen offset:32"); q.add(("kv", h))
        base = [10, 14, 11, 15]
        dst = [h * 4, (8 + h) * 4, 64 + h * 4, 64 + (8 + h) * 4]
        for i in range(4):
            sr = 40 if i < 2 else 44
            if h == 4: A(f"s_add_u32 s{base[i]}, s{base[i]}, 4096")
            A(f"buffer_load_dwordx4 a[{dst[i]}:{dst[i]+3}], v2, s[{sr}:{sr+3}], s{base[i]} offen offset:{(h%4)*1024}"); q.add(("fr", h))
    if KVL:
        A("s_mul_i32 s13, s3, 9216")
        for i in range(9):
            if i % 4 == 0: A(f"s_add_u32 m0, s13, {i*1024}"); A(f"s_add_u32 s12, s9, {i*1024}")
            A(f"buffer_load_dwordx4 v2, s[36:39], s12 offen offset:{(i%4)*1024} lds"); q.add("kvd")
        A("v_add_u32 v4, s13, v4")
    for h in range(3 if not KVL else 4): loads(h)
    srd(A, 48, P_X, 0, 2048 * 1024); srd(A, 52, P_WS, WS_H, SZ_H); srd(A, 56, P_WS, WS_STATS, SZ_STATS)
    srd(A, 60, P_WS, WS_WGU, SZ_WGU); srd(A, 64, P_WS, WS_CNT, SZ_CNT)
    for r in range(64): A(f"v_accvgpr_write_b32 a{128+r}, 0")
    KA = 32; TT = [[128, 144], [160, 176]]; OF = [[8, 12], [16, 20]]; EPS = 24; XR = 200
    HPK = 240
    CSV = 208
    A(f"v_mov_b32 v{EPS}, {f32(1e-6)}")
    A("s_mul_i32 s78, s73, 7")
    A("s_lshr_b32 s79, s3, 1"); A("s_add_u32 s79, s79, s78"); A("s_lshl_b32 s79, s79, 15")
    A("s_and_b32 s81, s3, 1"); A("s_lshl_b32 s81, s81, 13"); A("s_add_u32 s79, s79, s81")
    A("s_lshl_b32 s80, s78, 15"); A("s_lshl_b32 s81, s3, 13"); A("s_add_u32 s80, s80, s81")
    def dma_groups(stage):
        slot = (stage % 4) * 32768; L = []
        for hlf in range(2):
            for i in range(4):
                g = []
                if i == 0:
                    g.append(f"s_add_u32 m0, s81, {slot + hlf*4096}")
                    g.append(f"s_add_u32 s82, s79, {stage*16384 + hlf*4096}" if stage < 2 else f"s_add_u32 s82, s80, {stage*32768 + hlf*4096}")
                g.append(f"buffer_load_dwordx4 v2, s[60:63], s82 offen offset:{i*1024} lds")
                L.append((g, ("dma", stage)))
        return L
    def emit(gt):
        for l in gt[0]: A(l)
        q.add(gt[1])
    ts(A, 2, 1)
    def cv(h): return [f"v_cvt_pk_bf16_f32 v{KA+4*h+j}, v{KR+8*h+2*j}, v{KR+8*h+2*j+1}" for j in range(4)]
    def tm(h, aa):
        T = TT[h % 2][aa]
        return f"v_mfma_f32_32x32x16_bf16 v[{T}:{T+15}], v[{KA+4*h}:{KA+4*h+3}], a[{(aa*8+h)*4}:{(aa*8+h)*4+3}], 0"
    def mm(h, aa, b):
        ac = 128 + 16 * (2 * aa + b); o = OF[h % 2][aa]
        return f"v_mfma_f32_32x32x16_bf16 a[{ac}:{ac+15}], a[{64+(b*8+h)*4}:{64+(b*8+h)*4+3}], v[{o}:{o+3}], a[{ac}:{ac+15}]"
    def valu(h):
        L = []
        T0, T1 = TT[h % 2]; o0, o1 = OF[h % 2]
        L += [f"v_add_f32 v25, v{T0+8}, v{EPS}", f"v_add_f32 v26, v{T1+8}, v{EPS}", "v_rcp_f32 v25, v25", "v_rcp_f32 v26, v26", "s_nop 0"]
        for r in range(8): L += [f"v_mul_f32 v{T0+r}, v{T0+r}, v25", f"v_mul_f32 v{T1+r}, v{T1+r}, v26"]
        for j in range(4): L += [f"v_cvt_pk_bf16_f32 v{o0+j}, v{T0+2*j}, v{T0+2*j+1}", f"v_cvt_pk_bf16_f32 v{o1+j}, v{T1+2*j}, v{T1+2*j+1}"]
        return L
    if KVL:
        A(f"s_waitcnt vmcnt({q.need('kvd')})")
        for h in range(8):
            A(f"ds_read_b128 v[{KR+8*h}:{KR+8*h+3}], v4 offset:{h*1088}")
            A(f"ds_read_b128 v[{KR+8*h+4}:{KR+8*h+7}], v4 offset:{h*1088+32}")
            if h == 3: A("s_waitcnt lgkmcnt(4)")
        A("s_waitcnt lgkmcnt(0)")
    A(f"s_waitcnt vmcnt({q.need(('fr', 0))})")
    for l in cv(0): A(l)
    ts(A, 2, 2)
    A("s_nop 1")
    A(tm(0, 0)); A(tm(0, 1))
    wpend = dma_groups(0) + dma_groups(1) + dma_groups(2)
    for h in range(9):
        if h + (4 if KVL else 3) < 8: loads(h + (4 if KVL else 3))
        if h == 5:
            A("s_lshl_b32 s6, s70, 15"); A("s_lshl_b32 s7, s69, 7"); A("s_add_u32 s6, s6, s7"); A("s_lshl_b32 s7, s71, 6"); A("s_add_u32 s6, s6, s7")
            A("v_lshlrev_b32 v6, 10, v3"); A("v_lshl_add_u32 v6, v5, 3, v6")
            for qd in range(4):
                A(f"buffer_load_dwordx2 v[{XR+2*qd}:{XR+2*qd+1}], v6, s[48:51], s6 offen offset:{qd*16}"); q.add("x")
            srd(A, 48, P_WS, WS_CSP, SZ_CSP)
            A("v_lshl_add_u32 v230, v1, 6, v0"); A("v_min_u32 v230, 223, v230"); A("v_lshlrev_b32 v230, 2, v230")
            A("s_mul_i32 s6, s78, 128")
            for kc in range(16):
                A(f"s_add_u32 s7, s6, {kc*3584*4}")
                A(f"buffer_load_dword v{CSV+kc}, v230, s[48:51], s7 offen"); q.add("cs")
            if "nokfpf" not in EXP:
                A("s_and_b32 s6, s74, 3"); A("s_mul_i32 s6, s6, 917504"); A("s_mul_i32 s7, s75, 28672"); A("s_add_u32 s6, s6, s7")
                A("s_mul_i32 s7, s3, 7168"); A("s_add_u32 s6, s6, s7")
                A("v_min_u32 v7, 55, v0"); A("v_lshlrev_b32 v7, 7, v7")
                A("buffer_load_dword v231, v7, s[60:63], s6 offen"); q.add("pf")
        ms = []
        if h + 1 < 8:
            A(f"s_waitcnt vmcnt({q.need(('fr', h + 1))})")
            for l in cv(h + 1): A(l)
            A("s_nop 1")
            ms += [tm(h + 1, 0), tm(h + 1, 1)]
        if h >= 1: ms += [mm(h - 1, 0, 0), mm(h - 1, 0, 1), mm(h - 1, 1, 0), mm(h - 1, 1, 1)]
        vl = valu(h) if h < 8 else []
        if h == 0:
            for m_ in ms: A(m_)
            A("s_nop 5")
            for l in vl: A(l)
            A("s_nop 1")
        else:
            per = (len(vl) + len(ms) - 1) // len(ms) if vl else 0
            for m_ in ms:
                A(m_)
                for _ in range(per):
                    if vl: A(vl.pop(0))
                if h >= 6 and wpend and "wearly" in EXP: emit(wpend.pop(0))
            for l in vl: A(l)
            A("s_nop 1")
    ts(A, 2, 3)
    A("s_nop 7"); A("s_nop 3")
    reduce4(A, "a", 128, 64, 80, 98304)
    ts(A, 2, 4)
    A(f"s_waitcnt vmcnt({q.need('x')})")
    for qd in range(4):
        for j in range(2):
            xr = XR + 2 * qd + j; t8 = 8 + 2 * ((2 * qd + j) % 4)
            A(f"v_lshlrev_b32 v{t8}, 16, v{xr}"); A(f"v_and_b32 v{t8+1}, 0xffff0000, v{xr}")
            A(f"v_pk_add_f32 v[{64+4*qd+2*j}:{64+4*qd+2*j+1}], v[{64+4*qd+2*j}:{64+4*qd+2*j+1}], v[{t8}:{t8+1}]")
    for r in range(8): A(f"v_cvt_pk_bf16_f32 v{HPK+r}, v{64+2*r}, v{64+2*r+1}")
    A("s_lshl_b32 s8, s70, 5"); A("s_lshl_b32 s9, s69, 2"); A("s_add_u32 s8, s8, s9"); A("s_lshl_b32 s9, s71, 1"); A("s_add_u32 s8, s8, s9"); A("s_lshl_b32 s8, s8, 10")
    A(f"buffer_store_dwordx4 v[{HPK}:{HPK+3}], v2, s[52:55], s8 offen sc1"); q.add("st")
    A(f"buffer_store_dwordx4 v[{HPK+4}:{HPK+7}], v2, s[52:55], s8 offen offset:1024 sc1"); q.add("st")
    for r in range(16, 20): A(f"v_mov_b32 v{r}, 0")
    for r in range(8):
        A(f"v_dot2c_f32_bf16 v{16+(r&1)}, {ONES}, v{HPK+r}"); A(f"v_dot2c_f32_bf16 v{18+(r&1)}, v{HPK+r}, v{HPK+r}")
    A("s_nop 2")
    A("v_add_f32 v10, v16, v17"); A("v_add_f32 v11, v18, v19")
    halves_sum(A, 10, 12); halves_sum(A, 11, 12)
    A("s_lshl_b32 s8, s70, 12"); A("s_lshl_b32 s9, s69, 4"); A("s_add_u32 s8, s8, s9"); A("s_lshl_b32 s9, s71, 3"); A("s_add_u32 s8, s8, s9")
    A("v_lshlrev_b32 v6, 7, v3")
    A("buffer_store_dwordx2 v[10:11], v6, s[56:59], s8 offen sc1"); q.add("st")
    CSL = 147456
    A(f"s_waitcnt vmcnt({q.need('cs')})")
    for st_ in (8, 4, 2, 1):
        for kc in range(st_): A(f"v_add_f32 v{CSV+kc}, v{CSV+kc}, v{CSV+kc+st_}")
    A(f"v_add_u32 v7, {CSL}, v230"); A(f"ds_write_b32 v7, v{CSV}")
    for gt in wpend[:NW0]: emit(gt)
    A(f"s_waitcnt vmcnt({q.need('st')}) lgkmcnt(0)")
    A("s_barrier")
    A("s_lshr_b32 s83, s68, 1"); A("s_lshl_b32 s83, s83, 7")
    signal(A, 83, "kf_sig1")
    ts(A, 2, 5)
    for gt in wpend[NW0:]: emit(gt)
    srd(A, 40, P_WS, WS_H, SZ_H); srd(A, 44, P_WS, WS_STATS, SZ_STATS); srd(A, 52, P_WS, WS_ACT, SZ_ACT); srd(A, 56, P_WS, WS_WD, SZ_WD)
    A("s_lshl_b32 s6, s72, 2"); A("s_add_u32 s6, s6, s3")
    A("s_lshl_b32 s11, s6, 15")
    A("v_lshlrev_b32 v4, 7, v3"); A("v_lshl_add_u32 v4, v5, 6, v4")
    A(f"v_lshlrev_b32 v11, 4, v5"); A(f"v_add_u32 v11, {CSL}, v11")
    A("v_mov_b32 v12, v2"); A("v_add_u32 v13, 0x10000, v2")
    A("s_mul_i32 s14, s6, 112"); A("s_add_u32 s14, s14, s78"); A("s_lshl_b32 s14, s14, 10")
    A("s_mul_i32 s8, s3, 28")
    A("s_lshl_b32 s84, s69, 1"); A("s_add_u32 s84, s84, s71"); A("s_xor_b32 s85, s84, 1")
    A("s_mul_i32 s84, s84, 112"); A("s_add_u32 s84, s84, s8"); A("s_lshl_b32 s84, s84, 10")
    A("s_mul_i32 s85, s85, 112"); A("s_add_u32 s85, s85, s8"); A("s_lshl_b32 s85, s85, 10")
    for gt in dma_groups(3): emit(gt)
    A("s_lshl_b32 s83, s72, 7")
    wait_cnt(A, 83, 16, "kf_w1")
    ts(A, 3, 0)
    if "dbgts" in EXP:
        A("s_cmp_lg_u32 s3, 0"); A("s_cbranch_scc1 dbgx_f2"); dbg_stamp(A, 4, "f2"); A.label("dbgx_f2")
    def h_groups(c):
        L = []
        for t in range(8 * c, 8 * c + 8):
            g = []
            if t % 4 == 0: g.append(f"s_add_u32 s13, s11, {t*1024}")
            g.append(f"buffer_load_dwordx4 a[{4*t}:{4*t+3}], v2, s[40:43], s13 offen offset:{(t%4)*1024}{LD}")
            L.append((g, ("h", t)))
        return L
    SM = 212
    hall = h_groups(0) + h_groups(1) + h_groups(2) + h_groups(3)
    for gt in hall[:HPRE]: emit(gt)
    vpend = hall[HPRE:]
    smalls = [([f"s_lshl_b32 s15, s6, 12", f"buffer_load_dwordx4 v[{SM}:{SM+3}], v4, s[44:47], s15 offen{LD}"], "small")]
    smalls += [([f"buffer_load_dwordx4 v[{SM+4*j}:{SM+4*j+3}], v4, s[44:47], s15 offen offset:{j*16}{LD}"], "small") for j in range(1, 4)]
    vpend += smalls
    NM, C1, C2 = 8, 9, 10
    ACCS = [64 + 16 * i for i in range(7)]
    NAF = 12
    AF = [16 + 4 * i for i in range(NAF)]
    CSR = 176; ET = 192
    st_l = []
    for j in range(1, 4):
        for e in range(4): st_l.append(f"v_add_f32 v{SM+e}, v{SM+e}, v{SM+4*j+e}")
    st_l += [f"v_add_f32 v{SM}, v{SM}, v{SM+2}", f"v_add_f32 v{SM+1}, v{SM+1}, v{SM+3}",
             f"v_mov_b32 v{SM+4}, v{SM}", f"v_mov_b32 v{SM+5}, v{SM+1}", "s_nop 1",
             f"v_permlane32_swap_b32 v{SM}, v{SM+4}", f"v_permlane32_swap_b32 v{SM+1}, v{SM+5}", "s_nop 1",
             f"v_add_f32 v{SM}, v{SM}, v{SM+4}", f"v_add_f32 v{SM+1}, v{SM+1}, v{SM+5}",
             f"v_mul_f32 v{SM}, {f32(1/512)}, v{SM}", f"v_mul_f32 v{SM+1}, {f32(1/512)}, v{SM+1}",
             f"v_fma_f32 v{SM+1}, -v{SM}, v{SM}, v{SM+1}", f"v_max_f32 v{SM+1}, 0, v{SM+1}", f"v_add_f32 v{C2}, {f32(1e-5)}, v{SM+1}",
             f"v_rsq_f32 v{SM+1}, v{C2}", f"v_sub_f32 v{NM}, 0, v{SM}",
             f"v_mul_f32 v{C1}, {f32(-LOG2E)}, v{SM+1}"]
    seq = []
    for c in range(2):
        for i in range(16):
            for b in range(2): seq.append((b, 16 * c + i, c, b * 16384 + i * 1024))
    for c in range(2, 7):
        for t in range(32): seq.append((c, t, c, t * 1024))
    def aread(n):
        tile, t, stage, off = seq[n]; sl = stage % 4
        A(f"ds_read_b128 v[{AF[n%NAF]}:{AF[n%NAF]+3}], v{13 if sl >= 2 else 12} offset:{(sl%2)*32768 + off}")
    def csreads(tile): return [f"ds_read_b128 v[{CSR+4*qd}:{CSR+4*qd+3}], v11 offset:{tile*128 + qd*32}" for qd in range(4)]
    def epi(tile, n0):
        L = []; ac = ACCS[tile]; P = ET + 16; R8 = range(8)
        M = []
        M += [f"v_fmac_f32 v{ac+r}, v{NM}, v{CSR+r}" for r in range(16)]
        if tile < 6: M += csreads(tile + 1)
        M += [f"v_mul_f32 v{ET+r}, v{C1}, v{ac+r}" for r in R8]
        M += [x for r in R8 for x in (f"v_exp_f32 v{ET+r}, v{ET+r}", f"v_mul_f32 v{ET+8+r}, v{ac+r}, v{ac+8+r}")]
        M += [f"v_fma_f32 v{ET+r}, v{ET+r}, v{C2}, v{C2}" for r in R8]
        M += [f"v_rcp_f32 v{ET+r}, v{ET+r}" for r in R8]
        M += [f"v_mul_f32 v{ET+8+r}, v{ET+8+r}, v{ET+r}" for r in R8]
        M += [f"v_cvt_pk_bf16_f32 v{P+j}, v{ET+8+2*j}, v{ET+8+2*j+1}" for j in range(4)]
        M += [f"s_add_u32 s15, s14, {tile*1024}", f"buffer_store_dwordx4 v[{P}:{P+3}], v2, s[52:55], s15 offen sc1"]
        return [(n0, m) for m in M]
    def wd_reg(t, b):
        f = 2 * t + b
        return 128 + 4 * f if f < 32 else 4 * (f - 32)
    def wd_load(t, b):
        g = []
        if t % 4 == 0 and t > 0 and b == 0:
            g.append("s_add_u32 s84, s84, 4096"); g.append("s_add_u32 s85, s85, 4096")
        r = wd_reg(t, b)
        g.append(f"buffer_load_dwordx4 a[{r}:{r+3}], v2, s[56:59], s{84+b} offen offset:{(t%4)*1024}")
        return (g, ("wd", t))
    wd_all = [wd_load(t, b) for t in range(28) for b in range(2)]
    cost = lambda l: 2 if (l.startswith("v_exp") or l.startswith("v_rcp") or l.startswith("v_rsq")) else 1
    A(f"s_waitcnt vmcnt({q.need(('h', 0))})")
    ts(A, 3, 2)
    PF = 8
    A("s_barrier")
    for n in range(PF): aread(n)
    N = len(seq)
    pend = []; started = set(); hold = -1
    wd_i = 0
    hw = set()
    done_at = {0: 62, 1: 63, 2: 95, 3: 127, 4: 159, 5: 191}
    for n in range(N):
        tile, t, stage, off = seq[n]
        budget = BUD
        if n + PF < N and seq[n + PF][2] != seq[n + PF - 1][2]:
            ns = seq[n + PF][2]
            if ns >= 2:
                tags = [tg for tg in [("dma", ns)] if ns >= 3]
                if tags:
                    while any(gt[1] in tags for gt in vpend): emit(vpend.pop(0))
                    A(f"s_waitcnt vmcnt({q.need(*tags)})")
                A("s_barrier"); budget -= 2
                rs = ns + 2
                if 4 <= rs < 7: vpend += dma_groups(rs)
        if n < 64 and t not in hw and t % 2 == 0:
            hw.add(t); hw.add(t + 1)
            while any(gt[1] in (("h", t), ("h", t + 1)) for gt in vpend): emit(vpend.pop(0))
            A(f"s_waitcnt vmcnt({q.need(('h', t), ('h', t + 1))})"); budget -= 1
        if n == 50: pend += [(n, l) for l in csreads(0)]
        if n == 66:
            while any(gt[1] == "small" for gt in vpend): emit(vpend.pop(0))
            A(f"s_waitcnt vmcnt({q.need('small')})"); budget -= 1
            pend = [(n, l) for l in st_l] + pend
        if n + PF < N: aread(n + PF); budget -= 1
        if n % 2 == 0:
            A(f"s_waitcnt lgkmcnt({max(0, min(PF, N - 1 - n) - 1)})"); budget -= 1
        ac = ACCS[tile]
        c_in = f"v[{ac}:{ac+15}]" if tile in started else "0"
        started.add(tile)
        A(f"v_mfma_f32_32x32x16_bf16 v[{ac}:{ac+15}], v[{AF[n%NAF]}:{AF[n%NAF]+3}], a[{4*t}:{4*t+3}], {c_in}")
        if n == 63: ts(A, 3, 3)
        if vpend and n % 2 == 1:
            gt = vpend.pop(0); emit(gt); budget -= len(gt[0])
        elif not vpend and n >= WD0 and wd_i < min(NWD1, 32) and n % 2 == 1 and n <= 202:
            gt = wd_all[wd_i]; wd_i += 1; emit(gt); budget -= len(gt[0])
        for tl, dn in done_at.items():
            if n == max(dn + 5, 68): pend += epi(tl, n)
        if "nofill" in EXP and n > 70: pend = []
        while pend and budget >= cost(pend[0][1]) and n >= hold:
            e, l = pend.pop(0)
            c_ = cost(l)
            if "fillmov" in EXP and n > 70 and l.startswith("v_"): l = "v_mov_b32 v249, v248"
            if "fillnotrans" in EXP and n > 70 and (l.startswith("v_exp") or l.startswith("v_rcp")): l = "v_mov_b32 v249, v248"
            if "fillnolds" in EXP and n > 70 and l.startswith("ds_read"): l = "s_nop 0"
            A(l); budget -= c_
            if l.startswith("buffer_store"): q.add("st")
    ts(A, 3, 4)
    print('leftover fillers', len(pend))
    A("s_nop 7"); A("s_nop 3")
    A("s_waitcnt lgkmcnt(0)")
    for e, l in pend + epi(6, 0):
        if e == "sync": A("s_waitcnt lgkmcnt(0)")
        else:
            A(l)
            if l.startswith("buffer_store"): q.add("st")
    for gt in wd_all[wd_i:wd_i+4]: emit(gt)
    wd_i += 4
    A(f"s_waitcnt vmcnt({q.need('st')})")
    A("s_barrier")
    A("s_lshl_b32 s83, s72, 7"); A("s_add_u32 s83, s83, 2048")
    signal(A, 83, "kf_sig2")
    ts(A, 3, 7)
    for gt in wd_all[wd_i:]: emit(gt)
    srd(A, 36, P_WS, WS_ACT, SZ_ACT); srd(A, 48, P_OUT, 0, 2048 * 1024)
    A("s_mul_i32 s8, s3, 28")
    A("s_mul_i32 s9, s70, 112"); A("s_add_u32 s9, s9, s8"); A("s_lshl_b32 s9, s9, 10")
    A("s_xor_b32 s11, s70, 1"); A("s_mul_i32 s11, s11, 112"); A("s_add_u32 s11, s11, s8"); A("s_lshl_b32 s11, s11, 10")
    A("s_lshr_b32 s83, s68, 1"); A("s_lshl_b32 s83, s83, 7"); A("s_add_u32 s83, s83, 2048")
    wait_cnt(A, 83, 16, "kf_w2")
    ts(A, 4, 0)
    if "dbgts" in EXP:
        A("s_cmp_lg_u32 s3, 0"); A("s_cbranch_scc1 dbgx_f4"); dbg_stamp(A, 6, "f4"); A.label("dbgx_f4")
    D = DP4
    RB = 16
    def aloads(t):
        b = RB + (t % D) * 8
        for i in range(2):
            sg = [9, 11][i]
            if t % 4 == 0 and t > 0: A(f"s_add_u32 s{sg}, s{sg}, 4096")
            A(f"buffer_load_dwordx4 v[{b+4*i}:{b+4*i+3}], v2, s[36:39], s{sg} offen offset:{(t%4)*1024}{LD}"); q.add(("g", t))
    for t in range(D): aloads(t)
    ACC = 128
    ts(A, 4, 1)
    for t in range(28):
        A(f"s_waitcnt vmcnt({q.need(('g', t))})")
        if t == 1: ts(A, 4, 2)
        b = RB + (t % D) * 8
        for aa in range(2):
            for bb in range(2):
                ac = ACC + 16 * (2 * aa + bb); wr = wd_reg(t, bb)
                cin = "0" if t == 0 else f"v[{ac}:{ac+15}]"
                A(f"v_mfma_f32_32x32x16_bf16 v[{ac}:{ac+15}], a[{wr}:{wr+3}], v[{b+4*aa}:{b+4*aa+3}], {cin}")
        if t + D < 28: aloads(t + D)
    ts(A, 4, 3)
    A("s_nop 7"); A("s_nop 3")
    reduce4(A, "v", ACC, 64, 80, 0)
    ts(A, 4, 4)
    for r in range(8):
        t8 = 8 + 2 * (r % 4)
        A(f"v_lshlrev_b32 v{t8}, 16, v{HPK+r}"); A(f"v_and_b32 v{t8+1}, 0xffff0000, v{HPK+r}")
        A(f"v_pk_add_f32 v[{64+2*r}:{64+2*r+1}], v[{64+2*r}:{64+2*r+1}], v[{t8}:{t8+1}]")
    OP = 96
    for r in range(8): A(f"v_cvt_pk_bf16_f32 v{OP+r}, v{64+2*r}, v{64+2*r+1}")
    A("s_nop 1")
    for p in range(2):
        A(f"v_permlane32_swap_b32 v{OP+4*p}, v{OP+4*p+2}"); A(f"v_permlane32_swap_b32 v{OP+4*p+1}, v{OP+4*p+3}")
    A("v_lshlrev_b32 v6, 10, v3"); A("v_lshl_add_u32 v6, v5, 4, v6")
    A("s_lshl_b32 s8, s70, 15"); A("s_lshl_b32 s9, s69, 7"); A("s_add_u32 s8, s8, s9"); A("s_lshl_b32 s9, s71, 6"); A("s_add_u32 s8, s8, s9")
    for p in range(2): A(f"buffer_store_dwordx4 v[{OP+4*p}:{OP+4*p+3}], v6, s[48:51], s8 offen offset:{p*32}" + (" sc1" if "outsc1" in EXP else (" nt" if "outnt" in EXP else "")))
    ts(A, 4, 7, True)
    if "dbgts" in EXP:
        A("s_cmp_lg_u32 s3, 0"); A("s_cbranch_scc1 kf_end"); A("s_cmp_lg_u32 s2, 0"); A("s_cbranch_scc1 kf_end")
        A("s_waitcnt vmcnt(0)")
        dbg_stamp(A, 7, "f5")
        A("s_waitcnt vmcnt(0)")
        srd(A, 92, P_WS, 0x79000, 64); srd(A, 84, P_DBG, 0, 256)
        A("v_lshlrev_b32 v253, 2, v0"); A("v_mov_b32 v252, 0")
        A("buffer_load_dword v254, v253, s[92:95], 0 offen sc1"); A("buffer_load_dword v251, v252, s[92:95], 0 offen sc1")
        A("s_waitcnt vmcnt(0)")
        A("v_sub_u32 v254, v254, v251")
        A("buffer_store_dword v254, v253, s[84:87], 0 offen")
    A.label("kf_end")
    A("s_endpgm")

def gen_k1z(A):
    G3.ZERO_CNT = (WS_CNT, SZ_CNT)
    G3.gen_k1(A)

def build(path):
    kernels = [("k1_kernel", gen_k1z, (256, 163840, 512), 256, 256),
               ("kf_kernel", gen_kf, (256, 163840, 256), 512, 256)]
    hdr = open(f"cdna_kernels/{KNAME}.s.ref").read().split("\n")
    out = [l for l in hdr if l.startswith(";") and "@launch" not in l and "Override launch" not in l and "grid=ceil" not in l]
    for (n, g, (wg, lds, thr), vg, ac) in kernels:
        out.append(f"; @launch kernel={n} grid=({wg},1,1) block=({thr},1,1) lds={lds}")
    out.append('.amdgcn_target "amdgcn-amd-amdhsa--gfx950"'); out.append(".text")
    nerr = 0
    for (n, g, _, vg, ac) in kernels:
        A = Asm(); g(A)
        A.lines = [l for l in A.lines if l is not None]
        for variant in (A.lines, strip_opt(A.lines)):
            errs = check(variant, n)
            for e in errs[:30]: print("CHECK:", e)
            nerr += len(errs)
        out.append(f".globl {n}\n.p2align 8\n.type {n},@function"); out.append(A.text())
    out.append("code_end:\n  s_endpgm")
    out.append('.section .rodata,"a"')
    for (n, g, _, vg, ac) in kernels: out.append(kd(n, vg, ac))
    open(path, "w").write("\n".join(out) + "\n")
    print("written", path, "check errors:", nerr)
    import subprocess
    r = subprocess.run(["clang", "-x", "assembler", "-target", "amdgcn-amd-amdhsa", "-mcpu=gfx950", "-c", path, "-o", "x.o"], capture_output=True, text=True)
    if r.returncode: print(r.stderr[:2000])

if __name__ == "__main__":
    if "--ts" in sys.argv: G.TS = True; sys.argv.remove("--ts")
    build(sys.argv[1])
```

```python
import sys, os
sys.path.insert(0, "dev")
from asmlib import *
import gen as G
import gen3 as G3
from gen3 import *
from gen3 import VMQ, ts, STP, EXP, dbg_stamp

WS_CNT = 0x78000; SZ_CNT = 4096
LD = " sc1"

def signal(A, cnt_off_sgpr, lab):
    A("s_cmp_lg_u32 s3, 0"); A(f"s_cbranch_scc1 {lab}")
    A("v_mov_b32 v250, 1"); A("v_mov_b32 v251, 0")
    A("s_mov_b64 exec, 1")
    A(f"buffer_atomic_add v250, v251, s[64:67], s{cnt_off_sgpr} offen sc1")
    A("s_mov_b64 exec, -1")
    A.label(lab)

def wait_cnt(A, cnt_off_sgpr, target, lab):
    A("s_cmp_lg_u32 s3, 0"); A(f"s_cbranch_scc1 {lab}_done")
    A("v_mov_b32 v251, 0"); A("s_mov_b32 s76, 0")
    A.label(lab)
    A(f"buffer_load_dword v250, v251, s[64:67], s{cnt_off_sgpr} offen sc1")
    A("s_waitcnt vmcnt(0)")
    A("v_readfirstlane_b32 s77, v250")
    A("s_add_u32 s76, s76, 1")
    A("s_nop 2")
    A(f"s_cmp_ge_u32 s77, {target}"); A(f"s_cbranch_scc1 {lab}_done")
    A("s_cmp_ge_u32 s76, 0x20000"); A(f"s_cbranch_scc1 {lab}_done")
    A(f"s_sleep {PSL}")
    A(f"s_branch {lab}")
    A.label(f"{lab}_done")
    A("s_barrier")

def reduce4(A, pre, ACC, OUT, TMP, base):
    A("v_lshlrev_b32 v7, 4, v0")
    for qd in range(1, 4):
        A(f"s_xor_b32 s8, s3, {qd}"); A("s_mulk_i32 s8, 12288"); A(f"s_add_u32 s8, s8, {base}"); A("v_add_u32 v6, s8, v7")
        for j in range(4):
            r = ACC + 16 * qd + 4 * j
            A(f"ds_write_b128 v6, {pre}[{r}:{r+3}] offset:{(qd-1)*4096 + j*1024}")
    if pre == "a":
        for r in range(16): A(f"v_accvgpr_read_b32 v{OUT+r}, a{ACC+r}")
    A("s_mul_i32 s8, s3, 12288"); A(f"s_add_u32 s8, s8, {base}"); A("v_add_u32 v6, s8, v7")
    A("s_waitcnt lgkmcnt(0)")
    A("s_barrier")
    for p in range(3):
        for j in range(4):
            d = TMP + 16 * p + 4 * j
            A(f"ds_read_b128 v[{d}:{d+3}], v6 offset:{p*4096 + j*1024}")
    own = OUT if pre == "a" else ACC
    A("s_waitcnt lgkmcnt(8)")
    for r in range(0, 16, 2): A(f"v_pk_add_f32 v[{OUT+r}:{OUT+r+1}], v[{own+r}:{own+r+1}], v[{TMP+r}:{TMP+r+1}]")
    A("s_waitcnt lgkmcnt(0)")
    for r in range(0, 16, 2): A(f"v_pk_add_f32 v[{TMP+16+r}:{TMP+16+r+1}], v[{TMP+16+r}:{TMP+16+r+1}], v[{TMP+32+r}:{TMP+32+r+1}]")
    for r in range(0, 16, 2): A(f"v_pk_add_f32 v[{OUT+r}:{OUT+r+1}], v[{OUT+r}:{OUT+r+1}], v[{TMP+16+r}:{TMP+16+r+1}]")

BUD = int(os.environ.get("BUD", "6"))
DP4 = int(os.environ.get("DP4", "7"))
PSL = int(os.environ.get("PSL", "1"))
HPRE = int(os.environ.get("HPRE", "16"))
WD0 = int(os.environ.get("WD0", "138"))
NW0 = int(os.environ.get("NW0", "8"))
NWD1 = int(os.environ.get("NWD1", "32"))
def gen_kf(A):
    A.label("kf_kernel")
    prologue(A, 256, "kf_end"); ts(A, 2, 0)
    if "dbgts" in EXP:
        A("s_cmp_lg_u32 s3, 0"); A("s_cbranch_scc1 dbgx_f0"); dbg_stamp(A, 2, "f0"); A.label("dbgx_f0")
    A("s_and_b32 s74, s2, 7"); A("s_lshr_b32 s75, s2, 3")
    A("s_lshr_b32 s4, s75, 3"); A("s_lshl_b32 s68, s74, 2"); A("s_add_u32 s68, s68, s4"); A("s_and_b32 s69, s75, 7")
    A("s_lshr_b32 s4, s3, 1"); A("s_and_b32 s71, s3, 1"); A("s_lshl_b32 s70, s68, 1"); A("s_add_u32 s70, s70, s4")
    A("s_lshr_b32 s4, s74, 2"); A("s_lshl_b32 s72, s4, 3"); A("s_lshr_b32 s4, s75, 2"); A("s_add_u32 s72, s72, s4")
    A("s_and_b32 s4, s74, 3"); A("s_lshl_b32 s73, s4, 2"); A("s_and_b32 s4, s75, 3"); A("s_add_u32 s73, s73, s4")
    srd(A, 36, P_WS, WS_KVZ, SZ_KVZ); srd(A, 40, P_WS, WS_PQ, SZ_PQ); srd(A, 44, P_WS, WS_WO, SZ_WO)
    q = VMQ()
    A("v_lshlrev_b32 v2, 4, v0"); A("v_and_b32 v3, 31, v0"); A("v_min_u32 v4, 16, v3"); A("v_lshlrev_b32 v4, 6, v4")
    A("v_lshrrev_b32 v5, 5, v0"); A("v_lshl_add_u32 v4, v5, 4, v4")
    A("s_lshl_b32 s8, s3, 3"); A("s_mul_i32 s9, s8, 1088")
    A("s_lshl_b32 s10, s70, 5"); A("s_add_u32 s10, s10, s8"); A("s_lshl_b32 s10, s10, 10")
    A("s_xor_b32 s14, s70, 1"); A("s_lshl_b32 s14, s14, 5"); A("s_add_u32 s14, s14, s8"); A("s_lshl_b32 s14, s14, 10")
    A("s_lshl_b32 s11, s69, 1"); A("s_add_u32 s11, s11, s71"); A("s_xor_b32 s15, s11, 1")
    A("s_lshl_b32 s11, s11, 5"); A("s_add_u32 s11, s11, s8"); A("s_lshl_b32 s11, s11, 10")
    A("s_lshl_b32 s15, s15, 5"); A("s_add_u32 s15, s15, s8"); A("s_lshl_b32 s15, s15, 10")
    KR = 64
    KVL = "kvlds" in EXP
    def loads(h):
        if not KVL:
            A(f"s_add_u32 s12, s9, {h*1088}")
            A(f"buffer_load_dwordx4 v[{KR+8*h}:{KR+8*h+3}], v4, s[36:39], s12 offen"); q.add(("kv", h))
            A(f"buffer_load_dwordx4 v[{KR+8*h+4}:{KR+8*h+7}], v4, s[36:39], s12 offen offset:32"); q.add(("kv", h))
        base = [10, 14, 11, 15]
        dst = [h * 4, (8 + h) * 4, 64 + h * 4, 64 + (8 + h) * 4]
        for i in range(4):
            sr = 40 if i < 2 else 44
            if h == 4: A(f"s_add_u32 s{base[i]}, s{base[i]}, 4096")
            A(f"buffer_load_dwordx4 a[{dst[i]}:{dst[i]+3}], v2, s[{sr}:{sr+3}], s{base[i]} offen offset:{(h%4)*1024}"); q.add(("fr", h))
    if KVL:
        A("s_mul_i32 s13, s3, 9216")
        for i in range(9):
            if i % 4 == 0: A(f"s_add_u32 m0, s13, {i*1024}"); A(f"s_add_u32 s12, s9, {i*1024}")
            A(f"buffer_load_dwordx4 v2, s[36:39], s12 offen offset:{(i%4)*1024} lds"); q.add("kvd")
        A("v_add_u32 v4, s13, v4")
    for h in range(3 if not KVL else 4): loads(h)
    srd(A, 48, P_X, 0, 2048 * 1024); srd(A, 52, P_WS, WS_H, SZ_H); srd(A, 56, P_WS, WS_STATS, SZ_STATS)
    srd(A, 60, P_WS, WS_WGU, SZ_WGU); srd(A, 64, P_WS, WS_CNT, SZ_CNT)
    for r in range(64): A(f"v_accvgpr_write_b32 a{128+r}, 0")
    KA = 32; TT = [[128, 144], [160, 176]]; OF = [[8, 12], [16, 20]]; EPS = 24; XR = 200
    HPK = 240
    CSV = 208
    A(f"v_mov_b32 v{EPS}, {f32(1e-6)}")
    A("s_mul_i32 s78, s73, 7")
    A("s_lshr_b32 s79, s3, 1"); A("s_add_u32 s79, s79, s78"); A("s_lshl_b32 s79, s79, 15")
    A("s_and_b32 s81, s3, 1"); A("s_lshl_b32 s81, s81, 13"); A("s_add_u32 s79, s79, s81")
    A("s_lshl_b32 s80, s78, 15"); A("s_lshl_b32 s81, s3, 13"); A("s_add_u32 s80, s80, s81")
    def dma_groups(stage):
        slot = (stage % 4) * 32768; L = []
        for hlf in range(2):
            for i in range(4):
                g = []
                if i == 0:
                    g.append(f"s_add_u32 m0, s81, {slot + hlf*4096}")
                    g.append(f"s_add_u32 s82, s79, {stage*16384 + hlf*4096}" if stage < 2 else f"s_add_u32 s82, s80, {stage*32768 + hlf*4096}")
                g.append(f"buffer_load_dwordx4 v2, s[60:63], s82 offen offset:{i*1024} lds")
                L.append((g, ("dma", stage)))
        return L
    def emit(gt):
        for l in gt[0]: A(l)
        q.add(gt[1])
    ts(A, 2, 1)
    def cv(h): return [f"v_cvt_pk_bf16_f32 v{KA+4*h+j}, v{KR+8*h+2*j}, v{KR+8*h+2*j+1}" for j in range(4)]
    def tm(h, aa):
        T = TT[h % 2][aa]
        return f"v_mfma_f32_32x32x16_bf16 v[{T}:{T+15}], v[{KA+4*h}:{KA+4*h+3}], a[{(aa*8+h)*4}:{(aa*8+h)*4+3}], 0"
    def mm(h, aa, b):
        ac = 128 + 16 * (2 * aa + b); o = OF[h % 2][aa]
        return f"v_mfma_f32_32x32x16_bf16 a[{ac}:{ac+15}], a[{64+(b*8+h)*4}:{64+(b*8+h)*4+3}], v[{o}:{o+3}], a[{ac}:{ac+15}]"
    def valu(h):
        L = []
        T0, T1 = TT[h % 2]; o0, o1 = OF[h % 2]
        L += [f"v_add_f32 v25, v{T0+8}, v{EPS}", f"v_add_f32 v26, v{T1+8}, v{EPS}", "v_rcp_f32 v25, v25", "v_rcp_f32 v26, v26", "s_nop 0"]
        for r in range(8): L += [f"v_mul_f32 v{T0+r}, v{T0+r}, v25", f"v_mul_f32 v{T1+r}, v{T1+r}, v26"]
        for j in range(4): L += [f"v_cvt_pk_bf16_f32 v{o0+j}, v{T0+2*j}, v{T0+2*j+1}", f"v_cvt_pk_bf16_f32 v{o1+j}, v{T1+2*j}, v{T1+2*j+1}"]
        return L
    if KVL:
        A(f"s_waitcnt vmcnt({q.need('kvd')})")
        for h in range(8):
            A(f"ds_read_b128 v[{KR+8*h}:{KR+8*h+3}], v4 offset:{h*1088}")
            A(f"ds_read_b128 v[{KR+8*h+4}:{KR+8*h+7}], v4 offset:{h*1088+32}")
            if h == 3: A("s_waitcnt lgkmcnt(4)")
        A("s_waitcnt lgkmcnt(0)")
    A(f"s_waitcnt vmcnt({q.need(('fr', 0))})")
    for l in cv(0): A(l)
    ts(A, 2, 2)
    A("s_nop 1")
    A(tm(0, 0)); A(tm(0, 1))
    wpend = dma_groups(0) + dma_groups(1) + dma_groups(2)
    for h in range(9):
        if h + (4 if KVL else 3) < 8: loads(h + (4 if KVL else 3))
        if h == 5:
            A("s_lshl_b32 s6, s70, 15"); A("s_lshl_b32 s7, s69, 7"); A("s_add_u32 s6, s6, s7"); A("s_lshl_b32 s7, s71, 6"); A("s_add_u32 s6, s6, s7")
            A("v_lshlrev_b32 v6, 10, v3"); A("v_lshl_add_u32 v6, v5, 3, v6")
            for qd in range(4):
                A(f"buffer_load_dwordx2 v[{XR+2*qd}:{XR+2*qd+1}], v6, s[48:51], s6 offen offset:{qd*16}"); q.add("x")
            srd(A, 48, P_WS, WS_CSP, SZ_CSP)
            A("v_lshl_add_u32 v230, v1, 6, v0"); A("v_min_u32 v230, 223, v230"); A("v_lshlrev_b32 v230, 2, v230")
            A("s_mul_i32 s6, s78, 128")
            for kc in range(16):
                A(f"s_add_u32 s7, s6, {kc*3584*4}")
                A(f"buffer_load_dword v{CSV+kc}, v230, s[48:51], s7 offen"); q.add("cs")
            if "nokfpf" not in EXP:
                A("s_and_b32 s6, s74, 3"); A("s_mul_i32 s6, s6, 917504"); A("s_mul_i32 s7, s75, 28672"); A("s_add_u32 s6, s6, s7")
                A("s_mul_i32 s7, s3, 7168"); A("s_add_u32 s6, s6, s7")
                A("v_min_u32 v7, 55, v0"); A("v_lshlrev_b32 v7, 7, v7")
                A("buffer_load_dword v231, v7, s[60:63], s6 offen"); q.add("pf")
        ms = []
        if h + 1 < 8:
            A(f"s_waitcnt vmcnt({q.need(('fr', h + 1))})")
            for l in cv(h + 1): A(l)
            A("s_nop 1")
            ms += [tm(h + 1, 0), tm(h + 1, 1)]
        if h >= 1: ms += [mm(h - 1, 0, 0), mm(h - 1, 0, 1), mm(h - 1, 1, 0), mm(h - 1, 1, 1)]
        vl = valu(h) if h < 8 else []
        if h == 0:
            for m_ in ms: A(m_)
            A("s_nop 5")
            for l in vl: A(l)
            A("s_nop 1")
        else:
            per = (len(vl) + len(ms) - 1) // len(ms) if vl else 0
            for m_ in ms:
                A(m_)
                for _ in range(per):
                    if vl: A(vl.pop(0))
                if h >= 6 and wpend and "wearly" in EXP: emit(wpend.pop(0))
            for l in vl: A(l)
            A("s_nop 1")
    ts(A, 2, 3)
    A("s_nop 7"); A("s_nop 3")
    reduce4(A, "a", 128, 64, 80, 98304)
    ts(A, 2, 4)
    A(f"s_waitcnt vmcnt({q.need('x')})")
    for qd in range(4):
        for j in range(2):
            xr = XR + 2 * qd + j; t8 = 8 + 2 * ((2 * qd + j) % 4)
            A(f"v_lshlrev_b32 v{t8}, 16, v{xr}"); A(f"v_and_b32 v{t8+1}, 0xffff0000, v{xr}")
            A(f"v_pk_add_f32 v[{64+4*qd+2*j}:{64+4*qd+2*j+1}], v[{64+4*qd+2*j}:{64+4*qd+2*j+1}], v[{t8}:{t8+1}]")
    for r in range(8): A(f"v_cvt_pk_bf16_f32 v{HPK+r}, v{64+2*r}, v{64+2*r+1}")
    A("s_lshl_b32 s8, s70, 5"); A("s_lshl_b32 s9, s69, 2"); A("s_add_u32 s8, s8, s9"); A("s_lshl_b32 s9, s71, 1"); A("s_add_u32 s8, s8, s9"); A("s_lshl_b32 s8, s8, 10")
    A(f"buffer_store_dwordx4 v[{HPK}:{HPK+3}], v2, s[52:55], s8 offen sc1"); q.add("st")
    A(f"buffer_store_dwordx4 v[{HPK+4}:{HPK+7}], v2, s[52:55], s8 offen offset:1024 sc1"); q.add("st")
    for r in range(16, 20): A(f"v_mov_b32 v{r}, 0")
    for r in range(8):
        A(f"v_dot2c_f32_bf16 v{16+(r&1)}, {ONES}, v{HPK+r}"); A(f"v_dot2c_f32_bf16 v{18+(r&1)}, v{HPK+r}, v{HPK+r}")
    A("s_nop 2")
    A("v_add_f32 v10, v16, v17"); A("v_add_f32 v11, v18, v19")
    halves_sum(A, 10, 12); halves_sum(A, 11, 12)
    A("s_lshl_b32 s8, s70, 12"); A("s_lshl_b32 s9, s69, 9"); A("s_add_u32 s8, s8, s9"); A("s_lshl_b32 s9, s71, 8"); A("s_add_u32 s8, s8, s9")
    A("v_lshlrev_b32 v6, 3, v3")
    A("buffer_store_dwordx2 v[10:11], v6, s[56:59], s8 offen sc1"); q.add("st")
    CSL = 147456
    A(f"s_waitcnt vmcnt({q.need('cs')})")
    for st_ in (8, 4, 2, 1):
        for kc in range(st_): A(f"v_add_f32 v{CSV+kc}, v{CSV+kc}, v{CSV+kc+st_}")
    A(f"v_add_u32 v7, {CSL}, v230"); A(f"ds_write_b32 v7, v{CSV}")
    for gt in wpend[:NW0]: emit(gt)
    A(f"s_waitcnt vmcnt({q.need('st')}) lgkmcnt(0)")
    A("s_barrier")
    A("s_lshr_b32 s83, s68, 1"); A("s_lshl_b32 s83, s83, 7")
    signal(A, 83, "kf_sig1")
    ts(A, 2, 5)
    for gt in wpend[NW0:]: emit(gt)
    srd(A, 40, P_WS, WS_H, SZ_H); srd(A, 44, P_WS, WS_STATS, SZ_STATS); srd(A, 52, P_WS, WS_ACT, SZ_ACT); srd(A, 56, P_WS, WS_WD, SZ_WD)
    A("s_lshl_b32 s6, s72, 2"); A("s_add_u32 s6, s6, s3")
    A("s_lshl_b32 s11, s6, 15")
    A("v_lshlrev_b32 v4, 3, v3"); A("v_lshl_add_u32 v4, v5, 11, v4")
    A(f"v_lshlrev_b32 v11, 4, v5"); A(f"v_add_u32 v11, {CSL}, v11")
    A("v_mov_b32 v12, v2"); A("v_add_u32 v13, 0x10000, v2")
    A("s_mul_i32 s14, s6, 112"); A("s_add_u32 s14, s14, s78"); A("s_lshl_b32 s14, s14, 10")
    A("s_mul_i32 s8, s3, 28")
    A("s_lshl_b32 s84, s69, 1"); A("s_add_u32 s84, s84, s71"); A("s_xor_b32 s85, s84, 1")
    A("s_mul_i32 s84, s84, 112"); A("s_add_u32 s84, s84, s8"); A("s_lshl_b32 s84, s84, 10")
    A("s_mul_i32 s85, s85, 112"); A("s_add_u32 s85, s85, s8"); A("s_lshl_b32 s85, s85, 10")
    for gt in dma_groups(3): emit(gt)
    A("s_lshl_b32 s83, s72, 7")
    wait_cnt(A, 83, 16, "kf_w1")
    ts(A, 3, 0)
    if "dbgts" in EXP:
        A("s_cmp_lg_u32 s3, 0"); A("s_cbranch_scc1 dbgx_f2"); dbg_stamp(A, 4, "f2"); A.label("dbgx_f2")
    def h_groups(c):
        L = []
        for t in range(8 * c, 8 * c + 8):
            g = []
            if t % 4 == 0: g.append(f"s_add_u32 s13, s11, {t*1024}")
            g.append(f"buffer_load_dwordx4 a[{4*t}:{4*t+3}], v2, s[40:43], s13 offen offset:{(t%4)*1024}{LD}")
            L.append((g, ("h", t)))
        return L
    SM = 212
    hall = h_groups(0) + h_groups(1) + h_groups(2) + h_groups(3)
    for gt in hall[:HPRE]: emit(gt)
    vpend = hall[HPRE:]
    smalls = [([f"s_lshl_b32 s15, s6, 12", f"buffer_load_dwordx2 v[{SM}:{SM+1}], v4, s[44:47], s15 offen{LD}"], "small")]
    smalls += [([f"buffer_load_dwordx2 v[{SM+2*j}:{SM+2*j+1}], v4, s[44:47], s15 offen offset:{j*256}{LD}"], "small") for j in range(1, 8)]
    vpend += smalls
    NM, C1, C2 = 8, 9, 10
    ACCS = [64 + 16 * i for i in range(7)]
    NAF = 12
    AF = [16 + 4 * i for i in range(NAF)]
    CSR = 176; ET = 192
    st_l = []
    for stp in (8, 4, 2):
        for e in range(stp): st_l.append(f"v_add_f32 v{SM+e}, v{SM+e}, v{SM+e+stp}")
    st_l += [
             f"v_mov_b32 v{SM+4}, v{SM}", f"v_mov_b32 v{SM+5}, v{SM+1}", "s_nop 1",
             f"v_permlane32_swap_b32 v{SM}, v{SM+4}", f"v_permlane32_swap_b32 v{SM+1}, v{SM+5}", "s_nop 1",
             f"v_add_f32 v{SM}, v{SM}, v{SM+4}", f"v_add_f32 v{SM+1}, v{SM+1}, v{SM+5}",
             f"v_mul_f32 v{SM}, {f32(1/512)}, v{SM}", f"v_mul_f32 v{SM+1}, {f32(1/512)}, v{SM+1}",
             f"v_fma_f32 v{SM+1}, -v{SM}, v{SM}, v{SM+1}", f"v_max_f32 v{SM+1}, 0, v{SM+1}", f"v_add_f32 v{C2}, {f32(1e-5)}, v{SM+1}",
             f"v_rsq_f32 v{SM+1}, v{C2}", f"v_sub_f32 v{NM}, 0, v{SM}",
             f"v_mul_f32 v{C1}, {f32(-LOG2E)}, v{SM+1}"]
    seq = []
    for c in range(2):
        for i in range(16):
            for b in range(2): seq.append((b, 16 * c + i, c, b * 16384 + i * 1024))
    for c in range(2, 7):
        for t in range(32): seq.append((c, t, c, t * 1024))
    def aread(n):
        tile, t, stage, off = seq[n]; sl = stage % 4
        A(f"ds_read_b128 v[{AF[n%NAF]}:{AF[n%NAF]+3}], v{13 if sl >= 2 else 12} offset:{(sl%2)*32768 + off}")
    def csreads(tile): return [f"ds_read_b128 v[{CSR+4*qd}:{CSR+4*qd+3}], v11 offset:{tile*128 + qd*32}" for qd in range(4)]
    def epi(tile, n0):
        L = []; ac = ACCS[tile]; P = ET + 16; R8 = range(8)
        M = []
        M += [f"v_fmac_f32 v{ac+r}, v{NM}, v{CSR+r}" for r in range(16)]
        if tile < 6: M += csreads(tile + 1)
        M += [f"v_mul_f32 v{ET+r}, v{C1}, v{ac+r}" for r in R8]
        M += [x for r in R8 for x in (f"v_exp_f32 v{ET+r}, v{ET+r}", f"v_mul_f32 v{ET+8+r}, v{ac+r}, v{ac+8+r}")]
        M += [f"v_fma_f32 v{ET+r}, v{ET+r}, v{C2}, v{C2}" for r in R8]
        M += [f"v_rcp_f32 v{ET+r}, v{ET+r}" for r in R8]
        M += [f"v_mul_f32 v{ET+8+r}, v{ET+8+r}, v{ET+r}" for r in R8]
        M += [f"v_cvt_pk_bf16_f32 v{P+j}, v{ET+8+2*j}, v{ET+8+2*j+1}" for j in range(4)]
        M += [f"s_add_u32 s15, s14, {tile*1024}", f"buffer_store_dwordx4 v[{P}:{P+3}], v2, s[52:55], s15 offen sc1"]
        return [(n0, m) for m in M]
    def wd_reg(t, b):
        f = 2 * t + b
        return 128 + 4 * f if f < 32 else 4 * (f - 32)
    def wd_load(t, b):
        g = []
        if t % 4 == 0 and t > 0 and b == 0:
            g.append("s_add_u32 s84, s84, 4096"); g.append("s_add_u32 s85, s85, 4096")
        r = wd_reg(t, b)
        g.append(f"buffer_load_dwordx4 a[{r}:{r+3}], v2, s[56:59], s{84+b} offen offset:{(t%4)*1024}")
        return (g, ("wd", t))
    wd_all = [wd_load(t, b) for t in range(28) for b in range(2)]
    cost = lambda l: 2 if (l.startswith("v_exp") or l.startswith("v_rcp") or l.startswith("v_rsq")) else 1
    A(f"s_waitcnt vmcnt({q.need(('h', 0))})")
    ts(A, 3, 2)
    PF = 8
    A("s_barrier")
    for n in range(PF): aread(n)
    N = len(seq)
    pend = []; started = set(); hold = -1
    wd_i = 0
    hw = set()
    done_at = {0: 62, 1: 63, 2: 95, 3: 127, 4: 159, 5: 191}
    for n in range(N):
        tile, t, stage, off = seq[n]
        budget = BUD
        if n + PF < N and seq[n + PF][2] != seq[n + PF - 1][2]:
            ns = seq[n + PF][2]
            if ns >= 2:
                tags = [tg for tg in [("dma", ns)] if ns >= 3]
                if tags:
                    while any(gt[1] in tags for gt in vpend): emit(vpend.pop(0))
                    A(f"s_waitcnt vmcnt({q.need(*tags)})")
                A("s_barrier"); budget -= 2
                rs = ns + 2
                if 4 <= rs < 7: vpend += dma_groups(rs)
        if n < 64 and t not in hw and t % 2 == 0:
            hw.add(t); hw.add(t + 1)
            while any(gt[1] in (("h", t), ("h", t + 1)) for gt in vpend): emit(vpend.pop(0))
            A(f"s_waitcnt vmcnt({q.need(('h', t), ('h', t + 1))})"); budget -= 1
        if n == 50: pend += [(n, l) for l in csreads(0)]
        if n == 66:
            while any(gt[1] == "small" for gt in vpend): emit(vpend.pop(0))
            A(f"s_waitcnt vmcnt({q.need('small')})"); budget -= 1
            pend = [(n, l) for l in st_l] + pend
        if n + PF < N: aread(n + PF); budget -= 1
        if n % 2 == 0:
            A(f"s_waitcnt lgkmcnt({max(0, min(PF, N - 1 - n) - 1)})"); budget -= 1
        ac = ACCS[tile]
        c_in = f"v[{ac}:{ac+15}]" if tile in started else "0"
        started.add(tile)
        A(f"v_mfma_f32_32x32x16_bf16 v[{ac}:{ac+15}], v[{AF[n%NAF]}:{AF[n%NAF]+3}], a[{4*t}:{4*t+3}], {c_in}")
        if n == 63: ts(A, 3, 3)
        if vpend and n % 2 == 1:
            gt = vpend.pop(0); emit(gt); budget -= len(gt[0])
        elif not vpend and n >= WD0 and wd_i < min(NWD1, 32) and n % 2 == 1 and n <= 202:
            gt = wd_all[wd_i]; wd_i += 1; emit(gt); budget -= len(gt[0])
        for tl, dn in done_at.items():
            if n == max(dn + 5, 68): pend += epi(tl, n)
        if "nofill" in EXP and n > 70: pend = []
        while pend and budget >= cost(pend[0][1]) and n >= hold:
            e, l = pend.pop(0)
            c_ = cost(l)
            if "fillmov" in EXP and n > 70 and l.startswith("v_"): l = "v_mov_b32 v249, v248"
            if "fillnotrans" in EXP and n > 70 and (l.startswith("v_exp") or l.startswith("v_rcp")): l = "v_mov_b32 v249, v248"
            if "fillnolds" in EXP and n > 70 and l.startswith("ds_read"): l = "s_nop 0"
            A(l); budget -= c_
            if l.startswith("buffer_store"): q.add("st")
    ts(A, 3, 4)
    print('leftover fillers', len(pend))
    A("s_nop 7"); A("s_nop 3")
    A("s_waitcnt lgkmcnt(0)")
    for e, l in pend + epi(6, 0):
        if e == "sync": A("s_waitcnt lgkmcnt(0)")
        else:
            A(l)
            if l.startswith("buffer_store"): q.add("st")
    for gt in wd_all[wd_i:wd_i+4]: emit(gt)
    wd_i += 4
    A(f"s_waitcnt vmcnt({q.need('st')})")
    A("s_barrier")
    A("s_lshl_b32 s83, s72, 7"); A("s_add_u32 s83, s83, 2048")
    signal(A, 83, "kf_sig2")
    ts(A, 3, 7)
    for gt in wd_all[wd_i:]: emit(gt)
    srd(A, 36, P_WS, WS_ACT, SZ_ACT); srd(A, 48, P_OUT, 0, 2048 * 1024)
    A("s_mul_i32 s8, s3, 28")
    A("s_mul_i32 s9, s70, 112"); A("s_add_u32 s9, s9, s8"); A("s_lshl_b32 s9, s9, 10")
    A("s_xor_b32 s11, s70, 1"); A("s_mul_i32 s11, s11, 112"); A("s_add_u32 s11, s11, s8"); A("s_lshl_b32 s11, s11, 10")
    A("s_lshr_b32 s83, s68, 1"); A("s_lshl_b32 s83, s83, 7"); A("s_add_u32 s83, s83, 2048")
    wait_cnt(A, 83, 16, "kf_w2")
    ts(A, 4, 0)
    if "dbgts" in EXP:
        A("s_cmp_lg_u32 s3, 0"); A("s_cbranch_scc1 dbgx_f4"); dbg_stamp(A, 6, "f4"); A.label("dbgx_f4")
    D = DP4
    RB = 16
    def aloads(t):
        b = RB + (t % D) * 8
        for i in range(2):
            sg = [9, 11][i]
            if t % 4 == 0 and t > 0: A(f"s_add_u32 s{sg}, s{sg}, 4096")
            A(f"buffer_load_dwordx4 v[{b+4*i}:{b+4*i+3}], v2, s[36:39], s{sg} offen offset:{(t%4)*1024}{LD}"); q.add(("g", t))
    for t in range(D): aloads(t)
    ACC = 128
    ts(A, 4, 1)
    for t in range(28):
        A(f"s_waitcnt vmcnt({q.need(('g', t))})")
        if t == 1: ts(A, 4, 2)
        b = RB + (t % D) * 8
        for aa in range(2):
            for bb in range(2):
                ac = ACC + 16 * (2 * aa + bb); wr = wd_reg(t, bb)
                cin = "0" if t == 0 else f"v[{ac}:{ac+15}]"
                A(f"v_mfma_f32_32x32x16_bf16 v[{ac}:{ac+15}], a[{wr}:{wr+3}], v[{b+4*aa}:{b+4*aa+3}], {cin}")
        if t + D < 28: aloads(t + D)
    ts(A, 4, 3)
    A("s_nop 7"); A("s_nop 3")
    reduce4(A, "v", ACC, 64, 80, 0)
    ts(A, 4, 4)
    for r in range(8):
        t8 = 8 + 2 * (r % 4)
        A(f"v_lshlrev_b32 v{t8}, 16, v{HPK+r}"); A(f"v_and_b32 v{t8+1}, 0xffff0000, v{HPK+r}")
        A(f"v_pk_add_f32 v[{64+2*r}:{64+2*r+1}], v[{64+2*r}:{64+2*r+1}], v[{t8}:{t8+1}]")
    OP = 96
    for r in range(8): A(f"v_cvt_pk_bf16_f32 v{OP+r}, v{64+2*r}, v{64+2*r+1}")
    A("s_nop 1")
    for p in range(2):
        A(f"v_permlane32_swap_b32 v{OP+4*p}, v{OP+4*p+2}"); A(f"v_permlane32_swap_b32 v{OP+4*p+1}, v{OP+4*p+3}")
    A("v_lshlrev_b32 v6, 10, v3"); A("v_lshl_add_u32 v6, v5, 4, v6")
    A("s_lshl_b32 s8, s70, 15"); A("s_lshl_b32 s9, s69, 7"); A("s_add_u32 s8, s8, s9"); A("s_lshl_b32 s9, s71, 6"); A("s_add_u32 s8, s8, s9")
    for p in range(2): A(f"buffer_store_dwordx4 v[{OP+4*p}:{OP+4*p+3}], v6, s[48:51], s8 offen offset:{p*32}" + (" sc1" if "outsc1" in EXP else (" nt" if "outnt" in EXP else "")))
    ts(A, 4, 7, True)
    if "dbgts" in EXP:
        A("s_cmp_lg_u32 s3, 0"); A("s_cbranch_scc1 kf_end"); A("s_cmp_lg_u32 s2, 0"); A("s_cbranch_scc1 kf_end")
        A("s_waitcnt vmcnt(0)")
        dbg_stamp(A, 7, "f5")
        A("s_waitcnt vmcnt(0)")
        srd(A, 92, P_WS, 0x79000, 64); srd(A, 84, P_DBG, 0, 256)
        A("v_lshlrev_b32 v253, 2, v0"); A("v_mov_b32 v252, 0")
        A("buffer_load_dword v254, v253, s[92:95], 0 offen sc1"); A("buffer_load_dword v251, v252, s[92:95], 0 offen sc1")
        A("s_waitcnt vmcnt(0)")
        A("v_sub_u32 v254, v254, v251")
        A("buffer_store_dword v254, v253, s[84:87], 0 offen")
    A.label("kf_end")
    A("s_endpgm")

def gen_k1z(A):
    G3.ZERO_CNT = (WS_CNT, SZ_CNT)
    G3.gen_k1(A)

def build(path):
    kernels = [("k1_kernel", gen_k1z, (256, 163840, 512), 256, 256),
               ("kf_kernel", gen_kf, (256, 163840, 256), 512, 256)]
    hdr = open(f"cdna_kernels/{KNAME}.s.ref").read().split("\n")
    out = [l for l in hdr if l.startswith(";") and "@launch" not in l and "Override launch" not in l and "grid=ceil" not in l]
    for (n, g, (wg, lds, thr), vg, ac) in kernels:
        out.append(f"; @launch kernel={n} grid=({wg},1,1) block=({thr},1,1) lds={lds}")
    out.append('.amdgcn_target "amdgcn-amd-amdhsa--gfx950"'); out.append(".text")
    nerr = 0
    for (n, g, _, vg, ac) in kernels:
        A = Asm(); g(A)
        A.lines = [l for l in A.lines if l is not None]
        for variant in (A.lines, strip_opt(A.lines)):
            errs = check(variant, n)
            for e in errs[:30]: print("CHECK:", e)
            nerr += len(errs)
        out.append(f".globl {n}\n.p2align 8\n.type {n},@function"); out.append(A.text())
    out.append("code_end:\n  s_endpgm")
    out.append('.section .rodata,"a"')
    for (n, g, _, vg, ac) in kernels: out.append(kd(n, vg, ac))
    open(path, "w").write("\n".join(out) + "\n")
    print("written", path, "check errors:", nerr)
    import subprocess
    r = subprocess.run(["clang", "-x", "assembler", "-target", "amdgcn-amd-amdhsa", "-mcpu=gfx950", "-c", path, "-o", "x.o"], capture_output=True, text=True)
    if r.returncode: print(r.stderr[:2000])

if __name__ == "__main__":
    if "--ts" in sys.argv: G.TS = True; sys.argv.remove("--ts")
    build(sys.argv[1])
```

```python
import sys, struct
sys.path.insert(0, "dev")
from asmlib import *
import gen as G
from gen import (KNAME, MB, WS_KVZ, SZ_KVZ, WS_STATS, SZ_STATS, WS_CSP, SZ_CSP, WS_PQ, SZ_PQ, WS_H, SZ_H, WS_ACT, SZ_ACT,
                 WS_WGU, SZ_WGU, WS_WD, SZ_WD, WS_WO, SZ_WO, f32, LOG2E, ONES, P_X, P_WQKV, P_WO, P_BX, P_WG, P_WU, P_WD,
                 P_OUT, P_DBG, P_WS, prologue, srd, halves_sum, kd, strip_opt, WS_TS)
ZERO_CNT = None
SZ_CSP = 16 * 3584 * 4
WS_CS = 0x7C000; SZ_CS = 3584 * 4
def ts(A, k, slot, wait=False): G.ts_mark(A, k, slot, wait)

class VMQ:
    def __init__(self): self.q = []
    def add(self, tag, n=1): self.q += [tag] * n
    def need(self, *tags):
        idx = [i for i, x in enumerate(self.q) if x in tags]
        return len(self.q) - 1 - max(idx)

import os
EXP = set(os.environ.get("EXP", "").split(","))
STP = " sc1" if "nosc1" not in EXP else ""
JOBI = int(os.environ.get("JOBI", "3"))
JOBF = int(os.environ.get("JOBF", "4"))
SLP = int(os.environ.get("SLP", "2"))
NPRE = int(os.environ.get("NPRE", "8"))
VFAST = int(os.environ.get("VFAST", "8"))
BC = "op_sel_hi:[1,0,1]"
def job_issue(A, jl):
    pass

def gen_k1(A):
    A.label("k1_kernel")
    prologue(A, 256, "k1_end")
    A("s_mov_b32 s59, s3")
    A("s_and_b32 s3, s3, 3")
    A("v_and_b32 v1, 3, v1")
    A("s_and_b32 s4, s2, 7")
    A("s_lshr_b32 s5, s2, 3")
    A("s_lshr_b32 s6, s4, 1"); A("s_lshl_b32 s6, s6, 3"); A("s_lshr_b32 s7, s5, 2"); A("s_add_u32 s6, s6, s7")
    A("s_and_b32 s4, s4, 1"); A("s_lshl_b32 s4, s4, 2"); A("s_and_b32 s5, s5, 3"); A("s_add_u32 s5, s5, s4")
    srd(A, 44, P_WS, WS_KVZ, SZ_KVZ)
    srd(A, 48, P_DBG, 0, 256)
    A("s_cmp_ge_u32 s59, 4"); A("s_cbranch_scc1 k1_loader")
    ts(A, 1, 0)
    A("s_cmp_eq_u32 s3, 0"); A("s_cbranch_scc1 k1_w0")
    A("s_cmp_eq_u32 s3, 1"); A("s_cbranch_scc1 k1_w1")
    A("s_cmp_eq_u32 s3, 2"); A("s_cbranch_scc1 k1_w2")
    for w in (3, 0, 1, 2):
        A.label(f"k1_w{w}")
        if w == 0 and "dbgts" in EXP: dbg_stamp(A, 0, "k1a")
        k1_wave(A, w)
        if w == 0 and "dbgts" in EXP: A("s_waitcnt vmcnt(0)"); dbg_stamp(A, 1, "k1b")
        A("s_branch k1_fin")
    A.label("k1_loader")
    k1_loader(A)
    A("s_branch k1_end")
    A.label("k1_fin")
    if "k1st" not in EXP: ts(A, 1, 7, True)
    A.label("k1_end")
    A("s_endpgm")

def dbg_stamp(A, idx, lab):
    A("s_cmp_lg_u32 s2, 0"); A(f"s_cbranch_scc1 dbg_{lab}")
    A("s_memrealtime s[90:91]")
    srd(A, 92, P_WS, 0x79000, 64)
    A("s_waitcnt lgkmcnt(0)")
    A("v_mov_b32 v254, s90"); A(f"v_mov_b32 v253, {4*idx}")
    A("buffer_store_dword v254, v253, s[92:95], 0 offen sc1")
    A.label(f"dbg_{lab}")

def lds_signal(A, addr):
    A(f"v_mov_b32 v18, {addr}"); A("v_mov_b32 v123, 1")
    A("ds_write_b32 v18, v123")

def lds_wait4(A, addr, lab, sleep=0):
    A(f"v_mov_b32 v18, {addr}")
    if sleep: A(f"s_branch {lab}_first")
    A.label(lab)
    if sleep:
        A(f"s_sleep {sleep}")
        A.label(f"{lab}_first")
    A("ds_read_b128 v[124:127], v18")
    A("s_waitcnt lgkmcnt(0)")
    A("v_and_b32 v124, v124, v125"); A("v_and_b32 v126, v126, v127"); A("v_and_b32 v124, v124, v126")
    A("s_nop 0")
    A("v_readfirstlane_b32 s14, v124")
    A("s_nop 3")
    A("s_cmp_eq_u32 s14, 0")
    A(f"s_cbranch_scc1 {lab}")

def lds_wait(A, addr, lab):
    A(f"v_mov_b32 v18, {addr}")
    A.label(lab)
    A("ds_read_b32 v122, v18")
    A("s_waitcnt lgkmcnt(0)")
    A("v_readfirstlane_b32 s14, v122")
    A("s_nop 3")
    A("s_cmp_eq_u32 s14, 0")
    A(f"s_cbranch_scc1 {lab}")

def k1_loader(A):
    if "prioL" in EXP: A("s_setprio 3")
    ts(A, 0, 0)
    q = VMQ()
    srd(A, 36, P_X, 0, 2048 * 1024)
    srd(A, 40, P_WQKV, 0, 512 * 3072)
    A("s_cmp_lg_u32 s6, 0"); A("s_cbranch_scc1 k1_nozero")
    A("v_lshl_add_u32 v8, v1, 6, v0"); A("v_lshlrev_b32 v8, 4, v8")
    for i in range(4): A(f"v_mov_b32 v{12+i}, 0")
    A("s_mul_i32 s12, s5, 4352")
    A("buffer_store_dwordx4 v[12:15], v8, s[44:47], s12 offen sc1")
    A("v_add_u32 v8, 4096, v8"); A("v_cmp_gt_u32 vcc, 4352, v8")
    A("s_and_saveexec_b64 s[14:15], vcc"); A("s_cbranch_execz k1_z2")
    A("buffer_store_dwordx4 v[12:15], v8, s[44:47], s12 offen sc1")
    A.label("k1_z2"); A("s_mov_b64 exec, s[14:15]")
    A.label("k1_nozero")
    if ZERO_CNT:
        A("s_cmp_lg_u32 s2, 2"); A("s_cbranch_scc1 k1_nocz"); A("s_cmp_lg_u32 s3, 0"); A("s_cbranch_scc1 k1_nocz")
        srd(A, 52, P_WS, ZERO_CNT[0], ZERO_CNT[1])
        A("v_lshlrev_b32 v8, 7, v0"); A("v_mov_b32 v12, 0")
        A("buffer_store_dword v12, v8, s[52:55], 0 offen sc1")
        A.label("k1_nocz")
    A("v_lshrrev_b32 v4, 3, v0"); A("v_and_b32 v5, 7, v0"); A("v_lshrrev_b32 v6, 4, v0"); A("v_xor_b32 v5, v5, v6")
    A("v_lshlrev_b32 v5, 4, v5"); A("v_lshl_add_u32 v2, v4, 10, v5"); A("v_xor_b32 v3, 64, v2")
    A("s_lshl_b32 s7, s6, 16"); A("s_lshl_b32 s12, s3, 14"); A("s_add_u32 s7, s7, s12")
    A(f"s_mul_i32 s8, s3, {16*3072}"); A("s_lshl_b32 s12, s5, 7"); A("s_add_u32 s8, s8, s12")
    A("s_lshl_b32 s9, s3, 11"); A(f"s_mul_i32 s10, s3, {6*1024}"); A("s_add_u32 s10, s10, 8192")
    ROT = "rot" in EXP
    if ROT: A("s_and_b32 s58, s6, 7")
    def kst(stage, dst, mul):
        if ROT:
            A(f"s_add_u32 s{dst}, s58, {stage}"); A(f"s_and_b32 s{dst}, s{dst}, 7"); A(f"s_mul_i32 s{dst}, s{dst}, {mul}")
        else:
            A(f"s_mov_b32 s{dst}, {stage*mul}")
    def xdma(stage):
        slot = (stage % 4) * 32768
        kst(stage, 57, 128); A("s_add_u32 s57, s57, s7")
        for i in range(2):
            A(f"s_add_u32 m0, s9, {slot + i*1024}"); A(f"s_add_u32 s13, s57, {i*8192}")
            A(f"buffer_load_dwordx4 v{2+i}, s[36:39], s13 offen lds"); q.add(("st", stage))
    xdma(0)
    A("s_movk_i32 s12, 2731"); A("s_movk_i32 s13, 3072")
    for b in range(3):
        A(f"v_add_u32 v8, {64*b}, v0"); A("v_mul_lo_u32 v9, v8, s12"); A("v_lshrrev_b32 v9, 16, v9")
        A("v_mul_u32_u24 v10, 24, v9"); A("v_sub_u32 v10, v8, v10"); A(f"v_mul_lo_u32 v{4+b}, v9, s13")
        A("v_lshrrev_b32 v11, 3, v10"); A(f"v_lshl_add_u32 v{4+b}, v11, 10, v{4+b}")
        A("v_bfe_u32 v11, v10, 2, 1"); A("v_bfe_u32 v12, v9, 1, 1"); A("v_xor_b32 v11, v11, v12")
        A(f"v_lshl_add_u32 v{4+b}, v11, 6, v{4+b}"); A("v_and_b32 v11, 3, v10"); A(f"v_lshl_add_u32 v{4+b}, v11, 4, v{4+b}")
    def wdma(stage):
        slot = (stage % 4) * 32768
        kst(stage, 56, 64 * 3072); A("s_add_u32 s56, s56, s8")
        for a in range(2):
            for b in range(3):
                A(f"s_add_u32 m0, s10, {slot + (a*3+b)*1024}")
                if b == 0: A(f"s_add_u32 s12, s56, {a*8*3072}")
                else: A("s_nop 0")
                A(f"buffer_load_dwordx4 v{4+b}, s[40:43], s12 offen lds"); q.add(("st", stage))
    wdma(0)
    xdma(1); wdma(1)
    job = "nojob" not in EXP
    A("s_barrier")
    ts(A, 0, 1)
    FL = 131072 + 24576 + 4096
    A("s_lshl_b32 s12, s3, 2"); A(f"s_add_u32 s12, s12, {FL + 64}"); A("v_mov_b32 v22, s12"); A("v_mov_b32 v23, 1")
    def land(st):
        A(f"s_waitcnt vmcnt({q.need(('st', st))})")
        A(f"ds_write_b32 v22, v23 offset:{st * 16}")
    xdma(2); wdma(2)
    A(f"s_waitcnt vmcnt({q.need(('st', 0))})")
    A("s_barrier")
    A("s_cmp_lg_u32 s6, 0"); A("s_cbranch_scc1 k1_noflag"); A("s_cmp_lg_u32 s3, 0"); A("s_cbranch_scc1 k1_noflag")
    A("v_mov_b32 v20, 1"); A("s_lshl_b32 s12, s5, 2"); A("v_mov_b32 v21, s12")
    A("s_mov_b64 exec, 1")
    A("buffer_store_dword v20, v21, s[48:51], 0 offen sc1")
    A("s_mov_b64 exec, -1")
    A.label("k1_noflag")
    xdma(3); wdma(3)
    for st in range(7):
        if st < 4:
            A(f"s_waitcnt vmcnt({q.need(('st', st + 1))})"); A("s_barrier")
        else: land(st + 1)
        if st + 4 < 8: xdma(st + 4); wdma(st + 4)
        if st == JOBI and job:
            ts(A, 0, 2)
            job_issue(A, q)
    if job:
        if "prioL" in EXP: A("s_setprio 0")
        A("s_waitcnt vmcnt(0)")
        ts(A, 0, 3)
        job_finish(A)
    ts(A, 0, 7, True)

def k1_wave(A, w):
    wm, wn = w >> 1, w & 1
    q = VMQ()
    A("v_and_b32 v20, 31, v0"); A("v_lshrrev_b32 v21, 5, v0"); A("v_bfe_u32 v22, v0, 1, 3")
    A("v_xor_b32 v22, v22, v21"); A("v_lshlrev_b32 v22, 4, v22"); A("v_lshl_add_u32 v22, v20, 7, v22")
    A(f"v_add_u32 v8, {wm*4096}, v22")
    for t in range(1, 4): A(f"v_xor_b32 v{8+t}, {32*t}, v8")
    for t in range(4): A(f"v_add_u32 v{12+t}, 0x10000, v{8+t}")
    A("v_bfe_u32 v22, v0, 2, 2"); A("v_lshl_add_u32 v23, v21, 3, v22"); A("v_mul_u32_u24 v23, 384, v23")
    A("v_bfe_u32 v22, v0, 3, 1")
    if wn: A("v_xor_b32 v22, 1, v22")
    A("v_lshl_add_u32 v23, v22, 6, v23"); A("v_bfe_u32 v22, v0, 4, 1"); A("v_lshl_add_u32 v23, v22, 5, v23")
    A("v_and_b32 v22, 3, v0"); A("v_lshl_add_u32 v16, v22, 3, v23"); A("v_add_u32 v17, 0x10000, v16")
    XF = [24, 28]; WF = [32, 44]; ACC = 64
    RS, RQ, CS = 112, 114, 116
    RS2, RQ2, CS2 = 232, 234, 236
    for r in list(range(RS, CS + 3)) + list(range(RS2, CS2 + 3)): A(f"v_mov_b32 v{r}, 0")
    def reads(k):
        st, t = divmod(k, 4); sl = st % 4; hi = sl >= 2; off = (sl % 2) * 32768; b = k % 2
        L = [f"ds_read_b128 v[{XF[b]}:{XF[b]+3}], v{(12 if hi else 8)+t} offset:{off}"]
        for p in range(3):
            d = WF[b] + 4 * p; o = off + 8192 + t * 6144 + p * 128
            L.append(f"ds_read_b64_tr_b16 v[{d}:{d+1}], v{17 if hi else 16} offset:{o}")
            L.append(f"ds_read_b64_tr_b16 v[{d+2}:{d+3}], v{17 if hi else 16} offset:{o + 1536}")
        return L
    FL = 131072 + 24576 + 4096
    A("v_and_b32 v18, 3, v0"); A("v_lshlrev_b32 v18, 4, v18"); A(f"v_add_u32 v18, {FL + w*64}, v18")
    A("v_mov_b32 v24, 0"); A("v_mov_b32 v25, 0"); A("v_mov_b32 v26, 0"); A("v_mov_b32 v27, 0")
    A("ds_write_b128 v18, v[24:27]")
    A(f"v_mov_b32 v119, {FL}"); A("v_mov_b32 v123, 1")
    srd(A, 36, P_X, 0, 2048 * 1024); srd(A, 40, P_WQKV, 0, 512 * 3072)
    A("s_lshr_b32 s12, s2, 3"); A("s_lshl_b32 s12, s12, 2"); A(f"s_add_u32 s12, s12, {w}")
    A("s_and_b32 s13, s2, 7")
    A("s_lshr_b32 s15, s13, 1"); A("s_lshl_b32 s15, s15, 19"); A("s_lshl_b32 s14, s12, 12"); A("s_add_u32 s15, s15, s14")
    A("v_lshlrev_b32 v245, 7, v20")
    A("v_min_u32 v22, 47, v0"); A("v_mul_u32_u24 v23, 43, v22"); A("v_lshrrev_b32 v23, 9, v23")
    A("v_mul_u32_u24 v24, 12, v23"); A("v_sub_u32 v24, v22, v24")
    A("v_mul_u32_u24 v23, 3072, v23"); A("v_lshrrev_b32 v25, 2, v24"); A("v_lshl_add_u32 v23, v25, 10, v23")
    A("v_and_b32 v24, 3, v24"); A("v_lshl_add_u32 v23, v24, 7, v23")
    A("s_mul_i32 s14, s12, 12288"); A("s_and_b32 s13, s13, 1"); A("s_lshl_b32 s13, s13, 9"); A("s_add_u32 s14, s14, s13")
    A("s_waitcnt lgkmcnt(0)")
    A("s_barrier")
    if "nopf" not in EXP:
        A("buffer_load_dword v241, v23, s[40:43], s14 offen"); q.add("pf")
    if w == 1 and "tlbpf" in EXP:
        srd(A, 64, P_WS, 0, 24 * MB)
        A("v_lshlrev_b32 v22, 19, v0"); A("v_min_u32 v22, 0x17f0000, v22")
        A("buffer_load_dword v243, v22, s[64:67], 0 offen")
        srd(A, 64, P_OUT, 0, 2 * MB)
        A("v_lshlrev_b32 v22, 15, v0")
        A("buffer_load_dword v244, v22, s[64:67], 0 offen")
    if w == 0 and "codepf" in EXP:
        A("s_getpc_b64 s[64:65]")
        A.label("k1_pc")
        A("s_add_u32 s64, s64, k1_kernel-k1_pc")
        A("s_addc_u32 s65, s65, -1")
        A("s_lshr_b32 s12, s2, 3"); A("s_lshl_b32 s12, s12, 13")
        A("v_lshlrev_b32 v22, 7, v0"); A("v_add_u32 v22, s12, v22")
        A("s_mov_b32 s13, code_end-k1_kernel-4")
        A("s_cmp_gt_u32 s12, s13"); A("s_cbranch_scc1 k1_nocpf")
        A("v_min_u32 v22, s13, v22")
        A("global_load_dword v242, v22, s[64:65]")
        A.label("k1_nocpf")
    C1, CL, CN, CE = 176, 178, 180, 182
    for r, val in ((C1, 1.000001), (CL, LOG2E), (CN, -1.000001 * LOG2E), (CE, 1e-6)):
        A(f"v_mov_b32 v{r}, {f32(val)}"); A(f"v_mov_b32 v{r+1}, {f32(val)}")
    ON = 224
    for j in range(4): A(f"v_mov_b32 v{ON+j}, {ONES}")
    EXS = 131072 + 25600
    PRB = FL + 256
    A("v_lshlrev_b32 v228, 2, v20"); A(f"v_add_u32 v229, {PRB}, v228"); A(f"v_add_u32 v228, {EXS}, v228")
    A("v_lshlrev_b32 v230, 4, v21"); A(f"v_add_u32 v230, {PRB}, v230")
    if "prioS" in EXP: A("s_setprio 3")
    ts(A, 1, 1)
    A("s_barrier")
    if "noxpf" not in EXP: A("buffer_load_dword v240, v245, s[36:39], s15 offen"); q.add("pf")
    ts(A, 1, 2)
    for l in reads(0): A(l)
    A("s_waitcnt lgkmcnt(0)")
    for k in range(32):
        st, t = divmod(k, 4); b = k % 2
        if t == 3 and k + 1 < 32:
            if st < 4: A("s_barrier")
            else:
                lab = f"k1_lf{w}_{st}"
                A("v_and_b32 v124, v124, v125"); A("v_and_b32 v126, v126, v127"); A("v_and_b32 v124, v124, v126")
                A("s_nop 0")
                A("v_readfirstlane_b32 s14, v124"); A("s_nop 3")
                A("s_cmp_lg_u32 s14, 0"); A(f"s_cbranch_scc1 {lab}_ok")
                lds_wait4(A, FL + 64 + (st + 1) * 16, lab)
                A.label(f"{lab}_ok")
        if k == 28: lds_signal(A, FL + w * 4)
        if k == 24:
            A("s_lshl_b32 s14, s5, 2"); A("v_mov_b32 v120, s14")
            A("buffer_load_dword v121, v120, s[48:51], 0 offen sc1"); q.add("flag")
        if "k1st" in EXP and k in (4, 8, 16, 24): ts(A, 1, {4: 4, 8: 5, 16: 6, 24: 7}[k])
        rd = reads(k + 1) if k + 1 < 32 else []
        if t == 2 and 4 <= st < 7: rd.append(f"ds_read_b128 v[124:127], v119 offset:{64 + (st + 1) * 16}")
        x = XF[b]; wf = WF[b]
        c0 = "0" if k == 0 else None
        def C(r): return "0" if k == 0 else f"v[{r}:{r+15}]"
        A(f"v_mfma_f32_32x32x16_bf16 v[{ACC}:{ACC+15}], v[{wf}:{wf+3}], v[{x}:{x+3}], {C(ACC)}")
        for l in rd[:4]: A(l)
        A(f"v_mfma_f32_32x32x16_bf16 v[{ACC+16}:{ACC+31}], v[{x}:{x+3}], v[{wf+4}:{wf+7}], {C(ACC+16)}")
        for l in rd[4:]: A(l)
        A(f"v_mfma_f32_32x32x16_bf16 v[{ACC+32}:{ACC+47}], v[{x}:{x+3}], v[{wf+8}:{wf+11}], {C(ACC+32)}")
        if (k & 1) == wn and "nodots" not in EXP:
            for j in range(4):
                A(f"v_dot2c_f32_bf16 v{[RS, RS+1, RS2, RS2+1][j]}, {ONES}, v{x+j}")
                A(f"v_dot2c_f32_bf16 v{[RQ, RQ+1, RQ2, RQ2+1][j]}, v{x+j}, v{x+j}")
        if (k & 1) == wm and "nodots" not in EXP:
            for j in range(4):
                for p in range(3): A(f"v_dot2c_f32_bf16 v{(CS if j & 1 else CS2)+p}, {ONES}, v{wf+4*p+j}")
        A("s_waitcnt lgkmcnt(0)")
    ts(A, 1, 3)
    if "prioE" in EXP: A("s_setprio 3")
    T = 122
    EX = 65536
    A("s_nop 2")
    A(f"v_add_f32 v{RS}, v{RS}, v{RS+1}"); A(f"v_add_f32 v{RS2}, v{RS2}, v{RS2+1}")
    A(f"v_add_f32 v{RQ}, v{RQ}, v{RQ+1}"); A(f"v_add_f32 v{RQ2}, v{RQ2}, v{RQ2+1}")
    for p in range(3): A(f"v_add_f32 v{CS+p}, v{CS+p}, v{CS2+p}")
    A(f"v_add_f32 v{RS}, v{RS}, v{RS2}"); A(f"v_add_f32 v{RQ}, v{RQ}, v{RQ2}")
    hs = [RS, RQ, CS, CS + 1, CS + 2]
    for i, r in enumerate(hs): A(f"v_mov_b32 v{24+i}, v{r}")
    A("s_nop 1")
    for i, r in enumerate(hs): A(f"v_permlane32_swap_b32 v{r}, v{24+i}")
    A("s_nop 1")
    for i, r in enumerate(hs): A(f"v_add_f32 v{r}, v{r}, v{24+i}")
    es = (wm * 2 + wn) * 256; eo = (wm * 2 + (1 - wn)) * 256
    ec = 1024 + (wn * 2 + wm) * 384; eco = 1024 + (wn * 2 + (1 - wm)) * 384
    A(f"ds_write_b32 v228, v{RS} offset:{es}"); A(f"ds_write_b32 v228, v{RQ} offset:{es+128}")
    for p in range(3): A(f"ds_write_b32 v228, v{CS+p} offset:{ec + p*128}")
    lds_signal(A, FL + 16 + w * 4)
    lds_wait4(A, FL + 16, f"k1_sp{w}a")
    if "k1st" not in EXP: ts(A, 1, 6)
    A(f"ds_read_b32 v24, v228 offset:{eo}"); A(f"ds_read_b32 v25, v228 offset:{eo+128}")
    for p in range(3): A(f"ds_read_b32 v{26+p}, v228 offset:{eco + p*128}")
    A("s_waitcnt lgkmcnt(0)")
    A(f"v_add_f32 v{RS}, v{RS}, v24"); A(f"v_add_f32 v{RQ}, v{RQ}, v25")
    for p in range(3): A(f"v_add_f32 v{CS+p}, v{CS+p}, v{26+p}")
    PR = w * 512
    A(f"ds_write_b32 v229, v{CS} offset:{PR+256}")
    A(f"v_mul_f32 v{RS}, {f32(1/512)}, v{RS}"); A(f"v_mul_f32 v{RQ}, {f32(1/512)}, v{RQ}")
    A(f"v_fma_f32 v{RQ}, -v{RS}, v{RS}, v{RQ}"); A(f"v_max_f32 v{RQ}, 0, v{RQ}"); A(f"v_add_f32 v{RQ}, {f32(1e-5)}, v{RQ}")
    A(f"v_rsq_f32 v{RQ}, v{RQ}"); A("s_nop 0")
    A(f"v_mul_f32 v{RS}, v{RS}, v{RQ}"); A(f"v_sub_f32 v{RS}, 0, v{RS}")
    A(f"ds_write_b32 v229, v{RQ} offset:{PR}"); A(f"ds_write_b32 v229, v{RS} offset:{PR+128}")
    SA, SB, SC = 128, 144, 160
    A(f"v_mov_b32 v184, v{RQ}"); A(f"v_mov_b32 v186, v{RS}"); A(f"v_mov_b32 v188, v{CS+1}"); A(f"v_mov_b32 v190, v{CS+2}")
    A("s_waitcnt lgkmcnt(0)")
    for qd in range(4):
        A(f"ds_read_b128 v[{SA+4*qd}:{SA+4*qd+3}], v230 offset:{PR + qd*32}")
        A(f"ds_read_b128 v[{SB+4*qd}:{SB+4*qd+3}], v230 offset:{PR + 128 + qd*32}")
    for qd in range(4): A(f"ds_read_b128 v[{SC+4*qd}:{SC+4*qd+3}], v230 offset:{PR + 256 + qd*32}")
    A(f"ds_read_b128 v[124:127], v119")
    A("s_waitcnt lgkmcnt(5)")
    TP = 40
    def phi_vec(base, mode):
        prs = list(range(0, 16, 2))
        for i in prs:
            if mode == "q": A(f"v_pk_fma_f32 v[{TP+i}:{TP+i+1}], v[{SC+i}:{SC+i+1}], v[186:187], v[{C1}:{C1+1}] op_sel_hi:[1,0,1]")
            else:           A(f"v_pk_fma_f32 v[{TP+i}:{TP+i+1}], v[{SB+i}:{SB+i+1}], v[188:189], v[{C1}:{C1+1}] op_sel_hi:[1,0,1]")
        for i in prs:
            r = base + i
            if mode == "q": A(f"v_pk_fma_f32 v[{r}:{r+1}], v[{r}:{r+1}], v[184:185], v[{TP+i}:{TP+i+1}] op_sel_hi:[1,0,1]")
            else:           A(f"v_pk_fma_f32 v[{r}:{r+1}], v[{r}:{r+1}], v[{SA+i}:{SA+i+1}], v[{TP+i}:{TP+i+1}]")
        for i in prs:
            r = base + i
            A(f"v_pk_fma_f32 v[{TP+i}:{TP+i+1}], v[{r}:{r+1}], v[{CL}:{CL+1}], v[{CN}:{CN+1}]")
        for i in range(16): A(f"v_exp_f32_e64 v{TP+i}, v{TP+i} clamp")
        for i in prs: A(f"v_pk_add_f32 v[{TP+i}:{TP+i+1}], v[{TP+i}:{TP+i+1}], v[{CE}:{CE+1}]")
        for i in range(16): A(f"v_max_f32 v{base+i}, v{base+i}, v{TP+i}")
    PK = 200
    for r in range(0, 16, 2): A(f"v_pk_mul_f32 v[{24+r}:{24+r+1}], v[{SB+r}:{SB+r+1}], v[190:191] op_sel_hi:[1,0]")
    for r in range(0, 16, 2):
        rg = ACC + 32 + r
        A(f"v_pk_fma_f32 v[{rg}:{rg+1}], v[{rg}:{rg+1}], v[{SA+r}:{SA+r+1}], v[{24+r}:{24+r+1}]")
    phi_vec(ACC + 16, "k")
    for r in range(8): A(f"v_cvt_pk_bf16_f32 v{PK+16+r}, v{ACC+32+2*r}, v{ACC+32+2*r+1}")
    for r in range(8): A(f"v_cvt_pk_bf16_f32 v{PK+8+r}, v{ACC+16+2*r}, v{ACC+16+2*r+1}")
    A("s_nop 1")
    kp, vp = PK + 8, PK + 16; D = ACC + 16; Z = ACC + 32
    A(f"v_mfma_f32_32x32x16_bf16 v[{D}:{D+15}], v[{vp}:{vp+3}], v[{kp}:{kp+3}], 0")
    A(f"v_mfma_f32_32x32x16_bf16 v[{Z}:{Z+15}], v[{ON}:{ON+3}], v[{kp}:{kp+3}], 0")
    A(f"v_mfma_f32_32x32x16_bf16 v[{D}:{D+15}], v[{vp+4}:{vp+7}], v[{kp+4}:{kp+7}], v[{D}:{D+15}]")
    A(f"v_mfma_f32_32x32x16_bf16 v[{Z}:{Z+15}], v[{ON}:{ON+3}], v[{kp+4}:{kp+7}], v[{Z}:{Z+15}]")
    A("v_and_b32 v22, 16, v0"); A("v_cmp_ne_u32 vcc, 0, v22")
    A("v_lshlrev_b32 v19, 2, v0"); A(f"v_add_u32 v19, {EX + 8192}, v19")
    A("v_bfe_u32 v9, v0, 4, 1"); A("s_movk_i32 s13, 1088"); A("v_mul_lo_u32 v9, v9, s13")
    A("v_and_b32 v10, 15, v0"); A("v_lshl_add_u32 v9, v10, 2, v9"); A("v_lshl_add_u32 v10, v21, 8, v9")
    A("s_lshl_b32 s13, s5, 2"); A(f"s_add_u32 s13, s13, {2*wn}"); A("s_mulk_i32 s13, 1088")
    A("s_waitcnt lgkmcnt(0)")
    A("v_and_b32 v124, v124, v125"); A("v_and_b32 v126, v126, v127"); A("v_and_b32 v124, v124, v126"); A("s_nop 0")
    A("v_readfirstlane_b32 s14, v124"); A("s_nop 3")
    A("s_cmp_lg_u32 s14, 0"); A(f"s_cbranch_scc1 k1_d6{w}_ok")
    lds_wait4(A, FL, f"k1_d6{w}")
    A.label(f"k1_d6{w}_ok")
    for r in range(8): A(f"v_cndmask_b32 v{24+r}, v{D+r}, v{D+8+r}, vcc")
    keep = list(range(4 * wm, 4 * wm + 4)); send = [r for r in range(8) if r not in keep]
    mine = (wn * 2 + wm) * 2304; other = (wn * 2 + 1 - wm) * 2304
    for r in send: A(f"ds_write_b32 v19, v{24+r} offset:{mine + r*256}")
    if wm == 1: A(f"ds_write_b32 v19, v{Z} offset:{mine + 8*256}")
    lds_signal(A, FL + 32 + w * 4)
    lds_wait(A, FL + 32 + ((1 - wm) * 2 + wn) * 4, f"k1_sp{w}c")
    for i, r in enumerate(keep): A(f"ds_read_b32 v{32+i}, v19 offset:{other + r*256}")
    if wm == 0: A(f"ds_read_b32 v36, v19 offset:{other + 8*256}")
    A(f"s_waitcnt vmcnt({q.need('flag')})")
    A("s_waitcnt lgkmcnt(0)")
    for i, r in enumerate(keep): A(f"v_add_f32 v{24+r}, v{24+r}, v{32+i}")
    if wm == 0: A(f"v_add_f32 v36, v36, v{Z}")
    A("s_mov_b32 s15, 0")
    A.label(f"k1_poll{w}")
    A("v_readfirstlane_b32 s14, v121"); A("s_add_u32 s15, s15, 1"); A("s_nop 2"); A("s_cmp_lg_u32 s14, 0"); A(f"s_cbranch_scc1 k1_go{w}")
    A("s_cmp_ge_u32 s15, 0x20000"); A(f"s_cbranch_scc1 k1_go{w}")
    A("s_sleep 2"); A("buffer_load_dword v121, v120, s[48:51], 0 offen sc1"); A("s_waitcnt vmcnt(0)"); A(f"s_branch k1_poll{w}")
    A.label(f"k1_go{w}")
    for i, r in enumerate(keep):
        A(f"buffer_atomic_add_f32 v{24+r}, v10, s[44:47], s13 offen offset:{wm*512 + (r&3)*64}")
    if wm == 0:
        A("s_mov_b64 exec, 0xffffffff")
        A("buffer_atomic_add_f32 v36, v9, s[44:47], s13 offen offset:1024")
        A("s_mov_b64 exec, -1")
    if "k1st" not in EXP: ts(A, 1, 4)
    phi_vec(ACC, "q")
    for r in range(8): A(f"v_cvt_pk_bf16_f32 v{PK+r}, v{ACC+2*r}, v{ACC+2*r+1}")
    srd(A, 52, P_WS, WS_PQ, SZ_PQ)
    A("s_lshl_b32 s12, s6, 1"); A(f"s_add_u32 s12, s12, {wm}"); A("s_lshl_b32 s12, s12, 5")
    A("s_lshl_b32 s13, s5, 2"); A("s_add_u32 s12, s12, s13"); A(f"s_add_u32 s12, s12, {2*wn}"); A("s_lshl_b32 s12, s12, 10")
    A("v_lshlrev_b32 v18, 4, v0")
    A(f"buffer_store_dwordx4 v[{PK}:{PK+3}], v18, s[52:55], s12 offen{STP}")
    A(f"buffer_store_dwordx4 v[{PK+4}:{PK+7}], v18, s[52:55], s12 offen offset:1024{STP}")
    if "k1st" not in EXP: ts(A, 1, 5)

def job_issue(A, q):
    A("s_lshl_b32 s70, s3, 8"); A("s_add_u32 s70, s70, s2")
    A("s_lshl_b32 s71, s3, 13"); A("s_add_u32 s71, s71, 131072")
    A("v_lshrrev_b32 v28, 3, v0"); A("v_and_b32 v29, 7, v0"); A("v_lshlrev_b32 v29, 4, v29")
    A("v_lshl_add_u32 v30, v28, 10, v29")
    A("s_mov_b32 s72, 3")
    srd(A, 76, P_WO, 0, 0); srd(A, 80, P_WO, 0, 0)
    A("s_mov_b32 s88, 0"); A("s_mov_b32 s90, 0"); A("s_mov_b32 s91, 0")
    A("s_mov_b32 s62, 0"); A(f"s_mov_b32 s63, {131072 + 24576}")
    A("s_cmp_ge_u32 s70, 736"); A("s_cbranch_scc1 k1_js_done")
    A("s_movk_i32 s62, 1024"); A("s_mov_b32 s63, s71")
    A("s_cmp_lt_u32 s70, 448"); A("s_cbranch_scc1 k1_js_gu")
    A("s_mov_b32 s72, 1")
    A("s_cmp_lt_u32 s70, 672"); A("s_cbranch_scc1 k1_js_wd")
    srd(A, 76, P_WO, 0, 512 * 1024); srd(A, 80, P_WO, 0, 512 * 1024); srd(A, 84, P_WS, WS_WO, SZ_WO)
    A("s_mov_b32 s73, 32"); A("s_sub_u32 s70, s70, 672")
    A("s_branch k1_js_dd")
    A.label("k1_js_wd")
    srd(A, 76, P_WD, 0, 1792 * 1024); srd(A, 80, P_WD, 0, 1792 * 1024); srd(A, 84, P_WS, WS_WD, SZ_WD)
    A("s_mov_b32 s73, 112"); A("s_sub_u32 s70, s70, 448")
    A.label("k1_js_dd")
    A("s_lshr_b32 s74, s70, 3"); A("s_and_b32 s75, s70, 7")
    A("s_lshl_b32 s88, s74, 16"); A("s_lshl_b32 s89, s75, 7"); A("s_add_u32 s88, s88, s89")
    A("s_movk_i32 s90, 8192"); A("s_add_u32 s91, s88, 32768")
    A("s_branch k1_js_done")
    A.label("k1_js_gu")
    A("s_mov_b32 s72, 0")
    srd(A, 76, P_WG, 0, 512 * 3584); srd(A, 80, P_WU, 0, 512 * 3584); srd(A, 84, P_WS, WS_WGU, SZ_WGU)
    A("s_mul_i32 s74, s70, 2341"); A("s_lshr_b32 s74, s74, 16"); A("s_mul_i32 s75, s74, 28"); A("s_sub_u32 s75, s70, s75")
    A("s_movk_i32 s89, 3584"); A("v_mul_lo_u32 v30, v28, s89"); A("v_add_u32 v30, v30, v29")
    A(f"s_mul_i32 s88, s74, {32*3584}"); A("s_lshl_b32 s89, s75, 7"); A("s_add_u32 s88, s88, s89")
    A(f"s_movk_i32 s90, {8*3584}"); A("s_mov_b32 s91, s88")
    A.label("k1_js_done")
    for i in range(8):
        A("s_mov_b32 m0, s63")
        rg = 88 if i < 4 else 91
        A("s_add_u32 s63, s63, s62")
        A(f"buffer_load_dwordx4 v30, s[{76 if i < 4 else 80}:{79 if i < 4 else 83}], s{rg} offen lds"); q.add("job")
        A(f"s_add_u32 s{rg}, s{rg}, s90")

def job_finish(A):
    A("s_cmp_eq_u32 s72, 3"); A("s_cbranch_scc1 k1_jf_end")
    A("v_lshlrev_b32 v34, 4, v0")
    A("v_lshrrev_b32 v35, 5, v0"); A("v_bfe_u32 v36, v0, 2, 2"); A("v_lshl_add_u32 v35, v35, 2, v36"); A("v_lshlrev_b32 v35, 7, v35")
    A("v_and_b32 v36, 3, v0"); A("v_lshl_add_u32 v35, v36, 3, v35"); A("v_add_u32 v35, s71, v35"); A("v_bfe_u32 v36, v0, 4, 1")
    A("s_cmp_eq_u32 s72, 0"); A("s_cbranch_scc1 k1_jf_gu")
    A("v_lshl_add_u32 v35, v36, 5, v35")
    A("s_lshl_b32 s60, s75, 1"); A("s_mul_i32 s60, s60, s73"); A("s_lshl_b32 s61, s74, 2"); A("s_add_u32 s60, s60, s61")
    A("s_lshl_b32 s60, s60, 10"); A("s_lshl_b32 s61, s73, 10")
    for c in range(2):
        for i in range(4):
            d = 40 + (c * 4 + i) * 4
            A(f"ds_read_b64_tr_b16 v[{d}:{d+1}], v35 offset:{i*2048 + c*64}")
            A(f"ds_read_b64_tr_b16 v[{d+2}:{d+3}], v35 offset:{i*2048 + c*64 + 1024}")
    A("s_waitcnt lgkmcnt(0)")
    for c in range(2):
        for i in range(4):
            d = 40 + (c * 4 + i) * 4
            A(f"buffer_store_dwordx4 v[{d}:{d+3}], v34, s[84:87], s60 offen offset:{i*1024}{STP}")
        A("s_add_u32 s60, s60, s61")
    A("s_branch k1_jf_end")
    A.label("k1_jf_gu")
    srd(A, 76, P_WS, WS_CSP, SZ_CSP)
    A("v_lshl_add_u32 v35, v36, 12, v35")
    A("s_lshl_b32 s60, s75, 7"); A("s_lshl_b32 s61, s74, 1"); A("s_add_u32 s60, s60, s61"); A("s_lshl_b32 s60, s60, 10")
    for c in range(8): A(f"v_mov_b32 v{72+c}, 0")
    for c in range(4):
        for i in range(2):
            d = 40 + (c * 2 + i) * 4
            A(f"ds_read_b64_tr_b16 v[{d}:{d+1}], v35 offset:{i*2048 + c*32}")
            A(f"ds_read_b64_tr_b16 v[{d+2}:{d+3}], v35 offset:{i*2048 + c*32 + 1024}")
    A("s_waitcnt lgkmcnt(0)")
    for c in range(4):
        A(f"s_add_u32 s61, s60, {c*32*1024}")
        for i in range(2):
            d = 40 + (c * 2 + i) * 4
            A(f"buffer_store_dwordx4 v[{d}:{d+3}], v34, s[84:87], s61 offen offset:{i*1024}{STP}")
    for j in range(4):
        for i in range(2):
            for c in range(4): A(f"v_dot2c_f32_bf16 v{72+4*i+c}, {ONES}, v{40+(c*2+i)*4+j}")
    A("s_nop 2")
    for c in range(4): A(f"v_add_f32 v{72+c}, v{72+c}, v{76+c}")
    A("s_mulk_i32 s74, 3584"); A("s_lshl_b32 s61, s75, 7"); A("s_add_u32 s74, s74, s61"); A("s_lshl_b32 s74, s74, 2")
    A("v_and_b32 v32, 31, v0"); A("v_lshlrev_b32 v32, 2, v32")
    for c in range(4): halves_sum(A, 72 + c, 33)
    for c in range(4): A(f"buffer_store_dword v{72+c}, v32, s[76:79], s74 offen offset:{c*128}{STP}")
    A.label("k1_jf_end")

def ksplit_reduce(A, pre, ACC, OUT, TMP):
    A("v_lshlrev_b32 v7, 4, v0")
    for qd in range(1, 4):
        A(f"s_xor_b32 s8, s3, {qd}"); A("s_mulk_i32 s8, 12288"); A("v_add_u32 v6, s8, v7")
        for j in range(4):
            r = ACC + 16 * qd + 4 * j
            A(f"ds_write_b128 v6, {pre}[{r}:{r+3}] offset:{(qd-1)*4096 + j*1024}")
    if pre == "a":
        for r in range(16): A(f"v_accvgpr_read_b32 v{OUT+r}, a{ACC+r}")
    A("s_mul_i32 s8, s3, 12288"); A("v_add_u32 v6, s8, v7")
    A("s_waitcnt lgkmcnt(0)")
    A("s_barrier")
    for p in range(3):
        for j in range(4):
            d = TMP + 16 * p + 4 * j
            A(f"ds_read_b128 v[{d}:{d+3}], v6 offset:{p*4096 + j*1024}")
    own = OUT if pre == "a" else ACC
    A("s_waitcnt lgkmcnt(8)")
    for r in range(0, 16, 2): A(f"v_pk_add_f32 v[{OUT+r}:{OUT+r+1}], v[{own+r}:{own+r+1}], v[{TMP+r}:{TMP+r+1}]")
    A("s_waitcnt lgkmcnt(0)")
    for r in range(0, 16, 2): A(f"v_pk_add_f32 v[{TMP+16+r}:{TMP+16+r+1}], v[{TMP+16+r}:{TMP+16+r+1}], v[{TMP+32+r}:{TMP+32+r+1}]")
    for r in range(0, 16, 2): A(f"v_pk_add_f32 v[{OUT+r}:{OUT+r+1}], v[{OUT+r}:{OUT+r+1}], v[{TMP+16+r}:{TMP+16+r+1}]")

def prefetch(A, srdn, soff, dummy, lane128):
    A(f"buffer_load_dword v{dummy}, v{lane128}, s[{srdn}:{srdn+3}], s{soff} offen")

def gen_k2(A):
    A.label("k2_kernel")
    prologue(A, 256, "k2_end"); ts(A, 2, 0)
    A("s_and_b32 s4, s2, 7"); A("s_lshr_b32 s5, s2, 3"); A("s_mov_b32 s61, s4"); A("s_mov_b32 s62, s5")
    A("s_lshr_b32 s6, s5, 3"); A("s_lshl_b32 s4, s4, 2"); A("s_add_u32 s4, s4, s6"); A("s_and_b32 s5, s5, 7")
    srd(A, 36, P_WS, WS_KVZ, SZ_KVZ); srd(A, 40, P_WS, WS_PQ, SZ_PQ); srd(A, 44, P_WS, WS_WO, SZ_WO)
    srd(A, 48, P_X, 0, 2048 * 1024); srd(A, 52, P_WS, WS_H, SZ_H); srd(A, 56, P_WS, WS_STATS, SZ_STATS)
    srd(A, 64, P_WS, WS_WGU, SZ_WGU)
    q = VMQ()
    A("v_lshlrev_b32 v2, 4, v0"); A("v_and_b32 v3, 31, v0"); A("v_min_u32 v4, 16, v3"); A("v_lshlrev_b32 v4, 6, v4")
    A("v_lshrrev_b32 v5, 5, v0"); A("v_lshl_add_u32 v4, v5, 4, v4")
    A("s_lshl_b32 s8, s3, 3"); A("s_mul_i32 s9, s8, 1088")
    A("s_lshr_b32 s12, s3, 1"); A("s_and_b32 s16, s3, 1")
    A("s_lshl_b32 s13, s4, 1"); A("s_add_u32 s13, s13, s12")
    A("s_lshl_b32 s10, s13, 5"); A("s_add_u32 s10, s10, s8"); A("s_lshl_b32 s10, s10, 10")
    A("s_xor_b32 s14, s13, 1"); A("s_lshl_b32 s14, s14, 5"); A("s_add_u32 s14, s14, s8"); A("s_lshl_b32 s14, s14, 10")
    A("s_lshl_b32 s11, s5, 1"); A("s_add_u32 s11, s11, s16"); A("s_xor_b32 s15, s11, 1")
    A("s_lshl_b32 s11, s11, 5"); A("s_add_u32 s11, s11, s8"); A("s_lshl_b32 s11, s11, 10")
    A("s_lshl_b32 s15, s15, 5"); A("s_add_u32 s15, s15, s8"); A("s_lshl_b32 s15, s15, 10")
    KR = 64
    def loads(h):
        A(f"s_add_u32 s12, s9, {h*1088}")
        A(f"buffer_load_dwordx4 v[{KR+8*h}:{KR+8*h+3}], v4, s[36:39], s12 offen"); q.add(("kv", h))
        A(f"buffer_load_dwordx4 v[{KR+8*h+4}:{KR+8*h+7}], v4, s[36:39], s12 offen offset:32"); q.add(("kv", h))
        base = [10, 14, 11, 15]
        dst = [h * 4, (8 + h) * 4, 64 + h * 4, 64 + (8 + h) * 4]
        for i in range(4):
            sr = 40 if i < 2 else 44
            if h == 4: A(f"s_add_u32 s{base[i]}, s{base[i]}, 4096")
            A(f"buffer_load_dwordx4 a[{dst[i]}:{dst[i]+3}], v2, s[{sr}:{sr+3}], s{base[i]} offen offset:{(h%4)*1024}"); q.add(("fr", h))
    for h in range(3): loads(h)
    for r in range(64): A(f"v_accvgpr_write_b32 a{128+r}, 0")
    KA = 32; TT = [[128, 144], [160, 176]]; OF = [[8, 12], [16, 20]]; EPS = 24; XR = 200
    A(f"v_mov_b32 v{EPS}, {f32(1e-6)}")
    ts(A, 2, 1)
    def cv(h): return [f"v_cvt_pk_bf16_f32 v{KA+4*h+j}, v{KR+8*h+2*j}, v{KR+8*h+2*j+1}" for j in range(4)]
    def tm(h, aa):
        T = TT[h % 2][aa]
        return f"v_mfma_f32_32x32x16_bf16 v[{T}:{T+15}], v[{KA+4*h}:{KA+4*h+3}], a[{(aa*8+h)*4}:{(aa*8+h)*4+3}], 0"
    def mm(h, aa, b):
        ac = 128 + 16 * (2 * aa + b); o = OF[h % 2][aa]
        return f"v_mfma_f32_32x32x16_bf16 a[{ac}:{ac+15}], a[{64+(b*8+h)*4}:{64+(b*8+h)*4+3}], v[{o}:{o+3}], a[{ac}:{ac+15}]"
    def valu(h):
        L = []
        T0, T1 = TT[h % 2]; o0, o1 = OF[h % 2]
        L += [f"v_add_f32 v25, v{T0+8}, v{EPS}", f"v_add_f32 v26, v{T1+8}, v{EPS}", "v_rcp_f32 v25, v25", "v_rcp_f32 v26, v26", "s_nop 0"]
        for r in range(8): L += [f"v_mul_f32 v{T0+r}, v{T0+r}, v25", f"v_mul_f32 v{T1+r}, v{T1+r}, v26"]
        for j in range(4): L += [f"v_cvt_pk_bf16_f32 v{o0+j}, v{T0+2*j}, v{T0+2*j+1}", f"v_cvt_pk_bf16_f32 v{o1+j}, v{T1+2*j}, v{T1+2*j+1}"]
        return L
    A(f"s_waitcnt vmcnt({q.need(('fr', 0))})")
    for l in cv(0): A(l)
    ts(A, 2, 2)
    A("s_nop 1")
    A(tm(0, 0)); A(tm(0, 1))
    for h in range(9):
        if h + 3 < 8: loads(h + 3)
        if h == 5:
            A("s_lshl_b32 s17, s13, 15"); A("s_lshl_b32 s60, s5, 7"); A("s_add_u32 s17, s17, s60"); A("s_lshl_b32 s60, s16, 6"); A("s_add_u32 s17, s17, s60")
            A("v_lshlrev_b32 v6, 10, v3"); A("v_lshl_add_u32 v6, v5, 3, v6")
            for qd in range(4):
                A(f"buffer_load_dwordx2 v[{XR+2*qd}:{XR+2*qd+1}], v6, s[48:51], s17 offen offset:{qd*16}"); q.add("x")
            A("s_and_b32 s60, s61, 3"); A("s_mul_i32 s60, s60, 917504"); A("s_mul_i32 s63, s62, 28672"); A("s_add_u32 s60, s60, s63")
            A("s_mul_i32 s63, s3, 7168"); A("s_add_u32 s60, s60, s63")
            A("v_min_u32 v7, 55, v0"); A("v_lshlrev_b32 v7, 7, v7")
            A("buffer_load_dword v208, v7, s[64:67], s60 offen"); q.add("pf")
        if h == 6:
            srd(A, 68, P_WS, WS_CSP, SZ_CSP)
            A("s_lshl_b32 s60, s2, 2"); A("s_add_u32 s60, s60, s3"); A("s_lshl_b32 s63, s60, 8")
            A("v_lshlrev_b32 v7, 2, v0")
            A("s_cmp_ge_u32 s60, 56"); A("s_cbranch_scc1 k2_nocs1")
            A.lines.append(";OPT_BEGIN")
            for kc in range(16):
                A(f"s_add_u32 s60, s63, {kc*3584*4}")
                A(f"buffer_load_dword v{210+kc}, v7, s[68:71], s60 offen")
            A.lines.append(";OPT_END")
            A.label("k2_nocs1")
        ms = []
        if h + 1 < 8:
            A(f"s_waitcnt vmcnt({q.need(('fr', h + 1))})")
            for l in cv(h + 1): A(l)
            A("s_nop 1")
            ms += [tm(h + 1, 0), tm(h + 1, 1)]
        if h >= 1: ms += [mm(h - 1, 0, 0), mm(h - 1, 0, 1), mm(h - 1, 1, 0), mm(h - 1, 1, 1)]
        vl = valu(h) if h < 8 else []
        if h == 0:
            for m_ in ms: A(m_)
            A("s_nop 5")
            for l in vl: A(l)
            A("s_nop 1")
        else:
            per = (len(vl) + len(ms) - 1) // len(ms) if vl else 0
            for m_ in ms:
                A(m_)
                for _ in range(per):
                    if vl: A(vl.pop(0))
            for l in vl: A(l)
            A("s_nop 1")
    ts(A, 2, 3)
    A("s_nop 7"); A("s_nop 3")
    ksplit_reduce(A, "a", 128, 64, 80)
    ts(A, 2, 4)
    A(f"s_waitcnt vmcnt({q.need('x')})")
    for qd in range(4):
        for j in range(2):
            xr = XR + 2 * qd + j; t8 = 8 + 2 * ((2 * qd + j) % 4)
            A(f"v_lshlrev_b32 v{t8}, 16, v{xr}"); A(f"v_and_b32 v{t8+1}, 0xffff0000, v{xr}")
            A(f"v_pk_add_f32 v[{64+4*qd+2*j}:{64+4*qd+2*j+1}], v[{64+4*qd+2*j}:{64+4*qd+2*j+1}], v[{t8}:{t8+1}]")
    HP = 96
    for r in range(8): A(f"v_cvt_pk_bf16_f32 v{HP+r}, v{64+2*r}, v{64+2*r+1}")
    A("s_lshl_b32 s8, s13, 5"); A("s_lshl_b32 s9, s5, 2"); A("s_add_u32 s8, s8, s9"); A("s_lshl_b32 s9, s16, 1"); A("s_add_u32 s8, s8, s9"); A("s_lshl_b32 s8, s8, 10")
    A(f"buffer_store_dwordx4 v[{HP}:{HP+3}], v2, s[52:55], s8 offen{STP}")
    A(f"buffer_store_dwordx4 v[{HP+4}:{HP+7}], v2, s[52:55], s8 offen offset:1024{STP}")
    for r in range(16, 20): A(f"v_mov_b32 v{r}, 0")
    for r in range(8):
        A(f"v_dot2c_f32_bf16 v{16+(r&1)}, {ONES}, v{HP+r}"); A(f"v_dot2c_f32_bf16 v{18+(r&1)}, v{HP+r}, v{HP+r}")
    A("s_nop 2")
    A("v_add_f32 v10, v16, v17"); A("v_add_f32 v11, v18, v19")
    halves_sum(A, 10, 12); halves_sum(A, 11, 12)
    A("s_lshl_b32 s8, s13, 12"); A("s_lshl_b32 s9, s5, 4"); A("s_add_u32 s8, s8, s9"); A("s_lshl_b32 s9, s16, 3"); A("s_add_u32 s8, s8, s9")
    A("v_lshlrev_b32 v6, 7, v3")
    A(f"buffer_store_dwordx2 v[10:11], v6, s[56:59], s8 offen{STP}")
    A("s_lshl_b32 s60, s2, 2"); A("s_add_u32 s60, s60, s3"); A("s_cmp_ge_u32 s60, 56"); A("s_cbranch_scc1 k2_nocs2")
    A("s_waitcnt vmcnt(0)")
    A.lines.append(";OPT_BEGIN")
    for st_ in (8, 4, 2, 1):
        for kc in range(st_): A(f"v_add_f32 v{210+kc}, v{210+kc}, v{210+kc+st_}")
    srd(A, 68, P_WS, WS_CS, SZ_CS)
    A("v_lshlrev_b32 v7, 2, v0")
    A(f"buffer_store_dword v210, v7, s[68:71], s63 offen{STP}")
    A.lines.append(";OPT_END")
    A.label("k2_nocs2")
    ts(A, 2, 7, True)
    A.label("k2_end")
    A("s_endpgm")

def gen_k3(A):
    A.label("k3_kernel")
    prologue(A, 256, "k3_end"); ts(A, 3, 0)
    A("s_and_b32 s4, s2, 7"); A("s_lshr_b32 s5, s2, 3")
    A("s_lshr_b32 s6, s4, 2"); A("s_lshl_b32 s6, s6, 3"); A("s_lshr_b32 s7, s5, 2"); A("s_add_u32 s6, s6, s7")
    A("s_and_b32 s4, s4, 3"); A("s_lshl_b32 s4, s4, 2"); A("s_and_b32 s5, s5, 3"); A("s_add_u32 s5, s5, s4")
    A("s_mov_b32 s4, s6")
    srd(A, 36, P_WS, WS_WGU, SZ_WGU); srd(A, 40, P_WS, WS_H, SZ_H)
    q = VMQ()
    A("v_lshlrev_b32 v2, 4, v0")
    A("s_lshl_b32 s6, s4, 2"); A("s_add_u32 s6, s6, s3")
    A("s_mul_i32 s7, s5, 7")
    A("s_add_u32 s8, s7, s3"); A("s_lshl_b32 s8, s8, 15")
    A("s_lshl_b32 s9, s7, 15"); A("s_lshl_b32 s10, s3, 13"); A("s_add_u32 s9, s9, s10")
    A("s_lshl_b32 s11, s6, 15")
    def dma_groups(stage):
        slot = (stage % 4) * 32768; L = []
        for hlf in range(2):
            for i in range(4):
                g = []
                if i == 0:
                    g.append(f"s_add_u32 m0, s10, {slot + hlf*4096}")
                    g.append(f"s_add_u32 s12, s8, {(8*stage + 4*hlf)*1024}" if stage < 4 else f"s_add_u32 s12, s9, {stage*32768 + hlf*4096}")
                g.append(f"buffer_load_dwordx4 v2, s[36:39], s12 offen offset:{i*1024} lds")
                L.append((g, ("dma", stage)))
        return L
    def h_groups(c):
        L = []
        for t in range(8 * c, 8 * c + 8):
            g = []
            if t % 4 == 0: g.append(f"s_add_u32 s13, s11, {t*1024}")
            g.append(f"buffer_load_dwordx4 a[{4*t}:{4*t+3}], v2, s[40:43], s13 offen offset:{(t%4)*1024}")
            L.append((g, ("h", c)))
        return L
    def emit(gt):
        for l in gt[0]: A(l)
        q.add(gt[1])
    def inter(a, b):
        out = []
        for x, y in zip(a, b): out += [x, y]
        return out
    for gt in inter(dma_groups(0), h_groups(0)): emit(gt)
    srd(A, 44, P_WS, WS_STATS, SZ_STATS); srd(A, 48, P_WS, WS_CS, SZ_CS); srd(A, 52, P_WS, WS_ACT, SZ_ACT)
    SM = 212
    A("v_and_b32 v3, 31, v0"); A("v_lshrrev_b32 v5, 5, v0"); A("v_lshlrev_b32 v4, 7, v3"); A("v_lshl_add_u32 v4, v5, 6, v4")
    A("s_lshl_b32 s14, s6, 12")
    for j in range(4): A(f"buffer_load_dwordx4 v[{SM+4*j}:{SM+4*j+3}], v4, s[44:47], s14 offen offset:{j*16}"); q.add("small")
    A("v_lshl_add_u32 v6, v1, 6, v0"); A("v_min_u32 v6, 223, v6"); A("v_lshlrev_b32 v6, 2, v6")
    A("s_mul_i32 s14, s7, 128")
    A(f"buffer_load_dword v{SM+16}, v6, s[48:51], s14 offen"); q.add("small")
    vpend = inter(dma_groups(1), h_groups(1))
    for _ in range(NPRE): emit(vpend.pop(0))
    vpend += inter(dma_groups(2), h_groups(2)) + inter(dma_groups(3), h_groups(3))
    NM, C1, C2 = 8, 9, 10
    CSL = 131072
    A(f"v_add_u32 v7, {CSL}, v6")
    A(f"v_lshlrev_b32 v11, 4, v5"); A(f"v_add_u32 v11, {CSL}, v11")
    A("v_mov_b32 v12, v2"); A("v_add_u32 v13, 0x10000, v2")
    ACCS = [64 + 16 * i for i in range(7)]
    NAF = 12
    AF = [16 + 4 * i for i in range(NAF)]
    CSR = 176; ET = 192
    A("s_mul_i32 s14, s6, 112"); A("s_add_u32 s14, s14, s7"); A("s_lshl_b32 s14, s14, 10")
    st_l = []
    for j in range(1, 4):
        for e in range(4): st_l.append(f"v_add_f32 v{SM+e}, v{SM+e}, v{SM+4*j+e}")
    st_l += [f"v_add_f32 v{SM}, v{SM}, v{SM+2}", f"v_add_f32 v{SM+1}, v{SM+1}, v{SM+3}",
             f"v_mov_b32 v{SM+4}, v{SM}", f"v_mov_b32 v{SM+5}, v{SM+1}", "s_nop 1",
             f"v_permlane32_swap_b32 v{SM}, v{SM+4}", f"v_permlane32_swap_b32 v{SM+1}, v{SM+5}", "s_nop 1",
             f"v_add_f32 v{SM}, v{SM}, v{SM+4}", f"v_add_f32 v{SM+1}, v{SM+1}, v{SM+5}",
             f"v_mul_f32 v{SM}, {f32(1/512)}, v{SM}", f"v_mul_f32 v{SM+1}, {f32(1/512)}, v{SM+1}",
             f"v_fma_f32 v{SM+1}, -v{SM}, v{SM}, v{SM+1}", f"v_max_f32 v{SM+1}, 0, v{SM+1}", f"v_add_f32 v{SM+1}, {f32(1e-5)}, v{SM+1}",
             f"v_rsq_f32 v{SM+1}, v{SM+1}", f"v_sub_f32 v{NM}, 0, v{SM}",
             f"v_mul_f32 v{C1}, {f32(-LOG2E)}, v{SM+1}", f"v_mul_f32 v{C2}, v{SM+1}, v{SM+1}", f"ds_write_b32 v7, v{SM+16}"]
    seq = []
    for c in range(4):
        for i in range(8):
            for w in range(4): seq.append((w, 8 * c + i, c, w * 8192 + i * 1024))
    for c in range(4, 7):
        for t in range(32): seq.append((c, t, c, t * 1024))
    def aread(n):
        tile, t, stage, off = seq[n]; sl = stage % 4
        A(f"ds_read_b128 v[{AF[n%NAF]}:{AF[n%NAF]+3}], v{13 if sl >= 2 else 12} offset:{(sl%2)*32768 + off}")
    def epi(tile, n0):
        L = []; ac = ACCS[tile]; P = ET + 16; R8 = range(8)
        L += [(n0, f"ds_read_b128 v[{CSR+4*qd}:{CSR+4*qd+3}], v11 offset:{tile*128 + qd*32}") for qd in range(4)]
        L += [("sync", None)]
        M = []
        M += [f"v_fmac_f32 v{ac+r}, v{NM}, v{CSR+r}" for r in range(16)]
        M += [f"v_mul_f32 v{ET+r}, v{C1}, v{ac+r}" for r in R8]
        M += [x for r in R8 for x in (f"v_exp_f32 v{ET+r}, v{ET+r}", f"v_mul_f32 v{ET+8+r}, v{ac+r}, v{ac+8+r}")]
        M += [x for r in R8 for x in (f"v_add_f32 v{ET+r}, 1.0, v{ET+r}", f"v_mul_f32 v{ET+8+r}, v{ET+8+r}, v{C2}")]
        M += [f"v_rcp_f32 v{ET+r}, v{ET+r}" for r in R8]
        M += [f"v_mul_f32 v{ET+8+r}, v{ET+8+r}, v{ET+r}" for r in R8]
        M += [f"v_cvt_pk_bf16_f32 v{P+j}, v{ET+8+2*j}, v{ET+8+2*j+1}" for j in range(4)]
        M += [f"s_add_u32 s15, s14, {tile*1024}", f"buffer_store_dwordx4 v[{P}:{P+3}], v2, s[52:55], s15 offen{STP}"]
        return L + [(n0, m) for m in M]
    cost = lambda l: 2 if (l.startswith("v_exp") or l.startswith("v_rcp") or l.startswith("v_rsq")) else 1
    ts(A, 3, 1)
    A(f"s_waitcnt vmcnt({q.need(('dma', 0), ('h', 0))})")
    A("s_barrier")
    ts(A, 3, 2)
    PF = 8
    for n in range(PF): aread(n)
    N = len(seq)
    pend = []
    started = set()
    hold = -1
    for n in range(N):
        tile, t, stage, off = seq[n]
        budget = 6
        if n + PF < N and seq[n + PF][2] != seq[n + PF - 1][2]:
            ns = seq[n + PF][2]
            tags = [("dma", ns)] + ([("h", ns)] if ns < 4 else []) + (["small"] if ns == 1 else [])
            while any(gt[1] in tags for gt in vpend): emit(vpend.pop(0))
            A(f"s_waitcnt vmcnt({q.need(*tags)})")
            A("s_barrier")
            rs = ns + 2
            if 4 <= rs < 7: vpend += dma_groups(rs)
            budget -= 2
            if ns == 1: pend += [(n, l) for l in st_l]
        if n + PF < N: aread(n + PF); budget -= 1
        if n % 2 == 0:
            A(f"s_waitcnt lgkmcnt({max(0, min(PF, N - 1 - n) - 1)})"); budget -= 1
        ac = ACCS[tile]
        c_in = f"v[{ac}:{ac+15}]" if tile in started else "0"
        started.add(tile)
        A(f"v_mfma_f32_32x32x16_bf16 v[{ac}:{ac+15}], v[{AF[n%NAF]}:{AF[n%NAF]+3}], a[{4*t}:{4*t+3}], {c_in}")
        if n == 127: ts(A, 3, 3)
        if n == 159: ts(A, 3, 5)
        if n == 191: ts(A, 3, 6)
        rate = 1 if (n < VFAST) else 2
        if vpend and n % rate == rate - 1:
            gt = vpend.pop(0); emit(gt); budget -= len(gt[0])
        if n == 128 + 2:
            for tl in range(4): pend += epi(tl, n)
        if n == 128 + 32 + 13: pend += epi(4, n)
        if n == 128 + 64 + 13: pend += epi(5, n)
        if "k3nofill" in EXP and n > 100: pend = []
        while pend and budget > 0 and n >= hold:
            e, l = pend.pop(0)
            if e == "sync":
                hold = n + PF + 2; break
            A(l); budget -= cost(l)
            if l.startswith("buffer_store"): q.add("st")
    ts(A, 3, 4)
    A("s_nop 7"); A("s_nop 3")
    A("s_waitcnt lgkmcnt(0)")
    for e, l in pend + epi(6, 0):
        if e == "sync": A("s_waitcnt lgkmcnt(0)")
        else: A(l)
    ts(A, 3, 7, True)
    A.label("k3_end")
    A("s_endpgm")

def gen_k4(A):
    A.label("k4_kernel")
    prologue(A, 256, "k4_end"); ts(A, 4, 0)
    A("s_and_b32 s4, s2, 7"); A("s_lshr_b32 s5, s2, 3"); A("s_lshr_b32 s6, s5, 3"); A("s_lshl_b32 s4, s4, 2"); A("s_add_u32 s4, s4, s6"); A("s_and_b32 s5, s5, 7")
    srd(A, 36, P_WS, WS_ACT, SZ_ACT); srd(A, 40, P_WS, WS_WD, SZ_WD); srd(A, 44, P_WS, WS_H, SZ_H); srd(A, 48, P_OUT, 0, 2048 * 1024)
    q = VMQ()
    A("v_lshlrev_b32 v2, 4, v0")
    A("s_mul_i32 s8, s3, 28")
    A("s_lshr_b32 s13, s3, 1"); A("s_lshl_b32 s14, s4, 1"); A("s_add_u32 s13, s14, s13")
    A("s_and_b32 s14, s3, 1")
    A("s_mul_i32 s9, s13, 112"); A("s_add_u32 s9, s9, s8"); A("s_lshl_b32 s9, s9, 10")
    A("s_xor_b32 s11, s13, 1"); A("s_mul_i32 s11, s11, 112"); A("s_add_u32 s11, s11, s8"); A("s_lshl_b32 s11, s11, 10")
    A("s_lshl_b32 s10, s5, 1"); A("s_add_u32 s10, s10, s14"); A("s_xor_b32 s12, s10, 1")
    A("s_mul_i32 s10, s10, 112"); A("s_add_u32 s10, s10, s8"); A("s_lshl_b32 s10, s10, 10")
    A("s_mul_i32 s12, s12, 112"); A("s_add_u32 s12, s12, s8"); A("s_lshl_b32 s12, s12, 10")
    D = 5
    bases = [9, 11, 10, 12]
    def loads(t):
        b = (t % D) * 16
        for i in range(4):
            sr = 36 if i < 2 else 40
            if t % 4 == 0 and t > 0: A(f"s_add_u32 s{bases[i]}, s{bases[i]}, 4096")
            A(f"buffer_load_dwordx4 a[{b+4*i}:{b+4*i+3}], v2, s[{sr}:{sr+3}], s{bases[i]} offen offset:{(t%4)*1024}"); q.add(("g", t))
    for t in range(D): loads(t)
    A("s_lshl_b32 s15, s13, 5"); A("s_lshl_b32 s60, s5, 2"); A("s_add_u32 s15, s15, s60"); A("s_lshl_b32 s60, s14, 1"); A("s_add_u32 s15, s15, s60"); A("s_lshl_b32 s15, s15, 10")
    HR = 16
    ACC = 128
    for r in range(64): A(f"v_mov_b32 v{ACC+r}, 0")
    ts(A, 4, 1)
    for t in range(28):
        A(f"s_waitcnt vmcnt({q.need(('g', t))})")
        if t == 1: ts(A, 4, 2)
        b = (t % D) * 16
        for aa in range(2):
            for bb in range(2):
                ac = ACC + 16 * (2 * aa + bb)
                A(f"v_mfma_f32_32x32x16_bf16 v[{ac}:{ac+15}], a[{b+8+4*bb}:{b+8+4*bb+3}], a[{b+4*aa}:{b+4*aa+3}], v[{ac}:{ac+15}]")
        if t + D < 28: loads(t + D)
        if t == 22:
            A(f"buffer_load_dwordx4 v[{HR}:{HR+3}], v2, s[44:47], s15 offen"); q.add("h")
            A(f"buffer_load_dwordx4 v[{HR+4}:{HR+7}], v2, s[44:47], s15 offen offset:1024"); q.add("h")
    ts(A, 4, 3)
    A("s_nop 7"); A("s_nop 3")
    ksplit_reduce(A, "v", ACC, 64, 80)
    ts(A, 4, 4)
    A("s_waitcnt vmcnt(0)")
    for r in range(8):
        t8 = 8 + 2 * (r % 4)
        A(f"v_lshlrev_b32 v{t8}, 16, v{HR+r}"); A(f"v_and_b32 v{t8+1}, 0xffff0000, v{HR+r}")
        A(f"v_pk_add_f32 v[{64+2*r}:{64+2*r+1}], v[{64+2*r}:{64+2*r+1}], v[{t8}:{t8+1}]")
    OP = 96
    for r in range(8): A(f"v_cvt_pk_bf16_f32 v{OP+r}, v{64+2*r}, v{64+2*r+1}")
    A("s_nop 1")
    for p in range(2):
        A(f"v_permlane32_swap_b32 v{OP+4*p}, v{OP+4*p+2}"); A(f"v_permlane32_swap_b32 v{OP+4*p+1}, v{OP+4*p+3}")
    A("v_and_b32 v3, 31, v0"); A("v_lshrrev_b32 v5, 5, v0"); A("v_lshlrev_b32 v6, 10, v3"); A("v_lshl_add_u32 v6, v5, 4, v6")
    A("s_lshl_b32 s8, s13, 15"); A("s_lshl_b32 s9, s5, 7"); A("s_add_u32 s8, s8, s9"); A("s_lshl_b32 s9, s14, 6"); A("s_add_u32 s8, s8, s9")
    for p in range(2): A(f"buffer_store_dwordx4 v[{OP+4*p}:{OP+4*p+3}], v6, s[48:51], s8 offen offset:{p*32}{STP}")
    ts(A, 4, 7, True)
    A.label("k4_end")
    A("s_endpgm")

def build(path, extra_launches=0):
    kernels = [("k1_kernel", gen_k1, (256, 163840, 512), 256, 256),
               ("k2_kernel", gen_k2, (256, 49152, 256), 512, 256),
               ("k3_kernel", gen_k3, (256, 131072 + 1024, 256), 512, 256),
               ("k4_kernel", gen_k4, (256, 49152, 256), 512, 256)]
    hdr = open(f"cdna_kernels/{KNAME}.s.ref").read().split("\n")
    out = [l for l in hdr if l.startswith(";") and "@launch" not in l and "Override launch" not in l and "grid=ceil" not in l]
    for (n, g, (wg, lds, thr), vg, ac) in kernels:
        out.append(f"; @launch kernel={n} grid=({wg},1,1) block=({thr},1,1) lds={lds}")
    out.append('.amdgcn_target "amdgcn-amd-amdhsa--gfx950"'); out.append(".text")
    nerr = 0
    for (n, g, _, vg, ac) in kernels:
        A = Asm(); g(A)
        A.lines = [l for l in A.lines if l is not None]
        for variant in (A.lines, strip_opt(A.lines)):
            errs = check(variant, n)
            for e in errs[:30]: print("CHECK:", e)
            nerr += len(errs)
        out.append(f".globl {n}\n.p2align 8\n.type {n},@function"); out.append(A.text())
    out.append("code_end:\n  s_endpgm")
    out.append('.section .rodata,"a"')
    for (n, g, _, vg, ac) in kernels: out.append(kd(n, vg, ac))
    open(path, "w").write("\n".join(out) + "\n")
    print("written", path, "check errors:", nerr)
    import subprocess
    r = subprocess.run(["clang", "-x", "assembler", "-target", "amdgcn-amd-amdhsa", "-mcpu=gfx950", "-c", path, "-o", "x.o"], capture_output=True, text=True)
    if r.returncode: print(r.stderr[:2000])

if __name__ == "__main__":
    if "--ts" in sys.argv: G.TS = True; sys.argv.remove("--ts")
    build(sys.argv[1])
```

```python
import sys, os
sys.path.insert(0, "dev")
from asmlib import *
import gen as G
import gen3 as G3
from gen3 import *
from gen3 import VMQ, ts, STP, EXP, dbg_stamp

WS_CNT = 0x78000; SZ_CNT = 4096
LD = " sc1"

def signal(A, cnt_off_sgpr, lab):
    A("s_cmp_lg_u32 s3, 0"); A(f"s_cbranch_scc1 {lab}")
    A("v_mov_b32 v250, 1"); A("v_mov_b32 v251, 0")
    A("s_mov_b64 exec, 1")
    A(f"buffer_atomic_add v250, v251, s[64:67], s{cnt_off_sgpr} offen sc1")
    A("s_mov_b64 exec, -1")
    A.label(lab)

def wait_cnt(A, cnt_off_sgpr, target, lab):
    A("s_cmp_lg_u32 s3, 0"); A(f"s_cbranch_scc1 {lab}_done")
    A("v_mov_b32 v251, 0"); A("s_mov_b32 s76, 0")
    A.label(lab)
    A(f"buffer_load_dword v250, v251, s[64:67], s{cnt_off_sgpr} offen sc1")
    A("s_waitcnt vmcnt(0)")
    A("v_readfirstlane_b32 s77, v250")
    A("s_add_u32 s76, s76, 1")
    A("s_nop 2")
    A(f"s_cmp_ge_u32 s77, {target}"); A(f"s_cbranch_scc1 {lab}_done")
    A("s_cmp_ge_u32 s76, 0x20000"); A(f"s_cbranch_scc1 {lab}_done")
    A(f"s_sleep {PSL}")
    A(f"s_branch {lab}")
    A.label(f"{lab}_done")
    A("s_barrier")

def reduce4(A, pre, ACC, OUT, TMP, base):
    A("v_lshlrev_b32 v7, 4, v0")
    for qd in range(1, 4):
        A(f"s_xor_b32 s8, s3, {qd}"); A("s_mulk_i32 s8, 12288"); A(f"s_add_u32 s8, s8, {base}"); A("v_add_u32 v6, s8, v7")
        for j in range(4):
            r = ACC + 16 * qd + 4 * j
            A(f"ds_write_b128 v6, {pre}[{r}:{r+3}] offset:{(qd-1)*4096 + j*1024}")
    if pre == "a":
        for r in range(16): A(f"v_accvgpr_read_b32 v{OUT+r}, a{ACC+r}")
    A("s_mul_i32 s8, s3, 12288"); A(f"s_add_u32 s8, s8, {base}"); A("v_add_u32 v6, s8, v7")
    A("s_waitcnt lgkmcnt(0)")
    A("s_barrier")
    for p in range(3):
        for j in range(4):
            d = TMP + 16 * p + 4 * j
            A(f"ds_read_b128 v[{d}:{d+3}], v6 offset:{p*4096 + j*1024}")
    own = OUT if pre == "a" else ACC
    A("s_waitcnt lgkmcnt(8)")
    for r in range(0, 16, 2): A(f"v_pk_add_f32 v[{OUT+r}:{OUT+r+1}], v[{own+r}:{own+r+1}], v[{TMP+r}:{TMP+r+1}]")
    A("s_waitcnt lgkmcnt(0)")
    for r in range(0, 16, 2): A(f"v_pk_add_f32 v[{TMP+16+r}:{TMP+16+r+1}], v[{TMP+16+r}:{TMP+16+r+1}], v[{TMP+32+r}:{TMP+32+r+1}]")
    for r in range(0, 16, 2): A(f"v_pk_add_f32 v[{OUT+r}:{OUT+r+1}], v[{OUT+r}:{OUT+r+1}], v[{TMP+16+r}:{TMP+16+r+1}]")

BUD = int(os.environ.get("BUD", "6"))
DP4 = int(os.environ.get("DP4", "7"))
PSL = int(os.environ.get("PSL", "1"))
WSTEP = int(os.environ.get("WSTEP", "2"))
HPRE = int(os.environ.get("HPRE", "16"))
WD0 = int(os.environ.get("WD0", "138"))
NW0 = int(os.environ.get("NW0", "8"))
NWD1 = int(os.environ.get("NWD1", "32"))
def gen_kf(A):
    A.label("kf_kernel")
    prologue(A, 256, "kf_end"); ts(A, 2, 0)
    if "dbgts" in EXP:
        A("s_cmp_lg_u32 s3, 0"); A("s_cbranch_scc1 dbgx_f0"); dbg_stamp(A, 2, "f0"); A.label("dbgx_f0")
    A("s_and_b32 s74, s2, 7"); A("s_lshr_b32 s75, s2, 3")
    A("s_lshr_b32 s4, s75, 3"); A("s_lshl_b32 s68, s74, 2"); A("s_add_u32 s68, s68, s4"); A("s_and_b32 s69, s75, 7")
    A("s_lshr_b32 s4, s3, 1"); A("s_and_b32 s71, s3, 1"); A("s_lshl_b32 s70, s68, 1"); A("s_add_u32 s70, s70, s4")
    A("s_lshr_b32 s4, s74, 2"); A("s_lshl_b32 s72, s4, 3"); A("s_lshr_b32 s4, s75, 2"); A("s_add_u32 s72, s72, s4")
    A("s_and_b32 s4, s74, 3"); A("s_lshl_b32 s73, s4, 2"); A("s_and_b32 s4, s75, 3"); A("s_add_u32 s73, s73, s4")
    srd(A, 36, P_WS, WS_KVZ, SZ_KVZ); srd(A, 40, P_WS, WS_PQ, SZ_PQ); srd(A, 44, P_WS, WS_WO, SZ_WO)
    q = VMQ()
    A("v_lshlrev_b32 v2, 4, v0"); A("v_and_b32 v3, 31, v0"); A("v_min_u32 v4, 16, v3"); A("v_lshlrev_b32 v4, 6, v4")
    A("v_lshrrev_b32 v5, 5, v0"); A("v_lshl_add_u32 v4, v5, 4, v4")
    A("s_lshl_b32 s8, s3, 3"); A("s_mul_i32 s9, s8, 1088")
    A("s_lshl_b32 s10, s70, 5"); A("s_add_u32 s10, s10, s8"); A("s_lshl_b32 s10, s10, 10")
    A("s_xor_b32 s14, s70, 1"); A("s_lshl_b32 s14, s14, 5"); A("s_add_u32 s14, s14, s8"); A("s_lshl_b32 s14, s14, 10")
    A("s_lshl_b32 s11, s69, 1"); A("s_add_u32 s11, s11, s71"); A("s_xor_b32 s15, s11, 1")
    A("s_lshl_b32 s11, s11, 5"); A("s_add_u32 s11, s11, s8"); A("s_lshl_b32 s11, s11, 10")
    A("s_lshl_b32 s15, s15, 5"); A("s_add_u32 s15, s15, s8"); A("s_lshl_b32 s15, s15, 10")
    KR = 64
    KVL = "kvlds" in EXP
    def loads(h):
        if not KVL:
            A(f"s_add_u32 s12, s9, {h*1088}")
            A(f"buffer_load_dwordx4 v[{KR+8*h}:{KR+8*h+3}], v4, s[36:39], s12 offen"); q.add(("kv", h))
            A(f"buffer_load_dwordx4 v[{KR+8*h+4}:{KR+8*h+7}], v4, s[36:39], s12 offen offset:32"); q.add(("kv", h))
        base = [10, 14, 11, 15]
        dst = [h * 4, (8 + h) * 4, 64 + h * 4, 64 + (8 + h) * 4]
        for i in range(4):
            sr = 40 if i < 2 else 44
            if h == 4: A(f"s_add_u32 s{base[i]}, s{base[i]}, 4096")
            A(f"buffer_load_dwordx4 a[{dst[i]}:{dst[i]+3}], v2, s[{sr}:{sr+3}], s{base[i]} offen offset:{(h%4)*1024}"); q.add(("fr", h))
    if KVL:
        A("s_mul_i32 s13, s3, 9216")
        for i in range(9):
            if i % 4 == 0: A(f"s_add_u32 m0, s13, {i*1024}"); A(f"s_add_u32 s12, s9, {i*1024}")
            A(f"buffer_load_dwordx4 v2, s[36:39], s12 offen offset:{(i%4)*1024} lds"); q.add("kvd")
        A("v_add_u32 v4, s13, v4")
    for h in range(3 if not KVL else 4): loads(h)
    srd(A, 48, P_X, 0, 2048 * 1024); srd(A, 52, P_WS, WS_H, SZ_H); srd(A, 56, P_WS, WS_STATS, SZ_STATS)
    srd(A, 60, P_WS, WS_WGU, SZ_WGU); srd(A, 64, P_WS, WS_CNT, SZ_CNT)
    for r in range(64): A(f"v_accvgpr_write_b32 a{128+r}, 0")
    KA = 32; TT = [[128, 144], [160, 176]]; OF = [[8, 12], [16, 20]]; EPS = 24; XR = 200
    HPK = 240
    CSV = 208
    A(f"v_mov_b32 v{EPS}, {f32(1e-6)}")
    A("s_mul_i32 s78, s73, 7")
    A("s_lshr_b32 s79, s3, 1"); A("s_add_u32 s79, s79, s78"); A("s_lshl_b32 s79, s79, 15")
    A("s_and_b32 s81, s3, 1"); A("s_lshl_b32 s81, s81, 13"); A("s_add_u32 s79, s79, s81")
    A("s_lshl_b32 s80, s78, 15"); A("s_lshl_b32 s81, s3, 13"); A("s_add_u32 s80, s80, s81")
    def dma_groups(stage):
        slot = (stage % 4) * 32768; L = []
        for hlf in range(2):
            for i in range(4):
                g = []
                if i == 0:
                    g.append(f"s_add_u32 m0, s81, {slot + hlf*4096}")
                    g.append(f"s_add_u32 s82, s79, {stage*16384 + hlf*4096}" if stage < 2 else f"s_add_u32 s82, s80, {stage*32768 + hlf*4096}")
                g.append(f"buffer_load_dwordx4 v2, s[60:63], s82 offen offset:{i*1024} lds")
                L.append((g, ("dma", stage)))
        return L
    def emit(gt):
        for l in gt[0]: A(l)
        q.add(gt[1])
    ts(A, 2, 1)
    def cv(h): return [f"v_cvt_pk_bf16_f32 v{KA+4*h+j}, v{KR+8*h+2*j}, v{KR+8*h+2*j+1}" for j in range(4)]
    def tm(h, aa):
        T = TT[h % 2][aa]
        return f"v_mfma_f32_32x32x16_bf16 v[{T}:{T+15}], v[{KA+4*h}:{KA+4*h+3}], a[{(aa*8+h)*4}:{(aa*8+h)*4+3}], 0"
    def mm(h, aa, b):
        ac = 128 + 16 * (2 * aa + b); o = OF[h % 2][aa]
        return f"v_mfma_f32_32x32x16_bf16 a[{ac}:{ac+15}], a[{64+(b*8+h)*4}:{64+(b*8+h)*4+3}], v[{o}:{o+3}], a[{ac}:{ac+15}]"
    def valu(h):
        L = []
        T0, T1 = TT[h % 2]; o0, o1 = OF[h % 2]
        L += [f"v_add_f32 v25, v{T0+8}, v{EPS}", f"v_add_f32 v26, v{T1+8}, v{EPS}", "v_rcp_f32 v25, v25", "v_rcp_f32 v26, v26", "s_nop 0"]
        for r in range(8): L += [f"v_mul_f32 v{T0+r}, v{T0+r}, v25", f"v_mul_f32 v{T1+r}, v{T1+r}, v26"]
        for j in range(4): L += [f"v_cvt_pk_bf16_f32 v{o0+j}, v{T0+2*j}, v{T0+2*j+1}", f"v_cvt_pk_bf16_f32 v{o1+j}, v{T1+2*j}, v{T1+2*j+1}"]
        return L
    if KVL:
        A(f"s_waitcnt vmcnt({q.need('kvd')})")
        for h in range(8):
            A(f"ds_read_b128 v[{KR+8*h}:{KR+8*h+3}], v4 offset:{h*1088}")
            A(f"ds_read_b128 v[{KR+8*h+4}:{KR+8*h+7}], v4 offset:{h*1088+32}")
            if h == 3: A("s_waitcnt lgkmcnt(4)")
        A("s_waitcnt lgkmcnt(0)")
    A(f"s_waitcnt vmcnt({q.need(('fr', 0))})")
    for l in cv(0): A(l)
    ts(A, 2, 2)
    A("s_nop 1")
    A(tm(0, 0)); A(tm(0, 1))
    wpend = dma_groups(0) + dma_groups(1) + dma_groups(2)
    for h in range(9):
        if h + (4 if KVL else 3) < 8: loads(h + (4 if KVL else 3))
        if h == 5:
            A("s_lshl_b32 s6, s70, 15"); A("s_lshl_b32 s7, s69, 7"); A("s_add_u32 s6, s6, s7"); A("s_lshl_b32 s7, s71, 6"); A("s_add_u32 s6, s6, s7")
            A("v_lshlrev_b32 v6, 10, v3"); A("v_lshl_add_u32 v6, v5, 3, v6")
            for qd in range(4):
                A(f"buffer_load_dwordx2 v[{XR+2*qd}:{XR+2*qd+1}], v6, s[48:51], s6 offen offset:{qd*16}"); q.add("x")
            srd(A, 48, P_WS, WS_CSP, SZ_CSP)
            A("v_lshl_add_u32 v230, v1, 6, v0"); A("v_min_u32 v230, 223, v230"); A("v_lshlrev_b32 v230, 2, v230")
            A("s_mul_i32 s6, s78, 128")
            for kc in range(16):
                A(f"s_add_u32 s7, s6, {kc*3584*4}")
                A(f"buffer_load_dword v{CSV+kc}, v230, s[48:51], s7 offen"); q.add("cs")
            if "nokfpf" not in EXP:
                A("s_and_b32 s6, s74, 3"); A("s_mul_i32 s6, s6, 917504"); A("s_mul_i32 s7, s75, 28672"); A("s_add_u32 s6, s6, s7")
                A("s_mul_i32 s7, s3, 7168"); A("s_add_u32 s6, s6, s7")
                A("v_min_u32 v7, 55, v0"); A("v_lshlrev_b32 v7, 7, v7")
                A("buffer_load_dword v231, v7, s[60:63], s6 offen"); q.add("pf")
        ms = []
        if h + 1 < 8:
            A(f"s_waitcnt vmcnt({q.need(('fr', h + 1))})")
            for l in cv(h + 1): A(l)
            A("s_nop 1")
            ms += [tm(h + 1, 0), tm(h + 1, 1)]
        if h >= 1: ms += [mm(h - 1, 0, 0), mm(h - 1, 0, 1), mm(h - 1, 1, 0), mm(h - 1, 1, 1)]
        vl = valu(h) if h < 8 else []
        if h == 0:
            for m_ in ms: A(m_)
            A("s_nop 5")
            for l in vl: A(l)
            A("s_nop 1")
        else:
            per = (len(vl) + len(ms) - 1) // len(ms) if vl else 0
            for m_ in ms:
                A(m_)
                for _ in range(per):
                    if vl: A(vl.pop(0))
                if h >= 6 and wpend and "wearly" in EXP: emit(wpend.pop(0))
            for l in vl: A(l)
            A("s_nop 1")
    ts(A, 2, 3)
    A("s_nop 7"); A("s_nop 3")
    reduce4(A, "a", 128, 64, 80, 98304)
    ts(A, 2, 4)
    A(f"s_waitcnt vmcnt({q.need('x')})")
    for qd in range(4):
        for j in range(2):
            xr = XR + 2 * qd + j; t8 = 8 + 2 * ((2 * qd + j) % 4)
            A(f"v_lshlrev_b32 v{t8}, 16, v{xr}"); A(f"v_and_b32 v{t8+1}, 0xffff0000, v{xr}")
            A(f"v_pk_add_f32 v[{64+4*qd+2*j}:{64+4*qd+2*j+1}], v[{64+4*qd+2*j}:{64+4*qd+2*j+1}], v[{t8}:{t8+1}]")
    for r in range(8): A(f"v_cvt_pk_bf16_f32 v{HPK+r}, v{64+2*r}, v{64+2*r+1}")
    A("s_lshl_b32 s8, s70, 5"); A("s_lshl_b32 s9, s69, 2"); A("s_add_u32 s8, s8, s9"); A("s_lshl_b32 s9, s71, 1"); A("s_add_u32 s8, s8, s9"); A("s_lshl_b32 s8, s8, 10")
    A(f"buffer_store_dwordx4 v[{HPK}:{HPK+3}], v2, s[52:55], s8 offen sc1"); q.add("st")
    A(f"buffer_store_dwordx4 v[{HPK+4}:{HPK+7}], v2, s[52:55], s8 offen offset:1024 sc1"); q.add("st")
    for r in range(16, 20): A(f"v_mov_b32 v{r}, 0")
    for r in range(8):
        A(f"v_dot2c_f32_bf16 v{16+(r&1)}, {ONES}, v{HPK+r}"); A(f"v_dot2c_f32_bf16 v{18+(r&1)}, v{HPK+r}, v{HPK+r}")
    A("s_nop 2")
    A("v_add_f32 v10, v16, v17"); A("v_add_f32 v11, v18, v19")
    halves_sum(A, 10, 12); halves_sum(A, 11, 12)
    A("s_lshl_b32 s8, s70, 12"); A("s_lshl_b32 s9, s69, 9"); A("s_add_u32 s8, s8, s9"); A("s_lshl_b32 s9, s71, 8"); A("s_add_u32 s8, s8, s9")
    A("v_lshlrev_b32 v6, 3, v3")
    A("buffer_store_dwordx2 v[10:11], v6, s[56:59], s8 offen sc1"); q.add("st")
    CSL = 147456
    A(f"s_waitcnt vmcnt({q.need('cs')})")
    for st_ in (8, 4, 2, 1):
        for kc in range(st_): A(f"v_add_f32 v{CSV+kc}, v{CSV+kc}, v{CSV+kc+st_}")
    A(f"v_add_u32 v7, {CSL}, v230"); A(f"ds_write_b32 v7, v{CSV}")
    for gt in wpend[:NW0]: emit(gt)
    A(f"s_waitcnt vmcnt({q.need('st')}) lgkmcnt(0)")
    A("s_barrier")
    A("s_lshr_b32 s83, s68, 1"); A("s_lshl_b32 s83, s83, 7")
    signal(A, 83, "kf_sig1")
    ts(A, 2, 5)
    for gt in wpend[NW0:]: emit(gt)
    srd(A, 40, P_WS, WS_H, SZ_H); srd(A, 44, P_WS, WS_STATS, SZ_STATS); srd(A, 52, P_WS, WS_ACT, SZ_ACT); srd(A, 56, P_WS, WS_WD, SZ_WD)
    A("s_lshl_b32 s6, s72, 2"); A("s_add_u32 s6, s6, s3")
    A("s_lshl_b32 s11, s6, 15")
    A("v_lshlrev_b32 v4, 3, v3"); A("v_lshl_add_u32 v4, v5, 11, v4")
    A(f"v_lshlrev_b32 v11, 4, v5"); A(f"v_add_u32 v11, {CSL}, v11")
    A("v_mov_b32 v12, v2"); A("v_add_u32 v13, 0x10000, v2")
    A("s_mul_i32 s14, s6, 112"); A("s_add_u32 s14, s14, s78"); A("s_lshl_b32 s14, s14, 10")
    A("s_mul_i32 s8, s3, 28")
    A("s_lshl_b32 s84, s69, 1"); A("s_add_u32 s84, s84, s71"); A("s_xor_b32 s85, s84, 1")
    A("s_mul_i32 s84, s84, 112"); A("s_add_u32 s84, s84, s8"); A("s_lshl_b32 s84, s84, 10")
    A("s_mul_i32 s85, s85, 112"); A("s_add_u32 s85, s85, s8"); A("s_lshl_b32 s85, s85, 10")
    for gt in dma_groups(3): emit(gt)
    A("s_lshl_b32 s83, s72, 7")
    wait_cnt(A, 83, 16, "kf_w1")
    ts(A, 3, 0)
    if "dbgts" in EXP:
        A("s_cmp_lg_u32 s3, 0"); A("s_cbranch_scc1 dbgx_f2"); dbg_stamp(A, 4, "f2"); A.label("dbgx_f2")
    def h_groups(c):
        L = []
        for t in range(8 * c, 8 * c + 8):
            g = []
            if t % 4 == 0: g.append(f"s_add_u32 s13, s11, {t*1024}")
            g.append(f"buffer_load_dwordx4 a[{4*t}:{4*t+3}], v2, s[40:43], s13 offen offset:{(t%4)*1024}{LD}")
            L.append((g, ("h", t)))
        return L
    SM = 212
    hall = h_groups(0) + h_groups(1) + h_groups(2) + h_groups(3)
    for gt in hall[:HPRE]: emit(gt)
    vpend = hall[HPRE:]
    smalls = [([f"s_lshl_b32 s15, s6, 12", f"buffer_load_dwordx2 v[{SM}:{SM+1}], v4, s[44:47], s15 offen{LD}"], "small")]
    smalls += [([f"buffer_load_dwordx2 v[{SM+2*j}:{SM+2*j+1}], v4, s[44:47], s15 offen offset:{j*256}{LD}"], "small") for j in range(1, 8)]
    vpend += smalls
    NM, C1, C2 = 8, 9, 10
    ACCS = [64 + 16 * i for i in range(7)]
    NAF = 12
    AF = [16 + 4 * i for i in range(NAF)]
    CSR = 176; ET = 192
    st_l = []
    for stp in (8, 4, 2):
        for e in range(stp): st_l.append(f"v_add_f32 v{SM+e}, v{SM+e}, v{SM+e+stp}")
    st_l += [
             f"v_mov_b32 v{SM+4}, v{SM}", f"v_mov_b32 v{SM+5}, v{SM+1}", "s_nop 1",
             f"v_permlane32_swap_b32 v{SM}, v{SM+4}", f"v_permlane32_swap_b32 v{SM+1}, v{SM+5}", "s_nop 1",
             f"v_add_f32 v{SM}, v{SM}, v{SM+4}", f"v_add_f32 v{SM+1}, v{SM+1}, v{SM+5}",
             f"v_mul_f32 v{SM}, {f32(1/512)}, v{SM}", f"v_mul_f32 v{SM+1}, {f32(1/512)}, v{SM+1}",
             f"v_fma_f32 v{SM+1}, -v{SM}, v{SM}, v{SM+1}", f"v_max_f32 v{SM+1}, 0, v{SM+1}", f"v_add_f32 v{C2}, {f32(1e-5)}, v{SM+1}",
             f"v_rsq_f32 v{SM+1}, v{C2}", f"v_sub_f32 v{NM}, 0, v{SM}",
             f"v_mul_f32 v{C1}, {f32(-LOG2E)}, v{SM+1}"]
    seq = []
    for c in range(2):
        for i in range(16):
            for b in range(2): seq.append((b, 16 * c + i, c, b * 16384 + i * 1024))
    for c in range(2, 7):
        for t in range(32): seq.append((c, t, c, t * 1024))
    def aread(n):
        tile, t, stage, off = seq[n]; sl = stage % 4
        A(f"ds_read_b128 v[{AF[n%NAF]}:{AF[n%NAF]+3}], v{13 if sl >= 2 else 12} offset:{(sl%2)*32768 + off}")
    def csreads(tile): return [f"ds_read_b128 v[{CSR+4*qd}:{CSR+4*qd+3}], v11 offset:{tile*128 + qd*32}" for qd in range(4)]
    def epi(tile, n0):
        L = []; ac = ACCS[tile]; P = ET + 16; R8 = range(8)
        M = []
        M += [f"v_fmac_f32 v{ac+r}, v{NM}, v{CSR+r}" for r in range(16)]
        if tile < 6: M += csreads(tile + 1)
        M += [f"v_mul_f32 v{ET+r}, v{C1}, v{ac+r}" for r in R8]
        M += [x for r in R8 for x in (f"v_exp_f32 v{ET+r}, v{ET+r}", f"v_mul_f32 v{ET+8+r}, v{ac+r}, v{ac+8+r}")]
        M += [f"v_fma_f32 v{ET+r}, v{ET+r}, v{C2}, v{C2}" for r in R8]
        M += [f"v_rcp_f32 v{ET+r}, v{ET+r}" for r in R8]
        M += [f"v_mul_f32 v{ET+8+r}, v{ET+8+r}, v{ET+r}" for r in R8]
        M += [f"v_cvt_pk_bf16_f32 v{P+j}, v{ET+8+2*j}, v{ET+8+2*j+1}" for j in range(4)]
        M += [f"s_add_u32 s15, s14, {tile*1024}", f"buffer_store_dwordx4 v[{P}:{P+3}], v2, s[52:55], s15 offen sc1"]
        return [(n0, m) for m in M]
    def wd_reg(t, b):
        f = 2 * t + b
        return 128 + 4 * f if f < 32 else 4 * (f - 32)
    def wd_load(t, b):
        g = []
        if t % 4 == 0 and t > 0 and b == 0:
            g.append("s_add_u32 s84, s84, 4096"); g.append("s_add_u32 s85, s85, 4096")
        r = wd_reg(t, b)
        g.append(f"buffer_load_dwordx4 a[{r}:{r+3}], v2, s[56:59], s{84+b} offen offset:{(t%4)*1024}")
        return (g, ("wd", t))
    wd_all = [wd_load(t, b) for t in range(28) for b in range(2)]
    cost = lambda l: 2 if (l.startswith("v_exp") or l.startswith("v_rcp") or l.startswith("v_rsq")) else 1
    A(f"s_waitcnt vmcnt({q.need(('h', 0))})")
    ts(A, 3, 2)
    PF = 8
    A("s_barrier")
    for n in range(PF): aread(n)
    N = len(seq)
    pend = []; started = set(); hold = -1
    wd_i = 0
    hw = set()
    done_at = {0: 62, 1: 63, 2: 95, 3: 127, 4: 159, 5: 191}
    for n in range(N):
        tile, t, stage, off = seq[n]
        budget = BUD
        if n + PF < N and seq[n + PF][2] != seq[n + PF - 1][2]:
            ns = seq[n + PF][2]
            if ns >= 2:
                tags = [tg for tg in [("dma", ns)] if ns >= 3]
                if tags:
                    while any(gt[1] in tags for gt in vpend): emit(vpend.pop(0))
                    A(f"s_waitcnt vmcnt({q.need(*tags)})")
                if "nobar" not in EXP: A("s_barrier")
                budget -= 2
                rs = ns + 2
                if 4 <= rs < 7: vpend += dma_groups(rs)
        if n < 64 and t not in hw and t % 2 == 0:
            hw.add(t); hw.add(t + 1)
            while any(gt[1] in (("h", t), ("h", t + 1)) for gt in vpend): emit(vpend.pop(0))
            A(f"s_waitcnt vmcnt({q.need(('h', t), ('h', t + 1))})"); budget -= 1
        if n == 50: pend += [(n, l) for l in csreads(0)]
        if n == 66:
            while any(gt[1] == "small" for gt in vpend): emit(vpend.pop(0))
            A(f"s_waitcnt vmcnt({q.need('small')})"); budget -= 1
            pend = [(n, l) for l in st_l] + pend
        if n + PF < N: aread(n + PF); budget -= 1
        if n % WSTEP == 0:
            A(f"s_waitcnt lgkmcnt({max(0, min(PF, N - 1 - n) - (WSTEP - 1))})"); budget -= 1
        ac = ACCS[tile]
        c_in = f"v[{ac}:{ac+15}]" if tile in started else "0"
        started.add(tile)
        A(f"v_mfma_f32_32x32x16_bf16 v[{ac}:{ac+15}], v[{AF[n%NAF]}:{AF[n%NAF]+3}], a[{4*t}:{4*t+3}], {c_in}")
        if n == 63: ts(A, 3, 3)
        if vpend and n % 2 == 1:
            gt = vpend.pop(0); emit(gt); budget -= len(gt[0])
        elif not vpend and n >= WD0 and wd_i < min(NWD1, 32) and n % 2 == 1 and n <= 202:
            gt = wd_all[wd_i]; wd_i += 1; emit(gt); budget -= len(gt[0])
        for tl, dn in done_at.items():
            if n == max(dn + 5, 68): pend += epi(tl, n)
        if "nofill" in EXP and n > 70: pend = []
        while pend and budget >= cost(pend[0][1]) and n >= hold:
            e, l = pend.pop(0)
            c_ = cost(l)
            if "fillmov" in EXP and n > 70 and l.startswith("v_"): l = "v_mov_b32 v249, v248"
            if "fillnotrans" in EXP and n > 70 and (l.startswith("v_exp") or l.startswith("v_rcp")): l = "v_mov_b32 v249, v248"
            if "fillnolds" in EXP and n > 70 and l.startswith("ds_read"): l = "s_nop 0"
            A(l); budget -= c_
            if l.startswith("buffer_store"): q.add("st")
    ts(A, 3, 4)
    print('leftover fillers', len(pend))
    A("s_nop 7"); A("s_nop 3")
    A("s_waitcnt lgkmcnt(0)")
    for e, l in pend + epi(6, 0):
        if e == "sync": A("s_waitcnt lgkmcnt(0)")
        else:
            A(l)
            if l.startswith("buffer_store"): q.add("st")
    for gt in wd_all[wd_i:wd_i+4]: emit(gt)
    wd_i += 4
    A(f"s_waitcnt vmcnt({q.need('st')})")
    A("s_barrier")
    A("s_lshl_b32 s83, s72, 7"); A("s_add_u32 s83, s83, 2048")
    signal(A, 83, "kf_sig2")
    ts(A, 3, 7)
    for gt in wd_all[wd_i:]: emit(gt)
    srd(A, 36, P_WS, WS_ACT, SZ_ACT); srd(A, 48, P_OUT, 0, 2048 * 1024)
    A("s_mul_i32 s8, s3, 28")
    A("s_mul_i32 s9, s70, 112"); A("s_add_u32 s9, s9, s8"); A("s_lshl_b32 s9, s9, 10")
    A("s_xor_b32 s11, s70, 1"); A("s_mul_i32 s11, s11, 112"); A("s_add_u32 s11, s11, s8"); A("s_lshl_b32 s11, s11, 10")
    A("s_lshr_b32 s83, s68, 1"); A("s_lshl_b32 s83, s83, 7"); A("s_add_u32 s83, s83, 2048")
    wait_cnt(A, 83, 16, "kf_w2")
    ts(A, 4, 0)
    if "dbgts" in EXP:
        A("s_cmp_lg_u32 s3, 0"); A("s_cbranch_scc1 dbgx_f4"); dbg_stamp(A, 6, "f4"); A.label("dbgx_f4")
    D = DP4
    RB = 16
    def aloads(t):
        b = RB + (t % D) * 8
        for i in range(2):
            sg = [9, 11][i]
            if t % 4 == 0 and t > 0: A(f"s_add_u32 s{sg}, s{sg}, 4096")
            A(f"buffer_load_dwordx4 v[{b+4*i}:{b+4*i+3}], v2, s[36:39], s{sg} offen offset:{(t%4)*1024}{LD}"); q.add(("g", t))
    for t in range(D): aloads(t)
    ACC = 128
    ts(A, 4, 1)
    for t in range(28):
        A(f"s_waitcnt vmcnt({q.need(('g', t))})")
        if t == 1: ts(A, 4, 2)
        b = RB + (t % D) * 8
        for aa in range(2):
            for bb in range(2):
                ac = ACC + 16 * (2 * aa + bb); wr = wd_reg(t, bb)
                cin = "0" if t == 0 else f"v[{ac}:{ac+15}]"
                A(f"v_mfma_f32_32x32x16_bf16 v[{ac}:{ac+15}], a[{wr}:{wr+3}], v[{b+4*aa}:{b+4*aa+3}], {cin}")
        if t + D < 28: aloads(t + D)
    ts(A, 4, 3)
    A("s_nop 7"); A("s_nop 3")
    reduce4(A, "v", ACC, 64, 80, 0)
    ts(A, 4, 4)
    for r in range(8):
        t8 = 8 + 2 * (r % 4)
        A(f"v_lshlrev_b32 v{t8}, 16, v{HPK+r}"); A(f"v_and_b32 v{t8+1}, 0xffff0000, v{HPK+r}")
        A(f"v_pk_add_f32 v[{64+2*r}:{64+2*r+1}], v[{64+2*r}:{64+2*r+1}], v[{t8}:{t8+1}]")
    OP = 96
    for r in range(8): A(f"v_cvt_pk_bf16_f32 v{OP+r}, v{64+2*r}, v{64+2*r+1}")
    A("s_nop 1")
    for p in range(2):
        A(f"v_permlane32_swap_b32 v{OP+4*p}, v{OP+4*p+2}"); A(f"v_permlane32_swap_b32 v{OP+4*p+1}, v{OP+4*p+3}")
    A("v_lshlrev_b32 v6, 10, v3"); A("v_lshl_add_u32 v6, v5, 4, v6")
    A("s_lshl_b32 s8, s70, 15"); A("s_lshl_b32 s9, s69, 7"); A("s_add_u32 s8, s8, s9"); A("s_lshl_b32 s9, s71, 6"); A("s_add_u32 s8, s8, s9")
    for p in range(2): A(f"buffer_store_dwordx4 v[{OP+4*p}:{OP+4*p+3}], v6, s[48:51], s8 offen offset:{p*32}" + (" sc1" if "outsc1" in EXP else (" nt" if "outnt" in EXP else "")))
    ts(A, 4, 7, True)
    if "dbgts" in EXP:
        A("s_cmp_lg_u32 s3, 0"); A("s_cbranch_scc1 kf_end"); A("s_cmp_lg_u32 s2, 0"); A("s_cbranch_scc1 kf_end")
        A("s_waitcnt vmcnt(0)")
        dbg_stamp(A, 7, "f5")
        A("s_waitcnt vmcnt(0)")
        srd(A, 92, P_WS, 0x79000, 64); srd(A, 84, P_DBG, 0, 256)
        A("v_lshlrev_b32 v253, 2, v0"); A("v_mov_b32 v252, 0")
        A("buffer_load_dword v254, v253, s[92:95], 0 offen sc1"); A("buffer_load_dword v251, v252, s[92:95], 0 offen sc1")
        A("s_waitcnt vmcnt(0)")
        A("v_sub_u32 v254, v254, v251")
        A("buffer_store_dword v254, v253, s[84:87], 0 offen")
    A.label("kf_end")
    A("s_endpgm")

def gen_k1z(A):
    G3.ZERO_CNT = (WS_CNT, SZ_CNT)
    G3.gen_k1(A)

def build(path):
    kernels = [("k1_kernel", gen_k1z, (256, 163840, 512), 256, 256),
               ("kf_kernel", gen_kf, (256, 163840, 256), 512, 256)]
    hdr = open(f"cdna_kernels/{KNAME}.s.ref").read().split("\n")
    out = [l for l in hdr if l.startswith(";") and "@launch" not in l and "Override launch" not in l and "grid=ceil" not in l]
    for (n, g, (wg, lds, thr), vg, ac) in kernels:
        out.append(f"; @launch kernel={n} grid=({wg},1,1) block=({thr},1,1) lds={lds}")
    out.append('.amdgcn_target "amdgcn-amd-amdhsa--gfx950"'); out.append(".text")
    nerr = 0
    for (n, g, _, vg, ac) in kernels:
        A = Asm(); g(A)
        A.lines = [l for l in A.lines if l is not None]
        for variant in (A.lines, strip_opt(A.lines)):
            errs = check(variant, n)
            for e in errs[:30]: print("CHECK:", e)
            nerr += len(errs)
        out.append(f".globl {n}\n.p2align 8\n.type {n},@function"); out.append(A.text())
    out.append("code_end:\n  s_endpgm")
    out.append('.section .rodata,"a"')
    for (n, g, _, vg, ac) in kernels: out.append(kd(n, vg, ac))
    open(path, "w").write("\n".join(out) + "\n")
    print("written", path, "check errors:", nerr)
    import subprocess
    r = subprocess.run(["clang", "-x", "assembler", "-target", "amdgcn-amd-amdhsa", "-mcpu=gfx950", "-c", path, "-o", "x.o"], capture_output=True, text=True)
    if r.returncode: print(r.stderr[:2000])

if __name__ == "__main__":
    if "--ts" in sys.argv: G.TS = True; sys.argv.remove("--ts")
    build(sys.argv[1])
```
